```python
import torch

def _softmax(x, axis=-1):
    return torch.softmax(x, dim=axis)

def _gelu(x):
    return torch.nn.functional.gelu(x, approximate='tanh')

def _silu(x):
    return torch.nn.functional.silu(x)

def _sigmoid(x):
    return torch.sigmoid(x)

def _layernorm(x, axis=-1, eps=1e-05):
    m = x.mean(dim=axis, keepdim=True)
    v = x.var(dim=axis, keepdim=True, unbiased=False)
    return (x - m) / torch.sqrt(v + eps)

def _scatter_add(tgt, idx, src, axis=0):
    return tgt.clone().index_add_(axis, idx, src)

def _segment_sum(src, seg, n):
    out = torch.zeros((n,) + src.shape[1:], dtype=src.dtype)
    return out.index_add_(0, seg, src)

def _pad(x, pw):
    flat = tuple((v for pair in reversed(pw) for v in pair))
    return torch.nn.functional.pad(x, flat)
kernel_name = 'parallel_sum__memory_aug_recurrent_mem_tr__geglu_ffn__prompt'

def setup_inputs():

    _w = lambda a: (lambda t: t.to(torch.bfloat16) if t.is_floating_point() else t)(torch.as_tensor(a))

    def _A_setup():
        B, S, Dm = (1, 2048, 576)
        H, Dh = (32, 128)
        M, seg = (8, 32)
        seg = min(seg, S)
        S = S // seg * seg
        return {'x': _w((lambda *s: torch.randn(*s, dtype=torch.bfloat16) * 0.05)(B, S, Dm)), 'mem0': _w((lambda *s: torch.randn(*s, dtype=torch.bfloat16) * 1.6)(B, M, Dm)), 'Wq': _w((lambda *s: torch.randn(*s, dtype=torch.bfloat16) * 0.8)(Dm, H, Dh) * Dm ** (-0.5)), 'Wk': _w((lambda *s: torch.randn(*s, dtype=torch.bfloat16) * 0.8)(Dm, H, Dh) * Dm ** (-0.5)), 'Wv': _w((lambda *s: torch.randn(*s, dtype=torch.bfloat16) * 1.6)(Dm, H, Dh) * Dm ** (-0.5)), 'Wo': _w((lambda *s: torch.randn(*s, dtype=torch.bfloat16) * 1.6)(H, Dh, Dm) * (H * Dh) ** (-0.5)), 'seg_len': seg}
    _A_in = _A_setup()

    def _B_setup():
        B, S, D, F = (1, 2048, 576, 4608)
        return {'x': _w((lambda *s: torch.randn(*s, dtype=torch.bfloat16) * 0.05)(B, S, D)), 'w_gate': _w((lambda *s: torch.randn(*s, dtype=torch.bfloat16) * 0.05)(D, F)), 'w_up': _w((lambda *s: torch.randn(*s, dtype=torch.bfloat16) * 0.05)(D, F)), 'w_down': _w((lambda *s: torch.randn(*s, dtype=torch.bfloat16) * 0.05)(F, D))}
    _B_in = _B_setup()
    return {'A_x': _A_in['x'], 'A_mem0': _A_in['mem0'], 'A_Wq': _A_in['Wq'], 'A_Wk': _A_in['Wk'], 'A_Wv': _A_in['Wv'], 'A_Wo': _A_in['Wo'], 'A_seg_len': _A_in['seg_len'], 'B_x': _B_in['x'], 'B_w_gate': _B_in['w_gate'], 'B_w_up': _B_in['w_up'], 'B_w_down': _B_in['w_down']}

def reference(A_x, A_mem0, A_Wq, A_Wk, A_Wv, A_Wo, A_seg_len, B_x, B_w_gate, B_w_up, B_w_down):

    def _A_ref(x, mem0, Wq, Wk, Wv, Wo, seg_len):
        B, S, Dm = x.shape
        H, Dh = (Wq.shape[1], Wq.shape[2])
        M = mem0.shape[1]
        scale = Dh ** (-0.5)
        n_seg = S // seg_len
        L = M + seg_len
        idx = torch.arange(L)
        mask = (idx[:, None] < M) | (idx[:, None] >= idx[None, :])
        mem = mem0
        outs = []
        for s in range(n_seg):
            xs = x[:, s * seg_len:(s + 1) * seg_len, :].clone()
            h = torch.concatenate([mem, xs], axis=1)
            q = torch.einsum('btd,dhe->bhte', h, Wq)
            k = torch.einsum('btd,dhe->bhte', h, Wk)
            v = torch.einsum('btd,dhe->bhte', h, Wv)
            scores = torch.einsum('bhqe,bhke->bhqk', q, k) * scale
            scores = torch.where(mask[None, None], scores, -1000000000.0)
            p = _softmax(scores, axis=-1)
            o = torch.einsum('bhqk,bhke->bhqe', p, v)
            o = torch.einsum('bhte,hed->btd', o, Wo)
            mem = o[:, :M, :].clone()
            outs.append(o[:, M:, :])
        return torch.concatenate(outs, axis=1)

    def _B_ref(x, w_gate, w_up, w_down):
        return _gelu(x @ w_gate) * (x @ w_up) @ w_down
    x = A_x
    xn = _layernorm(x, axis=-1)
    return x + _A_ref(xn, A_mem0, A_Wq, A_Wk, A_Wv, A_Wo, A_seg_len) + _B_ref(xn, B_w_gate, B_w_up, B_w_down)
```

```python
from asmlib import *
from layout import *
from gemm1 import signal, wait_flag, f32bits, DBG_Q, DBG_KV, DBG_AO, DBG_AOINIT, G_T5
import math

A_HG = 12; A_WV = 13; A_CH = 14; A_SEG = 15
A_T0 = 24; A_T1 = 25; A_T2 = 26; A_T3 = 27; A_T4 = 28
A_QO = 16; A_KM = 17; A_AP = 18; A_OB = 19; A_CNT = 20; A_ABORT = 21; A_SC = 22
A_MK = 32
A_NINF = 40
V_LN = 1; V_L16 = 2; V_L8 = 3; V_XW = 4; V_TK = 5; V_AP = 6; V_OL = 7
def WF(t, hh, kk):
    n = ((t * 4 + hh) * 4 + kk) * 4
    return (n, 'a') if n < 256 else (192 + n - 256, 'v')
QF = 8; KF = 40; VF = 72; KM = 104; VM = 120; KR = 128
S = 136
PX = 156; PM = 164
TM = 172
ACC = 8
L_KC = 0
L_O = 16384

def ao(a, P, cfg):
    a('; ---- AO ----')
    SRD = 's[4:7]'
    a(f'v_and_b32 v{V_LN}, 63, v0\nv_lshlrev_b32 v{V_L16}, 4, v{V_LN}\nv_lshlrev_b32 v{V_L8}, 3, v{V_LN}')
    a('v_lshlrev_b32 v8, 4, v0')
    for r in range(4): a(f'v_mov_b32 v{12+r}, -1')
    a(f's_lshl_b32 s{A_T0}, s{A_T4}, 18\ns_add_u32 s{A_T0}, s{A_T0}, {WS_KM}\ns_mov_b32 s{A_T1}, 0')
    a.label('AOF')
    a(f'buffer_store_dwordx4 v[12:15], v8, {SRD}, s{A_T0} offen sc1')
    a(f's_add_u32 s{A_T0}, s{A_T0}, 4096\ns_add_u32 s{A_T1}, s{A_T1}, 1\ns_cmp_lt_u32 s{A_T1}, 64\ns_cbranch_scc1 AOF')
    a('s_waitcnt vmcnt(0)\ns_barrier')
    signal(a, P, DBG_AOINIT, None, vtmp=(8, 9))
    a(f's_mov_b32 s8, s{P["Wo"]}\ns_mov_b32 s9, s{P["Wo"]+1}\ns_mov_b32 s10, 4718592\ns_mov_b32 s11, 0x20000')
    a(f'v_lshrrev_b32 v8, 1, v{V_LN}\nv_and_b32 v9, 1, v{V_LN}\nv_lshlrev_b32 v9, 4, v9\nv_mul_u32_u24 v10, 1152, v8\nv_add_u32 v10, v10, v9')
    a(f'v_lshrrev_b32 v8, 4, v{V_LN}\nv_bfe_u32 v9, v{V_LN}, 2, 2\nv_lshl_add_u32 v8, v8, 2, v9\nv_lshlrev_b32 v8, 5, v8\nv_and_b32 v9, 3, v{V_LN}\nv_lshl_add_u32 v11, v9, 3, v8')
    a(f's_mul_i32 s{A_T0}, s{A_WV}, 40960\nv_add_u32 v11, s{A_T0}, v11')
    a(f's_mul_i32 s{A_T1}, s{A_HG}, {4*147456}\ns_mul_i32 s{A_T2}, s{A_CH}, 576\ns_add_u32 s{A_T1}, s{A_T1}, s{A_T2}\ns_lshl_b32 s{A_T2}, s{A_WV}, 5\ns_add_u32 s{A_T1}, s{A_T1}, s{A_T2}')
    a(f's_cmp_lt_u32 s{A_WV}, 2\ns_cselect_b32 s{A_T3}, {4*128}, {3*128}' if False else f's_mov_b32 s{A_T3}, {3*128}\ns_cmp_lt_u32 s{A_WV}, 2\ns_cselect_b32 s{A_T3}, {4*128}, s{A_T3}')
    strips = [(t, hh) for t in range(5) for hh in range(4)]
    D = 9
    def issue(idx):
        t, hh = strips[idx]; b = idx % 10
        for n in range(4):
            a(f's_add_u32 m0, s{A_T0}, {b*4096 + n*1024}')
            if t < 4: a(f's_add_u32 s{A_T2}, s{A_T1}, {hh*147456 + 32*n*1152 + t*128}')
            else: a(f's_add_u32 s{A_T2}, s{A_T1}, {hh*147456 + 32*n*1152}\ns_add_u32 s{A_T2}, s{A_T2}, s{A_T3}')
            a(f'buffer_load_dwordx4 v10, s[8:11], s{A_T2} offen lds')
    def process(idx):
        t, hh = strips[idx]; b = idx % 10
        a(f's_waitcnt vmcnt({4*min(D, len(strips)-1-idx)})')
        for kk in range(4):
            r, ty = WF(t, hh, kk)
            for hf in range(2):
                a(f'ds_read_b64_tr_b16 {vr(r+2*hf,2,ty)}, v11 offset:{b*4096 + (32*kk + 16*hf)*32}')
        a('s_waitcnt lgkmcnt(0)')
    for idx in range(len(strips) + D):
        if idx < len(strips): issue(idx)
        if idx >= D: process(idx - D)
    a('s_barrier')
    c = math.log2(math.e) / math.sqrt(128.0)
    a(f's_mov_b32 s{A_SC}, 0x{f32bits(c):08x}\ns_mov_b32 s{A_SC+1}, s{A_SC}\ns_mov_b32 s{A_NINF}, 0xff800000\ns_mov_b32 s{A_ABORT}, 0')
    a(f'v_lshrrev_b32 v8, 4, v{V_LN}\nv_lshlrev_b32 v8, 2, v8\nv_and_b32 v9, 15, v{V_LN}')
    for r in range(4):
        a(f'v_add_u32 v10, {r}, v8\nv_cmp_le_u32 s[{A_MK+2*r}:{A_MK+2*r+1}], v10, v9')
    a(f's_lshl_b32 s{A_T0}, s{A_WV}, 12')
    a(f'v_lshlrev_b32 v{V_XW}, 5, v9\nv_lshrrev_b32 v10, 4, v{V_LN}\nv_lshl_add_u32 v{V_XW}, v10, 3, v{V_XW}\nv_add_u32 v{V_XW}, s{A_T0}, v{V_XW}')
    a(f'v_bfe_u32 v8, v{V_LN}, 2, 2\nv_lshl_add_u32 v8, v10, 3, v8\nv_lshlrev_b32 v8, 5, v8\nv_and_b32 v11, 3, v{V_LN}\nv_lshl_add_u32 v{V_TK}, v11, 3, v8\nv_add_u32 v{V_TK}, s{A_T0}, v{V_TK}')
    a(f'v_mul_u32_u24 v{V_AP}, 2304, v9\nv_lshl_add_u32 v{V_AP}, v10, 4, v{V_AP}')
    a(f's_lshl_b32 s{A_T0}, s{A_HG}, 2\ns_add_u32 s{A_T0}, s{A_T0}, s{A_WV}')
    a(f's_lshl_b32 s{A_T1}, s{A_SEG}, 5\ns_add_u32 s{A_T1}, s{A_T1}, s{A_T0}')
    a(f's_lshl_b32 s{A_QO}, s{A_T1}, 13\ns_lshl_b32 s{A_KM}, s{A_T1}, 12\ns_add_u32 s{A_KM}, s{A_KM}, {WS_KM}')
    a(f's_lshl_b32 s{A_T1}, s{A_SEG}, 3\ns_add_u32 s{A_T1}, s{A_T1}, s{A_HG}\ns_mul_i32 s{A_AP}, s{A_T1}, 73728\ns_mul_i32 s{A_T1}, s{A_CH}, 1152\ns_add_u32 s{A_AP}, s{A_AP}, s{A_T1}\ns_lshl_b32 s{A_T1}, s{A_WV}, 6\ns_add_u32 s{A_AP}, s{A_AP}, s{A_T1}\ns_add_u32 s{A_AP}, s{A_AP}, {WS_AP}')
    a(f's_mov_b32 s{A_OB}, {L_O}')
    for rb in range(8):
        wait_flag(a, P, DBG_KV + 4*rb, None, 24, vtmp=(8, 9), sleep=8)
        wait_flag(a, P, DBG_Q + 4*rb, None, 24, vtmp=(8, 9), sleep=8)
    def mf(d, x, y, init): a(f'v_mfma_f32_16x16x32_bf16 {vr(d,4)}, {x}, {y}, {"0" if init else vr(d,4)}')
    a.label('AOL')
    for (base, reg) in ((WS_QF, QF), (WS_KF, KF), (WS_VF, VF)):
        for hf in range(2):
            a(f's_add_u32 s{A_T0}, s{A_QO}, {base + hf*4096}')
            for q in range(4): a(f'buffer_load_dwordx4 {vr(reg+16*hf+4*q,4)}, v{V_L16}, {SRD}, s{A_T0} offen offset:{q*1024} sc1')
    a('s_waitcnt vmcnt(8)')
    S00 = S; S0M = S+4; S10 = S+8; S11 = S+12; S1M = S+16
    for ks in range(4):
        mf(S00, vr(KF+4*ks,4), vr(QF+4*ks,4), ks == 0)
        mf(S10, vr(KF+4*ks,4), vr(QF+16+4*ks,4), ks == 0)
        mf(S11, vr(KF+16+4*ks,4), vr(QF+16+4*ks,4), ks == 0)
    a(f's_mov_b32 s{A_CNT}, 0')
    a.label('AOP')
    for pw in range(4):
        a(f'buffer_load_dwordx2 {vr(KR+2*pw,2)}, v{V_L8}, {SRD}, s{A_KM} offen offset:{pw*1024} sc1')
        a(f'buffer_load_dwordx2 {vr(VM+2*pw,2)}, v{V_L8}, {SRD}, s{A_KM} offen offset:{pw*1024+512} sc1')
    a(f's_add_u32 s{A_CNT}, s{A_CNT}, 1\ns_cmp_gt_u32 s{A_CNT}, 0x40000\ns_cselect_b32 s{A_ABORT}, 1, s{A_ABORT}')
    a('s_waitcnt vmcnt(0)')
    a(f'v_max3_u32 v{TM}, v{VM}, v{VM+1}, v{VM+2}')
    for r in range(VM+3, VM+15, 2): a(f'v_max3_u32 v{TM}, v{TM}, v{r}, v{r+1}')
    a(f'v_max_u32 v{TM}, v{TM}, v{VM+15}')
    a(f'v_cmp_eq_u32 vcc, -1, v{TM}')
    a(f's_cmp_lg_u32 s{A_ABORT}, 0\ns_cbranch_scc1 AOG')
    a('s_cbranch_vccz AOG')
    a(f's_sleep {cfg.get("ASLEEP", 4)}\ns_branch AOP')
    a.label('AOG')
    for pw in range(4):
        a(f'ds_write2st64_b32 v{V_XW}, v{KR+2*pw}, v{KR+2*pw+1} offset0:{pw*4} offset1:{pw*4+2}')
    a('s_waitcnt lgkmcnt(0)')
    for ks in range(4):
        for hh in range(2): a(f'ds_read_b64_tr_b16 {vr(KM+4*ks+2*hh,2)}, v{V_TK} offset:{ks*1024 + hh*128}')
    for r in range(4):
        a(f'v_mov_b32 v{TM}, s{A_NINF}')
        a(f'v_cndmask_b32 v{S00+r}, v{TM}, v{S00+r}, s[{A_MK+2*r}:{A_MK+2*r+1}]')
        a(f'v_cndmask_b32 v{S11+r}, v{TM}, v{S11+r}, s[{A_MK+2*r}:{A_MK+2*r+1}]')
    for ks in range(4):
        a(f's_waitcnt lgkmcnt({6-2*ks})')
        mf(S0M, vr(KM+4*ks,4), vr(QF+4*ks,4), ks == 0)
        mf(S1M, vr(KM+4*ks,4), vr(QF+16+4*ks,4), ks == 0)
    LS = [TM+4, TM+6]
    for qt in range(2):
        xs = [S00] if qt == 0 else [S10, S11]
        sm = S0M if qt == 0 else S1M
        MX = TM; M2 = TM+1
        a(f'v_max3_f32 v{MX}, v{xs[0]}, v{xs[0]+1}, v{xs[0]+2}')
        a(f'v_max3_f32 v{M2}, v{xs[0]+3}, v{sm}, v{sm+1}')
        if qt:
            a(f'v_max3_f32 v{MX}, v{MX}, v{S11}, v{S11+1}')
            a(f'v_max3_f32 v{M2}, v{M2}, v{S11+2}, v{S11+3}')
        a(f'v_max_f32 v{MX}, v{MX}, v{M2}\nv_max_f32 v{M2}, v{MX}, v{M2}')
        a(f'v_permlane32_swap_b32 v{MX}, v{M2}\nv_max_f32 v{MX}, v{MX}, v{M2}\nv_max_f32 v{M2}, v{MX}, v{M2}')
        a(f'v_permlane16_swap_b32 v{MX}, v{M2}\nv_max_f32 v{MX}, v{MX}, v{M2}')
        a(f'v_mul_f32 v{MX}, s{A_SC}, v{MX}')
        prs = [x + o for x in xs for o in (0, 2)] + [sm]
        for r in prs: a(f'v_pk_fma_f32 {vr(r,2)}, {vr(r,2)}, s[{A_SC}:{A_SC+1}], {vr(MX,2)} op_sel_hi:[1,1,0] neg_lo:[0,0,1] neg_hi:[0,0,1]')
        for r in prs: a(f'v_exp_f32 v{r}, v{r}\nv_exp_f32 v{r+1}, v{r+1}')
        px = PX + 4*qt; pm = PM + 4*qt
        for k, r in enumerate(prs[:-1]): a(f'v_cvt_pk_bf16_f32 v{px+k}, v{r}, v{r+1}')
        if qt == 0: a(f'v_mov_b64 {vr(px+2,2)}, 0')
        a(f'v_cvt_pk_bf16_f32 v{pm}, v{sm}, v{sm+1}\nv_mov_b64 {vr(pm+1+0,1) if False else vr(pm+2,2)}, 0')
        a(f'v_mov_b32 v{pm+1}, 0\nv_cvt_pk_bf16_f32 v{pm+3}, v{sm}, v{sm+1}')
        l = LS[qt]
        a(f'v_pk_add_f32 {vr(l,2)}, {vr(prs[0],2)}, {vr(prs[1],2)}')
        for r in prs[2:]: a(f'v_pk_add_f32 {vr(l,2)}, {vr(l,2)}, {vr(r,2)}')
        a(f'v_add_f32 v{MX}, v{l}, v{l+1}\nv_add_f32 v{M2}, v{l}, v{l+1}')
        a(f'v_permlane32_swap_b32 v{MX}, v{M2}\nv_add_f32 v{l}, v{MX}, v{M2}\nv_add_f32 v{l+1}, v{MX}, v{M2}')
        a(f'v_permlane16_swap_b32 v{l}, v{l+1}\nv_add_f32 v{l}, v{l}, v{l+1}')
        a(f'v_rcp_f32 v{l}, v{l}')
    O = 8
    for qt in range(2):
        for et in range(8):
            d = O + 32*qt + 4*et
            mf(d, vr(VF+4*et,4), vr(PX+4*qt,4), True)
        for et in range(8):
            d = O + 32*qt + 4*et
            a(f'v_mfma_f32_16x16x16_bf16 {vr(d,4)}, {vr(VM+2*(et//2),2)}, {vr(PM+4*qt+2*(et%2),2)}, {vr(d,4)}')
    a(f's_lshl_b32 s{A_T0}, s{A_WV}, 13\ns_add_u32 s{A_T0}, s{A_T0}, s{A_OB}\nv_add_u32 v{V_OL}, s{A_T0}, v{V_L16}')
    for qt in range(2):
        for kk in range(4):
            d = O + 32*qt + 8*kk
            for r in range(0, 8, 2): a(f'v_pk_mul_f32 {vr(d+r,2)}, {vr(d+r,2)}, {vr(LS[qt],2)} op_sel_hi:[1,0]')
            for r in range(4): a(f'v_cvt_pk_bf16_f32 v{d+r}, v{d+2*r}, v{d+2*r+1}')
            a(f'ds_write_b128 v{V_OL}, {vr(d,4)} offset:{(qt*4+kk)*1024}')
    a('s_waitcnt lgkmcnt(0)\ns_barrier')
    a(f'v_add_u32 v{V_OL}, s{A_OB}, v{V_L16}')
    a(f's_xor_b32 s{A_OB}, s{A_OB}, {L_O ^ (L_O + 32768)}')
    BR = 48; NB = 8
    seq = [(hh, kk, qt) for hh in range(4) for kk in range(4) for qt in range(2)]
    def rd(n):
        hh, kk, qt = seq[n]
        a(f'ds_read_b128 {vr(BR+4*(n%NB),4)}, v{V_OL} offset:{hh*8192 + (qt*4+kk)*1024}')
    PD = NB - 2
    for n in range(PD): rd(n)
    for n, (hh, kk, qt) in enumerate(seq):
        if n + PD < len(seq): rd(n + PD)
        a(f's_waitcnt lgkmcnt({min(PD, len(seq)-1-n)})')
        for t in range(5):
            r, ty = WF(t, hh, kk)
            mf(ACC + 4*(2*t+qt), vr(r,4,ty), vr(BR+4*(n%NB),4), hh == 0 and kk == 0)
    a(f's_add_u32 s{A_T0}, s{A_AP}, {16*2304}')
    for t in range(4):
        for qt in range(2):
            a(f'buffer_store_dwordx4 {vr(ACC+4*(2*t+qt),4)}, v{V_AP}, {SRD}, s{A_AP if qt == 0 else A_T0} offen offset:{t*256} sc1')
    a(f's_cmp_ge_u32 s{A_WV}, 2\ns_cbranch_scc1 AON5')
    for qt in range(2):
        a(f'buffer_store_dwordx4 {vr(ACC+4*(8+qt),4)}, v{V_AP}, {SRD}, s{A_AP if qt == 0 else A_T0} offen offset:1024 sc1')
    a.label('AON5')
    a('s_waitcnt vmcnt(0)\ns_barrier')
    a(f's_lshl_b32 s{A_T0}, s{A_SEG}, 1\ns_add_u32 s{A_T0}, s{A_T0}, s{A_CH}\ns_lshr_b32 s{A_T1}, s{A_T0}, 3\ns_and_b32 s{A_T0}, s{A_T0}, 7\ns_lshl_b32 s{A_T0}, s{A_T0}, 2\ns_lshl_b32 s{A_T0}, 1, s{A_T0}')
    signal(a, P, DBG_AO, A_T1, val=(A_T0,), vtmp=(8, 9))
    a(f's_add_u32 s{A_SEG}, s{A_SEG}, 2\ns_add_u32 s{A_QO}, s{A_QO}, {2*32*8192}\ns_add_u32 s{A_KM}, s{A_KM}, {2*32*4096}\ns_add_u32 s{A_AP}, s{A_AP}, {2*8*73728}')
    a(f's_cmp_lt_u32 s{A_SEG}, 64\ns_cbranch_scc1 AOL')
```

```python
import re

_REG = re.compile(r'\b([vas])\[(\d+):(\d+)\]|\b([vas])(\d+)\b|\b(vcc|exec|m0|scc)\b')

def regs_of(op):
    out = []
    for m in _REG.finditer(op):
        if m.group(1):
            out += [(m.group(1), i) for i in range(int(m.group(2)), int(m.group(3)) + 1)]
        elif m.group(4):
            out.append((m.group(4), int(m.group(5))))
        else:
            out.append((m.group(6), 0))
    return out

TRANS = ('v_exp_f32', 'v_log_f32', 'v_rcp_f32', 'v_rsq_f32', 'v_sqrt_f32', 'v_sin_f32', 'v_cos_f32')

def split_ops(s):
    ops = []; depth = 0; cur = ''
    for ch in s:
        if ch == '[': depth += 1
        if ch == ']': depth -= 1
        if ch == ',' and depth == 0:
            ops.append(cur.strip()); cur = ''
        else:
            cur += ch
    if cur.strip(): ops.append(cur.strip())
    return ops

class Ins:
    __slots__ = ('text', 'mn', 'kind', 'defs', 'uses', 'passes', 'srcc', 'ab', 'ws', 'dpp', 'storedata', 'exact_c')
    def __init__(self, text):
        self.text = text
        t = text.split(';')[0].strip()
        parts = t.split(None, 1)
        self.mn = mn = parts[0]
        rest = parts[1] if len(parts) > 1 else ''
        ops = split_ops(rest)
        self.defs = set(); self.uses = set(); self.passes = 0; self.srcc = set(); self.ab = set()
        self.ws = 1; self.dpp = False; self.storedata = set(); self.exact_c = None
        if mn.endswith(':') or mn.startswith('.'):
            self.kind = 'label'; self.ws = 0; return
        if mn == 's_nop':
            self.kind = 'salu'; self.ws = int(rest, 0) + 1; return
        def first_tok(o): return o.split()[0] if o.split() else o
        if mn.startswith('v_mfma') or mn.startswith('v_smfmac'):
            self.kind = 'mfma'
            self.passes = 8 if '32x32' in mn else 4
            if 'f32_16x16x4_f32' in mn or '32x32x2_f32' in mn: raise Exception('sgemm not modelled')
            d = regs_of(ops[0]); self.defs = set(d)
            self.ab = set(regs_of(ops[1])) | set(regs_of(ops[2]))
            if mn.startswith('v_smfmac'):
                self.srcc = set(d); self.exact_c = tuple(d)
                self.ab |= set(regs_of(first_tok(ops[3])))
            else:
                c = regs_of(first_tok(ops[3])); self.srcc = set(c); self.exact_c = tuple(c)
            self.uses = self.ab | self.srcc
            return
        if mn.startswith('v_'):
            self.kind = 'valu'
            self.dpp = ('_dpp' in mn) or ('row_' in rest) or ('quad_perm' in rest)
            o = [first_tok(x) for x in ops]
            if mn.startswith('v_cmp'):
                self.defs = set(regs_of(o[0]));
                for x in o[1:]: self.uses |= set(regs_of(x))
            elif mn.startswith('v_permlane') and 'swap' in mn:
                self.defs = set(regs_of(o[0])) | set(regs_of(o[1])); self.uses = set(self.defs)
            elif mn in ('v_add_co_u32', 'v_sub_co_u32', 'v_addc_co_u32', 'v_subb_co_u32', 'v_mad_u64_u32'):
                self.defs = set(regs_of(o[0])) | set(regs_of(o[1]))
                for x in o[2:]: self.uses |= set(regs_of(x))
            else:
                self.defs = set(regs_of(o[0]))
                for x in o[1:]: self.uses |= set(regs_of(x))
                if mn.startswith('v_fmac') or mn.startswith('v_writelane') or self.dpp or mn.startswith('v_pk_fmac'):
                    self.uses |= self.defs
                if mn.startswith('v_cndmask') and len(o) == 3: self.uses.add(('vcc', 0))
            return
        if mn.startswith('ds_') or mn.startswith('global_') or mn.startswith('buffer_') or mn.startswith('flat_'):
            self.kind = 'mem'
            o = [first_tok(x) for x in ops]
            islds = bool(re.search(r'\blds\b', rest)) or 'load_lds' in mn
            isload = ('read' in mn or 'load' in mn) and not islds
            ret_atomic = 'atomic' in mn and re.search(r'\bsc0\b', rest) and mn.startswith('global_') and len(o) == 4
            if mn in ('buffer_inv', 'buffer_wbl2'): return
            if isload or ret_atomic:
                self.defs = set(regs_of(o[0]))
                for x in o[1:]: self.uses |= set(regs_of(x))
            else:
                for x in o: self.uses |= set(regs_of(x))
                if 'atomic' in mn and mn.startswith('buffer_') and re.search(r'\bsc0\b', rest):
                    self.defs = set(regs_of(o[0]))
                if re.search(r'store_dwordx[34]', mn):
                    self.storedata = set(regs_of(o[0] if mn.startswith('buffer_') else o[1]))
            if islds: self.uses.add(('m0', 0))
            return
        self.kind = 'salu'
        o = [first_tok(x) for x in ops]
        if mn.startswith('s_cmp') or mn.startswith('s_cbranch') or mn in ('s_branch', 's_waitcnt', 's_barrier', 's_endpgm', 's_sleep', 's_setprio', 's_bitcmp1_b32', 's_bitcmp0_b32'):
            for x in o: self.uses |= set(regs_of(x))
        else:
            if o:
                self.defs = set(regs_of(o[0]))
                for x in o[1:]: self.uses |= set(regs_of(x))
            if 'saveexec' in mn: self.defs.add(('exec', 0))

def need_ws(p, c):
    n = 0
    vdefs = lambda s: {r for r in s if r[0] in 'va'}
    sdefs = lambda s: {r for r in s if r[0] in ('s', 'vcc')}
    if p.kind == 'valu':
        pv = vdefs(p.defs); ps = sdefs(p.defs)
        if c.kind == 'mfma' and pv & c.uses: n = max(n, 2)
        if c.kind == 'valu':
            if pv & c.uses:
                if c.dpp: n = max(n, 2)
                if c.mn.startswith('v_permlane'): n = max(n, 2)
                if c.mn.startswith('v_readlane') or c.mn.startswith('v_readfirstlane'): n = max(n, 1)
                if p.mn in TRANS and c.mn not in TRANS: n = max(n, 1)
                if p.mn in TRANS and c.mn in TRANS: n = max(n, 1)
            if ps & c.uses:
                n = max(n, 4 if (c.mn.startswith('v_readlane') or c.mn.startswith('v_writelane')) else 2)
        if c.kind == 'mem' and ps & c.uses: n = max(n, 5)
        if c.kind == 'mem' and p.mn in TRANS and pv & c.uses: n = max(n, 1)
        if c.kind == 'salu' and ps & c.uses and not c.mn.startswith('s_cbranch'): n = max(n, 1)
        if ('exec', 0) in p.defs: n = max(n, 5)
    if p.kind == 'mfma':
        big = {4: 8, 8: 12}[p.passes]
        if c.kind in ('valu', 'mem'):
            if p.defs & (c.uses | c.defs): n = max(n, big)
            if c.kind == 'valu' and p.srcc & c.defs: n = max(n, {4: 3, 8: 7}[p.passes])
            if c.kind == 'mem' and p.srcc & c.defs: n = max(n, {4: 3, 8: 7}[p.passes])
        if c.kind == 'mfma':
            if p.defs & c.ab: n = max(n, big)
            if p.defs & c.srcc:
                if not (c.exact_c == tuple(sorted(p.defs)) and c.passes == p.passes):
                    n = max(n, {4: 6, 8: 10}[p.passes])
            elif p.defs & c.defs:
                n = max(n, big)
    if p.kind == 'mem' and p.storedata:
        if p.storedata & c.defs: n = max(n, 2)
    if p.kind == 'salu' and ('m0', 0) in p.defs and c.kind == 'mem' and ('m0', 0) in c.uses: n = max(n, 1)
    return n

class Asm:
    def __init__(self):
        self.lines = []
        self.nlabel = 0
    def __call__(self, text):
        for l in text.split('\n'):
            l = l.strip()
            if l: self.lines.append(l)
    def label(self, name): self.lines.append(name + ':')
    def newlabel(self, base='L'):
        self.nlabel += 1
        return f'{base}_{self.nlabel}'
    def finalize(self):
        out = []; window = []
        nins = 0
        for l in self.lines:
            if l.startswith(';') or l.startswith('//'):
                out.append(l); continue
            ins = Ins(l)
            if ins.kind == 'label':
                out.append(l); continue
            need = 0
            dist = 0
            for p in reversed(window):
                req = need_ws(p, ins)
                if req - dist > need: need = req - dist
                dist += p.ws
                if dist > 24: break
            while need > 0:
                k = min(need, 16)
                nop = Ins(f's_nop {k-1}')
                out.append(f'  s_nop {k-1}  ; auto'); window.append(nop); need -= k; nins += 1
            out.append('  ' + l); window.append(ins); nins += 1
            if len(window) > 40: window = window[-30:]
        return '\n'.join(out) + '\n', nins

def vr(a, n=1, t='v'):
    return f'{t}{a}' if n == 1 else f'{t}[{a}:{a+n-1}]'
```

```python
from asmlib import *
from layout import *
import math

class Cnt:
    def __init__(self, a, name, maxv):
        self.a = a; self.name = name; self.q = []; self.maxv = maxv
    def issue(self, tag, n=1):
        for _ in range(n): self.q.append(tag)
    def wait(self, tag):
        idx = max(i for i, t in enumerate(self.q) if t == tag) if tag in self.q else None
        if idx is None: return
        n = len(self.q) - 1 - idx
        assert n <= self.maxv, (self.name, n)
        self.a(f's_waitcnt {self.name}({n})')
        self.q = self.q[idx + 1:]
    def wait_all(self):
        self.a(f's_waitcnt {self.name}(0)'); self.q = []
    def reset(self, q=()): self.q = list(q)

S_WS = 4
S_W = 8
S_H = 12; S_WV = 13; S_STEP = 14; S_ABORT = 15
S_PC = 16; S_PST = 17; S_MC = 18; S_MN = 19; S_MP = 20
S_KF = 21; S_VF = 22; S_KM = 23; S_VM = 24
S_RED = 25; S_TASK = 26; S_CNT = 27
S_MK_KEY = 28; S_MK_J8 = 30
S_SC = 32
S_T0 = 34; S_T1 = 35; S_T3 = 36; S_T4 = 37; S_T2 = 43
S_RB = 38; S_RMA = 39; S_RIS8 = 40; S_RLD = 41; S_PO = 42
S_W512 = 44; S_W4 = 45; S_W2K = 46; S_F0 = 47; S_MK_N6 = 48; S_PF = 50; S_ROT = 51; S_TAG = 54; S_TAGS = 55; S_ROTB = 3; S_DUP = 24; S_CK = 56; S_CK2 = 96; S_CK3 = 98

V_L16 = 0; V_IDX = 1; V_WL = 2; V_X = 3
def A(i): return 4 + 4 * i
ACC = {'q0': 40, 'q1': 44, 'k0': 48, 'k1': 52, 'v0': 56, 'v1': 60}
T0 = 64; T1 = 72

QK_LDS = {0: 'q', 2: 'k', 4: 'q', 6: 'k', 8: 'q'}
WO_LDS = [(0, 1), (1, 1), (2, 1), (3, 1)]

def build_frag_map():
    slots = []
    for m in 'qkv':
        for i in range(9): slots.append((m, i))
    for p in range(4):
        for c in range(2): slots.append(('o', p, c))
    slots.append(('o8',))
    lds_slots = [(m, i) for i, m in sorted(QK_LDS.items())] + [('o', p, c) for p, c in WO_LDS]
    reg_slots = [s for s in slots if s not in lds_slots]
    assert len(reg_slots) == 27 and len(lds_slots) == 9
    loc = {}
    for n, s in enumerate(reg_slots):
        for z in range(2):
            f = 2 * n + z
            loc[(s, z)] = ('a', 8 * f) if f < 32 else ('v', 80 + 8 * (f - 32))
    for n, s in enumerate(lds_slots):
        for z in range(2): loc[(s, z)] = ('lds', n * 4096 + z * 2048)
    return reg_slots, lds_slots, loc

REG_SLOTS, LDS_SLOTS, LOC = build_frag_map()

def frag_reg(s, z):
    t, r = LOC[(s, z)]
    assert t != 'lds'
    return vr(r, 8, t)

def actual_col(pos):
    j = 2 - pos // 192; pw = (pos % 192) // 48; tg = (pos % 48) // 16
    return (9 * pw + 3 * j + tg) * 16 + pos % 16
M_PITCH = 1536
def m_off(pos):
    return pos * 2 if pos < 192 else pos * 2 + 384

def chain_prologue(a, P):
    a('; ---- chain prologue: weights ----')
    a(f'v_and_b32 v4, 63, v0')
    a(f'v_lshlrev_b32 v{V_L16}, 4, v4')
    a('v_lshrrev_b32 v8, 2, v4\nv_and_b32 v9, 3, v4\nv_lshlrev_b32 v9, 4, v9')
    a('v_lshl_add_u32 v5, v8, 13, v9')
    a('v_mul_u32_u24 v6, 1152, v8\nv_add_u32 v6, v6, v9')
    a('v_lshrrev_b32 v8, 1, v4\nv_and_b32 v9, 1, v4\nv_lshlrev_b32 v9, 4, v9')
    a('v_mul_u32_u24 v7, 1152, v8\nv_add_u32 v7, v7, v9')
    a('v_lshrrev_b32 v8, 5, v4\nv_lshlrev_b32 v10, 4, v8')
    a('v_bfe_u32 v8, v4, 3, 1\nv_lshl_add_u32 v10, v8, 3, v10')
    a('v_bfe_u32 v8, v4, 4, 1\nv_lshl_add_u32 v10, v8, 2, v10')
    a('v_bfe_u32 v8, v4, 2, 1\nv_add_u32 v10, v10, v8')
    a('v_and_b32 v9, 3, v4\nv_lshlrev_b32 v9, 3, v9')
    a('v_lshl_add_u32 v11, v10, 6, v9')
    a('v_lshl_add_u32 v12, v10, 5, v9')
    a(f's_mul_i32 s{S_T0}, s{S_WV}, 36864\ns_add_u32 s{S_T0}, s{S_T0}, {L_W}')
    a(f's_lshl_b32 s{S_T1}, s{S_WV}, 12')
    a(f'v_add_u32 v13, s{S_T0}, v11\nv_add_u32 v14, s{S_T1}, v11')
    a(f'v_add_u32 v15, s{S_T0}, v12\nv_add_u32 v16, s{S_T1}, v12')
    a(f'v_add_u32 v{V_WL}, s{S_T0}, v{V_L16}')
    a(f'v_bfe_u32 v8, v4, 1, 1\nv_mul_u32_u24 v8, 0xAAAA, v8\nv_add_u32 v{V_IDX}, 0x4444, v8')
    a(f's_lshl_b32 s{S_T2}, s{S_H}, 8\ns_lshl_b32 s{S_T3}, s{S_WV}, 6\ns_add_u32 s{S_T2}, s{S_T2}, s{S_T3}')
    a(f's_mul_i32 s{S_T3}, s{S_H}, 147456\ns_mul_i32 s{S_T4}, s{S_WV}, 288\ns_add_u32 s{S_T3}, s{S_T3}, s{S_T4}')
    a(f's_add_u32 s{S_ROT}, s{S_H}, s{S_WV}\ns_mul_i32 s{S_CNT}, s{S_ROT}, 43\ns_lshr_b32 s{S_CNT}, s{S_CNT}, 7\ns_mul_i32 s{S_CNT}, s{S_CNT}, 3\ns_sub_u32 s{S_ROT}, s{S_ROT}, s{S_CNT}')
    order = REG_SLOTS + LDS_SLOTS
    D = 9
    vm = Cnt(a, 'vmcnt', 63); lg = Cnt(a, 'lgkmcnt', 15)
    cur_mat = [None]
    def set_srd(m):
        if cur_mat[0] == m: return
        cur_mat[0] = m
        p = P[{'q': 'Wq', 'k': 'Wk', 'v': 'Wv', 'o': 'Wo', 'o8': 'Wo'}[m]]
        a(f's_mov_b32 s{S_W}, s{p}\ns_mov_b32 s{S_W+1}, s{p+1}\ns_mov_b32 s{S_W+2}, 4718592\ns_mov_b32 s{S_W+3}, 0x20000')
    def buf_of(idx): return (idx - 27) % 10
    def issue(idx):
        s = order[idx]; b = buf_of(idx)
        set_srd(s[0])
        for n in range(4):
            if b == 9: a(f's_add_u32 m0, s{S_T1}, {n*1024}')
            else: a(f's_add_u32 m0, s{S_T0}, {b*4096 + n*1024}')
            if s[0] in 'qkv' and s[0] != 'o':
                if s[1] < 3:
                    opts = [actual_col(((s[1] + r) % 3) * 64 + 16 * n) * 8192 for r in range(3)]
                    a(f's_mov_b32 s{S_CNT}, {opts[0]}\ns_cmp_eq_u32 s{S_ROT}, 1\ns_cselect_b32 s{S_CNT}, {opts[1]}, s{S_CNT}')
                    a(f's_cmp_eq_u32 s{S_ROT}, 2\ns_cselect_b32 s{S_CNT}, {opts[2]}, s{S_CNT}')
                    a(f's_add_u32 s{S_CNT}, s{S_CNT}, s{S_T2}')
                else:
                    a(f's_add_u32 s{S_CNT}, s{S_T2}, {actual_col(s[1]*64 + 16*n)*8192}')
                vo = 5
            elif s[0] == 'o':
                a(f's_add_u32 s{S_CNT}, s{S_T3}, {(s[2]*64 + 16*n)*1152 + s[1]*64}'); vo = 6
            else:
                a(f's_add_u32 s{S_CNT}, s{S_T3}, {(32*n)*1152 + 256}'); vo = 7
            a(f'buffer_load_dwordx4 v{vo}, s[{S_W}:{S_W+3}], s{S_CNT} offen lds')
            vm.issue(idx)
    def process(idx):
        s = order[idx]; b = buf_of(idx)
        vm.wait(idx)
        is8 = s[0] == 'o8'
        base = (16 if is8 else 14) if b == 9 else (15 if is8 else 13)
        boff = 0 if b == 9 else b * 4096
        for z in range(2):
            t, r = LOC[(s, z)]
            if t == 'lds': t, r = 'v', 20 + 8 * z
            for m in range(4):
                if is8: off = boff + (z * 64 + (m >> 1) * 32 + (m & 1) * 2) * 32
                else: off = boff + ((m >> 1) * 32 + (m & 1) * 2) * 64 + z * 32
                a(f'ds_read_b64_tr_b16 {vr(r + 2*m, 2, t)}, v{base} offset:{off}')
        a('s_waitcnt lgkmcnt(0)')
        if LOC[(s, 0)][0] == 'lds':
            for q in range(4):
                a(f'ds_write_b128 v{V_WL}, {vr(20 + 4*q, 4)} offset:{boff + q*1024}')
            a('s_waitcnt lgkmcnt(0)')
    for idx in range(36 + D):
        if idx < 36: issue(idx)
        if idx >= D: process(idx - D)

def lds_frag_read(a, lg, s, z, dst, tag):
    t, off = LOC[(s, z)]
    assert t == 'lds'
    a(f'ds_read_b128 {vr(dst, 4)}, v{V_WL} offset:{off}')
    a(f'ds_read_b128 {vr(dst+4, 4)}, v{V_WL} offset:{off+1024}')
    lg.issue(tag, 2)

def timeout(a, lbl_ok_branch=None):
    a(f's_add_u32 s{S_CNT}, s{S_CNT}, 1')
    a(f's_cmp_gt_u32 s{S_CNT}, 0x40000')
    a(f's_cselect_b32 s{S_ABORT}, 1, s{S_ABORT}')

def emit_vma(a, dst, tmp):
    a(f'v_bfe_u32 v{tmp}, v{V_L16}, 6, 2')
    a(f'v_bfe_u32 v{dst}, v{V_L16}, 4, 1')
    a(f'v_lshl_add_u32 v{dst}, v{tmp}, 1, v{dst}')
    a(f'v_mul_u32_u24 v{dst}, {M_PITCH}, v{dst}')
    a(f'v_add_u32 v{dst}, s{S_ROTB}, v{dst}')
    a(f'v_bfe_u32 v{tmp}, v{V_L16}, 5, 1')
    a(f'v_lshl_add_u32 v{dst}, v{tmp}, 4, v{dst}')
    a(f'v_lshrrev_b32 v{tmp}, 8, v{V_L16}')
    a(f'v_lshl_add_u32 v{dst}, v{tmp}, 5, v{dst}')

def R(i): return 4 + 4 * i
SLOT = {0: 0, 1: 1, 2: 2, 3: 3, 4: 4, 5: 5, 6: 6, 7: 0, 8: 1}
def AR(c): return R(SLOT[c])

def zero(a, regs):
    regs = sorted(regs); i = 0
    while i < len(regs):
        r = regs[i]
        if r % 2 == 0 and i + 1 < len(regs) and regs[i+1] == r + 1:
            a(f'v_mov_b64 v[{r}:{r+1}], 0'); i += 2
        else:
            a(f'v_mov_b32 v{r}, 0'); i += 1

def chain_loop(a, cfg, sfx, stf):
    NFULL = 4; NP = cfg.get('NP', 3)
    assert 2 <= NP <= 6
    D1 = cfg.get('D1', 0); D2 = cfg.get('D2', 0); D2R = cfg.get('D2R', 0)
    dbg = cfg.get('dbg', False)
    SRD = f's[{S_WS}:{S_WS+3}]'
    vm = Cnt(a, 'vmcnt', 63); lg = Cnt(a, 'lgkmcnt', 15)
    smap = cfg.get('smap', {str(k): k for k in range(8)})
    def stamp(k):
        if dbg and str(k) in smap:
            q = smap[str(k)]
            a(f'{"s_memrealtime" if cfg.get("rt") else "s_memtime"} s[{60+2*q}:{61+2*q}]')
    def smf(d, aa, b): a(f'v_smfmac_f32_16x16x64_bf16 {vr(d,4)}, {vr(aa,4)}, {b}, v{V_IDX}')
    def delay(n):
        while n > 0:
            k = min(n, 16); a(f's_nop {k-1}'); n -= k
    def mf(d, x, y, cinit):
        c = vr(d, 4) if not cinit else '0'
        a(f'v_mfma_f32_16x16x32_bf16 {vr(d,4)}, {vr(x,4)}, {vr(y,4)}, {c}')
    L = lambda t: [x for x in t.split('\n') if x.strip()]
    VX0 = 32; VX1 = 36

    a.label(f'STEP{sfx}')
    lg.reset(['T'] * 4)
    a(f's_mov_b32 s{S_CNT}, 0')
    def aoff(i): return i * 128 if i < 3 else m_off(i * 64)
    def ldA(i, reg=None):
        a(f'buffer_load_dwordx4 {vr(AR(i) if reg is None else reg,4)}, v{V_X}, {SRD}, s{S_MC} offen offset:{aoff(i)} sc1'); vm.issue(('A', i))
    CK = VX1 + 3
    PM = cfg.get('PM', 'np3')
    tmo = f"""s_add_u32 s{S_CNT}, s{S_CNT}, 1
s_cmp_gt_u32 s{S_CNT}, 0x40000
s_cselect_b32 s{S_ABORT}, 1, s{S_ABORT}
s_cmp_lg_u32 s{S_ABORT}, 0
s_cselect_b64 s[{S_T3}:{S_T4}], 0, -1"""
    a.label(f'POLLM0{sfx}')
    if PM == 'pipe1':
        ldA(0)
        delay(cfg.get('STG', 30))
        a.label(f'POLLM{sfx}')
        ldA(0, R(1))
        a(tmo)
        a('s_waitcnt vmcnt(1)')
        a(f'v_max_u32 v{CK}, v{R(0)+1}, v{R(0)+3}')
        a(f'v_cmp_eq_u32 vcc, -1, v{CK}')
        a(f's_and_b64 vcc, vcc, s[{S_T3}:{S_T4}]')
        a(f's_cbranch_vccz GOTM{sfx}')
        ldA(0)
        a('s_waitcnt vmcnt(1)')
        a(f'v_max_u32 v{CK}, v{R(1)+1}, v{R(1)+3}')
        a(f'v_cmp_eq_u32 vcc, -1, v{CK}')
        a(f's_cbranch_vccnz POLLM{sfx}')
        a(f'v_mov_b64 {vr(R(0),2)}, {vr(R(1),2)}\nv_mov_b64 {vr(R(0)+2,2)}, {vr(R(1)+2,2)}')
        a.label(f'GOTM{sfx}')
        vm.reset()
        ldA(1); ldA(2)
        NC = 1
    else:
        vm.reset()
        for i in range(3): ldA(i)
        a(tmo)
        for i in range(3):
            vm.wait(('A', i))
            if i == 0: a(f'v_max_u32 v{CK}, v{AR(0)+1}, v{AR(0)+3}')
            else: a(f'v_max3_u32 v{CK}, v{CK}, v{AR(i)+1}, v{AR(i)+3}')
        a(f'v_cmp_eq_u32 vcc, -1, v{CK}')
        a(f's_and_b64 vcc, vcc, s[{S_T3}:{S_T4}]')
        a(f's_cbranch_vccnz POLLM0{sfx}')
        NC = 3
    a(f'v_subrev_u32 v{V_X}, s{S_ROTB}, v{V_X}')
    stamp(0)
    if dbg: a(f's_mov_b32 s52, s{S_CNT}')
    XB = R(2); XT = R(2) + 1; TK = R(2) + 2; X2 = R(2) + 3
    fl = L(f"""v_and_b32 v{XT}, 0xf0, v{V_L16}
v_bfe_u32 v{XB}, v{V_L16}, 8, 2
v_lshl_add_u32 v{XB}, v{XB}, 2, v{XT}
v_add_u32 v{XB}, s{S_W512}, v{XB}
v_lshlrev_b32 v{XB}, 1, v{XB}
v_lshrrev_b32 v{XT}, 8, v{V_L16}
v_bfe_u32 v{X2}, v{V_L16}, 6, 2
v_lshl_add_u32 v{XT}, v{XT}, 3, v{X2}
v_bfe_u32 v{TK}, v{V_L16}, 4, 2
v_lshlrev_b32 v{TK}, 3, v{TK}
v_lshl_add_u32 v{TK}, v{XT}, 5, v{TK}
v_lshrrev_b32 v{X2}, 1, v{V_L16}""")
    def bop(m, i, z):
        s = (m, i)
        if LOC[(s, z)][0] == 'lds': return vr(T0 if z == 0 else T1, 8)
        return frag_reg(s, z)
    lds_chunks = sorted(QK_LDS)
    def ldvx(q):
        a(f'buffer_load_dwordx4 {vr(VX0+4*q,4)}, v{V_L16}, {SRD}, s{S_VF} offen offset:{q*1024} sc1'); vm.issue('vx')
    def bar0():
        a('s_barrier')
    def pf1():
        a(f'v_lshlrev_b32 v{V_X}, 3, v{V_L16}')
        a(f's_mov_b32 m0, {L_QX}')
    def pf2():
        a(f's_mov_b64 exec, 0xffffffff')
        a(f'buffer_load_dword v{V_X}, {SRD}, s{S_PF} offen sc1 lds'); vm.issue('pf')
        a('s_mov_b64 exec, -1')
    memq = {0: [lambda: ldA(3), lambda: ldA(4), lambda: ldA(5), lambda: ldA(6), lambda: ldvx(0), lambda: ldvx(1)],
            1: [lambda: ldA(7)], 2: [lambda: ldA(8), bar0] + ([] if cfg.get('nopf') else [pf1, pf2])}
    first_ck = True
    for i in range(9):
        mem = list(memq.get(i, [])); pend = []
        if i >= NC: vm.wait(('A', i))
        if NC <= i <= 2:
            pr = (S_T0, S_CK) if i == 1 else (S_CK2, S_CK3)
            pend.append(f'v_cmp_eq_u32 s[{pr[0]}:{pr[0]+1}], -1, v{AR(i)+1}'); pend.append(f'v_cmp_eq_u32 s[{pr[1]}:{pr[1]+1}], -1, v{AR(i)+3}')
        if i >= 3:
            if first_ck: pend.append(f'v_max_u32 v{V_X}, v{AR(i)+1}, v{AR(i)+3}'); first_ck = False
            else: pend.append(f'v_max3_u32 v{V_X}, v{V_X}, v{AR(i)+1}, v{AR(i)+3}')
        mats = ['q', 'k'] + (['v'] if i < NFULL else [])
        if i in QK_LDS: mats = [m for m in mats if m != QK_LDS[i]] + [QK_LDS[i]]
        for m in mats:
            if i in QK_LDS and m == QK_LDS[i]: lg.wait('T')
            for z in range(2):
                smf(ACC[f'{m}{z}'], AR(i), bop(m, i, z))
                if mem: mem.pop(0)()
                elif pend: a(pend.pop(0))
                elif fl and i >= 3: a(fl.pop(0))
        assert not mem and not pend
        if i in QK_LDS and i != lds_chunks[-1]:
            nx = lds_chunks[lds_chunks.index(i) + 1]
            lds_frag_read(a, lg, (QK_LDS[nx], nx), 0, T0, 'T'); lds_frag_read(a, lg, (QK_LDS[nx], nx), 1, T1, 'T')
    assert not fl, fl
    stamp(1)
    KX = {(0, 0): 64, (1, 0): 68, (0, 1): 72, (1, 1): 76, (0, 2): R(4), (1, 2): R(5), (0, 3): R(3), (1, 3): 64}
    def ldkx(t, ks):
        a(f'ds_read_b128 {vr(KX[(t, ks)],4)}, v{V_L16} offset:{L_KX + t*4096 + ks*1024}'); lg.issue(('kx', t, ks))
    vrem = [(i, z) for i in range(NFULL, 9) for z in range(2)]
    def vsm(n):
        for _ in range(n):
            if vrem:
                i, z = vrem.pop(0); smf(ACC[f'v{z}'], AR(i), bop('v', i, z))
    a(f'v_cmp_eq_u32 vcc, -1, v{V_X}')
    vsm(1)
    ldkx(0, 0); ldkx(1, 0); ldkx(0, 1); ldkx(1, 1)
    K0 = ACC['k0']; K1 = ACC['k1']; Q0 = ACC['q0']; Q1 = ACC['q1']
    a(f'v_pk_add_f32 {vr(K0,2)}, {vr(K0,2)}, {vr(K0+2,2)}')
    a(f'v_pk_add_f32 {vr(K1,2)}, {vr(K1,2)}, {vr(K1+2,2)}')
    a(f'v_cvt_pk_bf16_f32 v{K0}, v{K0}, v{K0+1}')
    a(f'v_cvt_pk_bf16_f32 v{K0+2}, v{K1}, v{K1+1}')
    a(f'v_pk_add_f32 {vr(Q0,2)}, {vr(Q0,2)}, {vr(Q0+2,2)}')
    a(f'v_pk_add_f32 {vr(Q1,2)}, {vr(Q1,2)}, {vr(Q1+2,2)}')
    a(f'v_cvt_pk_bf16_f32 v{K0+1}, v{Q0}, v{Q0+1}')
    a(f'v_cvt_pk_bf16_f32 v{K0+3}, v{Q1}, v{Q1+1}')
    a(f'ds_write2st64_b64 v{XB}, {vr(K0,2)}, {vr(K0+2,2)} offset0:{L_KXX//512} offset1:{L_KXX//512+1}'); lg.issue('xw')
    vsm(1)
    if NC == 1:
        for pr in (S_T0, S_CK, S_CK2, S_CK3): a(f's_or_b64 vcc, vcc, s[{pr}:{pr+1}]')
    a(f's_and_b64 vcc, vcc, s[{S_T3}:{S_T4}]')
    if cfg.get('forceredo'): a(f's_and_b32 s{S_T0}, s{S_STEP}, 7\ns_cmp_eq_u32 s{S_T0}, s{S_WV}\ns_cselect_b64 vcc, -1, vcc')
    a(f's_cbranch_vccnz REDO{sfx}')
    a.label(f'REDOX{sfx}')
    vsm(1)
    a(f'v_mov_b32 v{V_X}, v{X2}')
    a(f'v_mov_b32 v{K1}, v{K0}\nv_mov_b32 v{K1+1}, v{K0+2}')
    vsm(1)
    if not cfg.get('nopub'):
        a(f'buffer_store_dwordx2 {vr(K1,2)}, v{V_X}, {SRD}, s{S_KM} offen sc1'); vm.issue('pub')
    ldkx(0, 2); ldkx(1, 2); ldkx(0, 3)
    vsm(cfg.get('VB', 1))
    lg.wait('xw')
    a('s_barrier')
    stamp(2)
    F = {0: 40, 1: 44, 2: 48, 3: 52}
    def ldf(ks):
        for hh in range(2):
            a(f'ds_read_b64_tr_b16 {vr(F[ks]+2*hh,2)}, v{TK} offset:{L_KXX + ks*1024 + hh*128}'); lg.issue(('f', ks))
    for ks in range(4): ldf(ks)
    vsm(len(vrem))
    stamp(3)
    SX0 = R(6); SX1 = R(0); SM = R(1)
    OW = 12; OW2 = 13; ORD = 14; ORD2 = 15; OT = 62; OT2 = 63
    PX = 48; PMX = 52; PMY = 54
    f1 = L(f"""v_pk_add_f32 v[56:57], v[56:57], v[58:59]
v_pk_add_f32 v[60:61], v[60:61], v[62:63]
v_cvt_pk_bf16_f32 v56, v56, v57
v_cvt_pk_bf16_f32 v57, v60, v61""")
    f2 = L(f"""v_bfe_u32 v{OT}, v{V_L16}, 6, 2
v_bfe_u32 v{ORD}, v{V_L16}, 4, 1
v_lshl_add_u32 v{ORD}, v{OT}, 1, v{ORD}
v_lshlrev_b32 v{OT2}, 1, v{ORD}
v_lshrrev_b32 v{OT}, 9, v{V_L16}
v_add_u32 v{OT}, s{S_W4}, v{OT}
v_xor_b32 v{OT}, v{OT}, v{OT2}
v_lshlrev_b32 v{OT}, 4, v{OT}
v_lshl_add_u32 v{OW}, v{ORD}, 8, v{OT}
v_bfe_u32 v{OT}, v{V_L16}, 8, 1
v_lshl_add_u32 v{OW}, v{OT}, 3, v{OW}
v_xor_b32 v{OW2}, 32, v{OW}
v_lshrrev_b32 v{OT}, 8, v{V_L16}
v_bfe_u32 v{ORD2}, v{V_L16}, 5, 1
v_lshl_add_u32 v{OT}, v{OT}, 1, v{ORD2}
v_xor_b32 v{OT}, v{OT}, v{OT2}
v_lshlrev_b32 v{OT}, 4, v{OT}
v_lshl_add_u32 v{ORD}, v{ORD}, 8, v{OT}
v_xor_b32 v{ORD2}, 128, v{ORD}""")
    def fill(lst, n):
        for _ in range(n):
            if lst: a(lst.pop(0))
    lg.wait(('f', 0))
    mf(SX0, KX[(0, 0)], F[0], True); mf(SX1, KX[(1, 0)], F[0], True)
    ldkx(1, 3)
    mf(SM, F[0], F[0], True)
    lg.wait(('f', 1))
    mf(SX0, KX[(0, 1)], F[1], False); mf(SX1, KX[(1, 1)], F[1], False); fill(f1, 2)
    mf(SM, F[1], F[1], False); fill(f1, 2)
    lg.wait(('f', 2))
    mf(SX0, KX[(0, 2)], F[2], False)
    if not cfg.get('nopub'):
        a(f'buffer_store_dwordx2 v[56:57], v{V_X}, {SRD}, s{S_KM} offen offset:512 sc1'); vm.issue('pub')
    mf(SX1, KX[(1, 2)], F[2], False); fill(f2, 2)
    mf(SM, F[2], F[2], False); fill(f2, 2)
    lg.wait(('f', 3))
    mf(SM, F[3], F[3], False); fill(f2, 2)
    mf(SX0, KX[(0, 3)], F[3], False); fill(f2, 2)
    lg.wait(('kx', 1, 3))
    mf(SX1, KX[(1, 3)], F[3], False)
    B0 = 48; B1 = 56; B2 = 64; B3 = 72
    stamp(4)
    MX = 58; M2 = 59; LS = 60; L2 = 61
    lds_frag_read(a, lg, ('o', 0, 1), 1, B3, ('w', 1))
    fill(f2, 2)
    a(f'v_max3_f32 v{MX}, v{SM}, v{SM+1}, v{SX0}')
    a(f'v_max3_f32 v{MX}, v{MX}, v{SX0+1}, v{SX0+2}')
    lds_frag_read(a, lg, ('o', 0, 1), 0, B2, ('w', 0))
    a(f'v_max3_f32 v{M2}, v{SX1}, v{SX1+1}, v{SX1+2}')
    a(f'v_max3_f32 v{MX}, v{MX}, v{SX0+3}, v{SX1+3}')
    a(f'v_max_f32 v{MX}, v{MX}, v{M2}')
    a(f'v_max_f32 v{M2}, v{MX}, v{M2}')
    fill(f2, 2)
    a(f'v_permlane32_swap_b32 v{MX}, v{M2}')
    a(f'v_max_f32 v{MX}, v{MX}, v{M2}')
    a(f'v_max_f32 v{M2}, v{MX}, v{M2}')
    fill(f2, 2)
    a(f'v_permlane16_swap_b32 v{MX}, v{M2}')
    a(f'v_max_f32 v{MX}, v{MX}, v{M2}')
    a(f'v_mul_f32 v{MX}, s{S_SC}, v{MX}')
    rs = (SX0, SX0+2, SX1, SX1+2)
    for r in rs + (SM,): a(f'v_pk_fma_f32 {vr(r,2)}, {vr(r,2)}, s[{S_SC}:{S_SC+1}], {vr(MX,2)} op_sel_hi:[1,1,0] neg_lo:[0,0,1] neg_hi:[0,0,1]')
    for k, r in enumerate(rs):
        a(f'v_exp_f32 v{r}, v{r}\nv_exp_f32 v{r+1}, v{r+1}')
        if k: a(f'v_cvt_pk_bf16_f32 v{PX+k-1}, v{rs[k-1]}, v{rs[k-1]+1}')
    a(f'v_exp_f32 v{SM}, v{SM}')
    a(f'v_cvt_pk_bf16_f32 v{PX+3}, v{rs[3]}, v{rs[3]+1}')
    a(f'v_exp_f32 v{SM+1}, v{SM+1}')
    OX = R(4); OY = R(5)
    a(f'v_mov_b32 v{PMX+1}, 0')
    vm.wait('vx')
    mf(OX, VX0, PX, True)
    a(f'v_cvt_pk_bf16_f32 v{PMX}, v{SM}, v{SM+1}\nv_cvt_pk_bf16_f32 v{PMY+1}, v{SM}, v{SM+1}')
    mf(OY, VX1, PX, True)
    a(f'v_mov_b32 v{PMY}, 0')
    a(f'v_pk_add_f32 {vr(SX0,2)}, {vr(SX0,2)}, {vr(SX0+2,2)}')
    a(f'v_mfma_f32_16x16x16_bf16 {vr(OX,4)}, v[56:57], {vr(PMX,2)}, {vr(OX,4)}')
    a(f'v_pk_add_f32 {vr(SX1,2)}, {vr(SX1,2)}, {vr(SX1+2,2)}')
    a(f'v_pk_add_f32 {vr(SX0,2)}, {vr(SX0,2)}, {vr(SM,2)}')
    a(f'v_mfma_f32_16x16x16_bf16 {vr(OY,4)}, v[56:57], {vr(PMY,2)}, {vr(OY,4)}')
    a(f'v_pk_add_f32 {vr(SX0,2)}, {vr(SX0,2)}, {vr(SX1,2)}')
    a(f'v_add_f32 v{LS}, v{SX0}, v{SX0+1}')
    a(f'v_add_f32 v{L2}, v{SX0}, v{SX0+1}')
    fill(f2, 2)
    a(f'v_permlane32_swap_b32 v{LS}, v{L2}')
    a(f'v_add_f32 v{MX}, v{LS}, v{L2}')
    a(f'v_add_f32 v{M2}, v{LS}, v{L2}')
    fill(f2, 2)
    a(f'v_permlane16_swap_b32 v{MX}, v{M2}')
    a(f'v_add_f32 v{LS}, v{MX}, v{M2}')
    a(f'v_rcp_f32 v{LS}, v{LS}')
    fill(f2, 99)
    for o in (OX, OY):
        a(f'v_pk_mul_f32 {vr(o,2)}, {vr(o,2)}, {vr(LS,2)} op_sel_hi:[1,0]')
        a(f'v_pk_mul_f32 {vr(o+2,2)}, {vr(o+2,2)}, {vr(LS,2)} op_sel_hi:[1,0]')
        a(f'v_cvt_pk_bf16_f32 v{o}, v{o}, v{o+1}\nv_cvt_pk_bf16_f32 v{o+1}, v{o+2}, v{o+3}')
        if o == OX:
            a(f's_mov_b64 exec, s[{S_MK_KEY}:{S_MK_KEY+1}]')
            a(f'ds_write_b64 v{OW}, {vr(OX,2)} offset:{L_OX}'); lg.issue('ow')
    a(f'ds_write_b64 v{OW2}, {vr(OY,2)} offset:{L_OX}'); lg.issue('ow')
    a('s_mov_b64 exec, -1')
    WACC = 12
    zero(a, [r for r in range(WACC, WACC + 36) if r not in (ORD, ORD2)])
    lg.wait('ow')
    a('s_barrier')
    stamp(5)
    OA0 = 4; OA1 = 8
    a(f'ds_read_b128 {vr(OA0,4)}, v{ORD} offset:{L_OX}'); lg.issue('oa0')
    a(f'ds_read_b128 {vr(OA1,4)}, v{ORD2} offset:{L_OX}'); lg.issue('oa1')
    lds_frag_read(a, lg, ('o', 1, 1), 0, B0, ('w', 2)); lds_frag_read(a, lg, ('o', 1, 1), 1, B1, ('w', 3))
    zero(a, [ORD, ORD2])
    if not cfg.get('nodma'):
        a(f's_mov_b32 m0, s{S_W2K}')
        for q in range(2): a(f'buffer_load_dwordx4 v{V_L16}, {SRD}, s{S_KF} offen offset:{q*1024} sc1 lds'); vm.issue('kxd')
    def wacc(t): return WACC + 4 * t
    def post_tile(t):
        d = wacc(t); q = wacc(t - t % 3) + t % 3
        return [f'v_pk_add_f32 {vr(d,2)}, {vr(d,2)}, {vr(d+2,2)}', f'v_cvt_pk_bf16_f32 v{q}, v{d}, v{d+1}']
    def post_group(j):
        ops = post_tile(3*j) + [f'v_mov_b32 v{wacc(3*j)+3}, s{S_TAG}'] + post_tile(3*j+1) + post_tile(3*j+2)
        return ops + [('v', f'buffer_store_dwordx4 {vr(wacc(3*j),4)}, v{V_L16}, {SRD}, s{S_PST} offen offset:{j*1024} {stf}'.rstrip())]
    def wf(t, c):
        if t == 8: return frag_reg(('o8',), c)
        return frag_reg(('o', t // 2, c), t % 2)
    lbuf = {0: B2, 1: B3, 2: B0, 3: B1, 4: B2, 5: B3, 6: B0, 7: B1}
    seq = [(0,0),(1,0),(2,0),(0,1),(1,1),(2,1), (3,0),(4,0),(5,0),(3,1),(4,1),(5,1), (6,0),(7,0),(8,0),(8,1),(6,1),(7,1)]
    fillers = {k: [] for k in range(40)}
    PL = cfg.get('PL', 2)
    for j_, start in ((0, 8), (1, 14)):
        k = start; cnt = 0
        for op in post_group(j_):
            fillers[k].append(op); cnt += 1
            if cnt % PL == 0: k += 1
    lg.wait('oa0')
    stamp(8)
    for n_, (t, c) in enumerate(seq):
        if n_ == 3: lg.wait('oa1')
        if c == 1 and t != 8:
            lg.wait(('w', t)); b = vr(lbuf[t], 8)
        else: b = wf(t, c)
        smf(wacc(t), OA0 if c == 0 else OA1, b)
        if c == 1 and t < 4: lds_frag_read(a, lg, ('o', (t+4)//2, 1), (t+4) % 2, lbuf[t], ('w', t+4))
        for f in fillers[n_]:
            if isinstance(f, tuple): a(f[1]); vm.issue('pst')
            else: a(f)
    stamp(9)
    for k in range(18, 40):
        for f in fillers[k]:
            if isinstance(f, tuple): a(f[1]); vm.issue('pst')
            else: a(f)
    g2 = post_tile(8) + post_tile(6) + [f'v_mov_b32 v{wacc(6)+3}, s{S_TAG}'] + post_tile(7)
    a(g2[0]); a(g2[2]); a(g2[1]); a(g2[3]); a(g2[4]); a(g2[5]); a(g2[6])
    a(post_group(2)[-1][1]); vm.issue('pst')
    stamp(6)
    c0 = sorted(QK_LDS)[0]
    SEL = 36; RACC = 72; RL = 76; RO = 77; RT = 78; RT2 = 79; NEG = 4
    a(f's_bitcmp0_b32 s{S_RED}, 0\ns_cbranch_scc1 NORED{sfx}')
    PP = 12288
    a(f'v_lshrrev_b32 v{RT}, 8, v{V_L16}\nv_mul_u32_u24 v{RL}, {PP}, v{RT}\nv_and_or_b32 v{RL}, v{V_L16}, s{S_F0}, v{RL}')
    a(f's_add_u32 s{S_T2}, s{S_PC}, s{S_RLD}')
    a(f's_mov_b32 s{S_CNT}, 0')
    delay(D1)
    if cfg.get('D1W1'):
        a(f's_cmp_eq_u32 s{S_WV}, 0\ns_cbranch_scc1 NOD1W{sfx}')
        delay(cfg['D1W1'])
        a.label(f'NOD1W{sfx}')
    stamp(10)
    def pl():
        for it in range(8):
            a(f'buffer_load_dwordx4 {vr(4+4*it,4)}, v{RL}, {SRD}, s{S_T2} offen sc1'); vm.issue(('r', it))
            a(f's_add_u32 s{S_T2}, s{S_T2}, {4*PP if it < 7 else -7*4*PP & 0xffffffff}')
    vm.reset(); pl()
    a(f'v_bfe_u32 v{RT2}, v{V_L16}, 4, 4')
    a(f'v_and_b32 v{RO}, 1, v{RT2}\nv_lshlrev_b32 v{RO}, 4, v{RO}')
    a(f'v_mov_b32 v{RACC}, 0x3f80\nv_lshlrev_b32 v{RO}, v{RO}, v{RACC}')
    a(f'v_lshrrev_b32 v{RACC}, 1, v{RT2}')
    for r in range(4):
        a(f'v_cmp_eq_u32 vcc, {r}, v{RACC}')
        zero(a, range(40 + 4*r, 44 + 4*r))
        a(f'v_cndmask_b32 v{SEL+r}, 0, v{RO}, vcc')
    a(f'v_and_b32 v{RO}, 1, v{RT2}')
    a(f'v_mul_u32_u24 v{RO}, {M_PITCH}, v{RO}')
    a(f'v_lshl_add_u32 v{RO}, v{RACC}, 5, v{RO}')
    a(f'v_lshl_add_u32 v{RO}, v{RT}, 3, v{RO}')
    a(f'v_add_u32 v{RO}, s{S_RB}, v{RO}')
    zero(a, range(56, 64))
    emit_vma(a, V_X, RT2)
    lg.reset()
    lds_frag_read(a, lg, (QK_LDS[c0], c0), 0, T0, 'T')
    a.label(f'RWAIT{sfx}')
    for it in range(8):
        vm.wait(('r', it))
        if it == 0: stamp(11)
        mf(RACC, 4 + 4*it, SEL, it == 0)
    a(f's_add_u32 s{S_T0}, s{S_MN}, s{S_DUP}')
    a(f'v_pk_add_f32 {vr(RT,2)}, {vr(RACC,2)}, {vr(RACC+2,2)}')
    a(f'v_cvt_pk_bf16_f32 v{RACC}, v{RACC}, v{RACC+1}\nv_cvt_pk_bf16_f32 v{RACC+1}, v{RACC+2}, v{RACC+3}')
    a(f'v_add_f32 v{RT}, v{RT}, v{RT2}')
    a(f'v_cmp_neq_f32 vcc, s{S_TAGS}, v{RT}')
    a(f's_mov_b64 exec, s[{S_MK_J8}:{S_MK_J8+1}]')
    a(f's_and_b64 vcc, vcc, s[{S_MK_N6}:{S_MK_N6+1}]')
    a(f's_cbranch_vccnz RCHK{sfx}')
    a.label(f'RGO{sfx}')
    a(f'buffer_store_dwordx2 {vr(RACC,2)}, v{RO}, {SRD}, s{S_MN} offen {stf}'.rstrip())
    a(f'buffer_store_dwordx2 {vr(RACC,2)}, v{RO}, {SRD}, s{S_T0} offen {stf}'.rstrip())
    stamp(7)
    if dbg: a(f's_mov_b32 s53, s{S_CNT}')
    a(f'v_mov_b64 v[{NEG}:{NEG+1}], -1')
    a(f's_add_u32 s{S_T0}, s{S_MC}, s{S_DUP}')
    a(f'buffer_store_dwordx2 {vr(NEG,2)}, v{RO}, {SRD}, s{S_MC} offen {stf}'.rstrip())
    a(f'buffer_store_dwordx2 {vr(NEG,2)}, v{RO}, {SRD}, s{S_T0} offen {stf}'.rstrip())
    a('s_mov_b64 exec, -1')
    lds_frag_read(a, lg, (QK_LDS[c0], c0), 1, T1, 'T')
    delay(D2R)
    a(f's_branch NEXT{sfx}')
    a.label(f'NORED{sfx}')
    zero(a, range(40, 64))
    lds_frag_read(a, lg, (QK_LDS[c0], c0), 0, T0, 'T'); lds_frag_read(a, lg, (QK_LDS[c0], c0), 1, T1, 'T')
    emit_vma(a, V_X, 4)
    delay(D2)
    a.label(f'NEXT{sfx}')
    if dbg:
        a('s_waitcnt lgkmcnt(0)')
        a(f's_lshl_b32 s{S_T0}, s{S_STEP}, 7\ns_lshl_b32 s{S_T1}, s{S_H}, 2\ns_add_u32 s{S_T0}, s{S_T0}, s{S_T1}\ns_add_u32 s{S_T0}, s{S_T0}, s{S_WV}\ns_lshl_b32 s{S_T0}, s{S_T0}, 6\ns_add_u32 s{S_T0}, s{S_T0}, {WS_DBG}')
        for k in range(8): a(f'v_writelane_b32 v4, s{60+2*k}, {k}')
        a('v_writelane_b32 v4, s52, 8\nv_writelane_b32 v4, s53, 9\nv_writelane_b32 v4, s25, 10')
        a(f'v_lshrrev_b32 v5, 2, v{V_L16}')
        a('s_mov_b64 exec, 0x7ff')
        a(f'buffer_store_dword v4, v5, {SRD}, s{S_T0} offen')
        a('s_mov_b64 exec, -1')
    a(f's_add_u32 s{S_STEP}, s{S_STEP}, 1')
    a(f's_xor_b32 s{S_PC}, s{S_PC}, s{S_PO}\ns_xor_b32 s{S_PST}, s{S_PST}, s{S_PO}')
    a(f's_and_b32 s{S_T0}, s{S_STEP}, 3\ns_lshl_b32 s{S_TAG}, s{S_T0}, 7\ns_add_u32 s{S_TAG}, s{S_TAG}, 0x3f80\ns_lshl_b32 s{S_TAGS}, s{S_T0}, 23\ns_add_u32 s{S_TAGS}, s{S_TAGS}, 0x43000000')
    a(f's_mov_b32 s{S_T0}, s{S_MC}\ns_mov_b32 s{S_MC}, s{S_MN}\ns_mov_b32 s{S_MN}, s{S_MP}\ns_mov_b32 s{S_MP}, s{S_T0}')
    if not cfg.get('static'):
        a(f's_add_u32 s{S_VF}, s{S_VF}, {32*8192}\ns_add_u32 s{S_KF}, s{S_KF}, {32*8192}\ns_add_u32 s{S_PF}, s{S_PF}, {32*8192}')
    a(f's_add_u32 s{S_KM}, s{S_KM}, {32*4096}')
    a(f's_cmp_lt_u32 s{S_STEP}, 63\ns_cbranch_scc1 STEP{sfx}')
    FA = lambda i: 4 + 4 * i
    a(f's_mov_b32 s{S_CNT}, 0')
    a.label(f'FPOLL{sfx}')
    a(f'v_subrev_u32 v41, s{S_ROTB}, v{V_X}')
    for i in range(9): a(f'buffer_load_dwordx4 {vr(FA(i),4)}, v{V_X if i < 3 else 41}, {SRD}, s{S_MC} offen offset:{aoff(i)} sc1')
    timeout(a)
    a('s_waitcnt vmcnt(0)')
    a(f'v_max_u32 v40, v{FA(0)+1}, v{FA(0)+3}')
    for i in range(1, 9): a(f'v_max3_u32 v40, v40, v{FA(i)+1}, v{FA(i)+3}')
    a('v_cmp_eq_u32 vcc, -1, v40')
    a(f's_cmp_lg_u32 s{S_ABORT}, 0\ns_cbranch_scc1 FGO{sfx}')
    a(f's_cbranch_vccnz FPOLL{sfx}')
    a.label(f'FGO{sfx}')
    klds = [i for i in lds_chunks if QK_LDS[i] == 'k']
    assert len(klds) == 2
    lds_frag_read(a, lg, ('k', klds[0]), 0, T0, 'T'); lds_frag_read(a, lg, ('k', klds[0]), 1, T1, 'T')
    lds_frag_read(a, lg, ('k', klds[1]), 0, 40, 'T')
    for i in range(9):
        if i in klds: continue
        for z in range(2): smf(ACC[f'k{z}'], FA(i), frag_reg(('k', i), z))
    a('s_waitcnt lgkmcnt(0)')
    smf(ACC['k0'], FA(klds[0]), vr(T0, 8)); smf(ACC['k1'], FA(klds[0]), vr(T1, 8)); smf(ACC['k0'], FA(klds[1]), vr(40, 8))
    lds_frag_read(a, lg, ('k', klds[1]), 1, T0, 'T')
    for i in range(9):
        for z in range(2): smf(ACC[f'v{z}'], FA(i), frag_reg(('v', i), z))
    a('s_waitcnt lgkmcnt(0)')
    smf(ACC['k1'], FA(klds[1]), vr(T0, 8))
    a(f'v_lshrrev_b32 v{V_X}, 1, v{V_L16}')
    for nm, d in (('v0', 42), ('v1', 43), ('k0', 40), ('k1', 41)):
        r = ACC[nm]
        a(f'v_pk_add_f32 {vr(r,2)}, {vr(r,2)}, {vr(r+2,2)}')
        a(f'v_cvt_pk_bf16_f32 v{d}, v{r}, v{r+1}')
        if nm == 'v1': a(f'buffer_store_dwordx2 v[42:43], v{V_X}, {SRD}, s{S_KM} offen offset:512 sc1')
    a(f'buffer_store_dwordx2 v[40:41], v{V_X}, {SRD}, s{S_KM} offen sc1')
    a('s_branch CHAIN_DONE')
    a.label(f'REDO{sfx}')
    if dbg: a('s_add_u32 s25, s25, 0x10000')
    a('s_waitcnt vmcnt(0) lgkmcnt(0)')
    a('s_nop 15')
    zero(a, range(40, 64))
    emit_vma(a, V_X, T0)
    a(f'v_subrev_u32 v{T0+1}, s{S_ROTB}, v{V_X}')
    done_v = [(i, z) for i in range(NFULL) for z in range(2)] + [(4, 0), (4, 1)]
    for c in range(9):
        l = f'RD{c}{sfx}'
        dst = AR(c) if c >= 5 else R(3)
        a.label(l)
        a(f'buffer_load_dwordx4 {vr(dst,4)}, v{V_X if c < 3 else T0+1}, {SRD}, s{S_MC} offen offset:{aoff(c)} sc1')
        timeout(a)
        a(f's_cmp_lg_u32 s{S_ABORT}, 0\ns_cselect_b64 s[{S_T3}:{S_T4}], 0, -1')
        a('s_waitcnt vmcnt(0)')
        a(f'v_max_u32 v{T0+2}, v{dst+1}, v{dst+3}\nv_cmp_eq_u32 vcc, -1, v{T0+2}\ns_and_b64 vcc, vcc, s[{S_T3}:{S_T4}]')
        a(f's_cbranch_vccnz {l}')
        for m in 'qkv':
            for z in range(2):
                if m == 'v' and (c, z) not in done_v: continue
                if LOC[((m, c), z)][0] == 'lds':
                    lds_frag_read(a, lg, (m, c), z, T1, 'T'); a('s_waitcnt lgkmcnt(0)')
                    smf(ACC[f'{m}{z}'], dst, vr(T1, 8))
                else: smf(ACC[f'{m}{z}'], dst, frag_reg((m, c), z))
    a('s_nop 15')
    for ks in range(2):
        for t in range(2): a(f'ds_read_b128 {vr(KX[(t, ks)],4)}, v{V_L16} offset:{L_KX + t*4096 + ks*1024}')
    a(f'v_pk_add_f32 {vr(K0,2)}, {vr(K0,2)}, {vr(K0+2,2)}')
    a(f'v_pk_add_f32 {vr(K1,2)}, {vr(K1,2)}, {vr(K1+2,2)}')
    a(f'v_cvt_pk_bf16_f32 v{K0}, v{K0}, v{K0+1}')
    a(f'v_cvt_pk_bf16_f32 v{K0+2}, v{K1}, v{K1+1}')
    a(f'v_pk_add_f32 {vr(Q0,2)}, {vr(Q0,2)}, {vr(Q0+2,2)}')
    a(f'v_pk_add_f32 {vr(Q1,2)}, {vr(Q1,2)}, {vr(Q1+2,2)}')
    a(f'v_cvt_pk_bf16_f32 v{K0+1}, v{Q0}, v{Q0+1}')
    a(f'v_cvt_pk_bf16_f32 v{K0+3}, v{Q1}, v{Q1+1}')
    a(f'ds_write2st64_b64 v{XB}, {vr(K0,2)}, {vr(K0+2,2)} offset0:{L_KXX//512} offset1:{L_KXX//512+1}')
    a('s_waitcnt lgkmcnt(0)')
    a(f's_branch REDOX{sfx}')
    a.label(f'RCHK{sfx}')
    a('s_mov_b64 exec, -1')
    pl()
    timeout(a)
    a(f's_cmp_eq_u32 s{S_ABORT}, 0\ns_cbranch_scc1 RWAIT{sfx}')
    a('s_waitcnt vmcnt(0)')
    a(f's_mov_b64 exec, s[{S_MK_J8}:{S_MK_J8+1}]')
    a(f's_branch RGO{sfx}')

def next_prep(a, lg):
    for r in range(40, 64): a(f'v_mov_b32 v{r}, 0')
    c0 = sorted(QK_LDS)[0]
    lds_frag_read(a, lg, (QK_LDS[c0], c0), 0, T0, 'T'); lds_frag_read(a, lg, (QK_LDS[c0], c0), 1, T1, 'T')
    emit_vma(a, V_X, 4)

def chain_init(a, P, cfg):
    SRD = f's[{S_WS}:{S_WS+3}]'
    a(f's_mov_b32 s{S_STEP}, 0\ns_mov_b32 s{S_ABORT}, 0')
    a(f's_mov_b32 s{S_PC}, {WS_P}\ns_mov_b32 s{S_PO}, {WS_P ^ (WS_P + 0x80000)}')
    a(f's_mul_i32 s{S_T0}, s{S_H}, 12288\ns_add_u32 s{S_PST}, s{S_PC}, s{S_T0}\ns_mul_i32 s{S_T0}, s{S_WV}, 3072\ns_add_u32 s{S_PST}, s{S_PST}, s{S_T0}')
    a(f's_mov_b32 s{S_TAG}, 0x3f80\ns_mov_b32 s{S_TAGS}, 0x43000000\ns_lshl_b32 s{S_ROTB}, s{S_ROT}, 7')
    a(f's_mov_b32 s{S_MK_N6}, 0x00400040\ns_mov_b32 s{S_MK_N6+1}, 0x00400040')
    a(f's_mov_b32 s{S_MC}, {WS_M}\ns_mov_b32 s{S_MN}, {WS_M + M_STRIDE}\ns_mov_b32 s{S_MP}, {WS_M + 2*M_STRIDE}')
    a(f's_lshl_b32 s{S_T0}, s{S_H}, 13\ns_lshl_b32 s{S_T1}, s{S_WV}, 11\ns_add_u32 s{S_T1}, s{S_T0}, s{S_T1}')
    a(f's_add_u32 s{S_VF}, s{S_T1}, {WS_VF}')
    a(f's_add_u32 s{S_KF}, s{S_T1}, {WS_KF + 32*8192}')
    a(f's_and_b32 s{S_W2K}, s{S_WV}, 1\ns_lshl_b32 s{S_W2K}, s{S_W2K}, 12')
    a(f's_add_u32 s{S_PF}, s{S_T0}, {WS_VF + 32*8192}\ns_add_u32 s{S_T1}, s{S_T0}, {WS_KF + 2*32*8192}')
    a(f's_cmp_ge_u32 s{S_WV}, 2\ns_cselect_b32 s{S_PF}, s{S_T1}, s{S_PF}\ns_add_u32 s{S_PF}, s{S_PF}, s{S_W2K}\ns_lshl_b32 s{S_W2K}, s{S_WV}, 11')
    a(f's_lshl_b32 s{S_W512}, s{S_WV}, 9\ns_lshl_b32 s{S_W4}, s{S_WV}, 2\ns_mov_b32 s{S_F0}, 0xf0')
    a(f's_lshl_b32 s{S_T0}, s{S_H}, 12\ns_lshl_b32 s{S_T1}, s{S_WV}, 10\ns_add_u32 s{S_T0}, s{S_T0}, s{S_T1}')
    a(f's_add_u32 s{S_KM}, s{S_T0}, {WS_KM}')
    a(f's_mov_b32 s{S_MK_KEY}, 0xcccccccc\ns_mov_b32 s{S_MK_KEY+1}, 0xcccccccc')
    a(f's_mov_b32 s{S_MK_J8}, 0x003f003f\ns_mov_b32 s{S_MK_J8+1}, 0x003f003f')
    import struct
    c = math.log2(math.e) / math.sqrt(128.0)
    a(f's_mov_b32 s{S_SC}, 0x{struct.unpack("<I", struct.pack("<f", c))[0]:08x}\ns_mov_b32 s{S_SC+1}, s{S_SC}')
    a(f's_mov_b32 s{S_RED}, 0')
    a(f's_lshr_b32 s{S_T0}, s{S_H}, 4\ns_and_b32 s{S_T1}, s{S_H}, 15')
    a(f's_cmp_eq_u32 s{S_WV}, 0\ns_cselect_b32 s{S_RED}, 1, 0')
    l = a.newlabel('RT')
    a(f's_cmp_lg_u32 s{S_WV}, 1\ns_cbranch_scc1 {l}\ns_cmp_ge_u32 s{S_H}, 16\ns_cbranch_scc1 {l}')
    a(f's_mov_b32 s{S_RED}, 1\ns_mov_b32 s{S_T0}, 2')
    a.label(l)
    a(f's_lshr_b32 s{S_T3}, s{S_T1}, 2\ns_and_b32 s{S_T4}, s{S_T1}, 3')
    a(f's_mul_i32 s{S_RLD}, s{S_T3}, 3072\ns_lshl_b32 s{S_T2}, s{S_T0}, 10\ns_add_u32 s{S_RLD}, s{S_RLD}, s{S_T2}\ns_lshl_b32 s{S_T2}, s{S_T4}, 8\ns_add_u32 s{S_RLD}, s{S_RLD}, s{S_T2}')
    a(f's_sub_u32 s{S_T0}, 2, s{S_T0}')
    a(f's_mul_i32 s{S_RB}, s{S_T4}, {2*M_PITCH}\ns_mul_i32 s{S_T2}, s{S_T0}, 384\ns_add_u32 s{S_RB}, s{S_RB}, s{S_T2}\ns_mul_i32 s{S_T2}, s{S_T3}, 96\ns_add_u32 s{S_RB}, s{S_RB}, s{S_T2}')
    a(f's_cmp_eq_u32 s{S_T0}, 0\ns_cselect_b32 s{S_DUP}, 384, 0\ns_cselect_b32 s{S_T2}, 0, 384\ns_add_u32 s{S_RB}, s{S_RB}, s{S_T2}')

def mem0_copy(a, P):
    a(f's_mov_b32 s8, s{P["mem0"]}\ns_mov_b32 s9, s{P["mem0"]+1}\ns_mov_b32 s10, 9216\ns_mov_b32 s11, 0x20000')
    a(f's_mov_b32 s34, {WS_M}')
    for k in range(3):
        a(f'v_add_u32 v12, {k*256}, v0')
        a('v_mul_u32_u24 v13, 911, v12\nv_lshrrev_b32 v13, 16, v13')
        a('v_mul_u32_u24 v14, 72, v13\nv_sub_u32 v14, v12, v14')
        a('v_lshrrev_b32 v15, 1, v14')
        a('v_mul_u32_u24 v16, 57, v15\nv_lshrrev_b32 v16, 9, v16')
        a('v_mul_u32_u24 v17, 9, v16\nv_sub_u32 v17, v15, v17')
        a('v_mul_u32_u24 v18, 43, v17\nv_lshrrev_b32 v18, 7, v18')
        a('v_mul_u32_u24 v19, 3, v18\nv_sub_u32 v19, v17, v19')
        a('v_sub_u32 v18, 2, v18')
        a(f'v_mul_u32_u24 v20, {M_PITCH}, v13')
        a('v_mul_u32_u24 v21, 384, v18\nv_add_u32 v20, v20, v21\nv_min_u32 v21, 1, v18\nv_mul_u32_u24 v21, 384, v21\nv_add_u32 v20, v20, v21')
        a('v_mul_u32_u24 v21, 96, v16\nv_add_u32 v20, v20, v21\nv_lshl_add_u32 v20, v19, 5, v20\nv_and_b32 v21, 1, v14\nv_lshl_add_u32 v20, v21, 4, v20')
        a('v_lshlrev_b32 v21, 4, v12')
        a('v_cmp_gt_u32 vcc, 576, v12\ns_and_saveexec_b64 s[36:37], vcc')
        a('buffer_load_dwordx4 v[8:11], v21, s[8:11], 0 offen\ns_waitcnt vmcnt(0)')
        a('buffer_store_dwordx4 v[8:11], v20, s[4:7], s34 offen sc1')
        a('v_cmp_eq_u32 vcc, 0, v18\ns_and_b64 exec, exec, vcc')
        a('buffer_store_dwordx4 v[8:11], v20, s[4:7], s34 offen offset:384 sc1')
        a('s_mov_b64 exec, s[36:37]')
```

```python
from asmlib import *
from layout import *
from gemm1 import *

F_R = 16; F_CQ = 17; F_U = 18; F_HO = 19; F_WO = 20; F_DB = 21; F_CUR = 22; F_SEG = 23
V_LN = 1; V_L16 = 2; V_D = 3; V_TR = 4; V_TRC = 5
FACC = 16
HB = 64; NH = 16
AW = 128; NAW = 6
UK = 128
UB = 3 * UK * 64
NU = 4608 // UK
NRING = 6

def ffn2(a, P, cfg):
    a('; ---- ffn down ----')
    a(f's_lshl_b32 s{F_R}, s{G_RB}, 1\ns_and_b32 s{G_T0}, s{G_CG}, 1\ns_add_u32 s{F_R}, s{F_R}, s{G_T0}\ns_lshr_b32 s{F_CQ}, s{G_CG}, 1')
    a(f'v_and_b32 v{V_LN}, 63, v0\nv_lshlrev_b32 v{V_L16}, 4, v{V_LN}')
    a(f'v_lshrrev_b32 v8, 2, v{V_LN}\nv_and_b32 v9, 3, v{V_LN}\nv_lshlrev_b32 v9, 4, v9\nv_mul_u32_u24 v{V_D}, 1152, v8\nv_add_u32 v{V_D}, v{V_D}, v9')
    a(f'v_lshrrev_b32 v8, 5, v{V_LN}\nv_bfe_u32 v9, v{V_LN}, 2, 2\nv_lshl_add_u32 v8, v8, 3, v9\nv_lshlrev_b32 v8, 6, v8')
    a(f'v_bfe_u32 v9, v{V_LN}, 4, 1\nv_lshl_add_u32 v8, v9, 5, v8\nv_and_b32 v9, 3, v{V_LN}\nv_lshl_add_u32 v{V_TR}, v9, 3, v8')
    a(f's_mov_b32 s8, s{P["wd"]}\ns_mov_b32 s9, s{P["wd"]+1}\ns_mov_b32 s10, {4608*1152}\ns_mov_b32 s11, 0x20000')
    a(f's_mul_i32 s{F_WO}, s{F_CQ}, 192\ns_mul_i32 s{G_T0}, s{G_WV}, {32*1152}\ns_add_u32 s{F_WO}, s{F_WO}, s{G_T0}')
    a(f's_lshl_b32 s{G_LB}, s{G_WV}, 11')
    a(f's_mov_b32 s{F_DB}, 0\ns_mov_b32 s{F_CUR}, 0\ns_mov_b32 s{G_DJ}, 0')
    def dma_ops():
        ops = [f's_add_u32 s{G_T0}, s{F_DB}, s{G_LB}']
        for st in range(3):
            for hh in range(2):
                ops.append(f's_add_u32 m0, s{G_T0}, {st*UK*64 + hh*1024}\ns_add_u32 s{G_T1}, s{F_WO}, {st*64 + hh*16*1152}\nbuffer_load_dwordx4 v{V_D}, s[8:11], s{G_T1} offen lds')
        ops.append(f's_add_u32 s{G_DJ}, s{G_DJ}, 1\ns_cmp_lt_u32 s{G_DJ}, {NU}\ns_cselect_b32 s{G_T1}, {UK*1152}, 0\ns_add_u32 s{F_WO}, s{F_WO}, s{G_T1}')
        ops.append(f's_add_u32 s{F_DB}, s{F_DB}, {UB}\ns_cmp_eq_u32 s{F_DB}, {NRING*UB}\ns_cselect_b32 s{F_DB}, 0, s{F_DB}')
        return ops
    a('s_barrier')
    for _ in range(NRING - 1):
        for op in dma_ops(): a(op)
    wait_flag(a, P, DBG_H, G_RB, 24, vtmp=(8, 9), sleep=8)
    if cfg.get('prof'): cfg['_prof'](a, 2)
    a(f's_lshl_b32 s{F_HO}, s{F_R}, 2\ns_add_u32 s{F_HO}, s{F_HO}, s{G_WV}\ns_mul_i32 s{F_HO}, s{F_HO}, {288*1024}\ns_add_u32 s{F_HO}, s{F_HO}, {WS_HF}')
    KS = UK // 16
    def ldh(slot, koff):
        return f'buffer_load_dwordx4 {vr(HB+4*slot,4)}, v{V_L16}, s[4:7], s{G_T2} offen offset:{(koff % 4)*1024} sc1'
    for k in range(NH):
        if k % 4 == 0: a(f's_add_u32 s{G_T2}, s{F_HO}, {k*1024}')
        a(ldh(k, k))
    a(f's_add_u32 s{F_HO}, s{F_HO}, {NH*1024}')
    for r in range(FACC, FACC + 48, 2): a(f'v_mov_b64 {vr(r,2)}, 0')
    a(f's_mov_b32 s{F_U}, 0')
    a.label('F2L')
    for half in range(2):
        a('s_waitcnt vmcnt(40)')
        a('s_barrier')
        a(f'v_add_u32 v{V_TRC}, s{F_CUR}, v{V_TR}')
        a(f's_add_u32 s{F_CUR}, s{F_CUR}, {UB}\ns_cmp_eq_u32 s{F_CUR}, {NRING*UB}\ns_cselect_b32 s{F_CUR}, 0, s{F_CUR}')
        fill = dma_ops()
        seq = [(ks, st) for ks in range(KS) for st in range(3)]
        def rd(n):
            ks, st = seq[n]; w = AW + 4 * (n % NAW)
            a(f'ds_read_b64_tr_b16 {vr(w,2)}, v{V_TRC} offset:{st*UK*64 + ks*1024}')
            a(f'ds_read_b64_tr_b16 {vr(w+2,2)}, v{V_TRC} offset:{st*UK*64 + ks*1024 + 256}')
        PD = NAW - 1
        for n in range(PD): rd(n)
        for n, (ks, st) in enumerate(seq):
            if n + PD < len(seq): rd(n + PD)
            slot = half * KS + ks
            if st == 0:
                a('s_waitcnt vmcnt(15)')
            a(f's_waitcnt lgkmcnt({2*min(PD, len(seq)-1-n)})')
            d = vr(FACC + 16*st, 16)
            a(f'v_mfma_f32_32x32x16_bf16 {d}, {vr(AW+4*(n%NAW),4)}, {vr(HB+4*slot,4)}, {d}')
            if st == 2:
                if ks % 4 == 0: a(f's_add_u32 s{G_T2}, s{F_HO}, {slot*1024}')
                a(ldh(slot, slot))
            elif fill: a(fill.pop(0))
        assert not fill
    a(f's_add_u32 s{F_HO}, s{F_HO}, {NH*1024}')
    a(f's_add_u32 s{F_U}, s{F_U}, 2\ns_cmp_lt_u32 s{F_U}, {NU}\ns_cbranch_scc1 F2L')
    a('s_waitcnt vmcnt(0)\ns_barrier')
    if cfg.get('prof'): cfg['_prof'](a, 0)
    YP = 400
    a(f'v_and_b32 v8, 31, v{V_LN}\nv_mul_u32_u24 v8, {YP}, v8\nv_lshrrev_b32 v9, 5, v{V_LN}\nv_lshl_add_u32 v8, v9, 4, v8')
    a(f's_mul_i32 s{G_T0}, s{G_WV}, {32*YP}\nv_add_u32 v8, s{G_T0}, v8')
    for st in range(3):
        for aq in range(4):
            a(f'ds_write_b128 v8, {vr(FACC+16*st+4*aq,4)} offset:{st*128 + aq*32}')
    a('s_waitcnt lgkmcnt(0)\ns_barrier')
    IT = 8
    OA = 16; OY = 20; OX = 24; OO = 28
    for i in range(3):
        a(f'v_add_u32 v14, {64*i}, v{V_LN}\nv_mul_u32_u24 v{IT+i}, 171, v14\nv_lshrrev_b32 v{IT+i}, 12, v{IT+i}')
        a(f'v_mul_u32_u24 v15, 24, v{IT+i}\nv_sub_u32 v{IT+3+i}, v14, v15')
        a(f's_lshl_b32 s{G_T0}, s{G_WV}, 3\nv_add_u32 v{IT+i}, s{G_T0}, v{IT+i}')
        a(f'v_mul_u32_u24 v{OA+i}, 2304, v{IT+i}\nv_lshl_add_u32 v{OA+i}, v{IT+3+i}, 4, v{OA+i}')
        a(f'v_mul_u32_u24 v{OY+i}, {YP}, v{IT+i}\nv_lshl_add_u32 v{OY+i}, v{IT+3+i}, 4, v{OY+i}')
        a(f'v_mul_u32_u24 v{OX+i}, 1152, v{IT+i}\nv_lshl_add_u32 v{OX+i}, v{IT+3+i}, 3, v{OX+i}')
    a(f's_mov_b32 s8, s{P["x"]}\ns_mov_b32 s9, s{P["x"]+1}\ns_mov_b32 s10, {2048*1152}\ns_mov_b32 s11, 0x20000')
    a(f's_mov_b32 s32, s{P["out"]}\ns_mov_b32 s33, s{P["out"]+1}\ns_mov_b32 s34, {2048*1152}\ns_mov_b32 s35, 0x20000')
    a(f's_mov_b32 s{F_U}, 0')
    a.label('F3L')
    a(f's_lshl_b32 s{F_SEG}, s{F_R}, 2\ns_add_u32 s{F_SEG}, s{F_SEG}, s{F_U}')
    a(f's_mul_i32 s{F_WO}, s{F_SEG}, {32*1152}\ns_mul_i32 s{G_T0}, s{F_CQ}, 192\ns_add_u32 s{F_WO}, s{F_WO}, s{G_T0}')
    XV = 32; YV = 40; PV = 64
    for i in range(3): a(f'buffer_load_dwordx2 {vr(XV+2*i,2)}, v{OX+i}, s[8:11], s{F_WO} offen')
    a(f's_mul_i32 s{G_T0}, s{F_U}, {32*YP}')
    for i in range(3):
        a(f'v_add_u32 v15, s{G_T0}, v{OY+i}\nds_read_b128 {vr(YV+4*i,4)}, v15')
    a(f's_cmp_ge_u32 s{F_CQ}, 3\ns_cselect_b32 s{G_T0}, 1, 0\ns_lshl_b32 s{G_T1}, s{F_SEG}, 1\ns_add_u32 s{G_T0}, s{G_T0}, s{G_T1}')
    a(f's_lshr_b32 s{G_T1}, s{G_T0}, 3\ns_and_b32 s{G_T0}, s{G_T0}, 7\ns_lshl_b32 s{G_T0}, s{G_T0}, 2')
    wait_flag(a, P, DBG_AO, G_T1, 8, vtmp=(14, 15), sleep=cfg.get('FSLEEP', 4), shift_s=G_T0, mask=15)
    a(f's_mul_i32 s{G_T2}, s{F_SEG}, {8*73728}\ns_mul_i32 s{G_T0}, s{F_CQ}, 384\ns_add_u32 s{G_T2}, s{G_T2}, s{G_T0}\ns_add_u32 s{G_T2}, s{G_T2}, {WS_AP}')
    for hg in range(8):
        for i in range(3): a(f'buffer_load_dwordx4 {vr(PV+12*hg+4*i,4)}, v{OA+i}, s[4:7], s{G_T2} offen sc1')
        if hg < 7: a(f's_add_u32 s{G_T2}, s{G_T2}, 73728')
    a('s_waitcnt lgkmcnt(0)\ns_waitcnt vmcnt(24)')
    for i in range(3):
        x = XV + 2*i; y = YV + 4*i
        for hh in range(2):
            a(f'v_lshlrev_b32 v14, 16, v{x+hh}\nv_and_b32 v15, 0xffff0000, v{x+hh}')
            a(f'v_pk_add_f32 {vr(y+2*hh,2)}, {vr(y+2*hh,2)}, v[14:15]')
    for hg in range(8):
        a(f's_waitcnt vmcnt({3*(7-hg)})')
        for i in range(3):
            p = PV + 12*hg + 4*i; y = YV + 4*i
            a(f'v_pk_add_f32 {vr(y,2)}, {vr(y,2)}, {vr(p,2)}\nv_pk_add_f32 {vr(y+2,2)}, {vr(y+2,2)}, {vr(p+2,2)}')
    for i in range(3):
        y = YV + 4*i
        a(f'v_cvt_pk_bf16_f32 v{y}, v{y}, v{y+1}\nv_cvt_pk_bf16_f32 v{y+1}, v{y+2}, v{y+3}')
        a(f'buffer_store_dwordx2 {vr(y,2)}, v{OX+i}, s[32:35], s{F_WO} offen {cfg.get("OST", "")}')
    a(f's_add_u32 s{F_U}, s{F_U}, 1\ns_cmp_lt_u32 s{F_U}, 4\ns_cbranch_scc1 F3L')
```

```python
from asmlib import *
from layout import *
from chain import Cnt
import struct, math

def f32bits(x): return struct.unpack('<I', struct.pack('<f', x))[0]

G_CG = 12; G_WV = 13; G_RB = 14; G_I = 15
G_SW = 8
G_SG = 16; G_SU = 20
G_T0 = 24; G_T1 = 25; G_T2 = 26; G_T3 = 27; G_T4 = 28; G_T5 = 29
G_LB = 30
G_C1 = 32; G_C2 = 34; G_ONE = 36
G_DJ = 38
G_CUR = 39
G_DB = 40
G_SO = 41
G_CNT = 42

DBG_LN = 64; DBG_KV = 96; DBG_Q = 128; DBG_H = 160; DBG_AO = 192
DBG_CHAIN = 40; DBG_AOINIT = 44; DBG_IMPURE = 48

def signal(a, P, off_imm, s_idx=None, val=1, vtmp=(4, 5)):
    l = a.newlabel('SIG')
    a(f's_cmp_lg_u32 s13, 0\ns_cbranch_scc1 {l}')
    if s_idx is None: a(f'v_mov_b32 v{vtmp[0]}, {off_imm}')
    else: a(f's_lshl_b32 s{G_T5}, s{s_idx}, 2\ns_add_u32 s{G_T5}, s{G_T5}, {off_imm}\nv_mov_b32 v{vtmp[0]}, s{G_T5}')
    a(f'v_mov_b32 v{vtmp[1]}, {val}' if isinstance(val, int) else f'v_mov_b32 v{vtmp[1]}, s{val[0]}')
    a('s_mov_b64 exec, 1')
    a(f'global_atomic_add v{vtmp[0]}, v{vtmp[1]}, s[{P["dbg"]}:{P["dbg"]+1}]')
    a('s_mov_b64 exec, -1')
    a.label(l)

def wait_flag(a, P, off_imm, s_idx, target, vtmp=(4, 5), sleep=8, shift_s=None, mask=None, cnt=42):
    l = a.newlabel('WF'); d = a.newlabel('WFD')
    if s_idx is None: a(f'v_mov_b32 v{vtmp[0]}, {off_imm}')
    else: a(f's_lshl_b32 s{G_T5}, s{s_idx}, 2\ns_add_u32 s{G_T5}, s{G_T5}, {off_imm}\nv_mov_b32 v{vtmp[0]}, s{G_T5}')
    a(f's_mov_b32 s{cnt}, 0')
    a.label(l)
    a(f'global_load_dword v{vtmp[1]}, v{vtmp[0]}, s[{P["dbg"]}:{P["dbg"]+1}] sc1')
    a(f's_add_u32 s{cnt}, s{cnt}, 1\ns_cmp_gt_u32 s{cnt}, 0x20000\ns_cbranch_scc1 {d}')
    a('s_waitcnt vmcnt(0)')
    if shift_s is not None: a(f'v_lshrrev_b32 v{vtmp[1]}, s{shift_s}, v{vtmp[1]}\nv_and_b32 v{vtmp[1]}, {mask}, v{vtmp[1]}')
    a(f'v_cmp_le_u32 vcc, {target}, v{vtmp[1]}')
    a(f's_cbranch_vccnz {d}')
    if sleep: a(f's_sleep {sleep}')
    a(f's_branch {l}')
    a.label(d)
    a('s_waitcnt vmcnt(0)')

def rnd_bf16(a, dst, src, tmp=None):
    a(f'v_cvt_pk_bf16_f32 v{dst}, v{src}, v{src}\nv_lshlrev_b32 v{dst}, 16, v{dst}')

def layernorm(a, P):
    a('; ---- layernorm ----')
    a(f's_mov_b32 s8, s{P["x"]}\ns_mov_b32 s9, s{P["x"]+1}\ns_mov_b32 s10, {2048*1152}\ns_mov_b32 s11, 0x20000')
    a('v_and_b32 v1, 63, v0\nv_lshrrev_b32 v2, 3, v1\nv_and_b32 v3, 7, v1')
    a(f's_lshl_b32 s{G_T0}, s{G_CG}, 2\ns_add_u32 s{G_T0}, s{G_T0}, s{G_WV}\ns_lshl_b32 s{G_T0}, s{G_T0}, 3')
    a(f's_lshl_b32 s{G_T1}, s{G_RB}, 8\ns_add_u32 s{G_T0}, s{G_T0}, s{G_T1}')
    a(f's_mul_i32 s{G_T1}, s{G_T0}, 1152')
    a('v_mul_u32_u24 v4, 1152, v2\nv_lshl_add_u32 v4, v3, 4, v4')
    X = 8; F = 48
    for i in range(9): a(f'buffer_load_dwordx4 {vr(X+4*i,4)}, v4, s[8:11], s{G_T1} offen offset:{i*128}')
    a(f's_lshr_b32 s{G_T2}, s{G_T0}, 5\ns_mul_i32 s{G_T2}, s{G_T2}, 36864\ns_and_b32 s{G_T3}, s{G_T0}, 31\ns_lshl_b32 s{G_T3}, s{G_T3}, 4\ns_add_u32 s{G_T2}, s{G_T2}, s{G_T3}\ns_add_u32 s{G_T2}, s{G_T2}, {WS_XF}')
    a('v_lshrrev_b32 v5, 1, v3\nv_lshlrev_b32 v5, 10, v5\nv_and_b32 v6, 1, v3\nv_lshl_add_u32 v5, v6, 9, v5\nv_lshl_add_u32 v5, v2, 4, v5')
    for i in range(9):
        a(f's_waitcnt vmcnt({8-i})')
        for r in range(4):
            x = X + 4*i + r; f = F + 2*(4*i + r)
            a(f'v_lshlrev_b32 v{f}, 16, v{x}\nv_and_b32 v{f+1}, 0xffff0000, v{x}')
    def red8(v, t):
        a(f'v_add_f32_dpp v{v}, v{v}, v{v} quad_perm:[1,0,3,2] row_mask:0xf bank_mask:0xf')
        a(f'v_add_f32_dpp v{v}, v{v}, v{v} quad_perm:[2,3,0,1] row_mask:0xf bank_mask:0xf')
        a(f'v_add_f32_dpp v{v}, v{v}, v{v} row_half_mirror row_mask:0xf bank_mask:0xf')
    S = 120
    a(f'v_pk_add_f32 {vr(S,2)}, {vr(F,2)}, {vr(F+2,2)}')
    for k in range(2, 36): a(f'v_pk_add_f32 {vr(S,2)}, {vr(S,2)}, {vr(F+2*k,2)}')
    a(f'v_add_f32 v{S}, v{S}, v{S+1}')
    red8(S, S+1)
    a(f'v_mul_f32 v{S}, 0x{f32bits(1/576):08x}, v{S}')
    a(f'v_mov_b32 v{S+1}, v{S}')
    Q = 122; D = 124
    a(f'v_mov_b64 {vr(Q,2)}, 0')
    for k in range(36):
        a(f'v_pk_add_f32 {vr(D,2)}, {vr(F+2*k,2)}, {vr(S,2)} neg_lo:[0,1] neg_hi:[0,1]')
        a(f'v_pk_fma_f32 {vr(Q,2)}, {vr(D,2)}, {vr(D,2)}, {vr(Q,2)}')
    a(f'v_add_f32 v{Q}, v{Q}, v{Q+1}')
    red8(Q, Q+1)
    a(f'v_mul_f32 v{Q}, 0x{f32bits(1/576):08x}, v{Q}')
    rnd_bf16(a, Q, Q)
    a(f'v_add_f32 v{Q}, 0x{f32bits(1e-5):08x}, v{Q}')
    rnd_bf16(a, Q, Q)
    a(f'v_sqrt_f32 v{Q}, v{Q}')
    rnd_bf16(a, Q, Q)
    a(f'v_rcp_f32 v{Q}, v{Q}')
    rnd_bf16(a, S, S)
    a(f'v_mov_b32 v{S+1}, v{S}\nv_mov_b32 v{Q+1}, v{Q}')
    for k in range(36):
        f = F + 2*k
        a(f'v_pk_add_f32 {vr(f,2)}, {vr(f,2)}, {vr(S,2)} neg_lo:[0,1] neg_hi:[0,1]')
        a(f'v_cvt_pk_bf16_f32 v{X+k}, v{f}, v{f+1}')
        a(f'v_lshlrev_b32 v{f}, 16, v{X+k}\nv_and_b32 v{f+1}, 0xffff0000, v{X+k}')
        a(f'v_pk_mul_f32 {vr(f,2)}, {vr(f,2)}, {vr(Q,2)}')
        a(f'v_cvt_pk_bf16_f32 v{X+k}, v{f}, v{f+1}')
        if k % 4 == 3:
            i = k // 4
            a(f'buffer_store_dwordx4 {vr(X+4*i,4)}, v5, s[4:7], s{G_T2} offen sc1')
            a(f's_add_u32 s{G_T2}, s{G_T2}, 4096')
    a('s_waitcnt vmcnt(0)\ns_barrier')
    signal(a, P, DBG_LN, G_RB)

def XR(rt, ks):
    n = (rt * 36 + ks) * 4
    return vr(n, 4, 'a') if n < 256 else vr(224 + n - 256, 4, 'v')
V_LN = 1; V_DQ = 2; V_DG = 3; V_TR = 4; V_SK = 5; V_SV = 6; V_L16 = 7; V_D = 10; V_TRC = 11
ACG = 16; ACU = 48; WB = 80; NWB = 4; ET = 96
G_STEP = 16; G_MSK = 18; G_PT = 20; G_OB = 22; G_SZQ = 23; G_STQ = 31

def gemm1(a, P, cfg):
    a('; ---- gemm1 ----')
    a(f'v_and_b32 v{V_LN}, 63, v0\nv_lshlrev_b32 v{V_L16}, 4, v{V_LN}')
    a(f'v_lshrrev_b32 v8, 2, v{V_LN}\nv_and_b32 v9, 3, v{V_LN}\nv_lshlrev_b32 v9, 4, v9')
    a(f'v_lshl_add_u32 v{V_DQ}, v8, 13, v9')
    a(f'v_mul_u32_u24 v{V_DG}, 9216, v8\nv_add_u32 v{V_DG}, v{V_DG}, v9')
    a(f'v_lshrrev_b32 v8, 5, v{V_LN}\nv_bfe_u32 v9, v{V_LN}, 2, 2\nv_lshl_add_u32 v8, v8, 3, v9\nv_lshlrev_b32 v8, 6, v8')
    a(f'v_bfe_u32 v9, v{V_LN}, 4, 1\nv_lshl_add_u32 v8, v9, 5, v8\nv_and_b32 v9, 3, v{V_LN}\nv_lshl_add_u32 v{V_TR}, v9, 3, v8')
    a(f'v_lshrrev_b32 v8, 5, v{V_LN}\nv_and_b32 v9, 15, v{V_LN}\nv_lshlrev_b32 v9, 4, v9\nv_lshl_add_u32 v8, v8, 8, v9\nv_bfe_u32 v9, v{V_LN}, 4, 1')
    a(f'v_lshl_add_u32 v{V_SK}, v9, 12, v8\nv_lshl_add_u32 v{V_SV}, v9, 10, v8')
    a(f's_mov_b32 s{G_SW+3}, 0x20000\ns_mov_b32 s{G_SZQ}, {576*8192}\ns_mov_b32 s{G_STQ}, {16*8192}')
    a(f's_mul_i32 s{G_LB}, s{G_WV}, 9216')
    c1 = -2 * math.log2(math.e) * math.sqrt(2 / math.pi); c2 = c1 * 0.044715
    for sr, v in ((G_C1, c1), (G_C2, c2), (G_ONE, 1.0)):
        a(f's_mov_b32 s{sr}, 0x{f32bits(v):08x}\ns_mov_b32 s{sr+1}, s{sr}')
    pp = lambda n: f's[{P[n]}:{P[n]+1}]'
    def dma_ops():
        pre = f"""s_min_u32 s{G_T0}, s{G_DJ}, 27
s_mul_i32 s{G_T1}, s{G_T0}, 24
s_add_u32 s{G_T1}, s{G_T1}, s{G_CG}
s_lshr_b32 s{G_T2}, s{G_T1}, 7
s_and_b32 s{G_T1}, s{G_T1}, 127
s_lshl_b32 s{G_T1}, s{G_T1}, 6
s_mul_i32 s{G_SO}, s{G_WV}, {144*8192}
s_add_u32 s{G_SO}, s{G_SO}, s{G_T1}
s_cmp_eq_u32 s{G_T2}, 1|s_cselect_b64 s[{G_SW}:{G_SW+1}], {pp('Wv')}, {pp('Wk')}
s_cmp_eq_u32 s{G_T2}, 2|s_cselect_b64 s[{G_SW}:{G_SW+1}], {pp('Wq')}, s[{G_SW}:{G_SW+1}]
s_sub_u32 s{G_T1}, s{G_T0}, 16
s_lshr_b32 s{G_T2}, s{G_T1}, 1
s_mul_i32 s{G_T2}, s{G_T2}, 24
s_add_u32 s{G_T2}, s{G_T2}, s{G_CG}
s_lshl_b32 s{G_T2}, s{G_T2}, 6
s_mul_i32 s{G_T3}, s{G_WV}, {144*9216}
s_add_u32 s{G_T2}, s{G_T2}, s{G_T3}
s_bitcmp1_b32 s{G_T1}, 0|s_cselect_b64 s[{G_PT}:{G_PT+1}], {pp('wu')}, {pp('wg')}
s_cmp_ge_u32 s{G_T0}, 16|s_cselect_b64 s[{G_SW}:{G_SW+1}], s[{G_PT}:{G_PT+1}], s[{G_SW}:{G_SW+1}]|s_cselect_b32 s{G_SO}, s{G_T2}, s{G_SO}|s_cselect_b32 s{G_SW+2}, {576*9216}, s{G_SZQ}|s_cselect_b32 s{G_STEP}, {16*9216}, s{G_STQ}|s_cselect_b64 s[{G_MSK}:{G_MSK+1}], -1, 0
v_cndmask_b32 v{V_D}, v{V_DQ}, v{V_DG}, s[{G_MSK}:{G_MSK+1}]
s_add_u32 s{G_T0}, s{G_DB}, s{G_LB}"""
        ops = [x.replace('|', '\n') for x in pre.split('\n')]
        for n in range(9):
            ops.append(f's_add_u32 m0, s{G_T0}, {n*1024}\ns_nop 0\nbuffer_load_dwordx4 v{V_D}, s[{G_SW}:{G_SW+3}], s{G_SO} offen lds\ns_add_u32 s{G_SO}, s{G_SO}, s{G_STEP}')
        ops.append(f's_add_u32 s{G_DJ}, s{G_DJ}, 1')
        ops.append(f's_add_u32 s{G_DB}, s{G_DB}, 36864\ns_cmp_eq_u32 s{G_DB}, {4*36864}\ns_cselect_b32 s{G_DB}, 0, s{G_DB}')
        return ops
    a(f's_mov_b32 s{G_DJ}, 0\ns_mov_b32 s{G_DB}, 0\ns_mov_b32 s{G_CUR}, 0')
    for _ in range(3):
        for op in dma_ops(): a(op)
    wait_flag(a, P, DBG_LN, G_RB, 8, vtmp=(8, 9), sleep=4)
    a(f's_lshl_b32 s{G_T0}, s{G_RB}, 3\ns_lshl_b32 s{G_T1}, s{G_WV}, 1\ns_add_u32 s{G_T0}, s{G_T0}, s{G_T1}\ns_mul_i32 s{G_T0}, s{G_T0}, 36864\ns_add_u32 s{G_T0}, s{G_T0}, {WS_XF}')
    n = 0
    for rt in range(2):
        for ks in range(36):
            a(f'buffer_load_dwordx4 {XR(rt, ks)}, v{V_L16}, s[4:7], s{G_T0} offen offset:{(n % 4)*1024} sc1')
            n += 1
            if n % 4 == 0: a(f's_add_u32 s{G_T0}, s{G_T0}, 4096')
            if n % 36 == 0 and n < 72: a('s_waitcnt vmcnt(20)')
    a('s_waitcnt vmcnt(0)')

    def tile_start():
        a('s_waitcnt vmcnt(18)')
        a('s_barrier')
        a(f'v_add_u32 v{V_TRC}, s{G_CUR}, v{V_TR}')
        a(f's_add_u32 s{G_CUR}, s{G_CUR}, 36864\ns_cmp_eq_u32 s{G_CUR}, {4*36864}\ns_cselect_b32 s{G_CUR}, 0, s{G_CUR}')
    def body(acc, swapped):
        fill = dma_ops()
        def rd(ks):
            w = WB + 4 * (ks % NWB)
            a(f'ds_read_b64_tr_b16 {vr(w,2)}, v{V_TRC} offset:{ks*1024}')
            a(f'ds_read_b64_tr_b16 {vr(w+2,2)}, v{V_TRC} offset:{ks*1024+256}')
        PD = NWB - 1
        for ks in range(PD): rd(ks)
        for ks in range(36):
            if ks + PD < 36: rd(ks + PD)
            rem = min(PD, 35 - ks)
            a(f's_waitcnt lgkmcnt({2*rem})')
            w = vr(WB + 4 * (ks % NWB), 4)
            for rt in range(2):
                d = vr(acc + 16*rt, 16); c = d if ks else '0'
                if swapped: a(f'v_mfma_f32_32x32x16_bf16 {d}, {w}, {XR(rt, ks)}, {c}')
                else: a(f'v_mfma_f32_32x32x16_bf16 {d}, {XR(rt, ks)}, {w}, {c}')
                if fill and ks >= 1: a(fill.pop(0))
        assert not fill
    def pack_swapped(src_fn, rt, store_fn):
        for ai, aq in enumerate((0, 2)):
            t = ET + 8 * (rt % 2) + 4 * ai
            a(f'v_cvt_pk_bf16_f32 v{t}, v{src_fn(4*aq)}, v{src_fn(4*aq+1)}\nv_cvt_pk_bf16_f32 v{t+1}, v{src_fn(4*aq+2)}, v{src_fn(4*aq+3)}')
            a(f'v_cvt_pk_bf16_f32 v{t+2}, v{src_fn(4*aq+4)}, v{src_fn(4*aq+5)}\nv_cvt_pk_bf16_f32 v{t+3}, v{src_fn(4*aq+6)}, v{src_fn(4*aq+7)}')
            a(f'v_permlane32_swap_b32 v{t}, v{t+2}\nv_permlane32_swap_b32 v{t+1}, v{t+3}')
            store_fn(t, ai)
    a(f's_mov_b32 s{G_I}, 0')
    a.label('G1S')
    tile_start()
    a(f's_mul_i32 s{G_T4}, s{G_I}, 24\ns_add_u32 s{G_T4}, s{G_T4}, s{G_CG}')
    a(f's_lshl_b32 s{G_OB}, s{G_RB}, 3\ns_lshl_b32 s{G_T5}, s{G_WV}, 1\ns_add_u32 s{G_OB}, s{G_OB}, s{G_T5}\ns_lshl_b32 s{G_OB}, s{G_OB}, 18')
    a(f's_bfe_u32 s{G_T5}, s{G_T4}, 0x50002\ns_lshl_b32 s{G_T5}, s{G_T5}, 13\ns_add_u32 s{G_OB}, s{G_OB}, s{G_T5}')
    a(f's_and_b32 s{G_CNT}, s{G_T4}, 3\ns_lshl_b32 s{G_CNT}, s{G_CNT}, 10\ns_add_u32 s{G_OB}, s{G_OB}, s{G_CNT}')
    a(f's_lshr_b32 s{G_T4}, s{G_T4}, 7')
    a(f's_cmp_eq_u32 s{G_T4}, 1\ns_cbranch_scc1 G1V')
    a(f's_cmp_eq_u32 s{G_T4}, 0\ns_cselect_b32 s{G_T4}, {WS_KF}, {WS_QF}' if False else f's_mov_b32 s{G_T5}, {WS_KF}\ns_cmp_eq_u32 s{G_T4}, 0\ns_cselect_b32 s{G_T4}, s{G_T5}, {WS_QF}')
    a(f's_add_u32 s{G_OB}, s{G_OB}, s{G_T4}')
    body(ACG, True)
    for rt in range(2):
        pack_swapped(lambda r: ACG + 16*rt + r, rt,
                     lambda t, ai: a(f'buffer_store_dwordx4 {vr(t,4)}, v{V_SK}, s[4:7], s{G_OB} offen offset:{ai*512} sc1'))
        if rt == 0: a(f's_add_u32 s{G_OB}, s{G_OB}, {32*8192}')
    a('s_branch G1SE')
    a.label('G1V')
    a(f's_add_u32 s{G_OB}, s{G_OB}, s{G_CNT}\ns_add_u32 s{G_OB}, s{G_OB}, {WS_VF}')
    body(ACG, False)
    for rt in range(2):
        for ap in range(2):
            t = ET + 8 * rt + 4 * ap; s0 = ACG + 16*rt + 4*ap; s1 = s0 + 8
            a(f'v_cvt_pk_bf16_f32 v{t}, v{s0}, v{s0+1}\nv_cvt_pk_bf16_f32 v{t+1}, v{s0+2}, v{s0+3}')
            a(f'v_cvt_pk_bf16_f32 v{t+2}, v{s1}, v{s1+1}\nv_cvt_pk_bf16_f32 v{t+3}, v{s1+2}, v{s1+3}')
            a(f'buffer_store_dwordx4 {vr(t,4)}, v{V_SV}, s[4:7], s{G_OB} offen offset:{ap*512} sc1')
        if rt == 0: a(f's_add_u32 s{G_OB}, s{G_OB}, {32*8192}')
    a.label('G1SE')
    for (idx, off, nm) in ((10, DBG_KV, 'G1F1'), (15, DBG_Q, 'G1F2')):
        a(f's_cmp_lg_u32 s{G_I}, {idx}\ns_cbranch_scc1 {nm}')
        a('s_waitcnt vmcnt(0)\ns_barrier')
        signal(a, P, off, G_RB, vtmp=(8, 9))
        a.label(nm)
    a(f's_add_u32 s{G_I}, s{G_I}, 1\ns_cmp_lt_u32 s{G_I}, 16\ns_cbranch_scc1 G1S')
    a(f's_mov_b32 s{G_I}, 0')
    a.label('G1G')
    tile_start(); body(ACG, True)
    tile_start(); body(ACU, True)
    a(f's_lshl_b32 s{G_OB}, s{G_RB}, 3\ns_lshl_b32 s{G_T5}, s{G_WV}, 1\ns_add_u32 s{G_OB}, s{G_OB}, s{G_T5}\ns_mul_i32 s{G_OB}, s{G_OB}, {288*1024}')
    a(f's_mul_i32 s{G_T4}, s{G_I}, 24\ns_add_u32 s{G_T4}, s{G_T4}, s{G_CG}\ns_lshl_b32 s{G_T4}, s{G_T4}, 11\ns_add_u32 s{G_OB}, s{G_OB}, s{G_T4}\ns_add_u32 s{G_OB}, s{G_OB}, {WS_HF}')
    T = 112
    for rt in range(2):
        for q in range(0, 16, 4):
            prs = [(ACG + 16*rt + q + o, ACU + 16*rt + q + o, T + o) for o in (0, 2)]
            for g, u, t in prs: a(f'v_pk_mul_f32 {vr(t,2)}, {vr(g,2)}, {vr(g,2)}')
            for g, u, t in prs: a(f'v_pk_fma_f32 {vr(t,2)}, {vr(t,2)}, s[{G_C2}:{G_C2+1}], {vr(T+4,2)}') if False else a(f'v_pk_mul_f32 {vr(t,2)}, {vr(t,2)}, s[{G_C2}:{G_C2+1}]')
            for g, u, t in prs: a(f'v_pk_add_f32 {vr(t,2)}, {vr(t,2)}, s[{G_C1}:{G_C1+1}]')
            for g, u, t in prs: a(f'v_pk_mul_f32 {vr(t,2)}, {vr(t,2)}, {vr(g,2)}')
            for g, u, t in prs: a(f'v_exp_f32 v{t}, v{t}\nv_exp_f32 v{t+1}, v{t+1}')
            for g, u, t in prs: a(f'v_pk_add_f32 {vr(t,2)}, {vr(t,2)}, s[{G_ONE}:{G_ONE+1}]')
            for g, u, t in prs: a(f'v_rcp_f32 v{t}, v{t}\nv_rcp_f32 v{t+1}, v{t+1}')
            for g, u, t in prs: a(f'v_pk_mul_f32 {vr(g,2)}, {vr(g,2)}, {vr(u,2)}')
            for g, u, t in prs: a(f'v_pk_mul_f32 {vr(g,2)}, {vr(g,2)}, {vr(t,2)}')
        pack_swapped(lambda r: ACG + 16*rt + r, rt,
                     lambda t, ai: a(f'buffer_store_dwordx4 {vr(t,4)}, v{V_L16}, s[4:7], s{G_OB} offen offset:{ai*1024} sc1'))
        if rt == 0: a(f's_add_u32 s{G_OB}, s{G_OB}, {288*1024}')
    a(f's_add_u32 s{G_I}, s{G_I}, 1\ns_cmp_lt_u32 s{G_I}, 6\ns_cbranch_scc1 G1G')
    a('s_waitcnt vmcnt(0)\ns_barrier')
    signal(a, P, DBG_H, G_RB, vtmp=(8, 9))
```

```python
WS_CNT = 0x0000000
WS_P   = 0x0010000
P_SZ   = 32*9216
WS_M   = 0x0100000
M_STRIDE = 0x4000
WS_DBG = 0x9800000
WS_XF  = 0x0200000
WS_KF  = 0x1000000
WS_VF  = 0x2000000
WS_QF  = 0x3000000
WS_HF  = 0x4000000
WS_KM  = 0x5400000
WS_VM  = 0x5800000
WS_AP  = 0x6000000
WS_MH  = 0x9000000
WS_SIZE = 268435456
L_KX = 0
L_QX = 8192
L_KXX = 10240
L_OX = 14336
L_W  = 16384
```

```python
import sys, json
from asmlib import *
from layout import *
import chain as C, gemm1 as G, ffn2 as F, ao as AO

KN = 'parallel_sum__memory_aug_recurrent_mem_tr__geglu_ffn__prompt_kernel'
HEADER = open('parallel_sum__memory_aug_recurrent_mem_tr__geglu_ffn__prompt.s.ref').read().split('; Override launch')[0]

def gen(cfg):
    a = Asm()
    P = {}
    names = [('x',0),('mem0',8),('Wq',16),('Wk',24),('Wv',32),('Wo',40),('wg',64),('wu',72),('wd',80),('out',88),('dbg',96),('ws',104)]
    a('s_cmp_ge_u32 s2, 256\ns_cbranch_scc1 K_END')
    for i, (n, off) in enumerate(names):
        P[n] = 72 + 2*i
        a(f's_load_dwordx2 s[{P[n]}:{P[n]+1}], s[0:1], {off}')
    a('s_getreg_b32 s3, hwreg(HW_REG_XCC_ID)')
    a('v_lshrrev_b32 v4, 6, v0')
    a('v_readfirstlane_b32 s13, v4')
    a('s_waitcnt lgkmcnt(0)')
    a(f's_mov_b32 s4, s{P["ws"]}\ns_mov_b32 s5, s{P["ws"]+1}\ns_mov_b32 s6, {WS_SIZE}\ns_mov_b32 s7, 0x20000')
    if cfg.get('prof'): a('s_memrealtime s[100:101]')
    if cfg.get('fakexcc'): a(f's_mul_i32 s3, s2, {cfg["fakexcc"]}\ns_lshr_b32 s3, s3, 3\ns_and_b32 s3, s3, 7')
    a('s_cmp_lt_u32 s3, 8\ns_cselect_b32 s24, s3, 7')
    a('s_cmp_lg_u32 s13, 0\ns_cbranch_scc1 CL_WAIT')
    a('s_lshr_b32 s25, s2, 3\ns_and_b32 s25, s25, 31')
    a('s_mov_b32 s26, s24\ns_mov_b32 s28, 0')
    a('s_mov_b64 exec, 1')
    a.label('CL_TRY')
    a('s_lshl_b32 s27, 1, s25\ns_lshl_b32 s29, s26, 2')
    a('v_mov_b32 v4, s29\nv_mov_b32 v5, s27')
    a(f'global_atomic_or v6, v4, v5, s[{P["dbg"]}:{P["dbg"]+1}] sc0')
    a('s_waitcnt vmcnt(0)')
    a('v_readfirstlane_b32 s30, v6')
    a('s_and_b32 s31, s30, s27\ns_cbranch_scc0 CL_GOT')
    a('s_not_b32 s31, s30\ns_cbranch_scc0 CL_FULL')
    a('s_ff1_i32_b32 s25, s31\ns_branch CL_TRY')
    a.label('CL_FULL')
    a('s_add_u32 s28, s28, 1\ns_sub_u32 s26, 8, s28\ns_cmp_gt_u32 s28, 8\ns_cbranch_scc1 CL_NONE')
    a('s_mov_b32 s25, 0')
    a('s_cmp_lg_u32 s26, 0\ns_cbranch_scc1 CL_TRY')
    a(f'v_mov_b32 v4, {G.DBG_IMPURE}\nv_mov_b32 v5, 1')
    a(f'global_atomic_or v6, v4, v5, s[{P["dbg"]}:{P["dbg"]+1}] sc0\ns_waitcnt vmcnt(0)')
    a('s_branch CL_TRY')
    a.label('CL_NONE')
    a('s_mov_b32 s26, 8\ns_mov_b32 s25, 0')
    a.label('CL_GOT')
    a('s_lshl_b32 s26, s26, 5\ns_add_u32 s26, s26, s25')
    a('v_mov_b32 v4, 0\nv_mov_b32 v5, s26\nds_write_b32 v4, v5\ns_waitcnt lgkmcnt(0)')
    a('s_mov_b64 exec, -1')
    a.label('CL_WAIT')
    a('s_barrier')
    a('v_mov_b32 v4, 0\nds_read_b32 v5, v4\ns_waitcnt lgkmcnt(0)')
    a('v_readfirstlane_b32 s26, v5')
    a('s_barrier')
    a('s_lshr_b32 s24, s26, 5\ns_and_b32 s28, s26, 31')
    if cfg.get('prof'): a('s_mov_b32 s101, s26')
    a('s_cmp_ge_u32 s24, 8\ns_cbranch_scc1 K_END')
    a('s_cmp_eq_u32 s24, 0\ns_cbranch_scc1 R_CHAIN')
    a('s_cmp_eq_u32 s24, 1\ns_cbranch_scc1 R_AO')
    a(f's_sub_u32 s{G.G_CG}, s24, 2\ns_lshl_b32 s{G.G_CG}, s{G.G_CG}, 2\ns_lshr_b32 s25, s28, 3\ns_add_u32 s{G.G_CG}, s{G.G_CG}, s25\ns_and_b32 s{G.G_RB}, s28, 7')
    a(f's_cmp_ge_u32 s{G.G_CG}, 8\ns_cbranch_scc1 NO_LN')
    G.layernorm(a, P)
    a.label('NO_LN')
    G.gemm1(a, P, cfg)
    if cfg.get('prof'): prof(a, 1)
    a(f's_cmp_ge_u32 s{G.G_CG}, 12\ns_cbranch_scc1 K_DONE')
    F.ffn2(a, P, cfg)
    a('s_branch K_DONE')
    a.label('R_AO')
    a(f's_and_b32 s{AO.A_SEG}, s28, 1\ns_bfe_u32 s{AO.A_CH}, s28, 0x10001\ns_lshr_b32 s{AO.A_HG}, s28, 2')
    AO.ao(a, P, cfg)
    a('s_branch K_DONE')
    a.label('R_CHAIN')
    a(f's_mov_b32 s{C.S_H}, s28')
    a('v_lshlrev_b32 v5, 4, v0')
    for r in range(4): a(f'v_mov_b32 v{8+r}, 0')
    a(f's_mul_i32 s33, s{C.S_H}, 12288')
    for b in range(2):
        a(f's_add_u32 s34, s33, {WS_P + b*0x80000}')
        for k in range(3):
            a('buffer_store_dwordx4 v[8:11], v5, s[4:7], s34 offen sc1')
            a('s_add_u32 s34, s34, 4096')
    for r in range(4): a(f'v_mov_b32 v{8+r}, -1')
    a(f's_cmp_gt_u32 s{C.S_H}, 2\ns_cbranch_scc1 NOM')
    a(f's_cmp_eq_u32 s{C.S_H}, 0\ns_cbranch_scc1 M0COPY')
    a(f's_mul_i32 s34, s{C.S_H}, {M_STRIDE}\ns_add_u32 s34, s34, {WS_M}')
    for k in range(3):
        a('buffer_store_dwordx4 v[8:11], v5, s[4:7], s34 offen sc1')
        a('s_add_u32 s34, s34, 4096')
    a('s_branch NOM')
    a.label('M0COPY')
    C.mem0_copy(a, P)
    a.label('NOM')
    C.chain_prologue(a, P)
    C.chain_init(a, P, cfg)
    a('s_waitcnt vmcnt(0)\ns_barrier')
    G.signal(a, P, G.DBG_CHAIN, None)
    W = lambda off, tgt: G.wait_flag(a, P, off, None, tgt, sleep=2, cnt=C.S_CNT)
    W(G.DBG_CHAIN, 32); W(G.DBG_AOINIT, 32)
    for rb in range(8): W(G.DBG_KV + 4*rb, 24)
    a(f's_sub_u32 s34, s{C.S_KF}, {32*8192}\ns_mov_b32 m0, s{C.S_W2K}')
    for q in range(2): a(f'buffer_load_dwordx4 v{C.V_L16}, s[4:7], s34 offen offset:{q*1024} sc1 lds')
    a(f'v_mov_b32 v4, {G.DBG_IMPURE}')
    a(f'global_load_dword v5, v4, s[{P["dbg"]}:{P["dbg"]+1}] sc1')
    a('s_waitcnt vmcnt(0)\ns_barrier')
    a('v_readfirstlane_b32 s34, v5')
    if cfg.get('prof'): prof(a, 2)
    lg = C.Cnt(a, 'lgkmcnt', 15)
    C.next_prep(a, lg)
    if cfg.get('forceslow'): a('s_mov_b32 s34, 1')
    a('s_cmp_lg_u32 s34, 0\ns_cbranch_scc1 STEPS')
    C.chain_loop(a, cfg, 'F', '')
    C.chain_loop(a, cfg, 'S', 'sc1')
    a.label('CHAIN_DONE')
    a.label('K_DONE')
    a('s_waitcnt vmcnt(0) lgkmcnt(0)')
    if cfg.get('prof'): prof(a, 3)
    a.label('K_END')
    a('s_endpgm')
    body, n = a.finalize()
    head = HEADER + f'''; @launch grid=(256,1,1) block=(256,1,1) lds=163840
.amdgcn_target "amdgcn-amd-amdhsa--gfx950"
.text
.globl {KN}
.p2align 8
.type {KN},@function
{KN}:
'''
    tail = f'''.section .rodata,"a"
.p2align 6
.amdhsa_kernel {KN}
  .amdhsa_next_free_vgpr 512
  .amdhsa_next_free_sgpr 102
  .amdhsa_accum_offset 256
  .amdhsa_group_segment_fixed_size 0
  .amdhsa_kernarg_size 112
  .amdhsa_user_sgpr_count 2
  .amdhsa_user_sgpr_kernarg_segment_ptr 1
  .amdhsa_system_sgpr_workgroup_id_x 1
.end_amdhsa_kernel
'''
    return head + body + tail, n

def prof(a, k):
    l = a.newlabel('PR')
    a(f's_cmp_lg_u32 s13, 0\ns_cbranch_scc1 {l}')
    a('s_memrealtime s[58:59]\ns_waitcnt lgkmcnt(0)')
    a(f's_sub_u32 s58, s58, s100\ns_lshl_b32 s59, s2, 6\ns_add_u32 s59, s59, {WS_DBG + 0x80000 + k*8}')
    a('s_mov_b64 exec, 1')
    a('v_mov_b32 v78, s58\nv_mov_b32 v79, s101\nv_mov_b32 v77, 0')
    a('buffer_store_dwordx2 v[78:79], v77, s[4:7], s59 offen')
    a('s_mov_b64 exec, -1')
    a.label(l)

if __name__ == '__main__':
    cfg = json.loads(sys.argv[1]) if len(sys.argv) > 1 else dict(D1=110, D2=310)
    src, n = gen(cfg)
    out = sys.argv[2] if len(sys.argv) > 2 else 'all.s'
    open(out, 'w').write(src)
    print(n, 'instructions', len(src), 'bytes')
```

```python
from asmlib import *
from layout import *
from gemm1 import signal, wait_flag, f32bits, DBG_Q, DBG_KV, DBG_AO, DBG_AOINIT, G_T5, KVT_LO, DBG_CHAIN
import math

A_HG = 12; A_WV = 13; A_CH = 14; A_SEG = 15
A_T0 = 24; A_T1 = 25; A_T2 = 26; A_T3 = 27; A_T4 = 28
A_QO = 16; A_KM = 17; A_AP = 18; A_OB = 19; A_CNT = 20; A_ABORT = 21; A_SC = 22
A_MK = 32
A_NINF = 40
V_LN = 1; V_L16 = 2; V_L8 = 3; V_XW = 4; V_TK = 5; V_AP = 6; V_OL = 7; V_PF = 184
def WF(t, hh, kk):
    n = ((t * 4 + hh) * 4 + kk) * 4
    return (n, 'a') if n < 256 else (192 + n - 256, 'v')
QF = 8; KF = 40; VF = 72; KM = 104; VM = 120; KR = 128
S = 136
PX = 156; PM = 164
TM = 172
ACC = 8
L_KC = 0
L_O = 16384
L_PF = 49152

def ao(a, P, cfg):
    a('; ---- AO ----')
    SRD = 's[4:7]'
    a(f'v_and_b32 v{V_LN}, 63, v0\nv_lshlrev_b32 v{V_L16}, 4, v{V_LN}\nv_lshlrev_b32 v{V_L8}, 3, v{V_LN}')
    a('v_lshlrev_b32 v8, 4, v0')
    for r in range(4): a(f'v_mov_b32 v{12+r}, -1')
    a(f's_lshl_b32 s{A_T0}, s{A_T4}, 18\ns_add_u32 s{A_T0}, s{A_T0}, {WS_KM}\ns_mov_b32 s{A_T1}, 0')
    a.label('AOF')
    a(f'buffer_store_dwordx4 v[12:15], v8, {SRD}, s{A_T0} offen sc1')
    a(f's_add_u32 s{A_T0}, s{A_T0}, 4096\ns_add_u32 s{A_T1}, s{A_T1}, 1\ns_cmp_lt_u32 s{A_T1}, 64\ns_cbranch_scc1 AOF')
    a('s_waitcnt vmcnt(0)\ns_barrier')
    signal(a, P, DBG_AOINIT, None, vtmp=(8, 9))
    wait_flag(a, P, DBG_CHAIN, None, 32, vtmp=(8, 9), sleep=16)
    a.label('AO_ENTRY2')
    a(f'v_and_b32 v{V_LN}, 63, v0\nv_lshlrev_b32 v{V_L16}, 4, v{V_LN}\nv_lshlrev_b32 v{V_L8}, 3, v{V_LN}')
    a(f's_mov_b32 s8, s{P["Wo"]}\ns_mov_b32 s9, s{P["Wo"]+1}\ns_mov_b32 s10, 4718592\ns_mov_b32 s11, 0x20000')
    a(f'v_lshrrev_b32 v8, 1, v{V_LN}\nv_and_b32 v9, 1, v{V_LN}\nv_lshlrev_b32 v9, 4, v9\nv_mul_u32_u24 v10, 1152, v8\nv_add_u32 v10, v10, v9')
    a(f'v_lshrrev_b32 v8, 4, v{V_LN}\nv_bfe_u32 v9, v{V_LN}, 2, 2\nv_lshl_add_u32 v8, v8, 2, v9\nv_lshlrev_b32 v8, 5, v8\nv_and_b32 v9, 3, v{V_LN}\nv_lshl_add_u32 v11, v9, 3, v8')
    a(f's_mul_i32 s{A_T0}, s{A_WV}, 40960\nv_add_u32 v11, s{A_T0}, v11')
    a(f's_mul_i32 s{A_T1}, s{A_HG}, {4*147456}\ns_mul_i32 s{A_T2}, s{A_CH}, 576\ns_add_u32 s{A_T1}, s{A_T1}, s{A_T2}\ns_lshl_b32 s{A_T2}, s{A_WV}, 5\ns_add_u32 s{A_T1}, s{A_T1}, s{A_T2}')
    a(f's_cmp_lt_u32 s{A_WV}, 2\ns_cselect_b32 s{A_T3}, {4*128}, {3*128}' if False else f's_mov_b32 s{A_T3}, {3*128}\ns_cmp_lt_u32 s{A_WV}, 2\ns_cselect_b32 s{A_T3}, {4*128}, s{A_T3}')
    strips = [(t, hh) for t in range(5) for hh in range(4)]
    D = 9
    def issue(idx):
        t, hh = strips[idx]; b = idx % 10
        for n in range(4):
            a(f's_add_u32 m0, s{A_T0}, {b*4096 + n*1024}')
            if t < 4: a(f's_add_u32 s{A_T2}, s{A_T1}, {hh*147456 + 32*n*1152 + t*128}')
            else: a(f's_add_u32 s{A_T2}, s{A_T1}, {hh*147456 + 32*n*1152}\ns_add_u32 s{A_T2}, s{A_T2}, s{A_T3}')
            a(f'buffer_load_dwordx4 v10, s[8:11], s{A_T2} offen lds')
    def process(idx):
        t, hh = strips[idx]; b = idx % 10
        a(f's_waitcnt vmcnt({4*min(D, len(strips)-1-idx)})')
        for kk in range(4):
            r, ty = WF(t, hh, kk)
            for hf in range(2):
                a(f'ds_read_b64_tr_b16 {vr(r+2*hf,2,ty)}, v11 offset:{b*4096 + (32*kk + 16*hf)*32}')
        a('s_waitcnt lgkmcnt(0)')
    for idx in range(len(strips) + D):
        if idx < len(strips): issue(idx)
        if idx >= D: process(idx - D)
    a('s_barrier')
    c = math.log2(math.e) / math.sqrt(128.0)
    a(f's_mov_b32 s{A_SC}, 0x{f32bits(c):08x}\ns_mov_b32 s{A_SC+1}, s{A_SC}\ns_mov_b32 s{A_NINF}, 0xff800000\ns_mov_b32 s{A_ABORT}, 0')
    a(f'v_lshrrev_b32 v8, 4, v{V_LN}\nv_lshlrev_b32 v8, 2, v8\nv_and_b32 v9, 15, v{V_LN}')
    for r in range(4):
        a(f'v_add_u32 v10, {r}, v8\nv_cmp_le_u32 s[{A_MK+2*r}:{A_MK+2*r+1}], v10, v9')
    a(f's_lshl_b32 s{A_T0}, s{A_WV}, 12')
    a(f'v_lshlrev_b32 v{V_XW}, 5, v9\nv_lshrrev_b32 v10, 4, v{V_LN}\nv_lshl_add_u32 v{V_XW}, v10, 3, v{V_XW}\nv_add_u32 v{V_XW}, s{A_T0}, v{V_XW}')
    a(f'v_bfe_u32 v8, v{V_LN}, 2, 2\nv_lshl_add_u32 v8, v10, 3, v8\nv_lshlrev_b32 v8, 5, v8\nv_and_b32 v11, 3, v{V_LN}\nv_lshl_add_u32 v{V_TK}, v11, 3, v8\nv_add_u32 v{V_TK}, s{A_T0}, v{V_TK}')
    a(f'v_mul_u32_u24 v{V_AP}, 2304, v9\nv_lshl_add_u32 v{V_AP}, v10, 4, v{V_AP}')
    S0 = cfg.get('S0', 20)
    A_HD = 45; A_RBC = 46
    a(f's_lshl_b32 s{A_HD}, s{A_HG}, 2\ns_add_u32 s{A_HD}, s{A_HD}, s{A_WV}\ns_mov_b32 s{A_RBC}, -1')
    def seg_offsets():
        a(f's_lshl_b32 s{A_T1}, s{A_SEG}, 5\ns_add_u32 s{A_T1}, s{A_T1}, s{A_HD}')
        a(f's_lshl_b32 s{A_KM}, s{A_T1}, 12\ns_add_u32 s{A_KM}, s{A_KM}, {WS_KM}')
        a(f's_lshl_b32 s{A_T1}, s{A_SEG}, 3\ns_add_u32 s{A_T1}, s{A_T1}, s{A_HG}\ns_mul_i32 s{A_AP}, s{A_T1}, 73728\ns_mul_i32 s{A_T1}, s{A_CH}, 1152\ns_add_u32 s{A_AP}, s{A_AP}, s{A_T1}\ns_lshl_b32 s{A_T1}, s{A_WV}, 6\ns_add_u32 s{A_AP}, s{A_AP}, s{A_T1}\ns_add_u32 s{A_AP}, s{A_AP}, {WS_AP}')
    def next_seg(r):
        a(f's_cmp_lt_u32 s{r}, {S0}\ns_cselect_b32 s{A_T0}, 2, 8\ns_add_u32 s{r}, s{r}, s{A_T0}')
    seg_offsets()
    a(f's_mov_b32 s{A_OB}, {L_O}')
    if cfg.get('prof'): cfg['_prof'](a, 4)
    A_PFB = 41; A_PSEG = 43; A_PQO = 44
    a(f's_mul_i32 s{A_PFB}, s{A_WV}, 24576\ns_add_u32 s{A_PFB}, s{A_PFB}, {L_PF}')
    a(f'v_add_u32 v{V_PF}, s{A_PFB}, v{V_L16}')
    def prefetch():
        l = a.newlabel('AOPF'); l2 = a.newlabel('AOPF')
        a(f's_cmp_ge_u32 s{A_PSEG}, 64\ns_cbranch_scc1 {l2}')
        a(f's_lshr_b32 s{A_T0}, s{A_PSEG}, 3')
        a(f's_cmp_eq_u32 s{A_T0}, s{A_RBC}\ns_cbranch_scc1 {l}')
        a(f's_mov_b32 s{A_RBC}, s{A_T0}')
        a(f's_cmp_lt_u32 s{A_T0}, 2\ns_cselect_b32 s{A_T1}, {KVT_LO}, 24')
        wait_flag(a, P, DBG_KV, A_T0, f's{A_T1}', vtmp=(TM, TM+1), sleep=8)
        wait_flag(a, P, DBG_Q, A_T0, 24, vtmp=(TM, TM+1), sleep=8)
        a.label(l)
        a(f's_lshl_b32 s{A_PQO}, s{A_PSEG}, 5\ns_add_u32 s{A_PQO}, s{A_PQO}, s{A_HD}\ns_lshl_b32 s{A_PQO}, s{A_PQO}, 13')
        for bi, base in enumerate((WS_QF, WS_KF, WS_VF)):
            for hf in range(2):
                a(f's_add_u32 s{A_T0}, s{A_PQO}, {base + hf*4096}')
                a(f's_add_u32 m0, s{A_PFB}, {bi*8192 + hf*4096}')
                for q in range(4): a(f'buffer_load_dwordx4 v{V_L16}, {SRD}, s{A_T0} offen offset:{q*1024} sc1 lds')
        a.label(l2)
        next_seg(A_PSEG)
    def prefetch_late():
        global TM
        old = TM; TM = 186
        prefetch()
        TM = old
    a(f's_mov_b32 s{A_PSEG}, s{A_SEG}')
    prefetch()
    a('s_waitcnt vmcnt(0)')
    if cfg.get('prof'): cfg['_prof'](a, 5)
    def mf(d, x, y, init): a(f'v_mfma_f32_16x16x32_bf16 {vr(d,4)}, {x}, {y}, {"0" if init else vr(d,4)}')
    a.label('AOL')
    for n in range(24):
        a(f'ds_read_b128 {vr(QF+4*n,4)}, v{V_PF} offset:{n*1024}')
        if n == 14: a('s_waitcnt lgkmcnt(7)')
    a('s_waitcnt lgkmcnt(0)')
    S00 = S; S0M = S+4; S10 = S+8; S11 = S+12; S1M = S+16
    for ks in range(4):
        mf(S00, vr(KF+4*ks,4), vr(QF+4*ks,4), ks == 0)
        mf(S10, vr(KF+4*ks,4), vr(QF+16+4*ks,4), ks == 0)
        mf(S11, vr(KF+16+4*ks,4), vr(QF+16+4*ks,4), ks == 0)
    a(f's_mov_b32 s{A_CNT}, 0')
    a.label('AOP')
    for pw in range(4):
        a(f'buffer_load_dwordx2 {vr(KR+2*pw,2)}, v{V_L8}, {SRD}, s{A_KM} offen offset:{pw*1024} sc1')
        a(f'buffer_load_dwordx2 {vr(VM+2*pw,2)}, v{V_L8}, {SRD}, s{A_KM} offen offset:{pw*1024+512} sc1')
    a(f's_add_u32 s{A_CNT}, s{A_CNT}, 1\ns_cmp_gt_u32 s{A_CNT}, 0x40000\ns_cselect_b32 s{A_ABORT}, 1, s{A_ABORT}')
    a('s_waitcnt vmcnt(0)')
    a(f'v_max3_u32 v{TM}, v{VM}, v{VM+1}, v{VM+2}')
    for r in range(VM+3, VM+15, 2): a(f'v_max3_u32 v{TM}, v{TM}, v{r}, v{r+1}')
    a(f'v_max_u32 v{TM}, v{TM}, v{VM+15}')
    a(f'v_cmp_eq_u32 vcc, -1, v{TM}')
    a(f's_cmp_lg_u32 s{A_ABORT}, 0\ns_cbranch_scc1 AOG')
    a('s_cbranch_vccz AOG')
    a(f's_sleep {cfg.get("ASLEEP", 4)}\ns_branch AOP')
    a.label('AOG')
    for pw in range(4):
        a(f'ds_write2st64_b32 v{V_XW}, v{KR+2*pw}, v{KR+2*pw+1} offset0:{pw*4} offset1:{pw*4+2}')
    a('s_waitcnt lgkmcnt(0)')
    for ks in range(4):
        for hh in range(2): a(f'ds_read_b64_tr_b16 {vr(KM+4*ks+2*hh,2)}, v{V_TK} offset:{ks*1024 + hh*128}')
    PFHERE = True
    for r in range(4):
        a(f'v_mov_b32 v{TM}, s{A_NINF}')
        a(f'v_cndmask_b32 v{S00+r}, v{TM}, v{S00+r}, s[{A_MK+2*r}:{A_MK+2*r+1}]')
        a(f'v_cndmask_b32 v{S11+r}, v{TM}, v{S11+r}, s[{A_MK+2*r}:{A_MK+2*r+1}]')
    for ks in range(4):
        a(f's_waitcnt lgkmcnt({6-2*ks})')
        mf(S0M, vr(KM+4*ks,4), vr(QF+4*ks,4), ks == 0)
        mf(S1M, vr(KM+4*ks,4), vr(QF+16+4*ks,4), ks == 0)
    LS = [TM+4, TM+6]
    for qt in range(2):
        xs = [S00] if qt == 0 else [S10, S11]
        sm = S0M if qt == 0 else S1M
        MX = TM; M2 = TM+1
        a(f'v_max3_f32 v{MX}, v{xs[0]}, v{xs[0]+1}, v{xs[0]+2}')
        a(f'v_max3_f32 v{M2}, v{xs[0]+3}, v{sm}, v{sm+1}')
        if qt:
            a(f'v_max3_f32 v{MX}, v{MX}, v{S11}, v{S11+1}')
            a(f'v_max3_f32 v{M2}, v{M2}, v{S11+2}, v{S11+3}')
        a(f'v_max_f32 v{MX}, v{MX}, v{M2}\nv_max_f32 v{M2}, v{MX}, v{M2}')
        a(f'v_permlane32_swap_b32 v{MX}, v{M2}\nv_max_f32 v{MX}, v{MX}, v{M2}\nv_max_f32 v{M2}, v{MX}, v{M2}')
        a(f'v_permlane16_swap_b32 v{MX}, v{M2}\nv_max_f32 v{MX}, v{MX}, v{M2}')
        a(f'v_mul_f32 v{MX}, s{A_SC}, v{MX}')
        prs = [x + o for x in xs for o in (0, 2)] + [sm]
        for r in prs: a(f'v_pk_fma_f32 {vr(r,2)}, {vr(r,2)}, s[{A_SC}:{A_SC+1}], {vr(MX,2)} op_sel_hi:[1,1,0] neg_lo:[0,0,1] neg_hi:[0,0,1]')
        for r in prs: a(f'v_exp_f32 v{r}, v{r}\nv_exp_f32 v{r+1}, v{r+1}')
        px = PX + 4*qt; pm = PM + 4*qt
        for k, r in enumerate(prs[:-1]): a(f'v_cvt_pk_bf16_f32 v{px+k}, v{r}, v{r+1}')
        if qt == 0: a(f'v_mov_b64 {vr(px+2,2)}, 0')
        a(f'v_cvt_pk_bf16_f32 v{pm}, v{sm}, v{sm+1}\nv_mov_b64 {vr(pm+1+0,1) if False else vr(pm+2,2)}, 0')
        a(f'v_mov_b32 v{pm+1}, 0\nv_cvt_pk_bf16_f32 v{pm+3}, v{sm}, v{sm+1}')
        l = LS[qt]
        a(f'v_pk_add_f32 {vr(l,2)}, {vr(prs[0],2)}, {vr(prs[1],2)}')
        for r in prs[2:]: a(f'v_pk_add_f32 {vr(l,2)}, {vr(l,2)}, {vr(r,2)}')
        a(f'v_add_f32 v{MX}, v{l}, v{l+1}\nv_add_f32 v{M2}, v{l}, v{l+1}')
        a(f'v_permlane32_swap_b32 v{MX}, v{M2}\nv_add_f32 v{l}, v{MX}, v{M2}\nv_add_f32 v{l+1}, v{MX}, v{M2}')
        a(f'v_permlane16_swap_b32 v{l}, v{l+1}\nv_add_f32 v{l}, v{l}, v{l+1}')
        a(f'v_rcp_f32 v{l}, v{l}')
    prefetch_late()
    O = 8
    for qt in range(2):
        for et in range(8):
            d = O + 32*qt + 4*et
            mf(d, vr(VF+4*et,4), vr(PX+4*qt,4), True)
        for et in range(8):
            d = O + 32*qt + 4*et
            a(f'v_mfma_f32_16x16x16_bf16 {vr(d,4)}, {vr(VM+2*(et//2),2)}, {vr(PM+4*qt+2*(et%2),2)}, {vr(d,4)}')
    a(f's_lshl_b32 s{A_T0}, s{A_WV}, 13\ns_add_u32 s{A_T0}, s{A_T0}, s{A_OB}\nv_add_u32 v{V_OL}, s{A_T0}, v{V_L16}')
    for qt in range(2):
        for kk in range(4):
            d = O + 32*qt + 8*kk
            for r in range(0, 8, 2): a(f'v_pk_mul_f32 {vr(d+r,2)}, {vr(d+r,2)}, {vr(LS[qt],2)} op_sel_hi:[1,0]')
            for r in range(4): a(f'v_cvt_pk_bf16_f32 v{d+r}, v{d+2*r}, v{d+2*r+1}')
            a(f'ds_write_b128 v{V_OL}, {vr(d,4)} offset:{(qt*4+kk)*1024}')
    a('s_waitcnt lgkmcnt(0)\ns_barrier')
    a(f'v_add_u32 v{V_OL}, s{A_OB}, v{V_L16}')
    BR = 48; NB = 8
    seq = [(hh, kk, qt) for hh in range(4) for kk in range(4) for qt in range(2)]
    def rd(n):
        hh, kk, qt = seq[n]
        a(f'ds_read_b128 {vr(BR+4*(n%NB),4)}, v{V_OL} offset:{hh*8192 + (qt*4+kk)*1024}')
    PD = NB - 2
    for n in range(PD): rd(n)
    for n, (hh, kk, qt) in enumerate(seq):
        if n + PD < len(seq): rd(n + PD)
        a(f's_waitcnt lgkmcnt({min(PD, len(seq)-1-n)})')
        for t in range(5):
            r, ty = WF(t, hh, kk)
            mf(ACC + 4*(2*t+qt), vr(r,4,ty), vr(BR+4*(n%NB),4), hh == 0 and kk == 0)
    a(f's_add_u32 s{A_T0}, s{A_AP}, {16*2304}')
    for t in range(4):
        for qt in range(2):
            a(f'buffer_store_dwordx4 {vr(ACC+4*(2*t+qt),4)}, v{V_AP}, {SRD}, s{A_AP if qt == 0 else A_T0} offen offset:{t*256} sc1')
    a(f's_cmp_ge_u32 s{A_WV}, 2\ns_cbranch_scc1 AON5')
    for qt in range(2):
        a(f'buffer_store_dwordx4 {vr(ACC+4*(8+qt),4)}, v{V_AP}, {SRD}, s{A_AP if qt == 0 else A_T0} offen offset:1024 sc1')
    a.label('AON5')
    a('s_waitcnt vmcnt(0)\ns_barrier')
    a(f's_lshl_b32 s{A_T0}, s{A_SEG}, 1\ns_add_u32 s{A_T0}, s{A_T0}, s{A_CH}\ns_lshr_b32 s{A_T1}, s{A_T0}, 3\ns_and_b32 s{A_T0}, s{A_T0}, 7\ns_lshl_b32 s{A_T0}, s{A_T0}, 2\ns_lshl_b32 s{A_T0}, 1, s{A_T0}')
    signal(a, P, DBG_AO, A_T1, val=(A_T0,), vtmp=(8, 9))
    next_seg(A_SEG); seg_offsets()
    a(f's_cmp_lt_u32 s{A_SEG}, 64\ns_cbranch_scc1 AOL')
```

```python
from asmlib import *
from layout import *
import math

class Cnt:
    def __init__(self, a, name, maxv):
        self.a = a; self.name = name; self.q = []; self.maxv = maxv
    def issue(self, tag, n=1):
        for _ in range(n): self.q.append(tag)
    def wait(self, tag):
        idx = max(i for i, t in enumerate(self.q) if t == tag) if tag in self.q else None
        if idx is None: return
        n = len(self.q) - 1 - idx
        assert n <= self.maxv, (self.name, n)
        self.a(f's_waitcnt {self.name}({n})')
        self.q = self.q[idx + 1:]
    def wait_all(self):
        self.a(f's_waitcnt {self.name}(0)'); self.q = []
    def reset(self, q=()): self.q = list(q)

S_WS = 4
S_W = 8
S_H = 12; S_WV = 13; S_STEP = 14; S_ABORT = 15
S_PC = 16; S_PST = 17; S_MC = 18; S_MN = 19; S_MP = 20
S_KF = 21; S_VF = 22; S_KM = 23; S_VM = 24
S_RED = 25; S_TASK = 26; S_CNT = 27
S_MK_KEY = 28; S_MK_J8 = 30
S_SC = 32
S_T0 = 34; S_T1 = 35; S_T3 = 36; S_T4 = 37; S_T2 = 43
S_RB = 38; S_RMA = 39; S_RIS8 = 40; S_RLD = 41; S_PO = 42
S_W512 = 44; S_W4 = 45; S_W2K = 46; S_F0 = 47; S_MK_N6 = 48; S_PF = 50; S_ROT = 51; S_TAG = 54; S_TAGS = 55; S_ROTB = 3; S_DUP = 24; S_CK = 56; S_CK2 = 96; S_CK3 = 98; S_MC1 = 39; S_MC2 = 40; S_W1536 = 26

V_L16 = 0; V_IDX = 1; V_WL = 2; V_X = 3
def A(i): return 4 + 4 * i
ACC = {'q0': 40, 'q1': 44, 'k0': 48, 'k1': 52, 'v0': 56, 'v1': 60}
T0 = 64; T1 = 72

QK_LDS = {0: 'q', 2: 'k', 4: 'q', 6: 'k', 8: 'q'}
WO_LDS = [(0, 1), (1, 1), (2, 1), (3, 1)]

def build_frag_map():
    slots = []
    for m in 'qkv':
        for i in range(9): slots.append((m, i))
    for p in range(4):
        for c in range(2): slots.append(('o', p, c))
    slots.append(('o8',))
    lds_slots = [(m, i) for i, m in sorted(QK_LDS.items())] + [('o', p, c) for p, c in WO_LDS]
    reg_slots = [s for s in slots if s not in lds_slots]
    assert len(reg_slots) == 27 and len(lds_slots) == 9
    loc = {}
    for n, s in enumerate(reg_slots):
        for z in range(2):
            f = 2 * n + z
            loc[(s, z)] = ('a', 8 * f) if f < 32 else ('v', 80 + 8 * (f - 32))
    for n, s in enumerate(lds_slots):
        for z in range(2): loc[(s, z)] = ('lds', n * 4096 + z * 2048)
    return reg_slots, lds_slots, loc

REG_SLOTS, LDS_SLOTS, LOC = build_frag_map()

def frag_reg(s, z):
    t, r = LOC[(s, z)]
    assert t != 'lds'
    return vr(r, 8, t)

def actual_col(pos):
    c = pos // 64; pw = (pos % 64) // 16; jp = c // 3; tg = c % 3
    return (9 * pw + 3 * (2 - jp) + tg) * 16 + pos % 16
NCOPY = 1
M_CSTR = 0x10000
def m_imm(c): return (c % 4) * 1024

def chain_prologue(a, P, hook=None):
    a('; ---- chain prologue: weights ----')
    a(f'v_and_b32 v4, 63, v0')
    a(f'v_lshlrev_b32 v{V_L16}, 4, v4')
    a('v_lshrrev_b32 v8, 2, v4\nv_and_b32 v9, 3, v4\nv_lshlrev_b32 v9, 4, v9')
    a('v_lshl_add_u32 v5, v8, 13, v9')
    a('v_mul_u32_u24 v6, 1152, v8\nv_add_u32 v6, v6, v9')
    a('v_lshrrev_b32 v8, 1, v4\nv_and_b32 v9, 1, v4\nv_lshlrev_b32 v9, 4, v9')
    a('v_mul_u32_u24 v7, 1152, v8\nv_add_u32 v7, v7, v9')
    a('v_lshrrev_b32 v8, 5, v4\nv_lshlrev_b32 v10, 4, v8')
    a('v_bfe_u32 v8, v4, 3, 1\nv_lshl_add_u32 v10, v8, 3, v10')
    a('v_bfe_u32 v8, v4, 4, 1\nv_lshl_add_u32 v10, v8, 2, v10')
    a('v_bfe_u32 v8, v4, 2, 1\nv_add_u32 v10, v10, v8')
    a('v_and_b32 v9, 3, v4\nv_lshlrev_b32 v9, 3, v9')
    a('v_lshl_add_u32 v11, v10, 6, v9')
    a('v_lshl_add_u32 v12, v10, 5, v9')
    a(f's_mul_i32 s{S_T0}, s{S_WV}, 36864\ns_add_u32 s{S_T0}, s{S_T0}, {L_W}')
    a(f's_lshl_b32 s{S_T1}, s{S_WV}, 12')
    a(f'v_add_u32 v13, s{S_T0}, v11\nv_add_u32 v14, s{S_T1}, v11')
    a(f'v_add_u32 v15, s{S_T0}, v12\nv_add_u32 v16, s{S_T1}, v12')
    a(f'v_add_u32 v{V_WL}, s{S_T0}, v{V_L16}')
    a(f'v_bfe_u32 v8, v4, 1, 1\nv_mul_u32_u24 v8, 0xAAAA, v8\nv_add_u32 v{V_IDX}, 0x4444, v8')
    a(f's_lshl_b32 s{S_T2}, s{S_H}, 8\ns_lshl_b32 s{S_T3}, s{S_WV}, 6\ns_add_u32 s{S_T2}, s{S_T2}, s{S_T3}')
    a(f's_mul_i32 s{S_T3}, s{S_H}, 147456\ns_mul_i32 s{S_T4}, s{S_WV}, 288\ns_add_u32 s{S_T3}, s{S_T3}, s{S_T4}')
    a(f's_add_u32 s{S_ROT}, s{S_H}, s{S_WV}\ns_mul_i32 s{S_CNT}, s{S_ROT}, 43\ns_lshr_b32 s{S_CNT}, s{S_CNT}, 7\ns_mul_i32 s{S_CNT}, s{S_CNT}, 3\ns_sub_u32 s{S_ROT}, s{S_ROT}, s{S_CNT}')
    a(f's_mov_b32 s{S_ROT}, 0')
    order = REG_SLOTS + LDS_SLOTS
    D = 9
    vm = Cnt(a, 'vmcnt', 63); lg = Cnt(a, 'lgkmcnt', 15)
    cur_mat = [None]
    def set_srd(m):
        if cur_mat[0] == m: return
        cur_mat[0] = m
        p = P[{'q': 'Wq', 'k': 'Wk', 'v': 'Wv', 'o': 'Wo', 'o8': 'Wo'}[m]]
        a(f's_mov_b32 s{S_W}, s{p}\ns_mov_b32 s{S_W+1}, s{p+1}\ns_mov_b32 s{S_W+2}, 4718592\ns_mov_b32 s{S_W+3}, 0x20000')
    def buf_of(idx): return (idx - 27) % 10
    def issue(idx):
        s = order[idx]; b = buf_of(idx)
        set_srd(s[0])
        for n in range(4):
            if b == 9: a(f's_add_u32 m0, s{S_T1}, {n*1024}')
            else: a(f's_add_u32 m0, s{S_T0}, {b*4096 + n*1024}')
            if s[0] in 'qkv' and s[0] != 'o':
                if s[1] < 3:
                    opts = [actual_col(((s[1] + r) % 3) * 64 + 16 * n) * 8192 for r in range(3)]
                    a(f's_mov_b32 s{S_CNT}, {opts[0]}\ns_cmp_eq_u32 s{S_ROT}, 1\ns_cselect_b32 s{S_CNT}, {opts[1]}, s{S_CNT}')
                    a(f's_cmp_eq_u32 s{S_ROT}, 2\ns_cselect_b32 s{S_CNT}, {opts[2]}, s{S_CNT}')
                    a(f's_add_u32 s{S_CNT}, s{S_CNT}, s{S_T2}')
                else:
                    a(f's_add_u32 s{S_CNT}, s{S_T2}, {actual_col(s[1]*64 + 16*n)*8192}')
                vo = 5
            elif s[0] == 'o':
                a(f's_add_u32 s{S_CNT}, s{S_T3}, {(s[2]*64 + 16*n)*1152 + s[1]*64}'); vo = 6
            else:
                a(f's_add_u32 s{S_CNT}, s{S_T3}, {(32*n)*1152 + 256}'); vo = 7
            a(f'buffer_load_dwordx4 v{vo}, s[{S_W}:{S_W+3}], s{S_CNT} offen lds')
            vm.issue(idx)
    def process(idx):
        s = order[idx]; b = buf_of(idx)
        vm.wait(idx)
        is8 = s[0] == 'o8'
        base = (16 if is8 else 14) if b == 9 else (15 if is8 else 13)
        boff = 0 if b == 9 else b * 4096
        for z in range(2):
            t, r = LOC[(s, z)]
            if t == 'lds': t, r = 'v', 20 + 8 * z
            for m in range(4):
                if is8: off = boff + (z * 64 + (m >> 1) * 32 + (m & 1) * 2) * 32
                else: off = boff + ((m >> 1) * 32 + (m & 1) * 2) * 64 + z * 32
                a(f'ds_read_b64_tr_b16 {vr(r + 2*m, 2, t)}, v{base} offset:{off}')
        a('s_waitcnt lgkmcnt(0)')
        if LOC[(s, 0)][0] == 'lds':
            for q in range(4):
                a(f'ds_write_b128 v{V_WL}, {vr(20 + 4*q, 4)} offset:{boff + q*1024}')
            a('s_waitcnt lgkmcnt(0)')
    for idx in range(36 + D):
        if idx == D and hook: hook(vm)
        if idx < 36: issue(idx)
        if idx >= D: process(idx - D)

def lds_frag_read(a, lg, s, z, dst, tag):
    t, off = LOC[(s, z)]
    assert t == 'lds'
    a(f'ds_read_b128 {vr(dst, 4)}, v{V_WL} offset:{off}')
    a(f'ds_read_b128 {vr(dst+4, 4)}, v{V_WL} offset:{off+1024}')
    lg.issue(tag, 2)

def timeout(a, lbl_ok_branch=None):
    a(f's_add_u32 s{S_CNT}, s{S_CNT}, 1')
    a(f's_cmp_gt_u32 s{S_CNT}, 0x40000')
    a(f's_cselect_b32 s{S_ABORT}, 1, s{S_ABORT}')

def emit_vma(a, dst, tmp):
    a(f'v_bfe_u32 v{tmp}, v{V_L16}, 6, 2')
    a(f'v_lshlrev_b32 v{dst}, 8, v{tmp}')
    a(f'v_lshrrev_b32 v{tmp}, 8, v{V_L16}')
    a(f'v_lshl_add_u32 v{dst}, v{tmp}, 6, v{dst}')
    a(f'v_bfe_u32 v{tmp}, v{V_L16}, 4, 1')
    a(f'v_lshl_add_u32 v{dst}, v{tmp}, 5, v{dst}')
    a(f'v_bfe_u32 v{tmp}, v{V_L16}, 5, 1')
    a(f'v_lshl_add_u32 v{dst}, v{tmp}, 4, v{dst}')

def R(i): return 4 + 4 * i
SLOT = {0: 0, 1: 1, 2: 2, 3: 3, 4: 4, 5: 5, 6: 6, 7: 0, 8: 1}
def AR(c): return R(SLOT[c])

def zero(a, regs):
    regs = sorted(regs); i = 0
    while i < len(regs):
        r = regs[i]
        if r % 2 == 0 and i + 1 < len(regs) and regs[i+1] == r + 1:
            a(f'v_mov_b64 v[{r}:{r+1}], 0'); i += 2
        else:
            a(f'v_mov_b32 v{r}, 0'); i += 1

def chain_loop(a, cfg, sfx, stf):
    NFULL = 4; NP = cfg.get('NP', 3)
    assert 2 <= NP <= 6
    D1 = cfg.get('D1', 0); D2 = cfg.get('D2', 0); D2R = cfg.get('D2R', 0)
    dbg = cfg.get('dbg', False)
    SRD = f's[{S_WS}:{S_WS+3}]'
    vm = Cnt(a, 'vmcnt', 63); lg = Cnt(a, 'lgkmcnt', 15)
    smap = cfg.get('smap', {str(k): k for k in range(8)})
    def stamp(k):
        if dbg and str(k) in smap:
            q = smap[str(k)]
            a(f'{"s_memrealtime" if cfg.get("rt") else "s_memtime"} s[{60+2*q}:{61+2*q}]')
    def smf(d, aa, b): a(f'v_smfmac_f32_16x16x64_bf16 {vr(d,4)}, {vr(aa,4)}, {b}, v{V_IDX}')
    def delay(n):
        if cfg.get('SLEEP', 1):
            if n: a(f's_sleep {n}')
            return
        while n > 0:
            k = min(n, 16); a(f's_nop {k-1}'); n -= k
    def mf(d, x, y, cinit):
        c = vr(d, 4) if not cinit else '0'
        a(f'v_mfma_f32_16x16x32_bf16 {vr(d,4)}, {vr(x,4)}, {vr(y,4)}, {c}')
    L = lambda t: [x for x in t.split('\n') if x.strip()]
    VX0 = 32; VX1 = 36

    a.label(f'STEP{sfx}')
    lg.reset(['T'] * 4)
    a(f's_add_u32 s{S_MC1}, s{S_MC}, 4096\ns_add_u32 s{S_MC2}, s{S_MC}, 8192')
    a(f's_mov_b32 s{S_CNT}, 0')
    def aoff(i): return m_imm(i)
    def msr(i): return (S_MC, S_MC1, S_MC2)[i // 4]
    def ldA(i, reg=None):
        a(f'buffer_load_dwordx4 {vr(AR(i) if reg is None else reg,4)}, v{V_X}, {SRD}, s{msr(i)} offen offset:{aoff(i)} sc1'); vm.issue(('A', i))
    SH = cfg.get('SHARE', 1)
    L_ST = L_KXX - 0
    def st1():
        a(f's_add_u32 m0, s{S_W1536}, {L_ST}')
        a(f's_add_u32 s{S_T0}, s{S_MC}, s{S_W1536}')
        a(f'buffer_load_dwordx4 v{V_L16}, {SRD}, s{S_T0} offen offset:3072 sc1 lds' if False else f's_add_u32 s{S_T0}, s{S_T0}, 3072')
        a(f'buffer_load_dwordx4 v{V_L16}, {SRD}, s{S_T0} offen sc1 lds'); vm.issue('st')
    def st2():
        a(f's_mov_b64 exec, 0xffffffff')
        a(f'buffer_load_dwordx4 v{V_L16}, {SRD}, s{S_T0} offen offset:1024 sc1 lds'); vm.issue('st')
        a('s_mov_b64 exec, -1')
    CK = VX1 + 3
    PM = cfg.get('PM', 'np3')
    SPEC = cfg.get('SPECST', 0) and SH
    tmo = f"""s_add_u32 s{S_CNT}, s{S_CNT}, 1
s_cmp_gt_u32 s{S_CNT}, 0x40000
s_cselect_b32 s{S_ABORT}, 1, s{S_ABORT}
s_cmp_lg_u32 s{S_ABORT}, 0
s_cselect_b64 s[{S_T3}:{S_T4}], 0, -1"""
    a.label(f'POLLM0{sfx}')
    if PM == 'pipe1':
        ldA(0)
        delay(cfg.get('STG', 30))
        a.label(f'POLLM{sfx}')
        ldA(0, R(1))
        a(tmo)
        a('s_waitcnt vmcnt(1)')
        a(f'v_max_u32 v{CK}, v{R(0)+1}, v{R(0)+3}')
        a(f'v_cmp_eq_u32 vcc, -1, v{CK}')
        a(f's_and_b64 vcc, vcc, s[{S_T3}:{S_T4}]')
        a(f's_cbranch_vccz GOTM{sfx}')
        ldA(0)
        a('s_waitcnt vmcnt(1)')
        a(f'v_max_u32 v{CK}, v{R(1)+1}, v{R(1)+3}')
        a(f'v_cmp_eq_u32 vcc, -1, v{CK}')
        a(f's_cbranch_vccnz POLLM{sfx}')
        a(f'v_mov_b64 {vr(R(0),2)}, {vr(R(1),2)}\nv_mov_b64 {vr(R(0)+2,2)}, {vr(R(1)+2,2)}')
        a.label(f'GOTM{sfx}')
        vm.reset()
        ldA(1); ldA(2)
        NC = 1
    else:
        vm.reset()
        for i in range(3): ldA(i)
        if SPEC: st1(); st2()
        a(tmo)
        for i in range(3):
            vm.wait(('A', i))
            if i == 0: a(f'v_max_u32 v{CK}, v{AR(0)+1}, v{AR(0)+3}')
            else: a(f'v_max3_u32 v{CK}, v{CK}, v{AR(i)+1}, v{AR(i)+3}')
        a(f'v_cmp_eq_u32 vcc, -1, v{CK}')
        a(f's_and_b64 vcc, vcc, s[{S_T3}:{S_T4}]')
        a(f's_cbranch_vccnz POLLM0{sfx}')
        NC = 3
    a(f'v_subrev_u32 v{V_X}, s{S_ROTB}, v{V_X}')
    stamp(0)
    if dbg: a(f's_mov_b32 s52, s{S_CNT}')
    XB = R(2); XT = R(2) + 1; TK = R(2) + 2; X2 = R(2) + 3
    fl = L(f"""v_and_b32 v{XT}, 0xf0, v{V_L16}
v_bfe_u32 v{XB}, v{V_L16}, 8, 2
v_lshl_add_u32 v{XB}, v{XB}, 2, v{XT}
v_add_u32 v{XB}, s{S_W512}, v{XB}
v_lshlrev_b32 v{XB}, 1, v{XB}
v_lshrrev_b32 v{XT}, 8, v{V_L16}
v_bfe_u32 v{X2}, v{V_L16}, 6, 2
v_lshl_add_u32 v{XT}, v{XT}, 3, v{X2}
v_bfe_u32 v{TK}, v{V_L16}, 4, 2
v_lshlrev_b32 v{TK}, 3, v{TK}
v_lshl_add_u32 v{TK}, v{XT}, 5, v{TK}
v_lshrrev_b32 v{X2}, 1, v{V_L16}""")
    def bop(m, i, z):
        s = (m, i)
        if LOC[(s, z)][0] == 'lds': return vr(T0 if z == 0 else T1, 8)
        return frag_reg(s, z)
    lds_chunks = sorted(QK_LDS)
    def ldvx(q):
        a(f'buffer_load_dwordx4 {vr(VX0+4*q,4)}, v{V_L16}, {SRD}, s{S_VF} offen offset:{q*1024} sc1'); vm.issue('vx')
    def bar0():
        if SH: vm.wait('st')
        a('s_barrier')
    def pf1():
        a(f'v_lshlrev_b32 v{V_X}, 3, v{V_L16}')
        a(f's_mov_b32 m0, {L_QX}')
    def pf2():
        a(f's_mov_b64 exec, 0xffffffff')
        a(f'buffer_load_dword v{V_X}, {SRD}, s{S_PF} offen sc1 lds'); vm.issue('pf')
        a('s_mov_b64 exec, -1')
    def rdA(c):
        a(f'ds_read_b128 {vr(AR(c),4)}, v{V_X} offset:{L_ST + (c-3)*1024}'); lg.issue(('A', c))
    if SH:
        if SPEC:
            memq = {0: [lambda: ldvx(0), lambda: ldvx(1)],
                    1: [lambda: None] * cfg.get('B0P', 0) + [bar0, lambda: [rdA(c) for c in (3, 4, 5, 6)], lambda: rdA(7)],
                    2: [lambda: rdA(8)] + ([] if cfg.get('nopf') else [pf1, pf2])}
        else:
            memq = {0: [st1, st2, lambda: ldvx(0), lambda: ldvx(1)],
                    2: [bar0, lambda: [rdA(c) for c in (3, 4, 5, 6)], lambda: [rdA(7), rdA(8)]] + ([] if cfg.get('nopf') else [pf1, pf2])}
    else:
        memq = {0: [lambda: ldA(3), lambda: ldA(4), lambda: ldA(5), lambda: ldA(6), lambda: ldvx(0), lambda: ldvx(1)],
                1: [lambda: ldA(7)], 2: [lambda: ldA(8), bar0] + ([] if cfg.get('nopf') else [pf1, pf2])}
    first_ck = True
    for i in range(9):
        mem = list(memq.get(i, [])); pend = []
        if i >= NC:
            if SH and i >= 3: lg.wait(('A', i))
            else: vm.wait(('A', i))
        if NC <= i <= 2:
            pr = (S_T0, S_CK) if i == 1 else (S_CK2, S_CK3)
            pend.append(f'v_cmp_eq_u32 s[{pr[0]}:{pr[0]+1}], -1, v{AR(i)+1}'); pend.append(f'v_cmp_eq_u32 s[{pr[1]}:{pr[1]+1}], -1, v{AR(i)+3}')
        if i >= 3:
            if first_ck: pend.append(f'v_max_u32 v{V_X}, v{AR(i)+1}, v{AR(i)+3}'); first_ck = False
            else: pend.append(f'v_max3_u32 v{V_X}, v{V_X}, v{AR(i)+1}, v{AR(i)+3}')
        mats = ['q', 'k'] + (['v'] if i < NFULL else [])
        if i in QK_LDS: mats = [m for m in mats if m != QK_LDS[i]] + [QK_LDS[i]]
        for m in mats:
            if i in QK_LDS and m == QK_LDS[i]: lg.wait('T')
            for z in range(2):
                smf(ACC[f'{m}{z}'], AR(i), bop(m, i, z))
                if mem: mem.pop(0)()
                elif pend: a(pend.pop(0))
                elif fl and i >= 3: a(fl.pop(0))
        assert not mem and not pend
        if i in QK_LDS and i != lds_chunks[-1]:
            nx = lds_chunks[lds_chunks.index(i) + 1]
            lds_frag_read(a, lg, (QK_LDS[nx], nx), 0, T0, 'T'); lds_frag_read(a, lg, (QK_LDS[nx], nx), 1, T1, 'T')
    assert not fl, fl
    stamp(1)
    KX = {(0, 0): 64, (1, 0): 68, (0, 1): 72, (1, 1): 76, (0, 2): R(4), (1, 2): R(5), (0, 3): R(3), (1, 3): 64}
    def ldkx(t, ks):
        a(f'ds_read_b128 {vr(KX[(t, ks)],4)}, v{V_L16} offset:{L_KX + t*4096 + ks*1024}'); lg.issue(('kx', t, ks))
    vrem = [(i, z) for i in range(NFULL, 9) for z in range(2)]
    def vsm(n):
        for _ in range(n):
            if vrem:
                i, z = vrem.pop(0); smf(ACC[f'v{z}'], AR(i), bop('v', i, z))
    a(f'v_cmp_eq_u32 vcc, -1, v{V_X}')
    vsm(1)
    ldkx(0, 0); ldkx(1, 0); ldkx(0, 1); ldkx(1, 1)
    K0 = ACC['k0']; K1 = ACC['k1']; Q0 = ACC['q0']; Q1 = ACC['q1']
    a(f'v_pk_add_f32 {vr(K0,2)}, {vr(K0,2)}, {vr(K0+2,2)}')
    a(f'v_pk_add_f32 {vr(K1,2)}, {vr(K1,2)}, {vr(K1+2,2)}')
    a(f'v_cvt_pk_bf16_f32 v{K0}, v{K0}, v{K0+1}')
    a(f'v_cvt_pk_bf16_f32 v{K0+2}, v{K1}, v{K1+1}')
    a(f'v_pk_add_f32 {vr(Q0,2)}, {vr(Q0,2)}, {vr(Q0+2,2)}')
    a(f'v_pk_add_f32 {vr(Q1,2)}, {vr(Q1,2)}, {vr(Q1+2,2)}')
    a(f'v_cvt_pk_bf16_f32 v{K0+1}, v{Q0}, v{Q0+1}')
    a(f'v_cvt_pk_bf16_f32 v{K0+3}, v{Q1}, v{Q1+1}')
    a(f'ds_write2st64_b64 v{XB}, {vr(K0,2)}, {vr(K0+2,2)} offset0:{L_KXX//512} offset1:{L_KXX//512+1}'); lg.issue('xw')
    vsm(1)
    if NC == 1:
        for pr in (S_T0, S_CK, S_CK2, S_CK3): a(f's_or_b64 vcc, vcc, s[{pr}:{pr+1}]')
    a(f's_and_b64 vcc, vcc, s[{S_T3}:{S_T4}]')
    if cfg.get('forceredo'): a(f's_and_b32 s{S_T0}, s{S_STEP}, 7\ns_cmp_eq_u32 s{S_T0}, s{S_WV}\ns_cselect_b64 vcc, -1, vcc')
    a(f's_cbranch_vccnz REDO{sfx}')
    a.label(f'REDOX{sfx}')
    vsm(1)
    a(f'v_mov_b32 v{V_X}, v{X2}')
    a(f'v_mov_b32 v{K1}, v{K0}\nv_mov_b32 v{K1+1}, v{K0+2}')
    vsm(1)
    if not cfg.get('nopub'):
        a(f'buffer_store_dwordx2 {vr(K1,2)}, v{V_X}, {SRD}, s{S_KM} offen sc1'); vm.issue('pub')
    ldkx(0, 2); ldkx(1, 2); ldkx(0, 3)
    vsm(cfg.get('VB', 2))
    lg.wait('xw')
    a('s_barrier')
    stamp(2)
    F = {0: 40, 1: 44, 2: 48, 3: 52}
    def ldf(ks):
        for hh in range(2):
            a(f'ds_read_b64_tr_b16 {vr(F[ks]+2*hh,2)}, v{TK} offset:{L_KXX + ks*1024 + hh*128}'); lg.issue(('f', ks))
    for ks in range(4): ldf(ks)
    vsm(len(vrem))
    stamp(3)
    SX0 = R(6); SX1 = R(0); SM = R(1)
    OW = 12; OW2 = 13; ORD = 14; ORD2 = 15; OT = 62; OT2 = 63
    PX = 48; PMX = 52; PMY = 54
    f1 = L(f"""v_pk_add_f32 v[56:57], v[56:57], v[58:59]
v_pk_add_f32 v[60:61], v[60:61], v[62:63]
v_cvt_pk_bf16_f32 v56, v56, v57
v_cvt_pk_bf16_f32 v57, v60, v61""")
    f2 = L(f"""v_bfe_u32 v{OT}, v{V_L16}, 6, 2
v_bfe_u32 v{ORD}, v{V_L16}, 4, 1
v_lshl_add_u32 v{ORD}, v{OT}, 1, v{ORD}
v_lshlrev_b32 v{OT2}, 1, v{ORD}
v_lshrrev_b32 v{OT}, 9, v{V_L16}
v_add_u32 v{OT}, s{S_W4}, v{OT}
v_xor_b32 v{OT}, v{OT}, v{OT2}
v_lshlrev_b32 v{OT}, 4, v{OT}
v_lshl_add_u32 v{OW}, v{ORD}, 8, v{OT}
v_bfe_u32 v{OT}, v{V_L16}, 8, 1
v_lshl_add_u32 v{OW}, v{OT}, 3, v{OW}
v_xor_b32 v{OW2}, 32, v{OW}
v_lshrrev_b32 v{OT}, 8, v{V_L16}
v_bfe_u32 v{ORD2}, v{V_L16}, 5, 1
v_lshl_add_u32 v{OT}, v{OT}, 1, v{ORD2}
v_xor_b32 v{OT}, v{OT}, v{OT2}
v_lshlrev_b32 v{OT}, 4, v{OT}
v_lshl_add_u32 v{ORD}, v{ORD}, 8, v{OT}
v_xor_b32 v{ORD2}, 128, v{ORD}""")
    def fill(lst, n):
        for _ in range(n):
            if lst: a(lst.pop(0))
    lg.wait(('f', 0))
    mf(SX0, KX[(0, 0)], F[0], True); mf(SX1, KX[(1, 0)], F[0], True)
    ldkx(1, 3)
    mf(SM, F[0], F[0], True)
    lg.wait(('f', 1))
    mf(SX0, KX[(0, 1)], F[1], False); mf(SX1, KX[(1, 1)], F[1], False); fill(f1, 2)
    mf(SM, F[1], F[1], False); fill(f1, 2)
    lg.wait(('f', 2))
    mf(SX0, KX[(0, 2)], F[2], False)
    if not cfg.get('nopub'):
        a(f'buffer_store_dwordx2 v[56:57], v{V_X}, {SRD}, s{S_KM} offen offset:512 sc1'); vm.issue('pub')
    mf(SX1, KX[(1, 2)], F[2], False); fill(f2, 2)
    mf(SM, F[2], F[2], False); fill(f2, 2)
    lg.wait(('f', 3))
    mf(SM, F[3], F[3], False); fill(f2, 2)
    mf(SX0, KX[(0, 3)], F[3], False); fill(f2, 2)
    lg.wait(('kx', 1, 3))
    mf(SX1, KX[(1, 3)], F[3], False)
    B0 = 48; B1 = 56; B2 = 64; B3 = 72
    stamp(4)
    MX = 58; M2 = 59; LS = 60; L2 = 61
    lds_frag_read(a, lg, ('o', 0, 1), 1, B3, ('w', 1))
    fill(f2, 2)
    a(f'v_max3_f32 v{MX}, v{SM}, v{SM+1}, v{SX0}')
    a(f'v_max3_f32 v{MX}, v{MX}, v{SX0+1}, v{SX0+2}')
    lds_frag_read(a, lg, ('o', 0, 1), 0, B2, ('w', 0))
    a(f'v_max3_f32 v{M2}, v{SX1}, v{SX1+1}, v{SX1+2}')
    a(f'v_max3_f32 v{MX}, v{MX}, v{SX0+3}, v{SX1+3}')
    a(f'v_max_f32 v{MX}, v{MX}, v{M2}')
    a(f'v_max_f32 v{M2}, v{MX}, v{M2}')
    fill(f2, 2)
    a(f'v_permlane32_swap_b32 v{MX}, v{M2}')
    a(f'v_max_f32 v{MX}, v{MX}, v{M2}')
    a(f'v_max_f32 v{M2}, v{MX}, v{M2}')
    fill(f2, 2)
    a(f'v_permlane16_swap_b32 v{MX}, v{M2}')
    a(f'v_max_f32 v{MX}, v{MX}, v{M2}')
    a(f'v_mul_f32 v{MX}, s{S_SC}, v{MX}')
    rs = (SX0, SX0+2, SX1, SX1+2)
    for r in rs + (SM,): a(f'v_pk_fma_f32 {vr(r,2)}, {vr(r,2)}, s[{S_SC}:{S_SC+1}], {vr(MX,2)} op_sel_hi:[1,1,0] neg_lo:[0,0,1] neg_hi:[0,0,1]')
    for k, r in enumerate(rs):
        a(f'v_exp_f32 v{r}, v{r}\nv_exp_f32 v{r+1}, v{r+1}')
        if k: a(f'v_cvt_pk_bf16_f32 v{PX+k-1}, v{rs[k-1]}, v{rs[k-1]+1}')
    a(f'v_exp_f32 v{SM}, v{SM}')
    a(f'v_cvt_pk_bf16_f32 v{PX+3}, v{rs[3]}, v{rs[3]+1}')
    a(f'v_exp_f32 v{SM+1}, v{SM+1}')
    OX = R(4); OY = R(5)
    a(f'v_mov_b32 v{PMX+1}, 0')
    vm.wait('vx')
    mf(OX, VX0, PX, True)
    a(f'v_cvt_pk_bf16_f32 v{PMX}, v{SM}, v{SM+1}\nv_cvt_pk_bf16_f32 v{PMY+1}, v{SM}, v{SM+1}')
    mf(OY, VX1, PX, True)
    a(f'v_mov_b32 v{PMY}, 0')
    a(f'v_pk_add_f32 {vr(SX0,2)}, {vr(SX0,2)}, {vr(SX0+2,2)}')
    a(f'v_mfma_f32_16x16x16_bf16 {vr(OX,4)}, v[56:57], {vr(PMX,2)}, {vr(OX,4)}')
    a(f'v_pk_add_f32 {vr(SX1,2)}, {vr(SX1,2)}, {vr(SX1+2,2)}')
    a(f'v_pk_add_f32 {vr(SX0,2)}, {vr(SX0,2)}, {vr(SM,2)}')
    a(f'v_mfma_f32_16x16x16_bf16 {vr(OY,4)}, v[56:57], {vr(PMY,2)}, {vr(OY,4)}')
    a(f'v_pk_add_f32 {vr(SX0,2)}, {vr(SX0,2)}, {vr(SX1,2)}')
    a(f'v_add_f32 v{LS}, v{SX0}, v{SX0+1}')
    a(f'v_add_f32 v{L2}, v{SX0}, v{SX0+1}')
    fill(f2, 2)
    a(f'v_permlane32_swap_b32 v{LS}, v{L2}')
    a(f'v_add_f32 v{MX}, v{LS}, v{L2}')
    a(f'v_add_f32 v{M2}, v{LS}, v{L2}')
    fill(f2, 2)
    a(f'v_permlane16_swap_b32 v{MX}, v{M2}')
    a(f'v_add_f32 v{LS}, v{MX}, v{M2}')
    a(f'v_rcp_f32 v{LS}, v{LS}')
    fill(f2, 99)
    for o in (OX, OY):
        a(f'v_pk_mul_f32 {vr(o,2)}, {vr(o,2)}, {vr(LS,2)} op_sel_hi:[1,0]')
        a(f'v_pk_mul_f32 {vr(o+2,2)}, {vr(o+2,2)}, {vr(LS,2)} op_sel_hi:[1,0]')
        a(f'v_cvt_pk_bf16_f32 v{o}, v{o}, v{o+1}\nv_cvt_pk_bf16_f32 v{o+1}, v{o+2}, v{o+3}')
        if o == OX:
            a(f's_mov_b64 exec, s[{S_MK_KEY}:{S_MK_KEY+1}]')
            a(f'ds_write_b64 v{OW}, {vr(OX,2)} offset:{L_OX}'); lg.issue('ow')
    a(f'ds_write_b64 v{OW2}, {vr(OY,2)} offset:{L_OX}'); lg.issue('ow')
    a('s_mov_b64 exec, -1')
    WACC = 12
    zero(a, [r for r in range(WACC, WACC + 36) if r not in (ORD, ORD2)])
    lg.wait('ow')
    a('s_barrier')
    stamp(5)
    OA0 = 4; OA1 = 8
    a(f'ds_read_b128 {vr(OA0,4)}, v{ORD} offset:{L_OX}'); lg.issue('oa0')
    a(f'ds_read_b128 {vr(OA1,4)}, v{ORD2} offset:{L_OX}'); lg.issue('oa1')
    lds_frag_read(a, lg, ('o', 1, 1), 0, B0, ('w', 2)); lds_frag_read(a, lg, ('o', 1, 1), 1, B1, ('w', 3))
    zero(a, [ORD, ORD2])
    if not cfg.get('nodma'):
        a(f's_mov_b32 m0, s{S_W2K}')
        for q in range(2): a(f'buffer_load_dwordx4 v{V_L16}, {SRD}, s{S_KF} offen offset:{q*1024} sc1 lds'); vm.issue('kxd')
    def wacc(t): return WACC + 4 * t
    def post_tile(t):
        d = wacc(t); q = wacc(t - t % 3) + t % 3
        return [f'v_pk_add_f32 {vr(d,2)}, {vr(d,2)}, {vr(d+2,2)}', f'v_cvt_pk_bf16_f32 v{q}, v{d}, v{d+1}']
    def post_group(j):
        ops = post_tile(3*j) + [f'v_mov_b32 v{wacc(3*j)+3}, s{S_TAG}'] + post_tile(3*j+1) + post_tile(3*j+2)
        return ops + [('v', f'buffer_store_dwordx4 {vr(wacc(3*j),4)}, v{V_L16}, {SRD}, s{S_PST} offen offset:{j*1024} {stf}'.rstrip())]
    def wf(t, c):
        if t == 8: return frag_reg(('o8',), c)
        return frag_reg(('o', t // 2, c), t % 2)
    lbuf = {0: B2, 1: B3, 2: B0, 3: B1, 4: B2, 5: B3, 6: B0, 7: B1}
    seq = [(0,0),(1,0),(2,0),(0,1),(1,1),(2,1), (3,0),(4,0),(5,0),(3,1),(4,1),(5,1), (6,0),(7,0),(8,0),(8,1),(6,1),(7,1)]
    fillers = {k: [] for k in range(40)}
    PL = cfg.get('PL', 2)
    for j_, start in ((0, 8), (1, 14)):
        k = start; cnt = 0
        for op in post_group(j_):
            fillers[k].append(op); cnt += 1
            if cnt % PL == 0: k += 1
    lg.wait('oa0')
    stamp(8)
    for n_, (t, c) in enumerate(seq):
        if n_ == 3: lg.wait('oa1')
        if c == 1 and t != 8:
            lg.wait(('w', t)); b = vr(lbuf[t], 8)
        else: b = wf(t, c)
        smf(wacc(t), OA0 if c == 0 else OA1, b)
        if c == 1 and t < 4: lds_frag_read(a, lg, ('o', (t+4)//2, 1), (t+4) % 2, lbuf[t], ('w', t+4))
        for f in fillers[n_]:
            if isinstance(f, tuple): a(f[1]); vm.issue('pst')
            else: a(f)
    stamp(9)
    for k in range(18, 40):
        for f in fillers[k]:
            if isinstance(f, tuple): a(f[1]); vm.issue('pst')
            else: a(f)
    g2 = post_tile(8) + post_tile(6) + [f'v_mov_b32 v{wacc(6)+3}, s{S_TAG}'] + post_tile(7)
    a(g2[0]); a(g2[2]); a(g2[1]); a(g2[3]); a(g2[4]); a(g2[5]); a(g2[6])
    a(post_group(2)[-1][1]); vm.issue('pst')
    stamp(6)
    c0 = sorted(QK_LDS)[0]
    SEL = 36; RACC = 72; RL = 76; RO = 77; RT = 78; RT2 = 79; NEG = 4
    a(f's_bitcmp0_b32 s{S_RED}, 0\ns_cbranch_scc1 NORED{sfx}')
    PP = 12288
    a(f'v_lshrrev_b32 v{RT}, 8, v{V_L16}\nv_mul_u32_u24 v{RL}, {PP}, v{RT}\nv_and_or_b32 v{RL}, v{V_L16}, s{S_F0}, v{RL}')
    a(f's_add_u32 s{S_T2}, s{S_PC}, s{S_RLD}')
    a(f's_mov_b32 s{S_CNT}, 0')
    delay(D1)
    if cfg.get('D1W1'):
        a(f's_cmp_eq_u32 s{S_WV}, 0\ns_cbranch_scc1 NOD1W{sfx}')
        delay(cfg['D1W1'])
        a.label(f'NOD1W{sfx}')
    stamp(10)
    def pl():
        for it in range(8):
            a(f'buffer_load_dwordx4 {vr(4+4*it,4)}, v{RL}, {SRD}, s{S_T2} offen sc1'); vm.issue(('r', it))
            a(f's_add_u32 s{S_T2}, s{S_T2}, {4*PP if it < 7 else -7*4*PP & 0xffffffff}')
    vm.reset(); pl()
    a(f'v_bfe_u32 v{RT2}, v{V_L16}, 4, {4 if NCOPY == 1 else 3}')
    a(f'v_and_b32 v{RO}, 1, v{RT2}\nv_lshlrev_b32 v{RO}, 4, v{RO}')
    a(f'v_mov_b32 v{RACC}, 0x3f80\nv_lshlrev_b32 v{RO}, v{RO}, v{RACC}')
    a(f'v_lshrrev_b32 v{RACC}, 1, v{RT2}')
    for r in range(4):
        a(f'v_cmp_eq_u32 vcc, {r}, v{RACC}')
        zero(a, range(40 + 4*r, 44 + 4*r))
        a(f'v_cndmask_b32 v{SEL+r}, 0, v{RO}, vcc')
    a(f'v_and_b32 v{RO}, 1, v{RT2}\nv_lshlrev_b32 v{RO}, 5, v{RO}\nv_lshl_add_u32 v{RO}, v{RACC}, 10, v{RO}')
    a(f'v_lshl_add_u32 v{RO}, v{RT}, 3, v{RO}')
    a(f'v_add_u32 v{RO}, s{S_RB}, v{RO}')
    if NCOPY > 1: a(f'v_bfe_u32 v{RACC}, v{V_L16}, 7, 1\nv_lshl_add_u32 v{RO}, v{RACC}, 16, v{RO}')
    zero(a, range(56, 64))
    emit_vma(a, V_X, RT2)
    lg.reset()
    lds_frag_read(a, lg, (QK_LDS[c0], c0), 0, T0, 'T')
    a.label(f'RWAIT{sfx}')
    for it in range(8):
        vm.wait(('r', it))
        if it == 0: stamp(11)
        mf(RACC, 4 + 4*it, SEL, it == 0)
    a(f's_add_u32 s{S_T0}, s{S_MN}, s{S_DUP}' if NCOPY == 1 else f's_sub_u32 s{S_T0}, s{S_MN}, s{S_DUP}')
    a(f'v_pk_add_f32 {vr(RT,2)}, {vr(RACC,2)}, {vr(RACC+2,2)}')
    a(f'v_cvt_pk_bf16_f32 v{RACC}, v{RACC}, v{RACC+1}\nv_cvt_pk_bf16_f32 v{RACC+1}, v{RACC+2}, v{RACC+3}')
    a(f'v_add_f32 v{RT}, v{RT}, v{RT2}')
    a(f'v_cmp_neq_f32 vcc, s{S_TAGS}, v{RT}')
    a(f's_mov_b64 exec, s[{S_MK_J8}:{S_MK_J8+1}]')
    a(f's_and_b64 vcc, vcc, s[{S_MK_N6}:{S_MK_N6+1}]')
    a(f's_cbranch_vccnz RCHK{sfx}')
    a.label(f'RGO{sfx}')
    if NCOPY == 1:
        a(f'buffer_store_dwordx2 {vr(RACC,2)}, v{RO}, {SRD}, s{S_MN} offen {stf}'.rstrip())
    else:
        for c in range(NCOPY // 2):
            a(f'buffer_store_dwordx2 {vr(RACC,2)}, v{RO}, {SRD}, s{S_T0} offen {stf}'.rstrip())
            if c < NCOPY // 2 - 1: a(f's_add_u32 s{S_T0}, s{S_T0}, {2*M_CSTR}')
    stamp(7)
    if dbg: a(f's_mov_b32 s53, s{S_CNT}')
    a(f'v_mov_b64 v[{NEG}:{NEG+1}], -1')
    if NCOPY == 1:
        a(f'buffer_store_dwordx2 {vr(NEG,2)}, v{RO}, {SRD}, s{S_MC} offen {stf}'.rstrip())
    else:
        a(f's_sub_u32 s{S_T0}, s{S_MC}, s{S_DUP}')
        for c in range(NCOPY // 2):
            a(f'buffer_store_dwordx2 {vr(NEG,2)}, v{RO}, {SRD}, s{S_T0} offen {stf}'.rstrip())
            if c < NCOPY // 2 - 1: a(f's_add_u32 s{S_T0}, s{S_T0}, {2*M_CSTR}')
    a('s_mov_b64 exec, -1')
    lds_frag_read(a, lg, (QK_LDS[c0], c0), 1, T1, 'T')
    delay(D2R)
    a(f's_branch NEXT{sfx}')
    a.label(f'NORED{sfx}')
    zero(a, range(40, 64))
    lds_frag_read(a, lg, (QK_LDS[c0], c0), 0, T0, 'T'); lds_frag_read(a, lg, (QK_LDS[c0], c0), 1, T1, 'T')
    emit_vma(a, V_X, 4)
    delay(D2)
    a.label(f'NEXT{sfx}')
    if dbg:
        a('s_waitcnt lgkmcnt(0)')
        a(f's_lshl_b32 s{S_T0}, s{S_STEP}, 7\ns_lshl_b32 s{S_T1}, s{S_H}, 2\ns_add_u32 s{S_T0}, s{S_T0}, s{S_T1}\ns_add_u32 s{S_T0}, s{S_T0}, s{S_WV}\ns_lshl_b32 s{S_T0}, s{S_T0}, 6\ns_add_u32 s{S_T0}, s{S_T0}, {WS_DBG}')
        for k in range(8): a(f'v_writelane_b32 v4, s{60+2*k}, {k}')
        a('v_writelane_b32 v4, s52, 8\nv_writelane_b32 v4, s53, 9\nv_writelane_b32 v4, s25, 10')
        a(f'v_lshrrev_b32 v5, 2, v{V_L16}')
        a('s_mov_b64 exec, 0x7ff')
        a(f'buffer_store_dword v4, v5, {SRD}, s{S_T0} offen')
        a('s_mov_b64 exec, -1')
    a(f's_add_u32 s{S_STEP}, s{S_STEP}, 1')
    a(f's_xor_b32 s{S_PC}, s{S_PC}, s{S_PO}\ns_xor_b32 s{S_PST}, s{S_PST}, s{S_PO}')
    a(f's_and_b32 s{S_T0}, s{S_STEP}, 3\ns_lshl_b32 s{S_TAG}, s{S_T0}, 7\ns_add_u32 s{S_TAG}, s{S_TAG}, 0x3f80\ns_lshl_b32 s{S_TAGS}, s{S_T0}, 23\ns_add_u32 s{S_TAGS}, s{S_TAGS}, 0x43000000')
    a(f's_mov_b32 s{S_T0}, s{S_MC}\ns_mov_b32 s{S_MC}, s{S_MN}\ns_mov_b32 s{S_MN}, s{S_MP}\ns_mov_b32 s{S_MP}, s{S_T0}')
    if not cfg.get('static'):
        a(f's_add_u32 s{S_VF}, s{S_VF}, {32*8192}\ns_add_u32 s{S_KF}, s{S_KF}, {32*8192}\ns_add_u32 s{S_PF}, s{S_PF}, {32*8192}')
    if cfg.get('_kvwait'):
        a(f's_cmp_lg_u32 s{S_STEP}, 12\ns_cbranch_scc1 NKW{sfx}')
        cfg['_kvwait'](a)
        a.label(f'NKW{sfx}')
    a(f's_add_u32 s{S_KM}, s{S_KM}, {32*4096}')
    a(f's_cmp_lt_u32 s{S_STEP}, 63\ns_cbranch_scc1 STEP{sfx}')
    FA = lambda i: 4 + 4 * i
    a(f's_add_u32 s{S_MC1}, s{S_MC}, 4096\ns_add_u32 s{S_MC2}, s{S_MC}, 8192')
    a(f's_mov_b32 s{S_CNT}, 0')
    a.label(f'FPOLL{sfx}')
    a(f'v_subrev_u32 v41, s{S_ROTB}, v{V_X}')
    for i in range(9): a(f'buffer_load_dwordx4 {vr(FA(i),4)}, v{V_X if i < 3 else 41}, {SRD}, s{msr(i)} offen offset:{aoff(i)} sc1')
    timeout(a)
    a('s_waitcnt vmcnt(0)')
    a(f'v_max_u32 v40, v{FA(0)+1}, v{FA(0)+3}')
    for i in range(1, 9): a(f'v_max3_u32 v40, v40, v{FA(i)+1}, v{FA(i)+3}')
    a('v_cmp_eq_u32 vcc, -1, v40')
    a(f's_cmp_lg_u32 s{S_ABORT}, 0\ns_cbranch_scc1 FGO{sfx}')
    a(f's_cbranch_vccnz FPOLL{sfx}')
    a.label(f'FGO{sfx}')
    klds = [i for i in lds_chunks if QK_LDS[i] == 'k']
    assert len(klds) == 2
    lds_frag_read(a, lg, ('k', klds[0]), 0, T0, 'T'); lds_frag_read(a, lg, ('k', klds[0]), 1, T1, 'T')
    lds_frag_read(a, lg, ('k', klds[1]), 0, 40, 'T')
    for i in range(9):
        if i in klds: continue
        for z in range(2): smf(ACC[f'k{z}'], FA(i), frag_reg(('k', i), z))
    a('s_waitcnt lgkmcnt(0)')
    smf(ACC['k0'], FA(klds[0]), vr(T0, 8)); smf(ACC['k1'], FA(klds[0]), vr(T1, 8)); smf(ACC['k0'], FA(klds[1]), vr(40, 8))
    lds_frag_read(a, lg, ('k', klds[1]), 1, T0, 'T')
    for i in range(9):
        for z in range(2): smf(ACC[f'v{z}'], FA(i), frag_reg(('v', i), z))
    a('s_waitcnt lgkmcnt(0)')
    smf(ACC['k1'], FA(klds[1]), vr(T0, 8))
    a(f'v_lshrrev_b32 v{V_X}, 1, v{V_L16}')
    for nm, d in (('v0', 42), ('v1', 43), ('k0', 40), ('k1', 41)):
        r = ACC[nm]
        a(f'v_pk_add_f32 {vr(r,2)}, {vr(r,2)}, {vr(r+2,2)}')
        a(f'v_cvt_pk_bf16_f32 v{d}, v{r}, v{r+1}')
        if nm == 'v1': a(f'buffer_store_dwordx2 v[42:43], v{V_X}, {SRD}, s{S_KM} offen offset:512 sc1')
    a(f'buffer_store_dwordx2 v[40:41], v{V_X}, {SRD}, s{S_KM} offen sc1')
    a('s_branch CHAIN_DONE')
    a.label(f'REDO{sfx}')
    if dbg: a('s_add_u32 s25, s25, 0x10000')
    a('s_waitcnt vmcnt(0) lgkmcnt(0)')
    a('s_nop 15')
    zero(a, range(40, 64))
    emit_vma(a, V_X, T0)
    a(f'v_subrev_u32 v{T0+1}, s{S_ROTB}, v{V_X}')
    done_v = [(i, z) for i in range(NFULL) for z in range(2)] + [(4, 0), (4, 1)]
    for c in range(9):
        l = f'RD{c}{sfx}'
        dst = AR(c) if c >= 5 else R(3)
        a.label(l)
        a(f'buffer_load_dwordx4 {vr(dst,4)}, v{V_X if c < 3 else T0+1}, {SRD}, s{msr(c)} offen offset:{aoff(c)} sc1')
        timeout(a)
        a(f's_cmp_lg_u32 s{S_ABORT}, 0\ns_cselect_b64 s[{S_T3}:{S_T4}], 0, -1')
        a('s_waitcnt vmcnt(0)')
        a(f'v_max_u32 v{T0+2}, v{dst+1}, v{dst+3}\nv_cmp_eq_u32 vcc, -1, v{T0+2}\ns_and_b64 vcc, vcc, s[{S_T3}:{S_T4}]')
        a(f's_cbranch_vccnz {l}')
        for m in 'qkv':
            for z in range(2):
                if m == 'v' and (c, z) not in done_v: continue
                if LOC[((m, c), z)][0] == 'lds':
                    lds_frag_read(a, lg, (m, c), z, T1, 'T'); a('s_waitcnt lgkmcnt(0)')
                    smf(ACC[f'{m}{z}'], dst, vr(T1, 8))
                else: smf(ACC[f'{m}{z}'], dst, frag_reg((m, c), z))
    a('s_nop 15')
    for ks in range(2):
        for t in range(2): a(f'ds_read_b128 {vr(KX[(t, ks)],4)}, v{V_L16} offset:{L_KX + t*4096 + ks*1024}')
    a(f'v_pk_add_f32 {vr(K0,2)}, {vr(K0,2)}, {vr(K0+2,2)}')
    a(f'v_pk_add_f32 {vr(K1,2)}, {vr(K1,2)}, {vr(K1+2,2)}')
    a(f'v_cvt_pk_bf16_f32 v{K0}, v{K0}, v{K0+1}')
    a(f'v_cvt_pk_bf16_f32 v{K0+2}, v{K1}, v{K1+1}')
    a(f'v_pk_add_f32 {vr(Q0,2)}, {vr(Q0,2)}, {vr(Q0+2,2)}')
    a(f'v_pk_add_f32 {vr(Q1,2)}, {vr(Q1,2)}, {vr(Q1+2,2)}')
    a(f'v_cvt_pk_bf16_f32 v{K0+1}, v{Q0}, v{Q0+1}')
    a(f'v_cvt_pk_bf16_f32 v{K0+3}, v{Q1}, v{Q1+1}')
    a(f'ds_write2st64_b64 v{XB}, {vr(K0,2)}, {vr(K0+2,2)} offset0:{L_KXX//512} offset1:{L_KXX//512+1}')
    a('s_waitcnt lgkmcnt(0)')
    a(f's_branch REDOX{sfx}')
    a.label(f'RCHK{sfx}')
    a('s_mov_b64 exec, -1')
    pl()
    timeout(a)
    a(f's_cmp_eq_u32 s{S_ABORT}, 0\ns_cbranch_scc1 RWAIT{sfx}')
    a('s_waitcnt vmcnt(0)')
    a(f's_mov_b64 exec, s[{S_MK_J8}:{S_MK_J8+1}]')
    a(f's_branch RGO{sfx}')

def next_prep(a, lg):
    for r in range(40, 64): a(f'v_mov_b32 v{r}, 0')
    c0 = sorted(QK_LDS)[0]
    lds_frag_read(a, lg, (QK_LDS[c0], c0), 0, T0, 'T'); lds_frag_read(a, lg, (QK_LDS[c0], c0), 1, T1, 'T')
    emit_vma(a, V_X, 4)

def chain_init(a, P, cfg):
    SRD = f's[{S_WS}:{S_WS+3}]'
    a(f's_mov_b32 s{S_STEP}, 0\ns_mov_b32 s{S_ABORT}, 0')
    a(f's_mov_b32 s{S_PC}, {WS_P}\ns_mov_b32 s{S_PO}, {WS_P ^ (WS_P + 0x80000)}')
    a(f's_mul_i32 s{S_T0}, s{S_H}, 12288\ns_add_u32 s{S_PST}, s{S_PC}, s{S_T0}\ns_mul_i32 s{S_T0}, s{S_WV}, 3072\ns_add_u32 s{S_PST}, s{S_PST}, s{S_T0}')
    a(f's_mov_b32 s{S_TAG}, 0x3f80\ns_mov_b32 s{S_TAGS}, 0x43000000\ns_lshl_b32 s{S_ROTB}, s{S_ROT}, 7')
    a(f's_mov_b32 s{S_MK_N6}, 0x00400040\ns_mov_b32 s{S_MK_N6+1}, 0x00400040')
    a(f's_mov_b32 s{S_MC}, {WS_M}\ns_mov_b32 s{S_MN}, {WS_M + M_STRIDE}\ns_mov_b32 s{S_MP}, {WS_M + 2*M_STRIDE}')
    a(f's_lshl_b32 s{S_T0}, s{S_H}, 13\ns_lshl_b32 s{S_T1}, s{S_WV}, 11\ns_add_u32 s{S_T1}, s{S_T0}, s{S_T1}')
    a(f's_add_u32 s{S_VF}, s{S_T1}, {WS_VF}')
    a(f's_add_u32 s{S_KF}, s{S_T1}, {WS_KF + 32*8192}')
    a(f's_and_b32 s{S_W2K}, s{S_WV}, 1\ns_lshl_b32 s{S_W2K}, s{S_W2K}, 12')
    a(f's_add_u32 s{S_PF}, s{S_T0}, {WS_VF + 32*8192}\ns_add_u32 s{S_T1}, s{S_T0}, {WS_KF + 2*32*8192}')
    a(f's_cmp_ge_u32 s{S_WV}, 2\ns_cselect_b32 s{S_PF}, s{S_T1}, s{S_PF}\ns_add_u32 s{S_PF}, s{S_PF}, s{S_W2K}\ns_lshl_b32 s{S_W2K}, s{S_WV}, 11')
    a(f's_mul_i32 s{S_W1536}, s{S_WV}, 1536')
    a(f's_lshl_b32 s{S_W512}, s{S_WV}, 9\ns_lshl_b32 s{S_W4}, s{S_WV}, 2\ns_mov_b32 s{S_F0}, 0xf0')
    a(f's_lshl_b32 s{S_T0}, s{S_H}, 12\ns_lshl_b32 s{S_T1}, s{S_WV}, 10\ns_add_u32 s{S_T0}, s{S_T0}, s{S_T1}')
    a(f's_add_u32 s{S_KM}, s{S_T0}, {WS_KM}')
    a(f's_mov_b32 s{S_MK_KEY}, 0xcccccccc\ns_mov_b32 s{S_MK_KEY+1}, 0xcccccccc')
    a(f's_mov_b32 s{S_MK_J8}, 0x003f003f\ns_mov_b32 s{S_MK_J8+1}, 0x003f003f')
    import struct
    c = math.log2(math.e) / math.sqrt(128.0)
    a(f's_mov_b32 s{S_SC}, 0x{struct.unpack("<I", struct.pack("<f", c))[0]:08x}\ns_mov_b32 s{S_SC+1}, s{S_SC}')
    a(f's_mov_b32 s{S_RED}, 0')
    a(f's_lshr_b32 s{S_T0}, s{S_H}, 4\ns_and_b32 s{S_T1}, s{S_H}, 15')
    a(f's_cmp_eq_u32 s{S_WV}, 0\ns_cselect_b32 s{S_RED}, 1, 0')
    l = a.newlabel('RT')
    a(f's_cmp_lg_u32 s{S_WV}, 1\ns_cbranch_scc1 {l}\ns_cmp_ge_u32 s{S_H}, 16\ns_cbranch_scc1 {l}')
    a(f's_mov_b32 s{S_RED}, 1\ns_mov_b32 s{S_T0}, 2')
    a.label(l)
    a(f's_lshr_b32 s{S_T3}, s{S_T1}, 2\ns_and_b32 s{S_T4}, s{S_T1}, 3')
    a(f's_mul_i32 s{S_RLD}, s{S_T3}, 3072\ns_lshl_b32 s{S_T2}, s{S_T0}, 10\ns_add_u32 s{S_RLD}, s{S_RLD}, s{S_T2}\ns_lshl_b32 s{S_T2}, s{S_T4}, 8\ns_add_u32 s{S_RLD}, s{S_RLD}, s{S_T2}')
    a(f's_sub_u32 s{S_T0}, 2, s{S_T0}\ns_mul_i32 s{S_RB}, s{S_T0}, 3072\ns_lshl_b32 s{S_T2}, s{S_T4}, 8\ns_add_u32 s{S_RB}, s{S_RB}, s{S_T2}\ns_lshl_b32 s{S_T2}, s{S_T3}, 6\ns_add_u32 s{S_RB}, s{S_RB}, s{S_T2}\ns_mov_b32 s{S_DUP}, 0')
    if NCOPY > 1:
        a(f's_and_b32 s{S_DUP}, s{S_H}, {NCOPY-1}\ns_lshl_b32 s{S_DUP}, s{S_DUP}, 16')
        for r in (S_MC, S_MN, S_MP): a(f's_add_u32 s{r}, s{r}, s{S_DUP}')
        a(f's_mov_b32 s{S_MK_J8}, 0x3f3f3f3f\ns_mov_b32 s{S_MK_J8+1}, 0x3f3f3f3f')

def mem0_copy(a, P):
    a(f's_mov_b32 s8, s{P["mem0"]}\ns_mov_b32 s9, s{P["mem0"]+1}\ns_mov_b32 s10, 9216\ns_mov_b32 s11, 0x20000')
    a(f's_lshl_b32 s34, s{S_H}, 16\ns_add_u32 s34, s34, {WS_M}')
    for k in range(3):
        a(f'v_add_u32 v12, {k*256}, v0')
        a('v_mul_u32_u24 v13, 911, v12\nv_lshrrev_b32 v13, 16, v13')
        a('v_mul_u32_u24 v14, 72, v13\nv_sub_u32 v14, v12, v14')
        a('v_lshrrev_b32 v15, 1, v14')
        a('v_mul_u32_u24 v16, 57, v15\nv_lshrrev_b32 v16, 9, v16')
        a('v_mul_u32_u24 v17, 9, v16\nv_sub_u32 v17, v15, v17')
        a('v_mul_u32_u24 v18, 43, v17\nv_lshrrev_b32 v18, 7, v18')
        a('v_mul_u32_u24 v19, 3, v18\nv_sub_u32 v19, v17, v19')
        a('v_sub_u32 v18, 2, v18')
        a('v_lshrrev_b32 v20, 1, v13\nv_lshlrev_b32 v20, 8, v20\nv_lshl_add_u32 v20, v16, 6, v20')
        a('v_mul_u32_u24 v21, 3072, v18\nv_add_u32 v20, v20, v21\nv_lshl_add_u32 v20, v19, 10, v20')
        a('v_and_b32 v21, 1, v13\nv_lshl_add_u32 v20, v21, 5, v20\nv_and_b32 v21, 1, v14\nv_lshl_add_u32 v20, v21, 4, v20')
        a('v_lshlrev_b32 v21, 4, v12')
        a('v_cmp_gt_u32 vcc, 576, v12\ns_and_saveexec_b64 s[36:37], vcc')
        a('buffer_load_dwordx4 v[8:11], v21, s[8:11], 0 offen\ns_waitcnt vmcnt(0)')
        a('buffer_store_dwordx4 v[8:11], v20, s[4:7], s34 offen sc1')
        a('s_mov_b64 exec, s[36:37]')
```

```python
from asmlib import *
from layout import *
from chain import Cnt
import struct, math

def f32bits(x): return struct.unpack('<I', struct.pack('<f', x))[0]

G_CG = 12; G_WV = 13; G_RB = 14; G_I = 15
G_SW = 8
G_SG = 16; G_SU = 20
G_T0 = 24; G_T1 = 25; G_T2 = 26; G_T3 = 27; G_T4 = 28; G_T5 = 29
G_LB = 30
G_C1 = 32; G_C2 = 34; G_ONE = 36
G_DJ = 38
G_CUR = 39
G_DB = 40
G_SO = 41
G_CNT = 42

DBG_LN = 64; DBG_KV = 96; DBG_Q = 128; DBG_H = 160; DBG_AO = 192
KVT_LO = 96
NHELP = 2
DBG_CHAIN = 40; DBG_AOINIT = 44; DBG_IMPURE = 48

def signal(a, P, off_imm, s_idx=None, val=1, vtmp=(4, 5)):
    l = a.newlabel('SIG')
    a(f's_cmp_lg_u32 s13, 0\ns_cbranch_scc1 {l}')
    if s_idx is None: a(f'v_mov_b32 v{vtmp[0]}, {off_imm}')
    else: a(f's_lshl_b32 s{G_T5}, s{s_idx}, 2\ns_add_u32 s{G_T5}, s{G_T5}, {off_imm}\nv_mov_b32 v{vtmp[0]}, s{G_T5}')
    a(f'v_mov_b32 v{vtmp[1]}, {val}' if isinstance(val, int) else f'v_mov_b32 v{vtmp[1]}, s{val[0]}')
    a('s_mov_b64 exec, 1')
    a(f'global_atomic_add v{vtmp[0]}, v{vtmp[1]}, s[{P["dbg"]}:{P["dbg"]+1}]')
    a('s_mov_b64 exec, -1')
    a.label(l)

def wait_flag(a, P, off_imm, s_idx, target, vtmp=(4, 5), sleep=8, shift_s=None, mask=None, cnt=42):
    l = a.newlabel('WF'); d = a.newlabel('WFD')
    if s_idx is None: a(f'v_mov_b32 v{vtmp[0]}, {off_imm}')
    else: a(f's_lshl_b32 s{G_T5}, s{s_idx}, 2\ns_add_u32 s{G_T5}, s{G_T5}, {off_imm}\nv_mov_b32 v{vtmp[0]}, s{G_T5}')
    a(f's_mov_b32 s{cnt}, 0')
    a.label(l)
    a(f'global_load_dword v{vtmp[1]}, v{vtmp[0]}, s[{P["dbg"]}:{P["dbg"]+1}] sc1')
    a(f's_add_u32 s{cnt}, s{cnt}, 1\ns_cmp_gt_u32 s{cnt}, 0x20000\ns_cbranch_scc1 {d}')
    a('s_waitcnt vmcnt(0)')
    if shift_s is not None: a(f'v_lshrrev_b32 v{vtmp[1]}, s{shift_s}, v{vtmp[1]}\nv_and_b32 v{vtmp[1]}, {mask}, v{vtmp[1]}')
    a(f'v_cmp_le_u32 vcc, {target}, v{vtmp[1]}')
    a(f's_cbranch_vccnz {d}')
    if sleep: a(f's_sleep {sleep}')
    a(f's_branch {l}')
    a.label(d)
    a('s_waitcnt vmcnt(0)')

def rnd_bf16(a, dst, src, tmp=None):
    a(f'v_cvt_pk_bf16_f32 v{dst}, v{src}, v{src}\nv_lshlrev_b32 v{dst}, 16, v{dst}')

def layernorm(a, P):
    a('; ---- layernorm ----')
    a(f's_mov_b32 s8, s{P["x"]}\ns_mov_b32 s9, s{P["x"]+1}\ns_mov_b32 s10, {2048*1152}\ns_mov_b32 s11, 0x20000')
    a('v_and_b32 v1, 63, v0\nv_lshrrev_b32 v2, 3, v1\nv_and_b32 v3, 7, v1')
    a(f's_lshl_b32 s{G_T0}, s{G_T4}, 2\ns_add_u32 s{G_T0}, s{G_T0}, s{G_WV}\ns_lshl_b32 s{G_T0}, s{G_T0}, 3')
    a(f's_mul_i32 s{G_T1}, s{G_T0}, 1152')
    a('v_mul_u32_u24 v4, 1152, v2\nv_lshl_add_u32 v4, v3, 4, v4')
    X = 8; F = 48
    for i in range(9): a(f'buffer_load_dwordx4 {vr(X+4*i,4)}, v4, s[8:11], s{G_T1} offen offset:{i*128}')
    a(f's_lshr_b32 s{G_T2}, s{G_T0}, 5\ns_mul_i32 s{G_T2}, s{G_T2}, 36864\ns_and_b32 s{G_T3}, s{G_T0}, 31\ns_lshl_b32 s{G_T3}, s{G_T3}, 4\ns_add_u32 s{G_T2}, s{G_T2}, s{G_T3}\ns_add_u32 s{G_T2}, s{G_T2}, {WS_XF}')
    a('v_lshrrev_b32 v5, 1, v3\nv_lshlrev_b32 v5, 10, v5\nv_and_b32 v6, 1, v3\nv_lshl_add_u32 v5, v6, 9, v5\nv_lshl_add_u32 v5, v2, 4, v5')
    for i in range(9):
        a(f's_waitcnt vmcnt({8-i})')
        for r in range(4):
            x = X + 4*i + r; f = F + 2*(4*i + r)
            a(f'v_lshlrev_b32 v{f}, 16, v{x}\nv_and_b32 v{f+1}, 0xffff0000, v{x}')
    def red8(v, t):
        a(f'v_add_f32_dpp v{v}, v{v}, v{v} quad_perm:[1,0,3,2] row_mask:0xf bank_mask:0xf')
        a(f'v_add_f32_dpp v{v}, v{v}, v{v} quad_perm:[2,3,0,1] row_mask:0xf bank_mask:0xf')
        a(f'v_add_f32_dpp v{v}, v{v}, v{v} row_half_mirror row_mask:0xf bank_mask:0xf')
    S = 120
    a(f'v_pk_add_f32 {vr(S,2)}, {vr(F,2)}, {vr(F+2,2)}')
    for k in range(2, 36): a(f'v_pk_add_f32 {vr(S,2)}, {vr(S,2)}, {vr(F+2*k,2)}')
    a(f'v_add_f32 v{S}, v{S}, v{S+1}')
    red8(S, S+1)
    a(f'v_mul_f32 v{S}, 0x{f32bits(1/576):08x}, v{S}')
    a(f'v_mov_b32 v{S+1}, v{S}')
    Q = 122; D = 124
    a(f'v_mov_b64 {vr(Q,2)}, 0')
    for k in range(36):
        a(f'v_pk_add_f32 {vr(D,2)}, {vr(F+2*k,2)}, {vr(S,2)} neg_lo:[0,1] neg_hi:[0,1]')
        a(f'v_pk_fma_f32 {vr(Q,2)}, {vr(D,2)}, {vr(D,2)}, {vr(Q,2)}')
    a(f'v_add_f32 v{Q}, v{Q}, v{Q+1}')
    red8(Q, Q+1)
    a(f'v_mul_f32 v{Q}, 0x{f32bits(1/576):08x}, v{Q}')
    rnd_bf16(a, Q, Q)
    a(f'v_add_f32 v{Q}, 0x{f32bits(1e-5):08x}, v{Q}')
    rnd_bf16(a, Q, Q)
    a(f'v_sqrt_f32 v{Q}, v{Q}')
    rnd_bf16(a, Q, Q)
    a(f'v_rcp_f32 v{Q}, v{Q}')
    rnd_bf16(a, S, S)
    a(f'v_mov_b32 v{S+1}, v{S}\nv_mov_b32 v{Q+1}, v{Q}')
    for k in range(36):
        f = F + 2*k
        a(f'v_pk_add_f32 {vr(f,2)}, {vr(f,2)}, {vr(S,2)} neg_lo:[0,1] neg_hi:[0,1]')
        a(f'v_cvt_pk_bf16_f32 v{X+k}, v{f}, v{f+1}')
        a(f'v_lshlrev_b32 v{f}, 16, v{X+k}\nv_and_b32 v{f+1}, 0xffff0000, v{X+k}')
        a(f'v_pk_mul_f32 {vr(f,2)}, {vr(f,2)}, {vr(Q,2)}')
        a(f'v_cvt_pk_bf16_f32 v{X+k}, v{f}, v{f+1}')
        if k % 4 == 3:
            i = k // 4
            a(f'buffer_store_dwordx4 {vr(X+4*i,4)}, v5, s[4:7], s{G_T2} offen sc1')
            a(f's_add_u32 s{G_T2}, s{G_T2}, 4096')
    a('s_waitcnt vmcnt(0)\ns_barrier')
    a(f's_lshr_b32 s{G_T4}, s{G_T4}, 3')
    signal(a, P, DBG_LN, G_T4)

def XR(rt, ks):
    n = (rt * 36 + ks) * 4
    return vr(n, 4, 'a') if n < 256 else vr(224 + n - 256, 4, 'v')
V_LN = 1; V_DQ = 2; V_DG = 3; V_TR = 4; V_SK = 5; V_SV = 6; V_L16 = 7; V_D = 10; V_TRC = 11
ACG = 16; ACU = 48; WB = 80; NWB = 4; ET = 96
G_STEP = 16; G_MSK = 18; G_PT = 20; G_OB = 22; G_SZQ = 23; G_STQ = 31
G_PB = 43; G_O1 = 44; G_O2 = 45; G_P = 46; G_RBC = 47; G_LAST = 48; G_KVP = 49

def gemm1(a, P, cfg):
    a('; ---- gemm1 ----')
    a(f'v_and_b32 v{V_LN}, 63, v0\nv_lshlrev_b32 v{V_L16}, 4, v{V_LN}')
    a(f'v_lshrrev_b32 v8, 2, v{V_LN}\nv_and_b32 v9, 3, v{V_LN}\nv_lshlrev_b32 v9, 4, v9')
    a(f'v_lshl_add_u32 v{V_DQ}, v8, 13, v9')
    a(f'v_mul_u32_u24 v{V_DG}, 9216, v8\nv_add_u32 v{V_DG}, v{V_DG}, v9')
    a(f'v_lshrrev_b32 v8, 5, v{V_LN}\nv_bfe_u32 v9, v{V_LN}, 2, 2\nv_lshl_add_u32 v8, v8, 3, v9\nv_lshlrev_b32 v8, 6, v8')
    a(f'v_bfe_u32 v9, v{V_LN}, 4, 1\nv_lshl_add_u32 v8, v9, 5, v8\nv_and_b32 v9, 3, v{V_LN}\nv_lshl_add_u32 v{V_TR}, v9, 3, v8')
    a(f'v_lshrrev_b32 v8, 5, v{V_LN}\nv_and_b32 v9, 15, v{V_LN}\nv_lshlrev_b32 v9, 4, v9\nv_lshl_add_u32 v8, v8, 8, v9\nv_bfe_u32 v9, v{V_LN}, 4, 1')
    a(f'v_lshl_add_u32 v{V_SK}, v9, 12, v8\nv_lshl_add_u32 v{V_SV}, v9, 10, v8')
    a(f's_mov_b32 s{G_SW+3}, 0x20000\ns_mov_b32 s{G_SZQ}, {576*8192}\ns_mov_b32 s{G_STQ}, {16*8192}')
    a(f's_mul_i32 s{G_LB}, s{G_WV}, 9216')
    c1 = -2 * math.log2(math.e) * math.sqrt(2 / math.pi); c2 = c1 * 0.044715
    for sr, v in ((G_C1, c1), (G_C2, c2), (G_ONE, 1.0)):
        a(f's_mov_b32 s{sr}, 0x{f32bits(v):08x}\ns_mov_b32 s{sr+1}, s{sr}')
    pp = lambda n: f's[{P[n]}:{P[n]+1}]'
    def dma_ops():
        pre = f"""s_cmp_lt_u32 s{G_DJ}, s{G_PB}|s_cselect_b32 s{G_T0}, s{G_O1}, s{G_O2}|s_add_u32 s{G_T0}, s{G_T0}, s{G_DJ}
s_min_u32 s{G_T0}, s{G_T0}, 27
s_mul_i32 s{G_T1}, s{G_T0}, 24
s_add_u32 s{G_T1}, s{G_T1}, s{G_CG}
s_lshr_b32 s{G_T2}, s{G_T1}, 7
s_and_b32 s{G_T1}, s{G_T1}, 127
s_lshl_b32 s{G_T1}, s{G_T1}, 6
s_mul_i32 s{G_SO}, s{G_WV}, {144*8192}
s_add_u32 s{G_SO}, s{G_SO}, s{G_T1}
s_cmp_eq_u32 s{G_T2}, 1|s_cselect_b64 s[{G_SW}:{G_SW+1}], {pp('Wv')}, {pp('Wk')}
s_cmp_eq_u32 s{G_T2}, 2|s_cselect_b64 s[{G_SW}:{G_SW+1}], {pp('Wq')}, s[{G_SW}:{G_SW+1}]
s_sub_u32 s{G_T1}, s{G_T0}, 16
s_lshr_b32 s{G_T2}, s{G_T1}, 1
s_mul_i32 s{G_T2}, s{G_T2}, 24
s_add_u32 s{G_T2}, s{G_T2}, s{G_CG}
s_lshl_b32 s{G_T2}, s{G_T2}, 6
s_mul_i32 s{G_T3}, s{G_WV}, {144*9216}
s_add_u32 s{G_T2}, s{G_T2}, s{G_T3}
s_bitcmp1_b32 s{G_T1}, 0|s_cselect_b64 s[{G_PT}:{G_PT+1}], {pp('wu')}, {pp('wg')}
s_cmp_ge_u32 s{G_T0}, 16|s_cselect_b64 s[{G_SW}:{G_SW+1}], s[{G_PT}:{G_PT+1}], s[{G_SW}:{G_SW+1}]|s_cselect_b32 s{G_SO}, s{G_T2}, s{G_SO}|s_cselect_b32 s{G_SW+2}, {576*9216}, s{G_SZQ}|s_cselect_b32 s{G_STEP}, {16*9216}, s{G_STQ}|s_cselect_b64 s[{G_MSK}:{G_MSK+1}], -1, 0
v_cndmask_b32 v{V_D}, v{V_DQ}, v{V_DG}, s[{G_MSK}:{G_MSK+1}]
s_add_u32 s{G_T0}, s{G_DB}, s{G_LB}"""
        ops = [x.replace('|', '\n') for x in pre.split('\n')]
        for n in range(9):
            if cfg.get('g_nodma'): continue
            ops.append(f's_add_u32 m0, s{G_T0}, {n*1024}\ns_nop 0\nbuffer_load_dwordx4 v{V_D}, s[{G_SW}:{G_SW+3}], s{G_SO} offen lds\ns_add_u32 s{G_SO}, s{G_SO}, s{G_STEP}')
        ops.append(f's_add_u32 s{G_DJ}, s{G_DJ}, 1')
        ops.append(f's_add_u32 s{G_DB}, s{G_DB}, 36864\ns_cmp_eq_u32 s{G_DB}, {4*36864}\ns_cselect_b32 s{G_DB}, 0, s{G_DB}')
        return ops
    a(f's_mov_b32 s{G_DJ}, 0\ns_mov_b32 s{G_DB}, 0\ns_mov_b32 s{G_CUR}, 0')
    a(f's_lshr_b32 s{G_T0}, s{G_RB}, 1\ns_mul_i32 s{G_O1}, s{G_T0}, 3\ns_cmp_eq_u32 s{G_T0}, 3\ns_cselect_b32 s{G_PB}, 2, 3')
    a(f's_sub_u32 s{G_O2}, 0, s{G_PB}\ns_add_u32 s{G_LAST}, s{G_PB}, 16\ns_add_u32 s{G_KVP}, s{G_PB}, 11')
    a(f's_cmp_lt_u32 s{G_RB}, 2\ns_cselect_b32 s{G_O2}, 8, s{G_O2}\ns_cselect_b32 s{G_LAST}, 8, s{G_LAST}\ns_cselect_b32 s{G_KVP}, 99, s{G_KVP}')
    a(f's_and_b32 s{G_RBC}, s{G_RB}, 1')
    for _ in range(3):
        for op in dma_ops(): a(op)
    def load_x():
        wait_flag(a, P, DBG_LN, G_RBC, 8, vtmp=(8, 9), sleep=4)
        a(f's_lshl_b32 s{G_T0}, s{G_RBC}, 3\ns_lshl_b32 s{G_T1}, s{G_WV}, 1\ns_add_u32 s{G_T0}, s{G_T0}, s{G_T1}\ns_mul_i32 s{G_T0}, s{G_T0}, 36864\ns_add_u32 s{G_T0}, s{G_T0}, {WS_XF}')
        n = 0
        for rt in range(2):
            for ks in range(36):
                a(f'buffer_load_dwordx4 {XR(rt, ks)}, v{V_L16}, s[4:7], s{G_T0} offen offset:{(n % 4)*1024} sc1')
                n += 1
                if n % 4 == 0: a(f's_add_u32 s{G_T0}, s{G_T0}, 4096')
                if n % 36 == 0 and n < 72: a('s_waitcnt vmcnt(20)')
        a('s_waitcnt vmcnt(0)')
    load_x()
    if cfg.get('prof'): cfg['_prof'](a, 5)

    def tile_start():
        if cfg.get('gprof'): a('s_memtime s[60:61]\ns_waitcnt lgkmcnt(0)\ns_sub_u32 s66, s60, s64\ns_add_u32 s69, s69, s66')
        a('s_waitcnt vmcnt(18)')
        if cfg.get('gprof'): a('s_memtime s[62:63]\ns_waitcnt lgkmcnt(0)\ns_sub_u32 s66, s62, s60\ns_add_u32 s67, s67, s66')
        a('s_barrier')
        if cfg.get('gprof'): a('s_memtime s[64:65]\ns_waitcnt lgkmcnt(0)\ns_sub_u32 s66, s64, s62\ns_add_u32 s68, s68, s66')
        a(f'v_add_u32 v{V_TRC}, s{G_CUR}, v{V_TR}')
        a(f's_add_u32 s{G_CUR}, s{G_CUR}, 36864\ns_cmp_eq_u32 s{G_CUR}, {4*36864}\ns_cselect_b32 s{G_CUR}, 0, s{G_CUR}')
    def body(acc, swapped):
        fill = dma_ops()
        def rd(ks):
            w = WB + 4 * (ks % NWB)
            a(f'ds_read_b64_tr_b16 {vr(w,2)}, v{V_TRC} offset:{ks*1024}')
            a(f'ds_read_b64_tr_b16 {vr(w+2,2)}, v{V_TRC} offset:{ks*1024+256}')
        PD = NWB - 1; DSP = cfg.get('DSP', 5)
        for ks in range(PD): rd(ks)
        for ks in range(36):
            if ks + PD < 36: rd(ks + PD)
            rem = min(PD, 35 - ks)
            a(f's_waitcnt lgkmcnt({2*rem})')
            w = vr(WB + 4 * (ks % NWB), 4)
            for rt in range(2):
                d = vr(acc + 16*rt, 16); c = d if ks else '0'
                if swapped: a(f'v_mfma_f32_32x32x16_bf16 {d}, {w}, {XR(rt, ks)}, {c}')
                else: a(f'v_mfma_f32_32x32x16_bf16 {d}, {XR(rt, ks)}, {w}, {c}')
                if fill and ks >= 1 and (not fill[0].startswith('s_add_u32 m0') or (2*ks + rt) % DSP == 0): a(fill.pop(0))
        assert not fill
    def pack_swapped(src_fn, rt, store_fn):
        for ai, aq in enumerate((0, 2)):
            t = ET + 8 * (rt % 2) + 4 * ai
            a(f'v_cvt_pk_bf16_f32 v{t}, v{src_fn(4*aq)}, v{src_fn(4*aq+1)}\nv_cvt_pk_bf16_f32 v{t+1}, v{src_fn(4*aq+2)}, v{src_fn(4*aq+3)}')
            a(f'v_cvt_pk_bf16_f32 v{t+2}, v{src_fn(4*aq+4)}, v{src_fn(4*aq+5)}\nv_cvt_pk_bf16_f32 v{t+3}, v{src_fn(4*aq+6)}, v{src_fn(4*aq+7)}')
            a(f'v_permlane32_swap_b32 v{t}, v{t+2}\nv_permlane32_swap_b32 v{t+1}, v{t+3}')
            store_fn(t, ai)
    if cfg.get('gprof'): a('s_memtime s[64:65]\ns_waitcnt lgkmcnt(0)\ns_mov_b32 s67, 0\ns_mov_b32 s68, 0\ns_mov_b32 s69, 0')
    a(f's_mov_b32 s{G_P}, 0')
    a.label('G1S')
    tile_start()
    a(f's_cmp_lt_u32 s{G_P}, s{G_PB}\ns_cselect_b32 s{G_I}, s{G_O1}, s{G_O2}\ns_add_u32 s{G_I}, s{G_I}, s{G_P}')
    a(f's_mul_i32 s{G_T4}, s{G_I}, 24\ns_add_u32 s{G_T4}, s{G_T4}, s{G_CG}')
    a(f's_lshl_b32 s{G_OB}, s{G_RBC}, 3\ns_lshl_b32 s{G_T5}, s{G_WV}, 1\ns_add_u32 s{G_OB}, s{G_OB}, s{G_T5}\ns_lshl_b32 s{G_OB}, s{G_OB}, 18')
    a(f's_bfe_u32 s{G_T5}, s{G_T4}, 0x50002\ns_lshl_b32 s{G_T5}, s{G_T5}, 13\ns_add_u32 s{G_OB}, s{G_OB}, s{G_T5}')
    a(f's_and_b32 s{G_CNT}, s{G_T4}, 3\ns_lshl_b32 s{G_CNT}, s{G_CNT}, 10\ns_add_u32 s{G_OB}, s{G_OB}, s{G_CNT}')
    a(f's_lshr_b32 s{G_T4}, s{G_T4}, 7')
    a(f's_cmp_eq_u32 s{G_T4}, 1\ns_cbranch_scc1 G1V')
    a(f's_cmp_eq_u32 s{G_T4}, 0\ns_cselect_b32 s{G_T4}, {WS_KF}, {WS_QF}' if False else f's_mov_b32 s{G_T5}, {WS_KF}\ns_cmp_eq_u32 s{G_T4}, 0\ns_cselect_b32 s{G_T4}, s{G_T5}, {WS_QF}')
    a(f's_add_u32 s{G_OB}, s{G_OB}, s{G_T4}')
    body(ACG, True)
    for rt in range(2):
        pack_swapped(lambda r: ACG + 16*rt + r, rt,
                     lambda t, ai: a(f'buffer_store_dwordx4 {vr(t,4)}, v{V_SK}, s[4:7], s{G_OB} offen offset:{ai*512} {cfg.get("g_st", "sc1")}'))
        if rt == 0: a(f's_add_u32 s{G_OB}, s{G_OB}, {32*8192}')
    a('s_branch G1SE')
    a.label('G1V')
    a(f's_add_u32 s{G_OB}, s{G_OB}, s{G_CNT}\ns_add_u32 s{G_OB}, s{G_OB}, {WS_VF}')
    body(ACG, False)
    for rt in range(2):
        for ap in range(2):
            t = ET + 8 * rt + 4 * ap; s0 = ACG + 16*rt + 4*ap; s1 = s0 + 8
            a(f'v_cvt_pk_bf16_f32 v{t}, v{s0}, v{s0+1}\nv_cvt_pk_bf16_f32 v{t+1}, v{s0+2}, v{s0+3}')
            a(f'v_cvt_pk_bf16_f32 v{t+2}, v{s1}, v{s1+1}\nv_cvt_pk_bf16_f32 v{t+3}, v{s1+2}, v{s1+3}')
            a(f'buffer_store_dwordx4 {vr(t,4)}, v{V_SV}, s[4:7], s{G_OB} offen offset:{ap*512} {cfg.get("g_st", "sc1")}')
        if rt == 0: a(f's_add_u32 s{G_OB}, s{G_OB}, {32*8192}')
    a.label('G1SE')
    a(f's_add_u32 s{G_P}, s{G_P}, 1')
    a(f's_cmp_lg_u32 s{G_P}, s{G_PB}\ns_cbranch_scc1 G1F1')
    a('s_waitcnt vmcnt(0)\ns_barrier')
    signal(a, P, DBG_KV, G_RBC, vtmp=(8, 9))
    if cfg.get('prof'): cfg['_prof'](a, 6)
    a(f's_cmp_lt_u32 s{G_RB}, 2\ns_cbranch_scc1 G1F1')
    a(f's_mov_b32 s{G_RBC}, s{G_RB}')
    load_x()
    a.label('G1F1')
    a(f's_cmp_lg_u32 s{G_P}, s{G_KVP}\ns_cbranch_scc1 G1F2')
    a('s_waitcnt vmcnt(0)\ns_barrier')
    signal(a, P, DBG_KV, G_RBC, vtmp=(8, 9))
    a.label('G1F2')
    a(f's_cmp_lt_u32 s{G_P}, s{G_LAST}\ns_cbranch_scc1 G1S')
    a('s_waitcnt vmcnt(0)\ns_barrier')
    signal(a, P, DBG_Q, G_RB, vtmp=(8, 9))
    if cfg.get('prof'): cfg['_prof'](a, 7)
    a(f's_mov_b32 s{G_I}, 0')
    a.label('G1G')
    tile_start(); body(ACG, True)
    tile_start(); body(ACU, True)
    a(f's_lshl_b32 s{G_OB}, s{G_RB}, 3\ns_lshl_b32 s{G_T5}, s{G_WV}, 1\ns_add_u32 s{G_OB}, s{G_OB}, s{G_T5}\ns_mul_i32 s{G_OB}, s{G_OB}, {288*1024}')
    a(f's_mul_i32 s{G_T4}, s{G_I}, 24\ns_add_u32 s{G_T4}, s{G_T4}, s{G_CG}\ns_lshl_b32 s{G_T4}, s{G_T4}, 11\ns_add_u32 s{G_OB}, s{G_OB}, s{G_T4}\ns_add_u32 s{G_OB}, s{G_OB}, {WS_HF}')
    T = 112
    for rt in range(2):
        for q in range(0, 16, 4):
            prs = [(ACG + 16*rt + q + o, ACU + 16*rt + q + o, T + o) for o in (0, 2)]
            for g, u, t in prs: a(f'v_pk_mul_f32 {vr(t,2)}, {vr(g,2)}, {vr(g,2)}')
            for g, u, t in prs: a(f'v_pk_fma_f32 {vr(t,2)}, {vr(t,2)}, s[{G_C2}:{G_C2+1}], {vr(T+4,2)}') if False else a(f'v_pk_mul_f32 {vr(t,2)}, {vr(t,2)}, s[{G_C2}:{G_C2+1}]')
            for g, u, t in prs: a(f'v_pk_add_f32 {vr(t,2)}, {vr(t,2)}, s[{G_C1}:{G_C1+1}]')
            for g, u, t in prs: a(f'v_pk_mul_f32 {vr(t,2)}, {vr(t,2)}, {vr(g,2)}')
            for g, u, t in prs: a(f'v_exp_f32 v{t}, v{t}\nv_exp_f32 v{t+1}, v{t+1}')
            for g, u, t in prs: a(f'v_pk_add_f32 {vr(t,2)}, {vr(t,2)}, s[{G_ONE}:{G_ONE+1}]')
            for g, u, t in prs: a(f'v_rcp_f32 v{t}, v{t}\nv_rcp_f32 v{t+1}, v{t+1}')
            for g, u, t in prs: a(f'v_pk_mul_f32 {vr(g,2)}, {vr(g,2)}, {vr(u,2)}')
            for g, u, t in prs: a(f'v_pk_mul_f32 {vr(g,2)}, {vr(g,2)}, {vr(t,2)}')
        pack_swapped(lambda r: ACG + 16*rt + r, rt,
                     lambda t, ai: a(f'buffer_store_dwordx4 {vr(t,4)}, v{V_L16}, s[4:7], s{G_OB} offen offset:{ai*1024} {cfg.get("g_st", "sc1")}'))
        if rt == 0: a(f's_add_u32 s{G_OB}, s{G_OB}, {288*1024}')
    a(f's_add_u32 s{G_I}, s{G_I}, 1\ns_cmp_lt_u32 s{G_I}, 6\ns_cbranch_scc1 G1G')
    a('s_waitcnt vmcnt(0)\ns_barrier')
    signal(a, P, DBG_H, G_RB, vtmp=(8, 9))
    if cfg.get('gprof'):
        a(f's_lshl_b32 s59, s2, 6\ns_lshl_b32 s58, s13, 4\ns_add_u32 s59, s59, s58\ns_add_u32 s59, s59, {WS_DBG + 0x90000}')
        a('v_mov_b32 v12, s67\nv_mov_b32 v13, s68\nv_mov_b32 v14, s69\nv_mov_b32 v15, 0\nv_mov_b32 v8, 0\ns_mov_b64 exec, 1')
        a('buffer_store_dwordx4 v[12:15], v8, s[4:7], s59 offen\ns_mov_b64 exec, -1')
```

```python
import sys, json
from asmlib import *
from layout import *
import chain as C, gemm1 as G, ffn2 as F, ao as AO

KN = 'parallel_sum__memory_aug_recurrent_mem_tr__geglu_ffn__prompt_kernel'
HEADER = open('parallel_sum__memory_aug_recurrent_mem_tr__geglu_ffn__prompt.s.ref').read().split('; Override launch')[0]

def gen(cfg):
    cfg = dict(cfg); cfg['_prof'] = prof
    a = Asm()
    P = {}
    names = [('x',0),('mem0',8),('Wq',16),('Wk',24),('Wv',32),('Wo',40),('wg',64),('wu',72),('wd',80),('out',88),('dbg',96),('ws',104)]
    a('s_cmp_ge_u32 s2, 256\ns_cbranch_scc1 K_END')
    if cfg.get('perm'): a(f's_mul_i32 s2, s2, {cfg["perm"]}\ns_and_b32 s2, s2, 255')
    for i, (n, off) in enumerate(names):
        P[n] = 72 + 2*i
        a(f's_load_dwordx2 s[{P[n]}:{P[n]+1}], s[0:1], {off}')
    a('s_getreg_b32 s3, hwreg(HW_REG_XCC_ID)')
    a('v_lshrrev_b32 v4, 6, v0')
    a('v_readfirstlane_b32 s13, v4')
    a('s_waitcnt lgkmcnt(0)')
    a(f's_mov_b32 s4, s{P["ws"]}\ns_mov_b32 s5, s{P["ws"]+1}\ns_mov_b32 s6, {WS_SIZE}\ns_mov_b32 s7, 0x20000')
    if cfg.get('prof'): a('s_memrealtime s[100:101]')
    if cfg.get('fakexcc'): a('s_cmp_lt_u32 s2, 128\ns_cselect_b32 s24, 1, 0\ns_cmp_eq_u32 s3, 0\ns_cselect_b32 s3, s24, s3')
    a('s_cmp_lt_u32 s3, 8\ns_cselect_b32 s54, s3, 7')
    a('s_lshr_b32 s55, s2, 3\ns_and_b32 s55, s55, 31')
    DBGP = f's[{P["dbg"]}:{P["dbg"]+1}]'
    a('s_cmp_lg_u32 s13, 0\ns_cbranch_scc1 CL_ISSUED')
    a('s_mov_b64 exec, 1')
    a('s_lshl_b32 s27, 1, s55\ns_lshl_b32 s29, s54, 2')
    a('v_mov_b32 v4, s29\nv_mov_b32 v5, s27')
    a(f'global_atomic_or v250, v4, v5, {DBGP} sc0')
    a('s_mov_b64 exec, -1')
    a.label('CL_ISSUED')
    a('s_and_b32 s24, s2, 6\ns_cmp_lg_u32 s24, 2\ns_cbranch_scc1 NO_LN')
    a(f's_lshr_b32 s{G.G_T4}, s2, 3\ns_lshl_b32 s{G.G_T4}, s{G.G_T4}, 1\ns_and_b32 s24, s2, 1\ns_add_u32 s{G.G_T4}, s{G.G_T4}, s24')
    G.layernorm(a, P)
    a.label('NO_LN')
    def resolve(sfx, ldsaddr, firstwait):
        a(f's_cmp_lg_u32 s13, 0\ns_cbranch_scc1 CL_WAIT{sfx}')
        a('s_mov_b32 s25, s55\ns_mov_b32 s26, s54\ns_mov_b32 s28, 0\ns_lshl_b32 s27, 1, s25')
        a('s_mov_b64 exec, 1')
        a(firstwait)
        a(f's_branch CL_CHK{sfx}')
        a.label(f'CL_TRY{sfx}')
        a('s_lshl_b32 s27, 1, s25\ns_lshl_b32 s29, s26, 2')
        a('v_mov_b32 v248, s29\nv_mov_b32 v249, s27')
        a(f'global_atomic_or v250, v248, v249, {DBGP} sc0')
        a('s_waitcnt vmcnt(0)')
        a.label(f'CL_CHK{sfx}')
        a('v_readfirstlane_b32 s30, v250')
        a(f's_and_b32 s31, s30, s27\ns_cbranch_scc0 CL_GOT{sfx}')
        a(f's_not_b32 s31, s30\ns_cbranch_scc0 CL_FULL{sfx}')
        a(f's_ff1_i32_b32 s25, s31\ns_branch CL_TRY{sfx}')
        a.label(f'CL_FULL{sfx}')
        a(f's_add_u32 s28, s28, 1\ns_sub_u32 s26, 8, s28\ns_cmp_gt_u32 s28, 8\ns_cbranch_scc1 CL_NONE{sfx}')
        a('s_mov_b32 s25, 0')
        a(f's_cmp_lg_u32 s26, 0\ns_cbranch_scc1 CL_TRY{sfx}')
        a(f'v_mov_b32 v248, {G.DBG_IMPURE}\nv_mov_b32 v249, 1')
        a(f'global_atomic_or v250, v248, v249, {DBGP} sc0\ns_waitcnt vmcnt(0)')
        a(f's_branch CL_TRY{sfx}')
        a.label(f'CL_NONE{sfx}')
        a('s_mov_b32 s26, 8\ns_mov_b32 s25, 0')
        a.label(f'CL_GOT{sfx}')
        a('s_lshl_b32 s26, s26, 5\ns_add_u32 s26, s26, s25')
        a(f'v_mov_b32 v248, {ldsaddr}\nv_mov_b32 v249, s26\nds_write_b32 v248, v249\ns_waitcnt lgkmcnt(0)')
        a('s_mov_b64 exec, -1')
        a.label(f'CL_WAIT{sfx}')
        a('s_barrier')
        a(f'v_mov_b32 v248, {ldsaddr}\nds_read_b32 v249, v248\ns_waitcnt lgkmcnt(0)')
        a('v_readfirstlane_b32 s26, v249')
        a('s_barrier')
    if cfg.get('spec', 1):
        a(f's_mov_b32 s52, 1\ns_mov_b32 s{C.S_H}, s55')
        a('s_cmp_eq_u32 s54, 0\ns_cbranch_scc1 R_CHAIN2')
    resolve('A', 0, 's_waitcnt vmcnt(0)')
    a.label('ROLE')
    a('s_lshr_b32 s24, s26, 5\ns_and_b32 s28, s26, 31')
    if cfg.get('prof'): a('s_mov_b32 s101, s26')
    a('s_cmp_ge_u32 s24, 8\ns_cbranch_scc1 K_END')
    a('s_cmp_eq_u32 s24, 0\ns_cbranch_scc1 R_CHAIN')
    if cfg.get('warm', 1):
        a('s_sub_u32 s25, s26, 32\ns_mul_i32 s27, s25, 1171\ns_lshr_b32 s27, s27, 16\ns_mul_i32 s29, s27, 56\ns_sub_u32 s25, s25, s29')
        a(f's_cmp_eq_u32 s27, 1\ns_cselect_b64 s[8:9], s[{P["Wk"]}:{P["Wk"]+1}], s[{P["Wq"]}:{P["Wq"]+1}]')
        a(f's_cmp_eq_u32 s27, 2\ns_cselect_b64 s[8:9], s[{P["Wv"]}:{P["Wv"]+1}], s[8:9]')
        a(f's_cmp_eq_u32 s27, 3\ns_cselect_b64 s[8:9], s[{P["Wo"]}:{P["Wo"]+1}], s[8:9]')
        a('s_mov_b32 s10, 4718592\ns_mov_b32 s11, 0x20000')
        a('s_lshl_b32 s25, s25, 15\nv_lshlrev_b32 v4, 7, v0')
        for k in range(3):
            a(f'buffer_load_dword v{200+k}, v4, s[8:11], s25 offen')
            a(f's_add_u32 s25, s25, {56*32768}')
    a('s_cmp_eq_u32 s24, 1\ns_cbranch_scc1 R_AO')
    a(f's_sub_u32 s{G.G_CG}, s24, 2\ns_lshl_b32 s{G.G_CG}, s{G.G_CG}, 2\ns_lshr_b32 s25, s28, 3\ns_add_u32 s{G.G_CG}, s{G.G_CG}, s25\ns_and_b32 s{G.G_RB}, s28, 7')
    G.gemm1(a, P, cfg)
    if cfg.get('prof'): prof(a, 1)
    a(f's_cmp_lt_u32 s{G.G_CG}, 12\ns_cbranch_scc1 R_FFN')
    a(f's_sub_u32 s24, s{G.G_CG}, 12\ns_lshl_b32 s24, s24, 3\ns_add_u32 s24, s24, s{G.G_RB}')
    a(f's_and_b32 s{AO.A_CH}, s24, 1\ns_bfe_u32 s{AO.A_HG}, s24, 0x30001\ns_lshr_b32 s{AO.A_SEG}, s24, 4\ns_add_u32 s{AO.A_SEG}, s{AO.A_SEG}, {2 + cfg.get("S0", 20)}')
    a('s_barrier\ns_branch AO_ENTRY2')
    a.label('R_FFN')
    F.ffn2(a, P, cfg)
    a('s_branch K_DONE')
    a.label('R_AO')
    a(f's_and_b32 s{AO.A_SEG}, s28, 1\ns_bfe_u32 s{AO.A_CH}, s28, 0x10001\ns_lshr_b32 s{AO.A_HG}, s28, 2')
    AO.ao(a, P, cfg)
    a('s_branch K_DONE')
    a.label('R_CHAIN')
    a(f's_mov_b32 s{C.S_H}, s28\ns_mov_b32 s52, 0')
    a.label('R_CHAIN2')
    def hook(vm):
        a('s_cmp_eq_u32 s52, 0\ns_cbranch_scc1 CH_OK')
        resolve('B', 24576, 's_waitcnt vmcnt(36)')
        if cfg.get('prof'): a('s_mov_b32 s101, s26')
        a(f's_cmp_eq_u32 s26, s{C.S_H}\ns_cbranch_scc1 CH_OK')
        a('s_waitcnt vmcnt(0)\ns_barrier')
        a('s_lshl_b32 s24, s13, 6\nv_lshrrev_b32 v0, 4, v0\nv_or_b32 v0, s24, v0')
        a('s_branch ROLE')
        a.label('CH_OK')
        a(f's_lshl_b32 s24, s13, 10\nv_add_u32 v40, s24, v{C.V_L16}')
        for r in range(4): a(f'v_mov_b32 v{44+r}, 0')
        a(f's_mul_i32 s25, s{C.S_H}, 12288')
        for b in range(2):
            a(f's_add_u32 s24, s25, {WS_P + b*0x80000}')
            for k in range(3):
                a('buffer_store_dwordx4 v[44:47], v40, s[4:7], s24 offen sc1'); vm.issue('x')
                a('s_add_u32 s24, s24, 4096')
        for r in range(4): a(f'v_mov_b32 v{48+r}, -1')
        a(f's_sub_u32 s24, s{C.S_H}, 1\ns_cmp_gt_u32 s24, 1\ns_cbranch_scc1 NOM')
        a(f's_mul_i32 s24, s{C.S_H}, {M_STRIDE}\ns_add_u32 s24, s24, {WS_M}')
        for k in range(3):
            a('buffer_store_dwordx4 v[48:51], v40, s[4:7], s24 offen sc1')
            a('s_add_u32 s24, s24, 4096')
        a.label('NOM')
    C.chain_prologue(a, P, hook)
    a(f's_cmp_lg_u32 s{C.S_H}, 0\ns_cbranch_scc1 NOM0')
    a(f'v_mov_b32 v22, v0\ns_lshl_b32 s24, s13, 6\nv_lshrrev_b32 v0, 4, v0\nv_or_b32 v0, s24, v0')
    C.mem0_copy(a, P)
    a('v_mov_b32 v0, v22')
    a.label('NOM0')
    C.chain_init(a, P, cfg)
    if cfg.get('prof'): prof(a, 4)
    a('s_waitcnt vmcnt(0)\ns_barrier')
    G.signal(a, P, G.DBG_CHAIN, None)
    W = lambda off, tgt: G.wait_flag(a, P, off, None, tgt, sleep=2, cnt=C.S_CNT)
    W(G.DBG_CHAIN, 32); W(G.DBG_AOINIT, 32)
    for rb in range(2): W(G.DBG_KV + 4*rb, G.KVT_LO)
    a(f's_sub_u32 s34, s{C.S_KF}, {32*8192}\ns_mov_b32 m0, s{C.S_W2K}')
    for q in range(2): a(f'buffer_load_dwordx4 v{C.V_L16}, s[4:7], s34 offen offset:{q*1024} sc1 lds')
    a(f'v_mov_b32 v4, {G.DBG_IMPURE}')
    a(f'global_load_dword v5, v4, s[{P["dbg"]}:{P["dbg"]+1}] sc1')
    a('s_waitcnt vmcnt(0)\ns_barrier')
    a('v_readfirstlane_b32 s34, v5')
    if cfg.get('prof'): prof(a, 2)
    lg = C.Cnt(a, 'lgkmcnt', 15)
    C.next_prep(a, lg)
    cfg['_kvwait'] = lambda a: [G.wait_flag(a, P, G.DBG_KV + 4*rb, None, 24, sleep=2, cnt=C.S_CNT) for rb in range(2, 8)]
    if cfg.get('forceslow'): a('s_mov_b32 s34, 1')
    a('s_cmp_lg_u32 s34, 0\ns_cbranch_scc1 STEPS')
    C.chain_loop(a, cfg, 'F', '')
    C.chain_loop(a, cfg, 'S', 'sc1')
    a.label('CHAIN_DONE')
    a.label('K_DONE')
    a('s_waitcnt vmcnt(0) lgkmcnt(0)')
    if cfg.get('prof'): prof(a, 3)
    a.label('K_END')
    a('s_endpgm')
    body, n = a.finalize()
    head = HEADER + f'''; @launch grid=(256,1,1) block=(256,1,1) lds=163840
.amdgcn_target "amdgcn-amd-amdhsa--gfx950"
.text
.globl {KN}
.p2align 8
.type {KN},@function
{KN}:
'''
    tail = f'''.section .rodata,"a"
.p2align 6
.amdhsa_kernel {KN}
  .amdhsa_next_free_vgpr 512
  .amdhsa_next_free_sgpr 102
  .amdhsa_accum_offset 256
  .amdhsa_group_segment_fixed_size 0
  .amdhsa_kernarg_size 112
  .amdhsa_user_sgpr_count 2
  .amdhsa_user_sgpr_kernarg_segment_ptr 1
  .amdhsa_system_sgpr_workgroup_id_x 1
.end_amdhsa_kernel
'''
    return head + body + tail, n

def prof(a, k):
    l = a.newlabel('PR')
    a(f's_cmp_lg_u32 s13, 0\ns_cbranch_scc1 {l}')
    a('s_memrealtime s[58:59]\ns_waitcnt lgkmcnt(0)')
    a(f's_sub_u32 s58, s58, s100\ns_lshl_b32 s59, s2, 6\ns_add_u32 s59, s59, {WS_DBG + 0x80000 + k*8}')
    a('s_mov_b64 exec, 1')
    a('v_mov_b32 v14, s58\nv_mov_b32 v15, s101\nv_mov_b32 v13, 0')
    a('buffer_store_dwordx2 v[14:15], v13, s[4:7], s59 offen')
    a('s_mov_b64 exec, -1')
    a.label(l)

if __name__ == '__main__':
    cfg = json.loads(sys.argv[1]) if len(sys.argv) > 1 else dict(D1=110, D2=310)
    src, n = gen(cfg)
    out = sys.argv[2] if len(sys.argv) > 2 else 'all.s'
    open(out, 'w').write(src)
    print(n, 'instructions', len(src), 'bytes')
```

```python
from asmlib import *
from layout import *
import math

class Cnt:
    def __init__(self, a, name, maxv):
        self.a = a; self.name = name; self.q = []; self.maxv = maxv
    def issue(self, tag, n=1):
        for _ in range(n): self.q.append(tag)
    def wait(self, tag):
        idx = max(i for i, t in enumerate(self.q) if t == tag) if tag in self.q else None
        if idx is None: return
        n = len(self.q) - 1 - idx
        assert n <= self.maxv, (self.name, n)
        self.a(f's_waitcnt {self.name}({n})')
        self.q = self.q[idx + 1:]
    def wait_all(self):
        self.a(f's_waitcnt {self.name}(0)'); self.q = []
    def reset(self, q=()): self.q = list(q)

S_WS = 4
S_W = 8
S_H = 12; S_WV = 13; S_STEP = 14; S_ABORT = 15
S_PC = 16; S_PST = 17; S_MC = 18; S_MN = 19; S_MP = 20
S_KF = 21; S_VF = 22; S_KM = 23; S_VM = 24
S_RED = 25; S_TASK = 26; S_CNT = 27
S_MK_KEY = 28; S_MK_J8 = 30
S_SC = 32
S_T0 = 34; S_T1 = 35; S_T3 = 36; S_T4 = 37; S_T2 = 43
S_RB = 38; S_RMA = 39; S_RIS8 = 40; S_RLD = 41; S_PO = 42
S_W512 = 44; S_W4 = 45; S_W2K = 46; S_F0 = 47; S_MK_N6 = 48; S_PF = 50; S_ROT = 51; S_TAG = 54; S_TAGS = 55; S_ROTB = 3; S_DUP = 24; S_CK = 56; S_CK2 = 96; S_CK3 = 98; S_MC1 = 39; S_MC2 = 40; S_W1536 = 26; S_KXL = 58; S_ONE = 8; S_TGN = 59; S_CK4 = 10; S_W1K = 44; S_W64 = 45

V_L16 = 0; V_IDX = 1; V_WL = 2; V_X = 3
def A(i): return 4 + 4 * i
ACC = {'q0': 40, 'q1': 44, 'k0': 48, 'k1': 52, 'v0': 56, 'v1': 60}
T0 = 64; T1 = 72

QK_LDS = {0: 'q', 2: 'k', 4: 'q', 6: 'k', 8: 'q'}
WO_LDS = [(0, 1), (1, 1), (2, 1), (3, 1)]

def build_frag_map():
    slots = []
    for m in 'qkv':
        for i in range(9): slots.append((m, i))
    for p in range(4):
        for c in range(2): slots.append(('o', p, c))
    slots.append(('o8',))
    lds_slots = [(m, i) for i, m in sorted(QK_LDS.items())] + [('o', p, c) for p, c in WO_LDS]
    reg_slots = [s for s in slots if s not in lds_slots]
    assert len(reg_slots) == 27 and len(lds_slots) == 9
    loc = {}
    for n, s in enumerate(reg_slots):
        for z in range(2):
            f = 2 * n + z
            loc[(s, z)] = ('a', 8 * f) if f < 32 else ('v', 80 + 8 * (f - 32))
    for n, s in enumerate(lds_slots):
        for z in range(2): loc[(s, z)] = ('lds', n * 4096 + z * 2048)
    return reg_slots, lds_slots, loc

REG_SLOTS, LDS_SLOTS, LOC = build_frag_map()

def frag_reg(s, z):
    t, r = LOC[(s, z)]
    assert t != 'lds'
    return vr(r, 8, t)

def actual_col(pos):
    c = pos // 64; pw = (pos % 64) // 16; jp = c // 3; tg = c % 3
    return (9 * pw + 3 * (2 - jp) + tg) * 16 + pos % 16
NCOPY = 1
M_CSTR = 0x10000
def m_imm(c): return (c % 4) * 1024

def chain_prologue(a, P, hook=None):
    a('; ---- chain prologue: weights ----')
    a(f'v_and_b32 v4, 63, v0')
    a(f'v_lshlrev_b32 v{V_L16}, 4, v4')
    a('v_lshrrev_b32 v8, 2, v4\nv_and_b32 v9, 3, v4\nv_lshlrev_b32 v9, 4, v9')
    a('v_lshl_add_u32 v5, v8, 13, v9')
    a('v_mul_u32_u24 v6, 1152, v8\nv_add_u32 v6, v6, v9')
    a('v_lshrrev_b32 v8, 1, v4\nv_and_b32 v9, 1, v4\nv_lshlrev_b32 v9, 4, v9')
    a('v_mul_u32_u24 v7, 1152, v8\nv_add_u32 v7, v7, v9')
    a('v_lshrrev_b32 v8, 5, v4\nv_lshlrev_b32 v10, 4, v8')
    a('v_bfe_u32 v8, v4, 3, 1\nv_lshl_add_u32 v10, v8, 3, v10')
    a('v_bfe_u32 v8, v4, 4, 1\nv_lshl_add_u32 v10, v8, 2, v10')
    a('v_bfe_u32 v8, v4, 2, 1\nv_add_u32 v10, v10, v8')
    a('v_and_b32 v9, 3, v4\nv_lshlrev_b32 v9, 3, v9')
    a('v_lshl_add_u32 v11, v10, 6, v9')
    a('v_lshl_add_u32 v12, v10, 5, v9')
    a(f's_mul_i32 s{S_T0}, s{S_WV}, 36864\ns_add_u32 s{S_T0}, s{S_T0}, {L_W}')
    a(f's_lshl_b32 s{S_T1}, s{S_WV}, 12')
    a(f'v_add_u32 v13, s{S_T0}, v11\nv_add_u32 v14, s{S_T1}, v11')
    a(f'v_add_u32 v15, s{S_T0}, v12\nv_add_u32 v16, s{S_T1}, v12')
    a(f'v_add_u32 v{V_WL}, s{S_T0}, v{V_L16}')
    a(f'v_bfe_u32 v8, v4, 1, 1\nv_mul_u32_u24 v8, 0xAAAA, v8\nv_add_u32 v{V_IDX}, 0x4444, v8')
    a(f's_lshl_b32 s{S_T2}, s{S_H}, 8\ns_lshl_b32 s{S_T3}, s{S_WV}, 6\ns_add_u32 s{S_T2}, s{S_T2}, s{S_T3}')
    a(f's_mul_i32 s{S_T3}, s{S_H}, 147456\ns_mul_i32 s{S_T4}, s{S_WV}, 288\ns_add_u32 s{S_T3}, s{S_T3}, s{S_T4}')
    a(f's_add_u32 s{S_ROT}, s{S_H}, s{S_WV}\ns_mul_i32 s{S_CNT}, s{S_ROT}, 43\ns_lshr_b32 s{S_CNT}, s{S_CNT}, 7\ns_mul_i32 s{S_CNT}, s{S_CNT}, 3\ns_sub_u32 s{S_ROT}, s{S_ROT}, s{S_CNT}')
    a(f's_mov_b32 s{S_ROT}, 0')
    order = REG_SLOTS + LDS_SLOTS
    D = 9
    vm = Cnt(a, 'vmcnt', 63); lg = Cnt(a, 'lgkmcnt', 15)
    cur_mat = [None]
    def set_srd(m):
        if cur_mat[0] == m: return
        cur_mat[0] = m
        p = P[{'q': 'Wq', 'k': 'Wk', 'v': 'Wv', 'o': 'Wo', 'o8': 'Wo'}[m]]
        a(f's_mov_b32 s{S_W}, s{p}\ns_mov_b32 s{S_W+1}, s{p+1}\ns_mov_b32 s{S_W+2}, 4718592\ns_mov_b32 s{S_W+3}, 0x20000')
    def buf_of(idx): return (idx - 27) % 10
    def issue(idx):
        s = order[idx]; b = buf_of(idx)
        set_srd(s[0])
        for n in range(4):
            if b == 9: a(f's_add_u32 m0, s{S_T1}, {n*1024}')
            else: a(f's_add_u32 m0, s{S_T0}, {b*4096 + n*1024}')
            if s[0] in 'qkv' and s[0] != 'o':
                if s[1] < 3:
                    opts = [actual_col(((s[1] + r) % 3) * 64 + 16 * n) * 8192 for r in range(3)]
                    a(f's_mov_b32 s{S_CNT}, {opts[0]}\ns_cmp_eq_u32 s{S_ROT}, 1\ns_cselect_b32 s{S_CNT}, {opts[1]}, s{S_CNT}')
                    a(f's_cmp_eq_u32 s{S_ROT}, 2\ns_cselect_b32 s{S_CNT}, {opts[2]}, s{S_CNT}')
                    a(f's_add_u32 s{S_CNT}, s{S_CNT}, s{S_T2}')
                else:
                    a(f's_add_u32 s{S_CNT}, s{S_T2}, {actual_col(s[1]*64 + 16*n)*8192}')
                vo = 5
            elif s[0] == 'o':
                a(f's_add_u32 s{S_CNT}, s{S_T3}, {(s[2]*64 + 16*n)*1152 + s[1]*64}'); vo = 6
            else:
                a(f's_add_u32 s{S_CNT}, s{S_T3}, {(32*n)*1152 + 256}'); vo = 7
            a(f'buffer_load_dwordx4 v{vo}, s[{S_W}:{S_W+3}], s{S_CNT} offen lds')
            vm.issue(idx)
    def process(idx):
        s = order[idx]; b = buf_of(idx)
        vm.wait(idx)
        is8 = s[0] == 'o8'
        base = (16 if is8 else 14) if b == 9 else (15 if is8 else 13)
        boff = 0 if b == 9 else b * 4096
        for z in range(2):
            t, r = LOC[(s, z)]
            if t == 'lds': t, r = 'v', 20 + 8 * z
            for m in range(4):
                if is8: off = boff + (z * 64 + (m >> 1) * 32 + (m & 1) * 2) * 32
                else: off = boff + ((m >> 1) * 32 + (m & 1) * 2) * 64 + z * 32
                a(f'ds_read_b64_tr_b16 {vr(r + 2*m, 2, t)}, v{base} offset:{off}')
        a('s_waitcnt lgkmcnt(0)')
        if LOC[(s, 0)][0] == 'lds':
            for q in range(4):
                a(f'ds_write_b128 v{V_WL}, {vr(20 + 4*q, 4)} offset:{boff + q*1024}')
            a('s_waitcnt lgkmcnt(0)')
    for idx in range(36 + D):
        if idx == D and hook: hook(vm)
        if idx < 36: issue(idx)
        if idx >= D: process(idx - D)

def lds_frag_read(a, lg, s, z, dst, tag):
    t, off = LOC[(s, z)]
    assert t == 'lds'
    a(f'ds_read_b128 {vr(dst, 4)}, v{V_WL} offset:{off}')
    a(f'ds_read_b128 {vr(dst+4, 4)}, v{V_WL} offset:{off+1024}')
    lg.issue(tag, 2)

def timeout(a, lbl_ok_branch=None):
    a(f's_add_u32 s{S_CNT}, s{S_CNT}, 1')
    a(f's_cmp_gt_u32 s{S_CNT}, 0x40000')
    a(f's_cselect_b32 s{S_ABORT}, 1, s{S_ABORT}')

def emit_vma(a, dst, tmp):
    a(f'v_bfe_u32 v{tmp}, v{V_L16}, 6, 2')
    a(f'v_lshlrev_b32 v{dst}, 8, v{tmp}')
    a(f'v_lshrrev_b32 v{tmp}, 8, v{V_L16}')
    a(f'v_lshl_add_u32 v{dst}, v{tmp}, 6, v{dst}')
    a(f'v_bfe_u32 v{tmp}, v{V_L16}, 4, 1')
    a(f'v_lshl_add_u32 v{dst}, v{tmp}, 5, v{dst}')
    a(f'v_bfe_u32 v{tmp}, v{V_L16}, 5, 1')
    a(f'v_lshl_add_u32 v{dst}, v{tmp}, 4, v{dst}')

def R(i): return 4 + 4 * i
SLOT = {0: 0, 1: 1, 2: 2, 3: 3, 4: 4, 5: 5, 6: 6, 7: 0, 8: 1}
def AR(c): return R(SLOT[c])

def zero(a, regs):
    regs = sorted(regs); i = 0
    while i < len(regs):
        r = regs[i]
        if r % 2 == 0 and i + 1 < len(regs) and regs[i+1] == r + 1:
            a(f'v_mov_b64 v[{r}:{r+1}], 0'); i += 2
        else:
            a(f'v_mov_b32 v{r}, 0'); i += 1

def chain_loop(a, cfg, sfx, stf):
    NFULL = 4; NP = cfg.get('NP', 3)
    assert 2 <= NP <= 6
    D1 = cfg.get('D1', 0); D2 = cfg.get('D2', 0); D2R = cfg.get('D2R', 0)
    dbg = cfg.get('dbg', False)
    SRD = f's[{S_WS}:{S_WS+3}]'
    vm = Cnt(a, 'vmcnt', 63); lg = Cnt(a, 'lgkmcnt', 15)
    smap = cfg.get('smap', {str(k): k for k in range(8)})
    def stamp(k):
        if dbg and str(k) in smap:
            q = smap[str(k)]
            a(f'{"s_memrealtime" if cfg.get("rt") else "s_memtime"} s[{60+2*q}:{61+2*q}]')
    def smf(d, aa, b): a(f'v_smfmac_f32_16x16x64_bf16 {vr(d,4)}, {vr(aa,4)}, {b}, v{V_IDX}')
    def delay(n):
        if cfg.get('SLEEP', 1):
            if n: a(f's_sleep {n}')
            return
        while n > 0:
            k = min(n, 16); a(f's_nop {k-1}'); n -= k
    def mf(d, x, y, cinit):
        c = vr(d, 4) if not cinit else '0'
        a(f'v_mfma_f32_16x16x32_bf16 {vr(d,4)}, {vr(x,4)}, {vr(y,4)}, {c}')
    L = lambda t: [x for x in t.split('\n') if x.strip()]
    VX0 = 32; VX1 = 36

    a.label(f'STEP{sfx}')
    lg.reset(['T'] * 4)
    a(f's_add_u32 s{S_MC1}, s{S_MC}, 4096\ns_add_u32 s{S_MC2}, s{S_MC}, 8192')
    a(f's_mov_b32 s{S_CNT}, 0')
    def aoff(i): return m_imm(i)
    def msr(i): return (S_MC, S_MC1, S_MC2)[i // 4]
    def ldA(i, reg=None):
        a(f'buffer_load_dwordx4 {vr(AR(i) if reg is None else reg,4)}, v{V_X}, {SRD}, s{msr(i)} offen offset:{aoff(i)} sc1'); vm.issue(('A', i))
    SH = cfg.get('SHARE', 1)
    L_ST = L_KXX - 0
    def st1():
        a(f's_add_u32 m0, s{S_W1536}, {L_ST}')
        a(f's_add_u32 s{S_T0}, s{S_MC}, s{S_W1536}')
        a(f'buffer_load_dwordx4 v{V_L16}, {SRD}, s{S_T0} offen offset:3072 sc1 lds' if False else f's_add_u32 s{S_T0}, s{S_T0}, 3072')
        a(f'buffer_load_dwordx4 v{V_L16}, {SRD}, s{S_T0} offen sc1 lds'); vm.issue('st')
    def st2():
        a(f's_mov_b64 exec, 0xffffffff')
        a(f'buffer_load_dwordx4 v{V_L16}, {SRD}, s{S_T0} offen offset:1024 sc1 lds'); vm.issue('st')
        a('s_mov_b64 exec, -1')
    CK = VX1 + 3
    PM = cfg.get('PM', 'np3')
    SPEC = cfg.get('SPECST', 0) and SH
    tmo = f"""s_add_u32 s{S_CNT}, s{S_CNT}, 1
s_cmp_gt_u32 s{S_CNT}, 0x40000
s_cselect_b32 s{S_ABORT}, 1, s{S_ABORT}
s_cmp_lg_u32 s{S_ABORT}, 0
s_cselect_b64 s[{S_T3}:{S_T4}], 0, -1"""
    a.label(f'POLLM0{sfx}')
    if PM == 'pipe1':
        ldA(0)
        delay(cfg.get('STG', 30))
        a.label(f'POLLM{sfx}')
        ldA(0, R(1))
        a(tmo)
        a('s_waitcnt vmcnt(1)')
        a(f'v_max_u32 v{CK}, v{R(0)+1}, v{R(0)+3}')
        a(f'v_cmp_eq_u32 vcc, -1, v{CK}')
        a(f's_and_b64 vcc, vcc, s[{S_T3}:{S_T4}]')
        a(f's_cbranch_vccz GOTM{sfx}')
        ldA(0)
        a('s_waitcnt vmcnt(1)')
        a(f'v_max_u32 v{CK}, v{R(1)+1}, v{R(1)+3}')
        a(f'v_cmp_eq_u32 vcc, -1, v{CK}')
        a(f's_cbranch_vccnz POLLM{sfx}')
        a(f'v_mov_b64 {vr(R(0),2)}, {vr(R(1),2)}\nv_mov_b64 {vr(R(0)+2,2)}, {vr(R(1)+2,2)}')
        a.label(f'GOTM{sfx}')
        vm.reset()
        ldA(1); ldA(2)
        NC = 1
    else:
        vm.reset()
        for i in range(3): ldA(i)
        if SPEC: st1(); st2()
        a(tmo)
        NC = cfg.get('NC', 3)
        for i in range(NC):
            vm.wait(('A', i))
            if i == 0: a(f'v_max_u32 v{CK}, v{AR(0)+1}, v{AR(0)+3}')
            else: a(f'v_max3_u32 v{CK}, v{CK}, v{AR(i)+1}, v{AR(i)+3}')
        a(f'v_cmp_eq_u32 vcc, -1, v{CK}')
        a(f's_and_b64 vcc, vcc, s[{S_T3}:{S_T4}]')
        a(f's_cbranch_vccnz POLLM0{sfx}')
    stamp(0)
    if dbg: a(f's_mov_b32 s52, s{S_CNT}')
    XB = R(2); TK = R(2) + 1
    fl = ['TBL']
    def bop(m, i, z):
        s = (m, i)
        if LOC[(s, z)][0] == 'lds': return vr(T0 if z == 0 else T1, 8)
        return frag_reg(s, z)
    lds_chunks = sorted(QK_LDS)
    def ldvx(q):
        a(f'buffer_load_dwordx4 {vr(VX0+4*q,4)}, v{V_L16}, {SRD}, s{S_VF} offen offset:{q*1024} sc1'); vm.issue('vx')
    def bar0():
        if SH: vm.wait('st')
        stamp(16)
        a('s_barrier')
        stamp(12)
    def pf1():
        a(f'v_lshlrev_b32 v{V_X}, 3, v{V_L16}')
        a(f's_mov_b32 m0, {L_QX}')
    def pf2():
        a(f's_mov_b64 exec, 0xffffffff')
        a(f'buffer_load_dword v{V_X}, {SRD}, s{S_PF} offen sc1 lds'); vm.issue('pf')
        a('s_mov_b64 exec, -1')
    def rdA(c):
        a(f'ds_read_b128 {vr(AR(c),4)}, v{V_X} offset:{L_ST + (c-3)*1024}'); lg.issue(('A', c))
    if SH:
        if SPEC:
            memq = {0: [lambda: ldvx(0), lambda: ldvx(1)],
                    1: [lambda: None] * cfg.get('B0P', 0) + [bar0, lambda: [rdA(c) for c in (3, 4, 5, 6)], lambda: rdA(7)],
                    2: [lambda: rdA(8)] + ([] if cfg.get('nopf') else [pf1, pf2])}
        else:
            memq = {0: [st1, st2, lambda: ldvx(0), lambda: ldvx(1)],
                    2: [bar0, lambda: [rdA(c) for c in (3, 4, 5, 6)], lambda: [rdA(7), rdA(8)]] + ([] if cfg.get('nopf') else [pf1, pf2])}
    else:
        memq = {0: [lambda: ldA(3), lambda: ldA(4), lambda: ldA(5), lambda: ldA(6), lambda: ldvx(0), lambda: ldvx(1)],
                1: [lambda: ldA(7)], 2: [lambda: ldA(8), bar0] + ([] if cfg.get('nopf') else [pf1, pf2])}
    first_ck = True
    for i in range(9):
        mem = list(memq.get(i, [])); pend = []
        if i >= NC:
            if SH and i >= 3: lg.wait(('A', i))
            else: vm.wait(('A', i))
        if NC <= i <= 2:
            pr = (S_CK4, S_CK) if i == 1 else (S_CK2, S_CK3)
            pend.append(f'v_cmp_eq_u32 s[{pr[0]}:{pr[0]+1}], -1, v{AR(i)+1}'); pend.append(f'v_cmp_eq_u32 s[{pr[1]}:{pr[1]+1}], -1, v{AR(i)+3}')
        if i >= 3:
            if first_ck: pend.append(f'v_max_u32 v{V_X}, v{AR(i)+1}, v{AR(i)+3}'); first_ck = False
            else: pend.append(f'v_max3_u32 v{V_X}, v{V_X}, v{AR(i)+1}, v{AR(i)+3}')
        mats = ['q', 'k'] + (['v'] if i < NFULL else [])
        if i in QK_LDS: mats = [m for m in mats if m != QK_LDS[i]] + [QK_LDS[i]]
        for m in mats:
            if i in QK_LDS and m == QK_LDS[i]: lg.wait('T')
            for z in range(2):
                smf(ACC[f'{m}{z}'], AR(i), bop(m, i, z))
                if pend: a(pend.pop(0))
                elif fl and i >= 5:
                    fl.pop(0); a(f'ds_read_b128 {vr(R(2),4)}, v{V_L16} offset:{L_TBL}'); lg.issue('tbl')
                if mem: mem.pop(0)()
        assert not mem and not pend
        if i in QK_LDS and i != lds_chunks[-1]:
            nx = lds_chunks[lds_chunks.index(i) + 1]
            lds_frag_read(a, lg, (QK_LDS[nx], nx), 0, T0, 'T'); lds_frag_read(a, lg, (QK_LDS[nx], nx), 1, T1, 'T')
    assert not fl, fl
    stamp(1)
    KX = {(0, 0): 64, (1, 0): 68, (0, 1): 72, (1, 1): 76, (0, 2): R(4), (1, 2): R(5), (0, 3): R(3), (1, 3): 64}
    def ldkx(t, ks):
        a(f'ds_read_b128 {vr(KX[(t, ks)],4)}, v{V_L16} offset:{L_KX + t*4096 + ks*1024}'); lg.issue(('kx', t, ks))
    vrem = [(i, z) for i in range(NFULL, 9) for z in range(2)]
    def vsm(n):
        for _ in range(n):
            if vrem:
                i, z = vrem.pop(0); smf(ACC[f'v{z}'], AR(i), bop('v', i, z))
    a(f'v_cmp_eq_u32 vcc, -1, v{V_X}')
    lg.wait('tbl')
    vsm(1)
    a(f'v_add_u32 v{XB}, s{S_W1K}, v{XB}')
    ldkx(0, 0); ldkx(1, 0); ldkx(0, 1); ldkx(1, 1)
    K0 = ACC['k0']; K1 = ACC['k1']; Q0 = ACC['q0']; Q1 = ACC['q1']
    a(f'v_pk_add_f32 {vr(K0,2)}, {vr(K0,2)}, {vr(K0+2,2)}')
    a(f'v_pk_add_f32 {vr(K1,2)}, {vr(K1,2)}, {vr(K1+2,2)}')
    a(f'v_cvt_pk_bf16_f32 v{K0}, v{K0}, v{K0+1}')
    a(f'v_cvt_pk_bf16_f32 v{K0+2}, v{K1}, v{K1+1}')
    a(f'v_pk_add_f32 {vr(Q0,2)}, {vr(Q0,2)}, {vr(Q0+2,2)}')
    a(f'v_pk_add_f32 {vr(Q1,2)}, {vr(Q1,2)}, {vr(Q1+2,2)}')
    a(f'v_cvt_pk_bf16_f32 v{K0+1}, v{Q0}, v{Q0+1}')
    a(f'v_cvt_pk_bf16_f32 v{K0+3}, v{Q1}, v{Q1+1}')
    a(f'ds_write2st64_b64 v{XB}, {vr(K0,2)}, {vr(K0+2,2)} offset0:{L_KXX//512} offset1:{L_KXX//512+1}'); lg.issue('xw')
    vsm(1)
    if NC == 1:
        for pr in (S_CK4, S_CK, S_CK2, S_CK3): a(f's_or_b64 vcc, vcc, s[{pr}:{pr+1}]')
    a(f's_and_b64 vcc, vcc, s[{S_T3}:{S_T4}]')
    if cfg.get('forceredo'): a(f's_and_b32 s{S_T0}, s{S_STEP}, 7\ns_cmp_eq_u32 s{S_T0}, s{S_WV}\ns_cselect_b64 vcc, -1, vcc')
    a(f's_cbranch_vccnz REDO{sfx}')
    a.label(f'REDOX{sfx}')
    vsm(1)
    a(f'v_lshrrev_b32 v{V_X}, 1, v{V_L16}')
    a(f'v_mov_b32 v{K1}, v{K0}\nv_mov_b32 v{K1+1}, v{K0+2}')
    vsm(1)
    if not cfg.get('nopub'):
        a(f'buffer_store_dwordx2 {vr(K1,2)}, v{V_X}, {SRD}, s{S_KM} offen sc1'); vm.issue('pub')
    ldkx(0, 2); ldkx(1, 2); ldkx(0, 3)
    vsm(cfg.get('VB', 2))
    stamp(17)
    lg.wait('xw')
    stamp(18)
    a('s_barrier')
    stamp(2)
    F = {0: 40, 1: 44, 2: 48, 3: 52}
    def ldf(ks):
        for hh in range(2):
            a(f'ds_read_b64_tr_b16 {vr(F[ks]+2*hh,2)}, v{TK} offset:{L_KXX + ks*1024 + hh*128}'); lg.issue(('f', ks))
    for ks in range(4): ldf(ks)
    vsm(len(vrem))
    stamp(3)
    SX0 = R(6); SX1 = R(0); SM = R(1)
    OW = 14; OW2 = 12; ORD = 15; ORD2 = 13; OT = V_X; OT2 = 62
    PX = 48; PMX = 52; PMY = 54
    f1 = L(f"""v_pk_add_f32 v[56:57], v[56:57], v[58:59]
v_pk_add_f32 v[60:61], v[60:61], v[62:63]
v_cvt_pk_bf16_f32 v56, v56, v57
v_cvt_pk_bf16_f32 v57, v60, v61""")
    f2 = L(f"""v_xor_b32 v{OW}, s{S_W64}, v{OW}
v_xor_b32 v{OW2}, 32, v{OW}
v_xor_b32 v{ORD2}, 128, v{ORD}""")
    def fill(lst, n):
        for _ in range(n):
            if lst: a(lst.pop(0))
    lg.wait(('f', 0))
    mf(SX0, KX[(0, 0)], F[0], True); mf(SX1, KX[(1, 0)], F[0], True)
    ldkx(1, 3)
    mf(SM, F[0], F[0], True)
    lg.wait(('f', 1))
    mf(SX0, KX[(0, 1)], F[1], False); mf(SX1, KX[(1, 1)], F[1], False); fill(f1, 2)
    mf(SM, F[1], F[1], False); fill(f1, 2)
    lg.wait(('f', 2))
    mf(SX0, KX[(0, 2)], F[2], False)
    if not cfg.get('nopub'):
        a(f'buffer_store_dwordx2 v[56:57], v{V_X}, {SRD}, s{S_KM} offen offset:512 sc1'); vm.issue('pub')
    mf(SX1, KX[(1, 2)], F[2], False); fill(f2, 2)
    mf(SM, F[2], F[2], False); fill(f2, 2)
    lg.wait(('f', 3))
    mf(SM, F[3], F[3], False); fill(f2, 2)
    mf(SX0, KX[(0, 3)], F[3], False); fill(f2, 2)
    lg.wait(('kx', 1, 3))
    mf(SX1, KX[(1, 3)], F[3], False)
    B0 = 48; B1 = 56; B2 = 64; B3 = 72
    stamp(4)
    MX = 58; M2 = 59; LS = 60; L2 = 61
    B4 = 40
    lds_frag_read(a, lg, ('o', 1, 1), 0, B4, ('w', 2))
    lds_frag_read(a, lg, ('o', 0, 1), 1, B3, ('w', 1))
    a(f'v_max3_f32 v{MX}, v{SM}, v{SM+1}, v{SX0}')
    a(f'v_max3_f32 v{MX}, v{MX}, v{SX0+1}, v{SX0+2}')
    a(f'v_mov_b32 v{PMX+1}, 0\nv_mov_b32 v{PMY}, 0')
    a(f'v_max3_f32 v{M2}, v{SX1}, v{SX1+1}, v{SX1+2}')
    a(f'v_max3_f32 v{MX}, v{MX}, v{SX0+3}, v{SX1+3}')
    a(f'v_max_f32 v{MX}, v{MX}, v{M2}')
    a(f'v_max_f32 v{M2}, v{MX}, v{M2}')
    a(f'v_mov_b64 {vr(R(3),2)}, s[{S_ONE}:{S_ONE+1}]\nv_mov_b64 {vr(R(3)+2,2)}, s[{S_ONE}:{S_ONE+1}]')
    a(f'v_permlane32_swap_b32 v{MX}, v{M2}')
    a(f'v_max_f32 v{MX}, v{MX}, v{M2}')
    a(f'v_max_f32 v{M2}, v{MX}, v{M2}')
    lds_frag_read(a, lg, ('o', 0, 1), 0, B2, ('w', 0))
    a(f'v_permlane16_swap_b32 v{MX}, v{M2}')
    a(f'v_max_f32 v{MX}, v{MX}, v{M2}')
    a(f'v_mul_f32 v{MX}, s{S_SC}, v{MX}')
    stamp(13)
    rs = (SX0, SX0+2, SX1, SX1+2)
    for r in rs + (SM,): a(f'v_pk_fma_f32 {vr(r,2)}, {vr(r,2)}, s[{S_SC}:{S_SC+1}], {vr(MX,2)} op_sel_hi:[1,1,0] neg_lo:[0,0,1] neg_hi:[0,0,1]')
    for k, r in enumerate(rs):
        a(f'v_exp_f32 v{r}, v{r}\nv_exp_f32 v{r+1}, v{r+1}')
        if k: a(f'v_cvt_pk_bf16_f32 v{PX+k-1}, v{rs[k-1]}, v{rs[k-1]+1}')
    a(f'v_exp_f32 v{SM}, v{SM}')
    a(f'v_cvt_pk_bf16_f32 v{PX+3}, v{rs[3]}, v{rs[3]+1}')
    a(f'v_exp_f32 v{SM+1}, v{SM+1}')
    OX = R(4); OY = R(5); ONE = R(3); LS = 60
    vm.wait('vx')
    mf(LS, ONE, PX, True)
    a(f'v_cvt_pk_bf16_f32 v{PMX}, v{SM}, v{SM+1}\nv_cvt_pk_bf16_f32 v{PMY+1}, v{SM}, v{SM+1}')
    mf(OX, VX0, PX, True)
    a(f'v_mfma_f32_16x16x16_bf16 {vr(LS,4)}, {vr(ONE,2)}, {vr(PMX,2)}, {vr(LS,4)}')
    mf(OY, VX1, PX, True)
    a(f'v_mfma_f32_16x16x16_bf16 {vr(OX,4)}, v[56:57], {vr(PMX,2)}, {vr(OX,4)}')
    a(f'v_mfma_f32_16x16x16_bf16 {vr(OY,4)}, v[56:57], {vr(PMY,2)}, {vr(OY,4)}')
    stamp(14)
    lds_frag_read(a, lg, ('o', 1, 1), 1, B0, ('w', 3))
    fill(f2, 99)
    zero(a, range(SX0, SX0 + 4))
    a(f'v_rcp_f32 v{LS}, v{LS}')
    zero(a, range(VX0, VX0 + 8))
    for o in (OX, OY):
        a(f'v_pk_mul_f32 {vr(o,2)}, {vr(o,2)}, {vr(LS,2)} op_sel_hi:[1,0]')
        a(f'v_pk_mul_f32 {vr(o+2,2)}, {vr(o+2,2)}, {vr(LS,2)} op_sel_hi:[1,0]')
        a(f'v_cvt_pk_bf16_f32 v{o}, v{o}, v{o+1}\nv_cvt_pk_bf16_f32 v{o+1}, v{o+2}, v{o+3}')
        if o == OX:
            a(f's_mov_b64 exec, s[{S_MK_KEY}:{S_MK_KEY+1}]')
            a(f'ds_write_b64 v{OW}, {vr(OX,2)} offset:{L_OX}'); lg.issue('ow')
    a(f'ds_write_b64 v{OW2}, {vr(OY,2)} offset:{L_OX}'); lg.issue('ow')
    a('s_mov_b64 exec, -1')
    stamp(15)
    WACC = 12
    zero(a, [12, 14] + list(range(16, 28)))
    lg.wait('ow')
    a('s_barrier')
    stamp(5)
    OA0 = 4; OA1 = 8
    a(f'ds_read_b128 {vr(OA0,4)}, v{ORD} offset:{L_OX}'); lg.issue('oa0')
    a(f'ds_read_b128 {vr(OA1,4)}, v{ORD2} offset:{L_OX}'); lg.issue('oa1')
    lds_frag_read(a, lg, ('o', 3, 1), 0, B1, ('w', 6))
    zero(a, [ORD, ORD2])
    def wacc(t): return WACC + 4 * t
    def post_tile(t):
        d = wacc(t); q = wacc(t - t % 3) + t % 3
        return [f'v_pk_add_f32 {vr(d,2)}, {vr(d,2)}, {vr(d+2,2)}', f'v_cvt_pk_bf16_f32 v{q}, v{d}, v{d+1}']
    def post_group(j):
        ops = post_tile(3*j) + [f'v_mov_b32 v{wacc(3*j)+3}, s{S_TAG}'] + post_tile(3*j+1) + post_tile(3*j+2)
        return ops + [('v', f'buffer_store_dwordx4 {vr(wacc(3*j),4)}, v{V_L16}, {SRD}, s{S_PST} offen offset:{j*1024} {stf}'.rstrip())]
    def wf(t, c):
        if t == 8: return frag_reg(('o8',), c)
        return frag_reg(('o', t // 2, c), t % 2)
    lbuf = {0: B2, 1: B3, 2: B4, 3: B0, 4: B2, 5: B3, 6: B1, 7: B0}
    reload_ = {0: 4, 1: 5, 3: 7}
    seq = [(0,0),(1,0),(2,0),(0,1),(1,1),(2,1), (3,0),(4,0),(5,0),(3,1),(4,1),(5,1), (6,0),(7,0),(8,0),(8,1),(6,1),(7,1)]
    fillers = {k: [] for k in range(40)}
    PL = cfg.get('PL', 2)
    for j_, start in ((0, 8), (1, 14)):
        k = start; cnt = 0
        for op in post_group(j_):
            fillers[k].append(op); cnt += 1
            if cnt % PL == 0: k += 1
    for k_, r_ in enumerate(range(40, 48, 2)): fillers[6 + k_ // 2].append(f'v_mov_b64 v[{r_}:{r_+1}], 0')
    lg.wait('oa0')
    stamp(8)
    for n_, (t, c) in enumerate(seq):
        if n_ == 3: lg.wait('oa1')
        if c == 1 and t != 8:
            lg.wait(('w', t)); b = vr(lbuf[t], 8)
        else: b = wf(t, c)
        smf(wacc(t), OA0 if c == 0 else OA1, b)
        if c == 1 and t in reload_: lds_frag_read(a, lg, ('o', reload_[t]//2, 1), reload_[t] % 2, lbuf[t], ('w', reload_[t]))
        for f in fillers[n_]:
            if isinstance(f, tuple): a(f[1]); vm.issue('pst')
            else: a(f)
    stamp(9)
    for k in range(18, 40):
        for f in fillers[k]:
            if isinstance(f, tuple): a(f[1]); vm.issue('pst')
            else: a(f)
    g2 = post_tile(8) + post_tile(6) + [f'v_mov_b32 v{wacc(6)+3}, s{S_TAG}'] + post_tile(7)
    a(g2[0]); a(g2[2]); a(g2[1]); a(g2[3]); a(g2[4]); a(g2[5]); a(g2[6])
    a(post_group(2)[-1][1]); vm.issue('pst')
    stamp(6)
    if not cfg.get('static'):
        a(f's_add_u32 s{S_VF}, s{S_VF}, {32*8192}\ns_add_u32 s{S_PF}, s{S_PF}, {32*8192}')
    a(f's_add_u32 s{S_KM}, s{S_KM}, {32*4096}\ns_xor_b32 s{S_PST}, s{S_PST}, s{S_PO}')
    a(f's_add_u32 s{S_STEP}, s{S_STEP}, 1')
    a(f's_and_b32 s{S_T0}, s{S_STEP}, 3\ns_lshl_b32 s{S_TAG}, s{S_T0}, 7\ns_add_u32 s{S_TAG}, s{S_TAG}, 0x3f80\ns_lshl_b32 s{S_TGN}, s{S_T0}, 23\ns_add_u32 s{S_TGN}, s{S_TGN}, 0x43000000')
    c0 = sorted(QK_LDS)[0]
    SEL = 36; RACC = 72; RL = 76; RO = 77; RT = 78; RT2 = 79; NEG = 4
    a(f's_bitcmp0_b32 s{S_RED}, 0\ns_cbranch_scc1 NORED{sfx}')
    PP = 12288
    a(f'v_lshrrev_b32 v{RT}, 8, v{V_L16}\nv_mul_u32_u24 v{RL}, {PP}, v{RT}\nv_and_or_b32 v{RL}, v{V_L16}, s{S_F0}, v{RL}')
    a(f's_add_u32 s{S_T2}, s{S_PC}, s{S_RLD}')
    a(f's_mov_b32 s{S_CNT}, 0')
    delay(D1)
    if cfg.get('D1W1'):
        a(f's_cmp_eq_u32 s{S_WV}, 0\ns_cbranch_scc1 NOD1W{sfx}')
        delay(cfg['D1W1'])
        a.label(f'NOD1W{sfx}')
    stamp(10)
    def pl():
        for it in range(8):
            a(f'buffer_load_dwordx4 {vr(4+4*it,4)}, v{RL}, {SRD}, s{S_T2} offen sc1'); vm.issue(('r', it))
            a(f's_add_u32 s{S_T2}, s{S_T2}, {4*PP if it < 7 else -7*4*PP & 0xffffffff}')
    vm.reset(); pl()
    a(f'v_bfe_u32 v{RT2}, v{V_L16}, 4, {4 if NCOPY == 1 else 3}')
    a(f'v_and_b32 v{RO}, 1, v{RT2}\nv_lshlrev_b32 v{RO}, 4, v{RO}')
    a(f'v_mov_b32 v{RACC}, 0x3f80\nv_lshlrev_b32 v{RO}, v{RO}, v{RACC}')
    a(f'v_lshrrev_b32 v{RACC}, 1, v{RT2}')
    for r in range(4):
        a(f'v_cmp_eq_u32 vcc, {r}, v{RACC}')
        zero(a, range(40 + 4*r, 44 + 4*r))
        a(f'v_cndmask_b32 v{SEL+r}, 0, v{RO}, vcc')
    a(f'v_and_b32 v{RO}, 1, v{RT2}\nv_lshlrev_b32 v{RO}, 5, v{RO}\nv_lshl_add_u32 v{RO}, v{RACC}, 10, v{RO}')
    a(f'v_lshl_add_u32 v{RO}, v{RT}, 3, v{RO}')
    a(f'v_add_u32 v{RO}, s{S_RB}, v{RO}')
    if NCOPY > 1: a(f'v_bfe_u32 v{RACC}, v{V_L16}, 7, 1\nv_lshl_add_u32 v{RO}, v{RACC}, 16, v{RO}')
    zero(a, range(56, 64))
    emit_vma(a, V_X, RT2)
    lg.reset()
    lds_frag_read(a, lg, (QK_LDS[c0], c0), 0, T0, 'T')
    a.label(f'RWAIT{sfx}')
    for it in range(8):
        vm.wait(('r', it))
        if it == 0: stamp(11)
        mf(RACC, 4 + 4*it, SEL, it == 0)
    a(f's_add_u32 s{S_T0}, s{S_MN}, s{S_DUP}' if NCOPY == 1 else f's_sub_u32 s{S_T0}, s{S_MN}, s{S_DUP}')
    a(f'v_pk_add_f32 {vr(RT,2)}, {vr(RACC,2)}, {vr(RACC+2,2)}')
    a(f'v_cvt_pk_bf16_f32 v{RACC}, v{RACC}, v{RACC+1}\nv_cvt_pk_bf16_f32 v{RACC+1}, v{RACC+2}, v{RACC+3}')
    a(f'v_add_f32 v{RT}, v{RT}, v{RT2}')
    a(f'v_cmp_neq_f32 vcc, s{S_TAGS}, v{RT}')
    a(f's_mov_b64 exec, s[{S_MK_J8}:{S_MK_J8+1}]')
    a(f's_and_b64 vcc, vcc, s[{S_MK_N6}:{S_MK_N6+1}]')
    a(f's_cbranch_vccnz RCHK{sfx}')
    a.label(f'RGO{sfx}')
    if NCOPY == 1:
        a(f'buffer_store_dwordx2 {vr(RACC,2)}, v{RO}, {SRD}, s{S_MN} offen {stf}'.rstrip())
    else:
        for c in range(NCOPY // 2):
            a(f'buffer_store_dwordx2 {vr(RACC,2)}, v{RO}, {SRD}, s{S_T0} offen {stf}'.rstrip())
            if c < NCOPY // 2 - 1: a(f's_add_u32 s{S_T0}, s{S_T0}, {2*M_CSTR}')
    stamp(7)
    if dbg: a(f's_mov_b32 s53, s{S_CNT}')
    a(f'v_mov_b64 v[{NEG}:{NEG+1}], -1')
    if NCOPY == 1:
        a(f'buffer_store_dwordx2 {vr(NEG,2)}, v{RO}, {SRD}, s{S_MC} offen {stf}'.rstrip())
    else:
        a(f's_sub_u32 s{S_T0}, s{S_MC}, s{S_DUP}')
        for c in range(NCOPY // 2):
            a(f'buffer_store_dwordx2 {vr(NEG,2)}, v{RO}, {SRD}, s{S_T0} offen {stf}'.rstrip())
            if c < NCOPY // 2 - 1: a(f's_add_u32 s{S_T0}, s{S_T0}, {2*M_CSTR}')
    a('s_mov_b64 exec, -1')
    lds_frag_read(a, lg, (QK_LDS[c0], c0), 1, T1, 'T')
    delay(D2R)
    a(f's_branch NEXT{sfx}')
    a.label(f'NORED{sfx}')
    a(f's_cmp_lt_u32 s{S_WV}, 2\ns_cbranch_scc1 NODMA{sfx}')
    a(f's_mov_b32 m0, s{S_KXL}')
    for q in range(4): a(f'buffer_load_dwordx4 v{V_L16}, {SRD}, s{S_KF} offen offset:{q*1024} sc1 lds')
    a.label(f'NODMA{sfx}')
    zero(a, range(40, 64))
    lds_frag_read(a, lg, (QK_LDS[c0], c0), 0, T0, 'T'); lds_frag_read(a, lg, (QK_LDS[c0], c0), 1, T1, 'T')
    emit_vma(a, V_X, 4)
    delay(D2)
    a.label(f'NEXT{sfx}')
    if dbg:
        a('s_waitcnt lgkmcnt(0)')
        a(f's_sub_u32 s{S_T0}, s{S_STEP}, 1\ns_lshl_b32 s{S_T0}, s{S_T0}, 7\ns_lshl_b32 s{S_T1}, s{S_H}, 2\ns_add_u32 s{S_T0}, s{S_T0}, s{S_T1}\ns_add_u32 s{S_T0}, s{S_T0}, s{S_WV}\ns_lshl_b32 s{S_T0}, s{S_T0}, 6\ns_add_u32 s{S_T0}, s{S_T0}, {WS_DBG}')
        for k in range(8): a(f'v_writelane_b32 v4, s{60+2*k}, {k}')
        a('v_writelane_b32 v4, s52, 8\nv_writelane_b32 v4, s53, 9\nv_writelane_b32 v4, s25, 10')
        a(f'v_lshrrev_b32 v5, 2, v{V_L16}')
        a('s_mov_b64 exec, 0x7ff')
        a(f'buffer_store_dword v4, v5, {SRD}, s{S_T0} offen')
        a('s_mov_b64 exec, -1')
    a(f's_xor_b32 s{S_PC}, s{S_PC}, s{S_PO}\ns_mov_b32 s{S_TAGS}, s{S_TGN}')
    if not cfg.get('static'): a(f's_add_u32 s{S_KF}, s{S_KF}, {32*8192}')
    a(f's_mov_b32 s{S_T0}, s{S_MC}\ns_mov_b32 s{S_MC}, s{S_MN}\ns_mov_b32 s{S_MN}, s{S_MP}\ns_mov_b32 s{S_MP}, s{S_T0}')
    if cfg.get('_kvwait'):
        a(f's_cmp_lg_u32 s{S_STEP}, 12\ns_cbranch_scc1 NKW{sfx}')
        cfg['_kvwait'](a)
        a.label(f'NKW{sfx}')
    a(f's_cmp_lt_u32 s{S_STEP}, 63\ns_cbranch_scc1 STEP{sfx}')
    FA = lambda i: 4 + 4 * i
    a(f's_add_u32 s{S_MC1}, s{S_MC}, 4096\ns_add_u32 s{S_MC2}, s{S_MC}, 8192')
    a(f's_mov_b32 s{S_CNT}, 0')
    a.label(f'FPOLL{sfx}')
    a(f'v_subrev_u32 v41, s{S_ROTB}, v{V_X}')
    for i in range(9): a(f'buffer_load_dwordx4 {vr(FA(i),4)}, v{V_X if i < 3 else 41}, {SRD}, s{msr(i)} offen offset:{aoff(i)} sc1')
    timeout(a)
    a('s_waitcnt vmcnt(0)')
    a(f'v_max_u32 v40, v{FA(0)+1}, v{FA(0)+3}')
    for i in range(1, 9): a(f'v_max3_u32 v40, v40, v{FA(i)+1}, v{FA(i)+3}')
    a('v_cmp_eq_u32 vcc, -1, v40')
    a(f's_cmp_lg_u32 s{S_ABORT}, 0\ns_cbranch_scc1 FGO{sfx}')
    a(f's_cbranch_vccnz FPOLL{sfx}')
    a.label(f'FGO{sfx}')
    klds = [i for i in lds_chunks if QK_LDS[i] == 'k']
    assert len(klds) == 2
    lds_frag_read(a, lg, ('k', klds[0]), 0, T0, 'T'); lds_frag_read(a, lg, ('k', klds[0]), 1, T1, 'T')
    lds_frag_read(a, lg, ('k', klds[1]), 0, 40, 'T')
    for i in range(9):
        if i in klds: continue
        for z in range(2): smf(ACC[f'k{z}'], FA(i), frag_reg(('k', i), z))
    a('s_waitcnt lgkmcnt(0)')
    smf(ACC['k0'], FA(klds[0]), vr(T0, 8)); smf(ACC['k1'], FA(klds[0]), vr(T1, 8)); smf(ACC['k0'], FA(klds[1]), vr(40, 8))
    lds_frag_read(a, lg, ('k', klds[1]), 1, T0, 'T')
    for i in range(9):
        for z in range(2): smf(ACC[f'v{z}'], FA(i), frag_reg(('v', i), z))
    a('s_waitcnt lgkmcnt(0)')
    smf(ACC['k1'], FA(klds[1]), vr(T0, 8))
    a(f'v_lshrrev_b32 v{V_X}, 1, v{V_L16}')
    for nm, d in (('v0', 42), ('v1', 43), ('k0', 40), ('k1', 41)):
        r = ACC[nm]
        a(f'v_pk_add_f32 {vr(r,2)}, {vr(r,2)}, {vr(r+2,2)}')
        a(f'v_cvt_pk_bf16_f32 v{d}, v{r}, v{r+1}')
        if nm == 'v1': a(f'buffer_store_dwordx2 v[42:43], v{V_X}, {SRD}, s{S_KM} offen offset:512 sc1')
    a(f'buffer_store_dwordx2 v[40:41], v{V_X}, {SRD}, s{S_KM} offen sc1')
    a('s_branch CHAIN_DONE')
    a.label(f'REDO{sfx}')
    if dbg: a('s_add_u32 s25, s25, 0x10000')
    a('s_waitcnt vmcnt(0) lgkmcnt(0)')
    a('s_nop 15')
    zero(a, range(40, 64))
    emit_vma(a, V_X, T0)
    a(f'v_subrev_u32 v{T0+1}, s{S_ROTB}, v{V_X}')
    done_v = [(i, z) for i in range(NFULL) for z in range(2)] + [(4, 0), (4, 1)]
    for c in range(9):
        l = f'RD{c}{sfx}'
        dst = AR(c) if c >= 5 else R(3)
        a.label(l)
        a(f'buffer_load_dwordx4 {vr(dst,4)}, v{V_X if c < 3 else T0+1}, {SRD}, s{msr(c)} offen offset:{aoff(c)} sc1')
        timeout(a)
        a(f's_cmp_lg_u32 s{S_ABORT}, 0\ns_cselect_b64 s[{S_T3}:{S_T4}], 0, -1')
        a('s_waitcnt vmcnt(0)')
        a(f'v_max_u32 v{T0+2}, v{dst+1}, v{dst+3}\nv_cmp_eq_u32 vcc, -1, v{T0+2}\ns_and_b64 vcc, vcc, s[{S_T3}:{S_T4}]')
        a(f's_cbranch_vccnz {l}')
        for m in 'qkv':
            for z in range(2):
                if m == 'v' and (c, z) not in done_v: continue
                if LOC[((m, c), z)][0] == 'lds':
                    lds_frag_read(a, lg, (m, c), z, T1, 'T'); a('s_waitcnt lgkmcnt(0)')
                    smf(ACC[f'{m}{z}'], dst, vr(T1, 8))
                else: smf(ACC[f'{m}{z}'], dst, frag_reg((m, c), z))
    a('s_nop 15')
    for ks in range(2):
        for t in range(2): a(f'ds_read_b128 {vr(KX[(t, ks)],4)}, v{V_L16} offset:{L_KX + t*4096 + ks*1024}')
    a(f'v_pk_add_f32 {vr(K0,2)}, {vr(K0,2)}, {vr(K0+2,2)}')
    a(f'v_pk_add_f32 {vr(K1,2)}, {vr(K1,2)}, {vr(K1+2,2)}')
    a(f'v_cvt_pk_bf16_f32 v{K0}, v{K0}, v{K0+1}')
    a(f'v_cvt_pk_bf16_f32 v{K0+2}, v{K1}, v{K1+1}')
    a(f'v_pk_add_f32 {vr(Q0,2)}, {vr(Q0,2)}, {vr(Q0+2,2)}')
    a(f'v_pk_add_f32 {vr(Q1,2)}, {vr(Q1,2)}, {vr(Q1+2,2)}')
    a(f'v_cvt_pk_bf16_f32 v{K0+1}, v{Q0}, v{Q0+1}')
    a(f'v_cvt_pk_bf16_f32 v{K0+3}, v{Q1}, v{Q1+1}')
    a(f'ds_write2st64_b64 v{XB}, {vr(K0,2)}, {vr(K0+2,2)} offset0:{L_KXX//512} offset1:{L_KXX//512+1}')
    a('s_waitcnt lgkmcnt(0)')
    a(f's_branch REDOX{sfx}')
    a.label(f'RCHK{sfx}')
    a('s_mov_b64 exec, -1')
    pl()
    timeout(a)
    a(f's_cmp_eq_u32 s{S_ABORT}, 0\ns_cbranch_scc1 RWAIT{sfx}')
    a('s_waitcnt vmcnt(0)')
    a(f's_mov_b64 exec, s[{S_MK_J8}:{S_MK_J8+1}]')
    a(f's_branch RGO{sfx}')

def next_prep(a, lg):
    for r in range(40, 64): a(f'v_mov_b32 v{r}, 0')
    c0 = sorted(QK_LDS)[0]
    lds_frag_read(a, lg, (QK_LDS[c0], c0), 0, T0, 'T'); lds_frag_read(a, lg, (QK_LDS[c0], c0), 1, T1, 'T')
    emit_vma(a, V_X, 4)

def chain_init(a, P, cfg):
    SRD = f's[{S_WS}:{S_WS+3}]'
    a(f's_mov_b32 s{S_STEP}, 0\ns_mov_b32 s{S_ABORT}, {1 if cfg.get("free") else 0}')
    a(f's_mov_b32 s{S_PC}, {WS_P}\ns_mov_b32 s{S_PO}, {WS_P ^ (WS_P + 0x80000)}')
    a(f's_mul_i32 s{S_T0}, s{S_H}, 12288\ns_add_u32 s{S_PST}, s{S_PC}, s{S_T0}\ns_mul_i32 s{S_T0}, s{S_WV}, 3072\ns_add_u32 s{S_PST}, s{S_PST}, s{S_T0}')
    a(f's_mov_b32 s{S_TAG}, 0x3f80\ns_mov_b32 s{S_TAGS}, 0x43000000\ns_lshl_b32 s{S_ROTB}, s{S_ROT}, 7')
    a(f's_mov_b32 s{S_MK_N6}, 0x00400040\ns_mov_b32 s{S_MK_N6+1}, 0x00400040')
    if cfg.get('free'): a(f's_mov_b64 s[{S_MK_N6}:{S_MK_N6+1}], 0')
    a(f's_mov_b32 s{S_MC}, {WS_M}\ns_mov_b32 s{S_MN}, {WS_M + M_STRIDE}\ns_mov_b32 s{S_MP}, {WS_M + 2*M_STRIDE}')
    a(f's_lshl_b32 s{S_T0}, s{S_H}, 13\ns_lshl_b32 s{S_T1}, s{S_WV}, 11\ns_add_u32 s{S_T1}, s{S_T0}, s{S_T1}')
    a(f's_add_u32 s{S_VF}, s{S_T1}, {WS_VF}')
    a(f's_and_b32 s{S_W2K}, s{S_WV}, 1\ns_lshl_b32 s{S_W2K}, s{S_W2K}, 12\ns_mov_b32 s{S_KXL}, s{S_W2K}')
    a(f's_add_u32 s{S_KF}, s{S_T0}, s{S_W2K}\ns_add_u32 s{S_KF}, s{S_KF}, {WS_KF + 32*8192}')
    a(f's_add_u32 s{S_PF}, s{S_T0}, {WS_VF + 32*8192}\ns_add_u32 s{S_T1}, s{S_T0}, {WS_KF + 2*32*8192}')
    a(f's_cmp_ge_u32 s{S_WV}, 2\ns_cselect_b32 s{S_PF}, s{S_T1}, s{S_PF}\ns_add_u32 s{S_PF}, s{S_PF}, s{S_W2K}\ns_lshl_b32 s{S_W2K}, s{S_WV}, 11')
    a(f's_mul_i32 s{S_W1536}, s{S_WV}, 1536\ns_mov_b32 s{S_ONE}, 0x3f803f80\ns_mov_b32 s{S_ONE+1}, 0x3f803f80')
    a(f's_lshl_b32 s{S_W1K}, s{S_WV}, 10\ns_lshl_b32 s{S_W64}, s{S_WV}, 6\ns_mov_b32 s{S_F0}, 0xf0')
    a(f's_lshl_b32 s{S_T0}, s{S_H}, 12\ns_lshl_b32 s{S_T1}, s{S_WV}, 10\ns_add_u32 s{S_T0}, s{S_T0}, s{S_T1}')
    a(f's_add_u32 s{S_KM}, s{S_T0}, {WS_KM}')
    a(f's_mov_b32 s{S_MK_KEY}, 0xcccccccc\ns_mov_b32 s{S_MK_KEY+1}, 0xcccccccc')
    a(f's_mov_b32 s{S_MK_J8}, 0x003f003f\ns_mov_b32 s{S_MK_J8+1}, 0x003f003f')
    import struct
    c = math.log2(math.e) / math.sqrt(128.0)
    a(f's_mov_b32 s{S_SC}, 0x{struct.unpack("<I", struct.pack("<f", c))[0]:08x}\ns_mov_b32 s{S_SC+1}, s{S_SC}')
    a(f's_mov_b32 s{S_RED}, 0')
    a(f's_lshr_b32 s{S_T0}, s{S_H}, 4\ns_and_b32 s{S_T1}, s{S_H}, 15')
    a(f's_cmp_eq_u32 s{S_WV}, 0\ns_cselect_b32 s{S_RED}, 1, 0')
    l = a.newlabel('RT')
    a(f's_cmp_lg_u32 s{S_WV}, 1\ns_cbranch_scc1 {l}\ns_cmp_ge_u32 s{S_H}, 16\ns_cbranch_scc1 {l}')
    a(f's_mov_b32 s{S_RED}, 1\ns_mov_b32 s{S_T0}, 2')
    a.label(l)
    a(f's_lshr_b32 s{S_T3}, s{S_T1}, 2\ns_and_b32 s{S_T4}, s{S_T1}, 3')
    a(f's_mul_i32 s{S_RLD}, s{S_T3}, 3072\ns_lshl_b32 s{S_T2}, s{S_T0}, 10\ns_add_u32 s{S_RLD}, s{S_RLD}, s{S_T2}\ns_lshl_b32 s{S_T2}, s{S_T4}, 8\ns_add_u32 s{S_RLD}, s{S_RLD}, s{S_T2}')
    a(f's_sub_u32 s{S_T0}, 2, s{S_T0}\ns_mul_i32 s{S_RB}, s{S_T0}, 3072\ns_lshl_b32 s{S_T2}, s{S_T4}, 8\ns_add_u32 s{S_RB}, s{S_RB}, s{S_T2}\ns_lshl_b32 s{S_T2}, s{S_T3}, 6\ns_add_u32 s{S_RB}, s{S_RB}, s{S_T2}\ns_mov_b32 s{S_DUP}, 0')
    if NCOPY > 1:
        a(f's_and_b32 s{S_DUP}, s{S_H}, {NCOPY-1}\ns_lshl_b32 s{S_DUP}, s{S_DUP}, 16')
        for r in (S_MC, S_MN, S_MP): a(f's_add_u32 s{r}, s{r}, s{S_DUP}')
        a(f's_mov_b32 s{S_MK_J8}, 0x3f3f3f3f\ns_mov_b32 s{S_MK_J8+1}, 0x3f3f3f3f')

def mem0_copy(a, P):
    a(f's_mov_b32 s8, s{P["mem0"]}\ns_mov_b32 s9, s{P["mem0"]+1}\ns_mov_b32 s10, 9216\ns_mov_b32 s11, 0x20000')
    a(f's_lshl_b32 s34, s{S_H}, 16\ns_add_u32 s34, s34, {WS_M}')
    for k in range(3):
        a(f'v_add_u32 v12, {k*256}, v0')
        a('v_mul_u32_u24 v13, 911, v12\nv_lshrrev_b32 v13, 16, v13')
        a('v_mul_u32_u24 v14, 72, v13\nv_sub_u32 v14, v12, v14')
        a('v_lshrrev_b32 v15, 1, v14')
        a('v_mul_u32_u24 v16, 57, v15\nv_lshrrev_b32 v16, 9, v16')
        a('v_mul_u32_u24 v17, 9, v16\nv_sub_u32 v17, v15, v17')
        a('v_mul_u32_u24 v18, 43, v17\nv_lshrrev_b32 v18, 7, v18')
        a('v_mul_u32_u24 v19, 3, v18\nv_sub_u32 v19, v17, v19')
        a('v_sub_u32 v18, 2, v18')
        a('v_lshrrev_b32 v20, 1, v13\nv_lshlrev_b32 v20, 8, v20\nv_lshl_add_u32 v20, v16, 6, v20')
        a('v_mul_u32_u24 v21, 3072, v18\nv_add_u32 v20, v20, v21\nv_lshl_add_u32 v20, v19, 10, v20')
        a('v_and_b32 v21, 1, v13\nv_lshl_add_u32 v20, v21, 5, v20\nv_and_b32 v21, 1, v14\nv_lshl_add_u32 v20, v21, 4, v20')
        a('v_lshlrev_b32 v21, 4, v12')
        a('v_cmp_gt_u32 vcc, 576, v12\ns_and_saveexec_b64 s[36:37], vcc')
        a('buffer_load_dwordx4 v[8:11], v21, s[8:11], 0 offen\ns_waitcnt vmcnt(0)')
        a('buffer_store_dwordx4 v[8:11], v20, s[4:7], s34 offen sc1')
        a('s_mov_b64 exec, s[36:37]')

L_TBL = L_QX + 1024
def build_table(a):
    L16 = V_L16
    a(f"""v_and_b32 v8, 0xf0, v{L16}
v_bfe_u32 v4, v{L16}, 8, 2
v_lshl_add_u32 v4, v4, 2, v8
v_lshlrev_b32 v4, 1, v4
v_lshrrev_b32 v8, 8, v{L16}
v_bfe_u32 v9, v{L16}, 6, 2
v_lshl_add_u32 v8, v8, 3, v9
v_bfe_u32 v5, v{L16}, 4, 2
v_lshlrev_b32 v5, 3, v5
v_lshl_add_u32 v5, v8, 5, v5
v_bfe_u32 v8, v{L16}, 6, 2
v_bfe_u32 v7, v{L16}, 4, 1
v_lshl_add_u32 v7, v8, 1, v7
v_lshlrev_b32 v9, 1, v7
v_lshrrev_b32 v8, 9, v{L16}
v_xor_b32 v6, v8, v9
v_lshlrev_b32 v6, 4, v6
v_lshl_add_u32 v6, v7, 8, v6
v_bfe_u32 v8, v{L16}, 8, 1
v_lshl_add_u32 v6, v8, 3, v6
v_lshrrev_b32 v8, 8, v{L16}
v_bfe_u32 v10, v{L16}, 5, 1
v_lshl_add_u32 v8, v8, 1, v10
v_xor_b32 v8, v8, v9
v_lshlrev_b32 v8, 4, v8
v_lshl_add_u32 v7, v7, 8, v8
ds_write_b128 v{L16}, v[4:7] offset:{L_TBL}
s_waitcnt lgkmcnt(0)""")
```

```python
from asmlib import *
from layout import *
from chain import Cnt
import struct, math

def f32bits(x): return struct.unpack('<I', struct.pack('<f', x))[0]

G_CG = 12; G_WV = 13; G_RB = 14; G_I = 15
G_SW = 8
G_SG = 16; G_SU = 20
G_T0 = 24; G_T1 = 25; G_T2 = 26; G_T3 = 27; G_T4 = 28; G_T5 = 29
G_LB = 30
G_C1 = 32; G_C2 = 34; G_ONE = 36
G_DJ = 38
G_CUR = 39
G_DB = 40
G_SO = 41
G_CNT = 42

DBG_LN = 64; DBG_KV = 96; DBG_Q = 128; DBG_H = 160; DBG_AO = 192
KVT_LO = 96
NHELP = 2
DBG_CHAIN = 40; DBG_AOINIT = 44; DBG_IMPURE = 48

def signal(a, P, off_imm, s_idx=None, val=1, vtmp=(4, 5)):
    l = a.newlabel('SIG')
    a(f's_cmp_lg_u32 s13, 0\ns_cbranch_scc1 {l}')
    if s_idx is None: a(f'v_mov_b32 v{vtmp[0]}, {off_imm}')
    else: a(f's_lshl_b32 s{G_T5}, s{s_idx}, 2\ns_add_u32 s{G_T5}, s{G_T5}, {off_imm}\nv_mov_b32 v{vtmp[0]}, s{G_T5}')
    a(f'v_mov_b32 v{vtmp[1]}, {val}' if isinstance(val, int) else f'v_mov_b32 v{vtmp[1]}, s{val[0]}')
    a('s_mov_b64 exec, 1')
    a(f'global_atomic_add v{vtmp[0]}, v{vtmp[1]}, s[{P["dbg"]}:{P["dbg"]+1}]')
    a('s_mov_b64 exec, -1')
    a.label(l)

def wait_flag(a, P, off_imm, s_idx, target, vtmp=(4, 5), sleep=8, shift_s=None, mask=None, cnt=42, multi=None):
    l = a.newlabel('WF'); d = a.newlabel('WFD'); e = a.newlabel('WFE')
    a(f's_cmp_lg_u32 s13, 0\ns_cbranch_scc1 {e}')
    if multi:
        off0, n = multi
        a(f'v_mbcnt_lo_u32_b32 v{vtmp[0]}, -1, 0\nv_lshlrev_b32 v{vtmp[0]}, 2, v{vtmp[0]}\nv_add_u32 v{vtmp[0]}, {off0}, v{vtmp[0]}')
        a(f's_mov_b64 exec, {(1 << n) - 1}')
    else:
        if s_idx is None: a(f'v_mov_b32 v{vtmp[0]}, {off_imm}')
        else: a(f's_lshl_b32 s{G_T5}, s{s_idx}, 2\ns_add_u32 s{G_T5}, s{G_T5}, {off_imm}\nv_mov_b32 v{vtmp[0]}, s{G_T5}')
        a('s_mov_b64 exec, 1')
    a(f's_mov_b32 s{cnt}, 0')
    a.label(l)
    a(f'global_load_dword v{vtmp[1]}, v{vtmp[0]}, s[{P["dbg"]}:{P["dbg"]+1}] sc1')
    a(f's_add_u32 s{cnt}, s{cnt}, 1\ns_cmp_gt_u32 s{cnt}, 0x20000\ns_cbranch_scc1 {d}')
    a('s_waitcnt vmcnt(0)')
    if shift_s is not None: a(f'v_lshrrev_b32 v{vtmp[1]}, s{shift_s}, v{vtmp[1]}\nv_and_b32 v{vtmp[1]}, {mask}, v{vtmp[1]}')
    a(f'v_cmp_gt_u32 vcc, {target}, v{vtmp[1]}')
    a(f's_cbranch_vccz {d}')
    if sleep: a(f's_sleep {sleep}')
    a(f's_branch {l}')
    a.label(d)
    a('s_waitcnt vmcnt(0)')
    a('s_mov_b64 exec, -1')
    a.label(e)
    a('s_barrier')

def rnd_bf16(a, dst, src, tmp=None):
    a(f'v_cvt_pk_bf16_f32 v{dst}, v{src}, v{src}\nv_lshlrev_b32 v{dst}, 16, v{dst}')

def layernorm(a, P):
    a('; ---- layernorm ----')
    a(f's_mov_b32 s8, s{P["x"]}\ns_mov_b32 s9, s{P["x"]+1}\ns_mov_b32 s10, {2048*1152}\ns_mov_b32 s11, 0x20000')
    a('v_and_b32 v1, 63, v0\nv_lshrrev_b32 v2, 3, v1\nv_and_b32 v3, 7, v1')
    a(f's_lshl_b32 s{G_T0}, s{G_T4}, 2\ns_add_u32 s{G_T0}, s{G_T0}, s{G_WV}\ns_lshl_b32 s{G_T0}, s{G_T0}, 3')
    a(f's_mul_i32 s{G_T1}, s{G_T0}, 1152')
    a('v_mul_u32_u24 v4, 1152, v2\nv_lshl_add_u32 v4, v3, 4, v4')
    X = 8; F = 48
    for i in range(9): a(f'buffer_load_dwordx4 {vr(X+4*i,4)}, v4, s[8:11], s{G_T1} offen offset:{i*128}')
    a(f's_lshr_b32 s{G_T2}, s{G_T0}, 5\ns_mul_i32 s{G_T2}, s{G_T2}, 36864\ns_and_b32 s{G_T3}, s{G_T0}, 31\ns_lshl_b32 s{G_T3}, s{G_T3}, 4\ns_add_u32 s{G_T2}, s{G_T2}, s{G_T3}\ns_add_u32 s{G_T2}, s{G_T2}, {WS_XF}')
    a('v_lshrrev_b32 v5, 1, v3\nv_lshlrev_b32 v5, 10, v5\nv_and_b32 v6, 1, v3\nv_lshl_add_u32 v5, v6, 9, v5\nv_lshl_add_u32 v5, v2, 4, v5')
    for i in range(9):
        a(f's_waitcnt vmcnt({8-i})')
        for r in range(4):
            x = X + 4*i + r; f = F + 2*(4*i + r)
            a(f'v_lshlrev_b32 v{f}, 16, v{x}\nv_and_b32 v{f+1}, 0xffff0000, v{x}')
    def red8(v, t):
        a(f'v_add_f32_dpp v{v}, v{v}, v{v} quad_perm:[1,0,3,2] row_mask:0xf bank_mask:0xf')
        a(f'v_add_f32_dpp v{v}, v{v}, v{v} quad_perm:[2,3,0,1] row_mask:0xf bank_mask:0xf')
        a(f'v_add_f32_dpp v{v}, v{v}, v{v} row_half_mirror row_mask:0xf bank_mask:0xf')
    S = 120
    a(f'v_pk_add_f32 {vr(S,2)}, {vr(F,2)}, {vr(F+2,2)}')
    for k in range(2, 36): a(f'v_pk_add_f32 {vr(S,2)}, {vr(S,2)}, {vr(F+2*k,2)}')
    a(f'v_add_f32 v{S}, v{S}, v{S+1}')
    red8(S, S+1)
    a(f'v_mul_f32 v{S}, 0x{f32bits(1/576):08x}, v{S}')
    a(f'v_mov_b32 v{S+1}, v{S}')
    Q = 122; D = 124
    a(f'v_mov_b64 {vr(Q,2)}, 0')
    for k in range(36):
        a(f'v_pk_add_f32 {vr(D,2)}, {vr(F+2*k,2)}, {vr(S,2)} neg_lo:[0,1] neg_hi:[0,1]')
        a(f'v_pk_fma_f32 {vr(Q,2)}, {vr(D,2)}, {vr(D,2)}, {vr(Q,2)}')
    a(f'v_add_f32 v{Q}, v{Q}, v{Q+1}')
    red8(Q, Q+1)
    a(f'v_mul_f32 v{Q}, 0x{f32bits(1/576):08x}, v{Q}')
    rnd_bf16(a, Q, Q)
    a(f'v_add_f32 v{Q}, 0x{f32bits(1e-5):08x}, v{Q}')
    rnd_bf16(a, Q, Q)
    a(f'v_sqrt_f32 v{Q}, v{Q}')
    rnd_bf16(a, Q, Q)
    a(f'v_rcp_f32 v{Q}, v{Q}')
    rnd_bf16(a, S, S)
    a(f'v_mov_b32 v{S+1}, v{S}\nv_mov_b32 v{Q+1}, v{Q}')
    for k in range(36):
        f = F + 2*k
        a(f'v_pk_add_f32 {vr(f,2)}, {vr(f,2)}, {vr(S,2)} neg_lo:[0,1] neg_hi:[0,1]')
        a(f'v_cvt_pk_bf16_f32 v{X+k}, v{f}, v{f+1}')
        a(f'v_lshlrev_b32 v{f}, 16, v{X+k}\nv_and_b32 v{f+1}, 0xffff0000, v{X+k}')
        a(f'v_pk_mul_f32 {vr(f,2)}, {vr(f,2)}, {vr(Q,2)}')
        a(f'v_cvt_pk_bf16_f32 v{X+k}, v{f}, v{f+1}')
        if k % 4 == 3:
            i = k // 4
            a(f'buffer_store_dwordx4 {vr(X+4*i,4)}, v5, s[4:7], s{G_T2} offen sc1')
            a(f's_add_u32 s{G_T2}, s{G_T2}, 4096')
    a('s_waitcnt vmcnt(0)\ns_barrier')
    a(f's_lshr_b32 s{G_T4}, s{G_T4}, 3')
    signal(a, P, DBG_LN, G_T4)

def XR(rt, ks):
    n = (rt * 36 + ks) * 4
    return vr(n, 4, 'a') if n < 256 else vr(224 + n - 256, 4, 'v')
V_LN = 1; V_DQ = 2; V_DG = 3; V_TR = 4; V_SK = 5; V_SV = 6; V_L16 = 7; V_D = 10; V_TRC = 11
ACG = 16; ACU = 48; WB = 80; NWB = 4; ET = 96
G_STEP = 16; G_MSK = 18; G_PT = 20; G_OB = 22; G_SZQ = 23; G_STQ = 31
G_PB = 43; G_O1 = 44; G_O2 = 45; G_P = 46; G_RBC = 47; G_LAST = 48; G_KVP = 49; G_QS = 50

def gemm1(a, P, cfg):
    a('; ---- gemm1 ----')
    a(f'v_and_b32 v{V_LN}, 63, v0\nv_lshlrev_b32 v{V_L16}, 4, v{V_LN}')
    a(f'v_lshrrev_b32 v8, 2, v{V_LN}\nv_and_b32 v9, 3, v{V_LN}\nv_lshlrev_b32 v9, 4, v9')
    a(f'v_lshl_add_u32 v{V_DQ}, v8, 13, v9')
    a(f'v_mul_u32_u24 v{V_DG}, 9216, v8\nv_add_u32 v{V_DG}, v{V_DG}, v9')
    a(f'v_lshrrev_b32 v8, 5, v{V_LN}\nv_bfe_u32 v9, v{V_LN}, 2, 2\nv_lshl_add_u32 v8, v8, 3, v9\nv_lshlrev_b32 v8, 6, v8')
    a(f'v_bfe_u32 v9, v{V_LN}, 4, 1\nv_lshl_add_u32 v8, v9, 5, v8\nv_and_b32 v9, 3, v{V_LN}\nv_lshl_add_u32 v{V_TR}, v9, 3, v8')
    a(f'v_lshrrev_b32 v8, 5, v{V_LN}\nv_and_b32 v9, 15, v{V_LN}\nv_lshlrev_b32 v9, 4, v9\nv_lshl_add_u32 v8, v8, 8, v9\nv_bfe_u32 v9, v{V_LN}, 4, 1')
    a(f'v_lshl_add_u32 v{V_SK}, v9, 12, v8\nv_lshl_add_u32 v{V_SV}, v9, 10, v8')
    a(f's_mov_b32 s{G_SW+3}, 0x20000\ns_mov_b32 s{G_SZQ}, {576*8192}\ns_mov_b32 s{G_STQ}, {16*8192}')
    a(f's_mul_i32 s{G_LB}, s{G_WV}, 9216')
    c1 = -2 * math.log2(math.e) * math.sqrt(2 / math.pi); c2 = c1 * 0.044715
    for sr, v in ((G_C1, c1), (G_C2, c2), (G_ONE, 1.0)):
        a(f's_mov_b32 s{sr}, 0x{f32bits(v):08x}\ns_mov_b32 s{sr+1}, s{sr}')
    pp = lambda n: f's[{P[n]}:{P[n]+1}]'
    def dma_ops():
        pre = f"""s_cmp_lt_u32 s{G_DJ}, s{G_PB}|s_cselect_b32 s{G_T0}, s{G_O1}, s{G_O2}|s_add_u32 s{G_T0}, s{G_T0}, s{G_DJ}
s_min_u32 s{G_T0}, s{G_T0}, 27
s_mul_i32 s{G_T1}, s{G_T0}, 24
s_add_u32 s{G_T1}, s{G_T1}, s{G_CG}
s_lshr_b32 s{G_T2}, s{G_T1}, 7
s_and_b32 s{G_T1}, s{G_T1}, 127
s_lshl_b32 s{G_T1}, s{G_T1}, 6
s_mul_i32 s{G_SO}, s{G_WV}, {144*8192}
s_add_u32 s{G_SO}, s{G_SO}, s{G_T1}
s_cmp_eq_u32 s{G_T2}, 1|s_cselect_b64 s[{G_SW}:{G_SW+1}], {pp('Wv')}, {pp('Wk')}
s_cmp_eq_u32 s{G_T2}, 2|s_cselect_b64 s[{G_SW}:{G_SW+1}], {pp('Wq')}, s[{G_SW}:{G_SW+1}]
s_sub_u32 s{G_T1}, s{G_T0}, 16
s_lshr_b32 s{G_T2}, s{G_T1}, 1
s_mul_i32 s{G_T2}, s{G_T2}, 24
s_add_u32 s{G_T2}, s{G_T2}, s{G_CG}
s_lshl_b32 s{G_T2}, s{G_T2}, 6
s_mul_i32 s{G_T3}, s{G_WV}, {144*9216}
s_add_u32 s{G_T2}, s{G_T2}, s{G_T3}
s_bitcmp1_b32 s{G_T1}, 0|s_cselect_b64 s[{G_PT}:{G_PT+1}], {pp('wu')}, {pp('wg')}
s_cmp_ge_u32 s{G_T0}, 16|s_cselect_b64 s[{G_SW}:{G_SW+1}], s[{G_PT}:{G_PT+1}], s[{G_SW}:{G_SW+1}]|s_cselect_b32 s{G_SO}, s{G_T2}, s{G_SO}|s_cselect_b32 s{G_SW+2}, {576*9216}, s{G_SZQ}|s_cselect_b32 s{G_STEP}, {16*9216}, s{G_STQ}|s_cselect_b64 s[{G_MSK}:{G_MSK+1}], -1, 0
v_cndmask_b32 v{V_D}, v{V_DQ}, v{V_DG}, s[{G_MSK}:{G_MSK+1}]
s_add_u32 s{G_T0}, s{G_DB}, s{G_LB}"""
        ops = [x.replace('|', '\n') for x in pre.split('\n')]
        for n in range(9):
            if cfg.get('g_nodma'): continue
            ops.append(f's_add_u32 m0, s{G_T0}, {n*1024}\ns_nop 0\nbuffer_load_dwordx4 v{V_D}, s[{G_SW}:{G_SW+3}], s{G_SO} offen lds\ns_add_u32 s{G_SO}, s{G_SO}, s{G_STEP}')
        ops.append(f's_add_u32 s{G_DJ}, s{G_DJ}, 1')
        ops.append(f's_add_u32 s{G_DB}, s{G_DB}, 36864\ns_cmp_eq_u32 s{G_DB}, {4*36864}\ns_cselect_b32 s{G_DB}, 0, s{G_DB}')
        return ops
    a(f's_mov_b32 s{G_DJ}, 0\ns_mov_b32 s{G_DB}, 0\ns_mov_b32 s{G_CUR}, 0')
    a(f's_lshr_b32 s{G_T0}, s{G_RB}, 1\ns_mul_i32 s{G_O1}, s{G_T0}, 3\ns_cmp_eq_u32 s{G_T0}, 3\ns_cselect_b32 s{G_PB}, 2, 3')
    a(f's_sub_u32 s{G_O2}, 0, s{G_PB}\ns_add_u32 s{G_LAST}, s{G_PB}, 16\ns_add_u32 s{G_KVP}, s{G_PB}, 11')
    a(f's_cmp_lt_u32 s{G_RB}, 2\ns_cselect_b32 s{G_O2}, 8, s{G_O2}\ns_cselect_b32 s{G_LAST}, 8, s{G_LAST}\ns_cselect_b32 s{G_KVP}, 99, s{G_KVP}')
    a(f's_and_b32 s{G_RBC}, s{G_RB}, 1')
    for _ in range(3):
        for op in dma_ops(): a(op)
    def load_x():
        wait_flag(a, P, DBG_LN, G_RBC, 8, vtmp=(8, 9), sleep=4)
        a(f's_lshl_b32 s{G_T0}, s{G_RBC}, 3\ns_lshl_b32 s{G_T1}, s{G_WV}, 1\ns_add_u32 s{G_T0}, s{G_T0}, s{G_T1}\ns_mul_i32 s{G_T0}, s{G_T0}, 36864\ns_add_u32 s{G_T0}, s{G_T0}, {WS_XF}')
        n = 0
        for rt in range(2):
            for ks in range(36):
                a(f'buffer_load_dwordx4 {XR(rt, ks)}, v{V_L16}, s[4:7], s{G_T0} offen offset:{(n % 4)*1024} sc1')
                n += 1
                if n % 4 == 0: a(f's_add_u32 s{G_T0}, s{G_T0}, 4096')
                if n % 36 == 0 and n < 72: a('s_waitcnt vmcnt(20)')
        a('s_waitcnt vmcnt(0)')
    load_x()
    if cfg.get('prof'): cfg['_prof'](a, 5)

    def tile_start():
        if cfg.get('gprof'): a('s_memtime s[60:61]\ns_waitcnt lgkmcnt(0)\ns_sub_u32 s66, s60, s64\ns_add_u32 s69, s69, s66')
        a('s_waitcnt vmcnt(18)')
        if cfg.get('gprof'): a('s_memtime s[62:63]\ns_waitcnt lgkmcnt(0)\ns_sub_u32 s66, s62, s60\ns_add_u32 s67, s67, s66')
        a('s_barrier')
        if cfg.get('gprof'): a('s_memtime s[64:65]\ns_waitcnt lgkmcnt(0)\ns_sub_u32 s66, s64, s62\ns_add_u32 s68, s68, s66')
        a(f'v_add_u32 v{V_TRC}, s{G_CUR}, v{V_TR}')
        a(f's_add_u32 s{G_CUR}, s{G_CUR}, 36864\ns_cmp_eq_u32 s{G_CUR}, {4*36864}\ns_cselect_b32 s{G_CUR}, 0, s{G_CUR}')
    def body(acc, swapped):
        fill = dma_ops()
        def rd(ks):
            w = WB + 4 * (ks % NWB)
            a(f'ds_read_b64_tr_b16 {vr(w,2)}, v{V_TRC} offset:{ks*1024}')
            a(f'ds_read_b64_tr_b16 {vr(w+2,2)}, v{V_TRC} offset:{ks*1024+256}')
        PD = NWB - 1; DSP = cfg.get('DSP', 3)
        for ks in range(PD): rd(ks)
        for ks in range(36):
            if ks + PD < 36: rd(ks + PD)
            rem = min(PD, 35 - ks)
            a(f's_waitcnt lgkmcnt({2*rem})')
            w = vr(WB + 4 * (ks % NWB), 4)
            for rt in range(2):
                d = vr(acc + 16*rt, 16); c = d if ks else '0'
                if swapped: a(f'v_mfma_f32_32x32x16_bf16 {d}, {w}, {XR(rt, ks)}, {c}')
                else: a(f'v_mfma_f32_32x32x16_bf16 {d}, {XR(rt, ks)}, {w}, {c}')
                if fill and ks >= 1 and (not fill[0].startswith('s_add_u32 m0') or (2*ks + rt) % DSP == 0): a(fill.pop(0))
        assert not fill
    def pack_swapped(src_fn, rt, store_fn):
        for ai, aq in enumerate((0, 2)):
            t = ET + 8 * (rt % 2) + 4 * ai
            a(f'v_cvt_pk_bf16_f32 v{t}, v{src_fn(4*aq)}, v{src_fn(4*aq+1)}\nv_cvt_pk_bf16_f32 v{t+1}, v{src_fn(4*aq+2)}, v{src_fn(4*aq+3)}')
            a(f'v_cvt_pk_bf16_f32 v{t+2}, v{src_fn(4*aq+4)}, v{src_fn(4*aq+5)}\nv_cvt_pk_bf16_f32 v{t+3}, v{src_fn(4*aq+6)}, v{src_fn(4*aq+7)}')
            a(f'v_permlane32_swap_b32 v{t}, v{t+2}\nv_permlane32_swap_b32 v{t+1}, v{t+3}')
            store_fn(t, ai)
    if cfg.get('gprof'): a('s_memtime s[64:65]\ns_waitcnt lgkmcnt(0)\ns_mov_b32 s67, 0\ns_mov_b32 s68, 0\ns_mov_b32 s69, 0')
    a(f's_mov_b32 s{G_P}, 0')
    a.label('G1S')
    tile_start()
    a(f's_cmp_lt_u32 s{G_P}, s{G_PB}\ns_cselect_b32 s{G_I}, s{G_O1}, s{G_O2}\ns_add_u32 s{G_I}, s{G_I}, s{G_P}')
    a(f's_mul_i32 s{G_T4}, s{G_I}, 24\ns_add_u32 s{G_T4}, s{G_T4}, s{G_CG}')
    a(f's_lshl_b32 s{G_OB}, s{G_RBC}, 3\ns_lshl_b32 s{G_T5}, s{G_WV}, 1\ns_add_u32 s{G_OB}, s{G_OB}, s{G_T5}\ns_lshl_b32 s{G_OB}, s{G_OB}, 18')
    a(f's_bfe_u32 s{G_T5}, s{G_T4}, 0x50002\ns_lshl_b32 s{G_T5}, s{G_T5}, 13\ns_add_u32 s{G_OB}, s{G_OB}, s{G_T5}')
    a(f's_and_b32 s{G_CNT}, s{G_T4}, 3\ns_lshl_b32 s{G_CNT}, s{G_CNT}, 10\ns_add_u32 s{G_OB}, s{G_OB}, s{G_CNT}')
    a(f's_lshr_b32 s{G_T4}, s{G_T4}, 7')
    a(f's_cmp_eq_u32 s{G_T4}, 1\ns_cbranch_scc1 G1V')
    a(f's_cmp_eq_u32 s{G_T4}, 0\ns_cselect_b32 s{G_T4}, {WS_KF}, {WS_QF}' if False else f's_mov_b32 s{G_T5}, {WS_KF}\ns_cmp_eq_u32 s{G_T4}, 0\ns_cselect_b32 s{G_T4}, s{G_T5}, {WS_QF}')
    a(f's_cselect_b32 s{G_QS}, 1.0, 0x{f32bits(math.log2(math.e) / math.sqrt(128.0)):08x}\ns_mov_b32 s{G_QS+1}, s{G_QS}')
    a(f's_add_u32 s{G_OB}, s{G_OB}, s{G_T4}')
    body(ACG, True)
    for r in range(ACG, ACG + 32, 2): a(f'v_pk_mul_f32 {vr(r,2)}, {vr(r,2)}, s[{G_QS}:{G_QS+1}]')
    for rt in range(2):
        pack_swapped(lambda r: ACG + 16*rt + r, rt,
                     lambda t, ai: a(f'buffer_store_dwordx4 {vr(t,4)}, v{V_SK}, s[4:7], s{G_OB} offen offset:{ai*512} {cfg.get("g_st", "sc1")}'))
        if rt == 0: a(f's_add_u32 s{G_OB}, s{G_OB}, {32*8192}')
    a('s_branch G1SE')
    a.label('G1V')
    a(f's_add_u32 s{G_OB}, s{G_OB}, s{G_CNT}\ns_add_u32 s{G_OB}, s{G_OB}, {WS_VF}')
    body(ACG, False)
    for rt in range(2):
        for ap in range(2):
            t = ET + 8 * rt + 4 * ap; s0 = ACG + 16*rt + 4*ap; s1 = s0 + 8
            a(f'v_cvt_pk_bf16_f32 v{t}, v{s0}, v{s0+1}\nv_cvt_pk_bf16_f32 v{t+1}, v{s0+2}, v{s0+3}')
            a(f'v_cvt_pk_bf16_f32 v{t+2}, v{s1}, v{s1+1}\nv_cvt_pk_bf16_f32 v{t+3}, v{s1+2}, v{s1+3}')
            a(f'buffer_store_dwordx4 {vr(t,4)}, v{V_SV}, s[4:7], s{G_OB} offen offset:{ap*512} {cfg.get("g_st", "sc1")}')
        if rt == 0: a(f's_add_u32 s{G_OB}, s{G_OB}, {32*8192}')
    a.label('G1SE')
    a(f's_add_u32 s{G_P}, s{G_P}, 1')
    a(f's_cmp_lg_u32 s{G_P}, s{G_PB}\ns_cbranch_scc1 G1F1')
    a('s_waitcnt vmcnt(0)\ns_barrier')
    signal(a, P, DBG_KV, G_RBC, vtmp=(8, 9))
    if cfg.get('prof'): cfg['_prof'](a, 6)
    if cfg.get('PAUSE', 0): wait_flag(a, P, DBG_CHAIN, None, cfg.get('PAUSEN', 32), vtmp=(8, 9), sleep=16)
    a(f's_cmp_lt_u32 s{G_RB}, 2\ns_cbranch_scc1 G1F1')
    a(f's_mov_b32 s{G_RBC}, s{G_RB}')
    load_x()
    a.label('G1F1')
    a(f's_cmp_lg_u32 s{G_P}, s{G_KVP}\ns_cbranch_scc1 G1F2')
    a('s_waitcnt vmcnt(0)\ns_barrier')
    signal(a, P, DBG_KV, G_RBC, vtmp=(8, 9))
    a.label('G1F2')
    a(f's_cmp_lt_u32 s{G_P}, s{G_LAST}\ns_cbranch_scc1 G1S')
    a('s_waitcnt vmcnt(0)\ns_barrier')
    signal(a, P, DBG_Q, G_RB, vtmp=(8, 9))
    if cfg.get('prof'): cfg['_prof'](a, 7)
    a(f's_mov_b32 s{G_I}, 0')
    a.label('G1G')
    tile_start(); body(ACG, True)
    tile_start(); body(ACU, True)
    a(f's_lshl_b32 s{G_OB}, s{G_RB}, 3\ns_lshl_b32 s{G_T5}, s{G_WV}, 1\ns_add_u32 s{G_OB}, s{G_OB}, s{G_T5}\ns_mul_i32 s{G_OB}, s{G_OB}, {288*1024}')
    a(f's_mul_i32 s{G_T4}, s{G_I}, 24\ns_add_u32 s{G_T4}, s{G_T4}, s{G_CG}\ns_lshl_b32 s{G_T4}, s{G_T4}, 11\ns_add_u32 s{G_OB}, s{G_OB}, s{G_T4}\ns_add_u32 s{G_OB}, s{G_OB}, {WS_HF}')
    T = 112
    for rt in range(2):
        for q in range(0, 16, 4):
            prs = [(ACG + 16*rt + q + o, ACU + 16*rt + q + o, T + o) for o in (0, 2)]
            for g, u, t in prs: a(f'v_pk_mul_f32 {vr(t,2)}, {vr(g,2)}, {vr(g,2)}')
            for g, u, t in prs: a(f'v_pk_fma_f32 {vr(t,2)}, {vr(t,2)}, s[{G_C2}:{G_C2+1}], {vr(T+4,2)}') if False else a(f'v_pk_mul_f32 {vr(t,2)}, {vr(t,2)}, s[{G_C2}:{G_C2+1}]')
            for g, u, t in prs: a(f'v_pk_add_f32 {vr(t,2)}, {vr(t,2)}, s[{G_C1}:{G_C1+1}]')
            for g, u, t in prs: a(f'v_pk_mul_f32 {vr(t,2)}, {vr(t,2)}, {vr(g,2)}')
            for g, u, t in prs: a(f'v_exp_f32 v{t}, v{t}\nv_exp_f32 v{t+1}, v{t+1}')
            for g, u, t in prs: a(f'v_pk_add_f32 {vr(t,2)}, {vr(t,2)}, s[{G_ONE}:{G_ONE+1}]')
            for g, u, t in prs: a(f'v_rcp_f32 v{t}, v{t}\nv_rcp_f32 v{t+1}, v{t+1}')
            for g, u, t in prs: a(f'v_pk_mul_f32 {vr(g,2)}, {vr(g,2)}, {vr(u,2)}')
            for g, u, t in prs: a(f'v_pk_mul_f32 {vr(g,2)}, {vr(g,2)}, {vr(t,2)}')
        pack_swapped(lambda r: ACG + 16*rt + r, rt,
                     lambda t, ai: a(f'buffer_store_dwordx4 {vr(t,4)}, v{V_L16}, s[4:7], s{G_OB} offen offset:{ai*1024} {cfg.get("g_st", "sc1")}'))
        if rt == 0: a(f's_add_u32 s{G_OB}, s{G_OB}, {288*1024}')
    a(f's_add_u32 s{G_I}, s{G_I}, 1\ns_cmp_lt_u32 s{G_I}, 6\ns_cbranch_scc1 G1G')
    a('s_waitcnt vmcnt(0)\ns_barrier')
    signal(a, P, DBG_H, G_RB, vtmp=(8, 9))
    if cfg.get('gprof'):
        a(f's_lshl_b32 s59, s2, 6\ns_lshl_b32 s58, s13, 4\ns_add_u32 s59, s59, s58\ns_add_u32 s59, s59, {WS_DBG + 0x90000}')
        a('v_mov_b32 v12, s67\nv_mov_b32 v13, s68\nv_mov_b32 v14, s69\nv_mov_b32 v15, 0\nv_mov_b32 v8, 0\ns_mov_b64 exec, 1')
        a('buffer_store_dwordx4 v[12:15], v8, s[4:7], s59 offen\ns_mov_b64 exec, -1')
```

```python
import sys, json
from asmlib import *
from layout import *
import chain as C, gemm1 as G, ffn2 as F, ao as AO

KN = 'parallel_sum__memory_aug_recurrent_mem_tr__geglu_ffn__prompt_kernel'
HEADER = open('parallel_sum__memory_aug_recurrent_mem_tr__geglu_ffn__prompt.s.ref').read().split('; Override launch')[0]

def gen(cfg):
    cfg = dict(cfg); cfg['_prof'] = prof
    a = Asm()
    P = {}
    names = [('x',0),('mem0',8),('Wq',16),('Wk',24),('Wv',32),('Wo',40),('wg',64),('wu',72),('wd',80),('out',88),('dbg',96),('ws',104)]
    a('s_cmp_ge_u32 s2, 256\ns_cbranch_scc1 K_END')
    if cfg.get('perm'): a(f's_mul_i32 s2, s2, {cfg["perm"]}\ns_and_b32 s2, s2, 255')
    for i, (n, off) in enumerate(names):
        P[n] = 72 + 2*i
        a(f's_load_dwordx2 s[{P[n]}:{P[n]+1}], s[0:1], {off}')
    a('s_getreg_b32 s3, hwreg(HW_REG_XCC_ID)')
    a('v_lshrrev_b32 v4, 6, v0')
    a('v_readfirstlane_b32 s13, v4')
    a('s_waitcnt lgkmcnt(0)')
    a(f's_mov_b32 s4, s{P["ws"]}\ns_mov_b32 s5, s{P["ws"]+1}\ns_mov_b32 s6, {WS_SIZE}\ns_mov_b32 s7, 0x20000')
    if cfg.get('prof'): a('s_memrealtime s[100:101]')
    if cfg.get('fakexcc'): a('s_cmp_lt_u32 s2, 128\ns_cselect_b32 s24, 1, 0\ns_cmp_eq_u32 s3, 0\ns_cselect_b32 s3, s24, s3')
    a('s_cmp_lt_u32 s3, 8\ns_cselect_b32 s54, s3, 7')
    a('s_lshr_b32 s55, s2, 3\ns_and_b32 s55, s55, 31')
    DBGP = f's[{P["dbg"]}:{P["dbg"]+1}]'
    a('s_cmp_lg_u32 s13, 0\ns_cbranch_scc1 CL_ISSUED')
    a('s_mov_b64 exec, 1')
    a('s_lshl_b32 s27, 1, s55\ns_lshl_b32 s29, s54, 2')
    a('v_mov_b32 v4, s29\nv_mov_b32 v5, s27')
    a(f'global_atomic_or v250, v4, v5, {DBGP} sc0')
    a('s_mov_b64 exec, -1')
    a.label('CL_ISSUED')
    a('s_and_b32 s24, s2, 6\ns_cmp_lg_u32 s24, 2\ns_cbranch_scc1 NO_LN')
    a(f's_lshr_b32 s{G.G_T4}, s2, 3\ns_lshl_b32 s{G.G_T4}, s{G.G_T4}, 1\ns_and_b32 s24, s2, 1\ns_add_u32 s{G.G_T4}, s{G.G_T4}, s24')
    G.layernorm(a, P)
    a.label('NO_LN')
    def resolve(sfx, ldsaddr, firstwait):
        a(f's_cmp_lg_u32 s13, 0\ns_cbranch_scc1 CL_WAIT{sfx}')
        a('s_mov_b32 s25, s55\ns_mov_b32 s26, s54\ns_mov_b32 s28, 0\ns_lshl_b32 s27, 1, s25')
        a('s_mov_b64 exec, 1')
        a(firstwait)
        a(f's_branch CL_CHK{sfx}')
        a.label(f'CL_TRY{sfx}')
        a('s_lshl_b32 s27, 1, s25\ns_lshl_b32 s29, s26, 2')
        a('v_mov_b32 v248, s29\nv_mov_b32 v249, s27')
        a(f'global_atomic_or v250, v248, v249, {DBGP} sc0')
        a('s_waitcnt vmcnt(0)')
        a.label(f'CL_CHK{sfx}')
        a('v_readfirstlane_b32 s30, v250')
        a(f's_and_b32 s31, s30, s27\ns_cbranch_scc0 CL_GOT{sfx}')
        a(f's_not_b32 s31, s30\ns_cbranch_scc0 CL_FULL{sfx}')
        a(f's_ff1_i32_b32 s25, s31\ns_branch CL_TRY{sfx}')
        a.label(f'CL_FULL{sfx}')
        a(f's_add_u32 s28, s28, 1\ns_sub_u32 s26, 8, s28\ns_cmp_gt_u32 s28, 8\ns_cbranch_scc1 CL_NONE{sfx}')
        a('s_mov_b32 s25, 0')
        a(f's_cmp_lg_u32 s26, 0\ns_cbranch_scc1 CL_TRY{sfx}')
        a(f'v_mov_b32 v248, {G.DBG_IMPURE}\nv_mov_b32 v249, 1')
        a(f'global_atomic_or v250, v248, v249, {DBGP} sc0\ns_waitcnt vmcnt(0)')
        a(f's_branch CL_TRY{sfx}')
        a.label(f'CL_NONE{sfx}')
        a('s_mov_b32 s26, 8\ns_mov_b32 s25, 0')
        a.label(f'CL_GOT{sfx}')
        a('s_lshl_b32 s26, s26, 5\ns_add_u32 s26, s26, s25')
        a(f'v_mov_b32 v248, {ldsaddr}\nv_mov_b32 v249, s26\nds_write_b32 v248, v249\ns_waitcnt lgkmcnt(0)')
        a('s_mov_b64 exec, -1')
        a.label(f'CL_WAIT{sfx}')
        a('s_barrier')
        a(f'v_mov_b32 v248, {ldsaddr}\nds_read_b32 v249, v248\ns_waitcnt lgkmcnt(0)')
        a('v_readfirstlane_b32 s26, v249')
        a('s_barrier')
    if cfg.get('spec', 1):
        a(f's_mov_b32 s52, 1\ns_mov_b32 s{C.S_H}, s55')
        a('s_cmp_eq_u32 s54, 0\ns_cbranch_scc1 R_CHAIN2')
    resolve('A', 0, 's_waitcnt vmcnt(0)')
    a.label('ROLE')
    a('s_lshr_b32 s24, s26, 5\ns_and_b32 s28, s26, 31')
    if cfg.get('prof'): a('s_mov_b32 s101, s26')
    a('s_cmp_ge_u32 s24, 8\ns_cbranch_scc1 K_END')
    a('s_cmp_eq_u32 s24, 0\ns_cbranch_scc1 R_CHAIN')
    if cfg.get('warm', 1):
        a('s_sub_u32 s25, s26, 32\ns_mul_i32 s27, s25, 1171\ns_lshr_b32 s27, s27, 16\ns_mul_i32 s29, s27, 56\ns_sub_u32 s25, s25, s29')
        a(f's_cmp_eq_u32 s27, 1\ns_cselect_b64 s[8:9], s[{P["Wk"]}:{P["Wk"]+1}], s[{P["Wq"]}:{P["Wq"]+1}]')
        a(f's_cmp_eq_u32 s27, 2\ns_cselect_b64 s[8:9], s[{P["Wv"]}:{P["Wv"]+1}], s[8:9]')
        a(f's_cmp_eq_u32 s27, 3\ns_cselect_b64 s[8:9], s[{P["Wo"]}:{P["Wo"]+1}], s[8:9]')
        a('s_mov_b32 s10, 4718592\ns_mov_b32 s11, 0x20000')
        a('s_lshl_b32 s25, s25, 15\nv_lshlrev_b32 v4, 7, v0')
        for k in range(3):
            a(f'buffer_load_dword v{200+k}, v4, s[8:11], s25 offen')
            a(f's_add_u32 s25, s25, {56*32768}')
    a('s_cmp_eq_u32 s24, 1\ns_cbranch_scc1 R_AO')
    a(f's_sub_u32 s{G.G_CG}, s24, 2\ns_lshl_b32 s{G.G_CG}, s{G.G_CG}, 2\ns_lshr_b32 s25, s28, 3\ns_add_u32 s{G.G_CG}, s{G.G_CG}, s25\ns_and_b32 s{G.G_RB}, s28, 7')
    G.gemm1(a, P, cfg)
    if cfg.get('prof'): prof(a, 1)
    a(f's_cmp_lt_u32 s{G.G_CG}, 12\ns_cbranch_scc1 R_FFN')
    a(f's_sub_u32 s24, s{G.G_CG}, 12\ns_lshl_b32 s24, s24, 3\ns_add_u32 s24, s24, s{G.G_RB}')
    a(f's_and_b32 s{AO.A_CH}, s24, 1\ns_bfe_u32 s{AO.A_HG}, s24, 0x30001\ns_lshr_b32 s{AO.A_SEG}, s24, 4\ns_add_u32 s{AO.A_SEG}, s{AO.A_SEG}, {2 + cfg.get("S0", 20)}')
    a('s_barrier\ns_branch AO_ENTRY2')
    a.label('R_FFN')
    F.ffn2(a, P, cfg)
    a('s_branch K_DONE')
    a.label('R_AO')
    a(f's_and_b32 s{AO.A_SEG}, s28, 1\ns_bfe_u32 s{AO.A_CH}, s28, 0x10001\ns_lshr_b32 s{AO.A_HG}, s28, 2')
    AO.ao(a, P, cfg)
    a('s_branch K_DONE')
    a.label('R_CHAIN')
    a(f's_mov_b32 s{C.S_H}, s28\ns_mov_b32 s52, 0')
    a.label('R_CHAIN2')
    def hook(vm):
        a('s_cmp_eq_u32 s52, 0\ns_cbranch_scc1 CH_OK')
        resolve('B', 24576, 's_waitcnt vmcnt(36)')
        if cfg.get('prof'): a('s_mov_b32 s101, s26')
        a(f's_cmp_eq_u32 s26, s{C.S_H}\ns_cbranch_scc1 CH_OK')
        a('s_waitcnt vmcnt(0)\ns_barrier')
        a('s_lshl_b32 s24, s13, 6\nv_lshrrev_b32 v0, 4, v0\nv_or_b32 v0, s24, v0')
        a('s_branch ROLE')
        a.label('CH_OK')
        a(f's_lshl_b32 s24, s13, 10\nv_add_u32 v40, s24, v{C.V_L16}')
        for r in range(4): a(f'v_mov_b32 v{44+r}, 0')
        a(f's_mul_i32 s25, s{C.S_H}, 12288')
        for b in range(2):
            a(f's_add_u32 s24, s25, {WS_P + b*0x80000}')
            for k in range(3):
                a('buffer_store_dwordx4 v[44:47], v40, s[4:7], s24 offen sc1'); vm.issue('x')
                a('s_add_u32 s24, s24, 4096')
        for r in range(4): a(f'v_mov_b32 v{48+r}, -1')
        a(f's_sub_u32 s24, s{C.S_H}, 1\ns_cmp_gt_u32 s24, 1\ns_cbranch_scc1 NOM')
        a(f's_mul_i32 s24, s{C.S_H}, {M_STRIDE}\ns_add_u32 s24, s24, {WS_M}')
        for k in range(3):
            a('buffer_store_dwordx4 v[48:51], v40, s[4:7], s24 offen sc1')
            a('s_add_u32 s24, s24, 4096')
        a.label('NOM')
    C.chain_prologue(a, P, hook)
    a(f's_cmp_lg_u32 s{C.S_H}, 0\ns_cbranch_scc1 NOM0')
    a(f'v_mov_b32 v22, v0\ns_lshl_b32 s24, s13, 6\nv_lshrrev_b32 v0, 4, v0\nv_or_b32 v0, s24, v0')
    C.mem0_copy(a, P)
    a('v_mov_b32 v0, v22')
    a.label('NOM0')
    C.chain_init(a, P, cfg)
    if cfg.get('prof'): prof(a, 4)
    a('s_waitcnt vmcnt(0)\ns_barrier')
    G.signal(a, P, G.DBG_CHAIN, None)
    W = lambda off, tgt: G.wait_flag(a, P, off, None, tgt, sleep=2, cnt=C.S_CNT)
    G.wait_flag(a, P, 0, None, 32, sleep=2, cnt=C.S_CNT, multi=(G.DBG_CHAIN, 2))
    G.wait_flag(a, P, 0, None, G.KVT_LO, sleep=2, cnt=C.S_CNT, multi=(G.DBG_KV, 2))
    a(f's_sub_u32 s34, s{C.S_KF}, {32*8192}\ns_mov_b32 m0, s{C.S_KXL}')
    for q in range(4): a(f'buffer_load_dwordx4 v{C.V_L16}, s[4:7], s34 offen offset:{q*1024} sc1 lds')
    a(f'v_mov_b32 v4, {G.DBG_IMPURE}')
    a(f'global_load_dword v5, v4, s[{P["dbg"]}:{P["dbg"]+1}] sc1')
    a('s_waitcnt vmcnt(0)\ns_barrier')
    a('v_readfirstlane_b32 s34, v5')
    if cfg.get('prof'): prof(a, 2)
    lg = C.Cnt(a, 'lgkmcnt', 15)
    C.build_table(a)
    C.next_prep(a, lg)
    cfg['_kvwait'] = lambda a: G.wait_flag(a, P, 0, None, 24, sleep=2, cnt=C.S_CNT, multi=(G.DBG_KV + 8, 6))
    if cfg.get('forceslow'): a('s_mov_b32 s34, 1')
    a('s_cmp_lg_u32 s34, 0\ns_cbranch_scc1 STEPS')
    C.chain_loop(a, cfg, 'F', '')
    C.chain_loop(a, cfg, 'S', 'sc1')
    a.label('CHAIN_DONE')
    a.label('K_DONE')
    a('s_waitcnt vmcnt(0) lgkmcnt(0)')
    if cfg.get('prof'): prof(a, 3)
    a.label('K_END')
    a('s_endpgm')
    body, n = a.finalize()
    head = HEADER + f'''; @launch grid=(256,1,1) block=(256,1,1) lds=163840
.amdgcn_target "amdgcn-amd-amdhsa--gfx950"
.text
.globl {KN}
.p2align 8
.type {KN},@function
{KN}:
'''
    tail = f'''.section .rodata,"a"
.p2align 6
.amdhsa_kernel {KN}
  .amdhsa_next_free_vgpr 512
  .amdhsa_next_free_sgpr 102
  .amdhsa_accum_offset 256
  .amdhsa_group_segment_fixed_size 0
  .amdhsa_kernarg_size 112
  .amdhsa_user_sgpr_count 2
  .amdhsa_user_sgpr_kernarg_segment_ptr 1
  .amdhsa_system_sgpr_workgroup_id_x 1
.end_amdhsa_kernel
'''
    return head + body + tail, n

def prof(a, k):
    l = a.newlabel('PR')
    a(f's_cmp_lg_u32 s13, 0\ns_cbranch_scc1 {l}')
    a('s_memrealtime s[98:99]\ns_waitcnt lgkmcnt(0)')
    a(f's_sub_u32 s98, s98, s100\ns_lshl_b32 s99, s2, 6\ns_add_u32 s99, s99, {WS_DBG + 0x80000 + k*8}')
    a('s_mov_b64 exec, 1')
    a('v_mov_b32 v14, s98\nv_mov_b32 v15, s101\nv_mov_b32 v13, 0')
    a('buffer_store_dwordx2 v[14:15], v13, s[4:7], s99 offen')
    a('s_mov_b64 exec, -1')
    a.label(l)

if __name__ == '__main__':
    cfg = json.loads(sys.argv[1]) if len(sys.argv) > 1 else dict(D1=110, D2=310)
    src, n = gen(cfg)
    out = sys.argv[2] if len(sys.argv) > 2 else 'all.s'
    open(out, 'w').write(src)
    print(n, 'instructions', len(src), 'bytes')
```

```python
from asmlib import *
from layout import *
import math

class Cnt:
    def __init__(self, a, name, maxv):
        self.a = a; self.name = name; self.q = []; self.maxv = maxv
    def issue(self, tag, n=1):
        for _ in range(n): self.q.append(tag)
    def wait(self, tag):
        idx = max(i for i, t in enumerate(self.q) if t == tag) if tag in self.q else None
        if idx is None: return
        n = len(self.q) - 1 - idx
        assert n <= self.maxv, (self.name, n)
        self.a(f's_waitcnt {self.name}({n})')
        self.q = self.q[idx + 1:]
    def wait_all(self):
        self.a(f's_waitcnt {self.name}(0)'); self.q = []
    def reset(self, q=()): self.q = list(q)

S_WS = 4
S_W = 8
S_H = 12; S_WV = 13; S_STEP = 14; S_ABORT = 15
S_PC = 16; S_PST = 17; S_MC = 18; S_MN = 19; S_MP = 20
S_KF = 21; S_VF = 22; S_KM = 23; S_VM = 24
S_RED = 25; S_TASK = 26; S_CNT = 27
S_MK_KEY = 28; S_MK_J8 = 30
S_SC = 32
S_T0 = 34; S_T1 = 35; S_T3 = 36; S_T4 = 37; S_T2 = 43
S_RB = 38; S_RMA = 39; S_RIS8 = 40; S_RLD = 41; S_PO = 42
S_W512 = 44; S_W4 = 45; S_W2K = 46; S_F0 = 47; S_MK_N6 = 48; S_PF = 50; S_ROT = 51; S_TAG = 54; S_TAGS = 55; S_ROTB = 3; S_DUP = 24; S_CK = 56; S_CK2 = 96; S_CK3 = 98; S_MC1 = 39; S_MC2 = 40; S_W1536 = 26; S_KXL = 58; S_ONE = 8; S_TGN = 59; S_CK4 = 10; S_W1K = 44; S_W64 = 45

V_L16 = 0; V_IDX = 1; V_WL = 2; V_X = 3
def A(i): return 4 + 4 * i
ACC = {'q0': 40, 'q1': 44, 'k0': 48, 'k1': 52, 'v0': 56, 'v1': 60}
T0 = 64; T1 = 72

QK_LDS = {0: 'q', 2: 'k', 4: 'q', 6: 'k', 8: 'q'}
WO_LDS = [(0, 1), (1, 1), (2, 1), (3, 1)]

def build_frag_map():
    slots = []
    for m in 'qkv':
        for i in range(9): slots.append((m, i))
    for p in range(4):
        for c in range(2): slots.append(('o', p, c))
    slots.append(('o8',))
    lds_slots = [(m, i) for i, m in sorted(QK_LDS.items())] + [('o', p, c) for p, c in WO_LDS]
    reg_slots = [s for s in slots if s not in lds_slots]
    assert len(reg_slots) == 27 and len(lds_slots) == 9
    loc = {}
    for n, s in enumerate(reg_slots):
        for z in range(2):
            f = 2 * n + z
            loc[(s, z)] = ('a', 8 * f) if f < 32 else ('v', 80 + 8 * (f - 32))
    for n, s in enumerate(lds_slots):
        for z in range(2): loc[(s, z)] = ('lds', n * 4096 + z * 2048)
    return reg_slots, lds_slots, loc

REG_SLOTS, LDS_SLOTS, LOC = build_frag_map()

def frag_reg(s, z):
    t, r = LOC[(s, z)]
    assert t != 'lds'
    return vr(r, 8, t)

def actual_col(pos):
    c = pos // 64; pw = (pos % 64) // 16; jp = c // 3; tg = c % 3
    return (9 * pw + 3 * (2 - jp) + tg) * 16 + pos % 16
NCOPY = 1
M_CSTR = 0x10000
def m_imm(c): return (c % 4) * 1024

def chain_prologue(a, P, hook=None, hook2=None):
    a('; ---- chain prologue: weights ----')
    a(f'v_and_b32 v4, 63, v0')
    a(f'v_lshlrev_b32 v{V_L16}, 4, v4')
    a('v_lshrrev_b32 v8, 2, v4\nv_and_b32 v9, 3, v4\nv_lshlrev_b32 v9, 4, v9')
    a('v_lshl_add_u32 v5, v8, 13, v9')
    a('v_mul_u32_u24 v6, 1152, v8\nv_add_u32 v6, v6, v9')
    a('v_lshrrev_b32 v8, 1, v4\nv_and_b32 v9, 1, v4\nv_lshlrev_b32 v9, 4, v9')
    a('v_mul_u32_u24 v7, 1152, v8\nv_add_u32 v7, v7, v9')
    a('v_lshrrev_b32 v8, 5, v4\nv_lshlrev_b32 v10, 4, v8')
    a('v_bfe_u32 v8, v4, 3, 1\nv_lshl_add_u32 v10, v8, 3, v10')
    a('v_bfe_u32 v8, v4, 4, 1\nv_lshl_add_u32 v10, v8, 2, v10')
    a('v_bfe_u32 v8, v4, 2, 1\nv_add_u32 v10, v10, v8')
    a('v_and_b32 v9, 3, v4\nv_lshlrev_b32 v9, 3, v9')
    a('v_lshl_add_u32 v11, v10, 6, v9')
    a('v_lshl_add_u32 v12, v10, 5, v9')
    a(f's_mul_i32 s{S_T0}, s{S_WV}, 36864\ns_add_u32 s{S_T0}, s{S_T0}, {L_W}')
    a(f's_lshl_b32 s{S_T1}, s{S_WV}, 12')
    a(f'v_add_u32 v13, s{S_T0}, v11\nv_add_u32 v14, s{S_T1}, v11')
    a(f'v_add_u32 v15, s{S_T0}, v12\nv_add_u32 v16, s{S_T1}, v12')
    a(f'v_add_u32 v{V_WL}, s{S_T0}, v{V_L16}')
    a(f'v_bfe_u32 v8, v4, 1, 1\nv_mul_u32_u24 v8, 0xAAAA, v8\nv_add_u32 v{V_IDX}, 0x4444, v8')
    a(f's_lshl_b32 s{S_T2}, s{S_H}, 8\ns_lshl_b32 s{S_T3}, s{S_WV}, 6\ns_add_u32 s{S_T2}, s{S_T2}, s{S_T3}')
    a(f's_mul_i32 s{S_T3}, s{S_H}, 147456\ns_mul_i32 s{S_T4}, s{S_WV}, 288\ns_add_u32 s{S_T3}, s{S_T3}, s{S_T4}')
    a(f's_add_u32 s{S_ROT}, s{S_H}, s{S_WV}\ns_mul_i32 s{S_CNT}, s{S_ROT}, 43\ns_lshr_b32 s{S_CNT}, s{S_CNT}, 7\ns_mul_i32 s{S_CNT}, s{S_CNT}, 3\ns_sub_u32 s{S_ROT}, s{S_ROT}, s{S_CNT}')
    a(f's_mov_b32 s{S_ROT}, 0')
    order = LDS_SLOTS + REG_SLOTS
    D = 15
    vm = Cnt(a, 'vmcnt', 63); lg = Cnt(a, 'lgkmcnt', 15)
    cur_mat = [None]
    def set_srd(m):
        if cur_mat[0] == m: return
        cur_mat[0] = m
        p = P[{'q': 'Wq', 'k': 'Wk', 'v': 'Wv', 'o': 'Wo', 'o8': 'Wo'}[m]]
        a(f's_mov_b32 s{S_W}, s{p}\ns_mov_b32 s{S_W+1}, s{p+1}\ns_mov_b32 s{S_W+2}, 4718592\ns_mov_b32 s{S_W+3}, 0x20000')
    a(f'v_add_u32 v17, s{S_T1}, v{V_L16}')
    def issue(idx):
        s = order[idx]
        set_srd(s[0])
        for n in range(4):
            if s[0] in 'qkv' and s[0] != 'o':
                a(f's_add_u32 s{S_CNT}, s{S_T2}, {actual_col(s[1]*64 + 16*n)*8192}'); vo = 5
            elif s[0] == 'o':
                a(f's_add_u32 s{S_CNT}, s{S_T3}, {(s[2]*64 + 16*n)*1152 + s[1]*64}'); vo = 6
            else:
                a(f's_add_u32 s{S_CNT}, s{S_T3}, {(32*n)*1152 + 256}'); vo = 7
            if idx < 9:
                a(f's_add_u32 m0, s{S_T0}, {idx*4096 + n*1024}\ns_nop 0')
                a(f'buffer_load_dwordx4 v{vo}, s[{S_W}:{S_W+3}], s{S_CNT} offen lds')
            else:
                t, r = LOC[(s, 0)]
                a(f'buffer_load_dwordx4 {vr(r + 4*n, 4, t)}, v{vo}, s[{S_W}:{S_W+3}], s{S_CNT} offen')
            vm.issue(idx)
    def process(idx):
        s = order[idx]
        vm.wait(idx)
        is8 = s[0] == 'o8'
        inl = idx < 9
        base = (15 if is8 else 13) if inl else (16 if is8 else 14)
        boff = idx * 4096 if inl else 0
        if not inl:
            t, r = LOC[(s, 0)]
            for n in range(4): a(f'ds_write_b128 v17, {vr(r + 4*n, 4, t)} offset:{n*1024}')
            a('s_waitcnt lgkmcnt(0)')
        for z in range(2):
            t, r = LOC[(s, z)]
            if t == 'lds': t, r = 'v', 20 + 8 * z
            for m in range(4):
                if is8: off = boff + (z * 64 + (m >> 1) * 32 + (m & 1) * 2) * 32
                else: off = boff + ((m >> 1) * 32 + (m & 1) * 2) * 64 + z * 32
                a(f'ds_read_b64_tr_b16 {vr(r + 2*m, 2, t)}, v{base} offset:{off}')
        a('s_waitcnt lgkmcnt(0)')
        if inl:
            for q in range(4):
                a(f'ds_write_b128 v{V_WL}, {vr(20 + 4*q, 4)} offset:{boff + q*1024}')
            a('s_waitcnt lgkmcnt(0)')
    for idx in range(36 + D):
        if idx == D and hook: hook(vm)
        if idx == 37 and hook2: hook2(vm)
        if idx >= D: process(idx - D)
        if idx < 36: issue(idx)

def lds_frag_read(a, lg, s, z, dst, tag):
    t, off = LOC[(s, z)]
    assert t == 'lds'
    a(f'ds_read_b128 {vr(dst, 4)}, v{V_WL} offset:{off}')
    a(f'ds_read_b128 {vr(dst+4, 4)}, v{V_WL} offset:{off+1024}')
    lg.issue(tag, 2)

def timeout(a, lbl_ok_branch=None):
    a(f's_add_u32 s{S_CNT}, s{S_CNT}, 1')
    a(f's_cmp_gt_u32 s{S_CNT}, 0x40000')
    a(f's_cselect_b32 s{S_ABORT}, 1, s{S_ABORT}')

def emit_vma(a, dst, tmp):
    a(f'v_bfe_u32 v{tmp}, v{V_L16}, 6, 2')
    a(f'v_lshlrev_b32 v{dst}, 8, v{tmp}')
    a(f'v_lshrrev_b32 v{tmp}, 8, v{V_L16}')
    a(f'v_lshl_add_u32 v{dst}, v{tmp}, 6, v{dst}')
    a(f'v_bfe_u32 v{tmp}, v{V_L16}, 4, 1')
    a(f'v_lshl_add_u32 v{dst}, v{tmp}, 5, v{dst}')
    a(f'v_bfe_u32 v{tmp}, v{V_L16}, 5, 1')
    a(f'v_lshl_add_u32 v{dst}, v{tmp}, 4, v{dst}')

def R(i): return 4 + 4 * i
SLOT = {0: 0, 1: 1, 2: 2, 3: 3, 4: 4, 5: 5, 6: 6, 7: 0, 8: 1}
def AR(c): return R(SLOT[c])

def zero(a, regs):
    regs = sorted(regs); i = 0
    while i < len(regs):
        r = regs[i]
        if r % 2 == 0 and i + 1 < len(regs) and regs[i+1] == r + 1:
            a(f'v_mov_b64 v[{r}:{r+1}], 0'); i += 2
        else:
            a(f'v_mov_b32 v{r}, 0'); i += 1

def chain_loop(a, cfg, sfx, stf):
    NFULL = 4; NP = cfg.get('NP', 3)
    assert 2 <= NP <= 6
    D1 = cfg.get('D1', 0); D2 = cfg.get('D2', 0); D2R = cfg.get('D2R', 0)
    dbg = cfg.get('dbg', False)
    SRD = f's[{S_WS}:{S_WS+3}]'
    vm = Cnt(a, 'vmcnt', 63); lg = Cnt(a, 'lgkmcnt', 15)
    smap = cfg.get('smap', {str(k): k for k in range(8)})
    def stamp(k):
        if dbg and str(k) in smap:
            q = smap[str(k)]
            a(f'{"s_memrealtime" if cfg.get("rt") else "s_memtime"} s[{60+2*q}:{61+2*q}]')
    def smf(d, aa, b): a(f'v_smfmac_f32_16x16x64_bf16 {vr(d,4)}, {vr(aa,4)}, {b}, v{V_IDX}')
    def delay(n):
        if cfg.get('SLEEP', 1):
            if n: a(f's_sleep {n}')
            return
        while n > 0:
            k = min(n, 16); a(f's_nop {k-1}'); n -= k
    def mf(d, x, y, cinit):
        c = vr(d, 4) if not cinit else '0'
        a(f'v_mfma_f32_16x16x32_bf16 {vr(d,4)}, {vr(x,4)}, {vr(y,4)}, {c}')
    L = lambda t: [x for x in t.split('\n') if x.strip()]
    VX0 = 32; VX1 = 36

    a.label(f'STEP{sfx}')
    lg.reset(['T'] * 4)
    a(f's_add_u32 s{S_MC1}, s{S_MC}, 4096\ns_add_u32 s{S_MC2}, s{S_MC}, 8192')
    a(f's_mov_b32 s{S_CNT}, 0')
    def aoff(i): return m_imm(i)
    def msr(i): return (S_MC, S_MC1, S_MC2)[i // 4]
    def ldA(i, reg=None):
        a(f'buffer_load_dwordx4 {vr(AR(i) if reg is None else reg,4)}, v{V_X}, {SRD}, s{msr(i)} offen offset:{aoff(i)} sc1'); vm.issue(('A', i))
    SH = cfg.get('SHARE', 1)
    L_ST = L_KXX - 0
    def st1():
        a(f's_add_u32 m0, s{S_W1536}, {L_ST}')
        a(f's_add_u32 s{S_T0}, s{S_MC}, s{S_W1536}')
        a(f'buffer_load_dwordx4 v{V_L16}, {SRD}, s{S_T0} offen offset:3072 sc1 lds' if False else f's_add_u32 s{S_T0}, s{S_T0}, 3072')
        a(f'buffer_load_dwordx4 v{V_L16}, {SRD}, s{S_T0} offen sc1 lds'); vm.issue('st')
    def st2():
        a(f's_mov_b64 exec, 0xffffffff')
        a(f'buffer_load_dwordx4 v{V_L16}, {SRD}, s{S_T0} offen offset:1024 sc1 lds'); vm.issue('st')
        a('s_mov_b64 exec, -1')
    CK = VX1 + 3
    PM = cfg.get('PM', 'np3')
    SPEC = cfg.get('SPECST', 0) and SH
    tmo = f"""s_add_u32 s{S_CNT}, s{S_CNT}, 1
s_cmp_gt_u32 s{S_CNT}, 0x40000
s_cselect_b32 s{S_ABORT}, 1, s{S_ABORT}
s_cmp_lg_u32 s{S_ABORT}, 0
s_cselect_b64 s[{S_T3}:{S_T4}], 0, -1"""
    a.label(f'POLLM0{sfx}')
    if PM == 'pipe1':
        ldA(0)
        delay(cfg.get('STG', 30))
        a.label(f'POLLM{sfx}')
        ldA(0, R(1))
        a(tmo)
        a('s_waitcnt vmcnt(1)')
        a(f'v_max_u32 v{CK}, v{R(0)+1}, v{R(0)+3}')
        a(f'v_cmp_eq_u32 vcc, -1, v{CK}')
        a(f's_and_b64 vcc, vcc, s[{S_T3}:{S_T4}]')
        a(f's_cbranch_vccz GOTM{sfx}')
        ldA(0)
        a('s_waitcnt vmcnt(1)')
        a(f'v_max_u32 v{CK}, v{R(1)+1}, v{R(1)+3}')
        a(f'v_cmp_eq_u32 vcc, -1, v{CK}')
        a(f's_cbranch_vccnz POLLM{sfx}')
        a(f'v_mov_b64 {vr(R(0),2)}, {vr(R(1),2)}\nv_mov_b64 {vr(R(0)+2,2)}, {vr(R(1)+2,2)}')
        a.label(f'GOTM{sfx}')
        vm.reset()
        ldA(1); ldA(2)
        NC = 1
    else:
        vm.reset()
        for i in range(3): ldA(i)
        if SPEC: st1(); st2()
        a(tmo)
        NC = cfg.get('NC', 3)
        for i in range(NC):
            vm.wait(('A', i))
            if i == 0: a(f'v_max_u32 v{CK}, v{AR(0)+1}, v{AR(0)+3}')
            else: a(f'v_max3_u32 v{CK}, v{CK}, v{AR(i)+1}, v{AR(i)+3}')
        a(f'v_cmp_eq_u32 vcc, -1, v{CK}')
        a(f's_and_b64 vcc, vcc, s[{S_T3}:{S_T4}]')
        a(f's_cbranch_vccnz POLLM0{sfx}')
    stamp(0)
    if dbg: a(f's_mov_b32 s52, s{S_CNT}')
    XB = R(2); TK = R(2) + 1
    fl = ['TBL']
    def bop(m, i, z):
        s = (m, i)
        if LOC[(s, z)][0] == 'lds': return vr(T0 if z == 0 else T1, 8)
        return frag_reg(s, z)
    lds_chunks = sorted(QK_LDS)
    def ldvx(q):
        a(f'buffer_load_dwordx4 {vr(VX0+4*q,4)}, v{V_L16}, {SRD}, s{S_VF} offen offset:{q*1024} sc1'); vm.issue('vx')
    def bar0():
        if SH: vm.wait('st')
        stamp(16)
        a('s_barrier')
        stamp(12)
    def pf1():
        a(f'v_lshlrev_b32 v{V_X}, 3, v{V_L16}')
        a(f's_mov_b32 m0, {L_QX}')
    def pf2():
        a(f's_mov_b64 exec, 0xffffffff')
        a(f'buffer_load_dword v{V_X}, {SRD}, s{S_PF} offen sc1 lds'); vm.issue('pf')
        a('s_mov_b64 exec, -1')
    def rdA(c):
        a(f'ds_read_b128 {vr(AR(c),4)}, v{V_X} offset:{L_ST + (c-3)*1024}'); lg.issue(('A', c))
    if SH:
        if SPEC:
            memq = {0: [lambda: ldvx(0), lambda: ldvx(1)],
                    1: [lambda: None] * cfg.get('B0P', 0) + [bar0, lambda: [rdA(c) for c in (3, 4, 5, 6)], lambda: rdA(7)],
                    2: [lambda: rdA(8)] + ([] if cfg.get('nopf') else [pf1, pf2])}
        else:
            memq = {0: [st1, st2, lambda: ldvx(0), lambda: ldvx(1)],
                    2: [bar0, lambda: [rdA(c) for c in (3, 4, 5, 6)], lambda: [rdA(7), rdA(8)]] + ([] if cfg.get('nopf') else [pf1, pf2])}
    else:
        memq = {0: [lambda: ldA(3), lambda: ldA(4), lambda: ldA(5), lambda: ldA(6), lambda: ldvx(0), lambda: ldvx(1)],
                1: [lambda: ldA(7)], 2: [lambda: ldA(8), bar0] + ([] if cfg.get('nopf') else [pf1, pf2])}
    first_ck = True
    for i in range(9):
        mem = list(memq.get(i, [])); pend = []
        if i >= NC:
            if SH and i >= 3: lg.wait(('A', i))
            else: vm.wait(('A', i))
        if NC <= i <= 2:
            pr = (S_CK4, S_CK) if i == 1 else (S_CK2, S_CK3)
            pend.append(f'v_cmp_eq_u32 s[{pr[0]}:{pr[0]+1}], -1, v{AR(i)+1}'); pend.append(f'v_cmp_eq_u32 s[{pr[1]}:{pr[1]+1}], -1, v{AR(i)+3}')
        if i >= 3:
            if first_ck: pend.append(f'v_max_u32 v{V_X}, v{AR(i)+1}, v{AR(i)+3}'); first_ck = False
            else: pend.append(f'v_max3_u32 v{V_X}, v{V_X}, v{AR(i)+1}, v{AR(i)+3}')
        mats = ['q', 'k'] + (['v'] if i < NFULL else [])
        if i in QK_LDS: mats = [m for m in mats if m != QK_LDS[i]] + [QK_LDS[i]]
        for m in mats:
            if i in QK_LDS and m == QK_LDS[i]: lg.wait('T')
            for z in range(2):
                smf(ACC[f'{m}{z}'], AR(i), bop(m, i, z))
                if pend: a(pend.pop(0))
                elif fl and i >= 5:
                    fl.pop(0); a(f'ds_read_b128 {vr(R(2),4)}, v{V_L16} offset:{L_TBL}'); lg.issue('tbl')
                if mem: mem.pop(0)()
        assert not mem and not pend
        if i in QK_LDS and i != lds_chunks[-1]:
            nx = lds_chunks[lds_chunks.index(i) + 1]
            lds_frag_read(a, lg, (QK_LDS[nx], nx), 0, T0, 'T'); lds_frag_read(a, lg, (QK_LDS[nx], nx), 1, T1, 'T')
    assert not fl, fl
    stamp(1)
    KX = {(0, 0): 64, (1, 0): 68, (0, 1): 72, (1, 1): 76, (0, 2): R(4), (1, 2): R(5), (0, 3): R(3), (1, 3): 64}
    def ldkx(t, ks):
        a(f'ds_read_b128 {vr(KX[(t, ks)],4)}, v{V_L16} offset:{L_KX + t*4096 + ks*1024}'); lg.issue(('kx', t, ks))
    vrem = [(i, z) for i in range(NFULL, 9) for z in range(2)]
    def vsm(n):
        for _ in range(n):
            if vrem:
                i, z = vrem.pop(0); smf(ACC[f'v{z}'], AR(i), bop('v', i, z))
    a(f'v_cmp_eq_u32 vcc, -1, v{V_X}')
    lg.wait('tbl')
    vsm(1)
    a(f'v_add_u32 v{XB}, s{S_W1K}, v{XB}')
    ldkx(0, 0); ldkx(1, 0); ldkx(0, 1); ldkx(1, 1)
    K0 = ACC['k0']; K1 = ACC['k1']; Q0 = ACC['q0']; Q1 = ACC['q1']
    a(f'v_pk_add_f32 {vr(K0,2)}, {vr(K0,2)}, {vr(K0+2,2)}')
    a(f'v_pk_add_f32 {vr(K1,2)}, {vr(K1,2)}, {vr(K1+2,2)}')
    a(f'v_cvt_pk_bf16_f32 v{K0}, v{K0}, v{K0+1}')
    a(f'v_cvt_pk_bf16_f32 v{K0+2}, v{K1}, v{K1+1}')
    a(f'v_pk_add_f32 {vr(Q0,2)}, {vr(Q0,2)}, {vr(Q0+2,2)}')
    a(f'v_pk_add_f32 {vr(Q1,2)}, {vr(Q1,2)}, {vr(Q1+2,2)}')
    a(f'v_cvt_pk_bf16_f32 v{K0+1}, v{Q0}, v{Q0+1}')
    a(f'v_cvt_pk_bf16_f32 v{K0+3}, v{Q1}, v{Q1+1}')
    a(f'ds_write2st64_b64 v{XB}, {vr(K0,2)}, {vr(K0+2,2)} offset0:{L_KXX//512} offset1:{L_KXX//512+1}'); lg.issue('xw')
    vsm(1)
    if NC == 1:
        for pr in (S_CK4, S_CK, S_CK2, S_CK3): a(f's_or_b64 vcc, vcc, s[{pr}:{pr+1}]')
    a(f's_and_b64 vcc, vcc, s[{S_T3}:{S_T4}]')
    if cfg.get('forceredo'): a(f's_and_b32 s{S_T0}, s{S_STEP}, 7\ns_cmp_eq_u32 s{S_T0}, s{S_WV}\ns_cselect_b64 vcc, -1, vcc')
    a(f's_cbranch_vccnz REDO{sfx}')
    a.label(f'REDOX{sfx}')
    vsm(1)
    a(f'v_lshrrev_b32 v{V_X}, 1, v{V_L16}')
    a(f'v_mov_b32 v{K1}, v{K0}\nv_mov_b32 v{K1+1}, v{K0+2}')
    vsm(1)
    if not cfg.get('nopub'):
        a(f'buffer_store_dwordx2 {vr(K1,2)}, v{V_X}, {SRD}, s{S_KM} offen sc1'); vm.issue('pub')
    ldkx(0, 2); ldkx(1, 2); ldkx(0, 3)
    vsm(cfg.get('VB', 2))
    stamp(17)
    lg.wait('xw')
    stamp(18)
    a('s_barrier')
    stamp(2)
    F = {0: 40, 1: 44, 2: 48, 3: 52}
    def ldf(ks):
        for hh in range(2):
            a(f'ds_read_b64_tr_b16 {vr(F[ks]+2*hh,2)}, v{TK} offset:{L_KXX + ks*1024 + hh*128}'); lg.issue(('f', ks))
    for ks in range(4): ldf(ks)
    vsm(len(vrem))
    stamp(3)
    SX0 = R(6); SX1 = R(0); SM = R(1)
    OW = 14; OW2 = 12; ORD = 15; ORD2 = 13; OT = V_X; OT2 = 62
    PX = 48; PMX = 52; PMY = 54
    f1 = L(f"""v_pk_add_f32 v[56:57], v[56:57], v[58:59]
v_pk_add_f32 v[60:61], v[60:61], v[62:63]
v_cvt_pk_bf16_f32 v56, v56, v57
v_cvt_pk_bf16_f32 v57, v60, v61""")
    f2 = L(f"""v_xor_b32 v{OW}, s{S_W64}, v{OW}
v_xor_b32 v{OW2}, 32, v{OW}
v_xor_b32 v{ORD2}, 128, v{ORD}""")
    def fill(lst, n):
        for _ in range(n):
            if lst: a(lst.pop(0))
    lg.wait(('f', 0))
    mf(SX0, KX[(0, 0)], F[0], True); mf(SX1, KX[(1, 0)], F[0], True)
    ldkx(1, 3)
    mf(SM, F[0], F[0], True)
    lg.wait(('f', 1))
    mf(SX0, KX[(0, 1)], F[1], False); mf(SX1, KX[(1, 1)], F[1], False); fill(f1, 2)
    mf(SM, F[1], F[1], False); fill(f1, 2)
    lg.wait(('f', 2))
    mf(SX0, KX[(0, 2)], F[2], False)
    if not cfg.get('nopub'):
        a(f'buffer_store_dwordx2 v[56:57], v{V_X}, {SRD}, s{S_KM} offen offset:512 sc1'); vm.issue('pub')
    mf(SX1, KX[(1, 2)], F[2], False); fill(f2, 2)
    mf(SM, F[2], F[2], False); fill(f2, 2)
    lg.wait(('f', 3))
    mf(SM, F[3], F[3], False); fill(f2, 2)
    mf(SX0, KX[(0, 3)], F[3], False); fill(f2, 2)
    lg.wait(('kx', 1, 3))
    mf(SX1, KX[(1, 3)], F[3], False)
    B0 = 48; B1 = 56; B2 = 64; B3 = 72
    stamp(4)
    MX = 58; M2 = 59; LS = 60; L2 = 61
    B4 = 40
    lds_frag_read(a, lg, ('o', 1, 1), 0, B4, ('w', 2))
    lds_frag_read(a, lg, ('o', 0, 1), 1, B3, ('w', 1))
    a(f'v_max3_f32 v{MX}, v{SM}, v{SM+1}, v{SX0}')
    a(f'v_max3_f32 v{MX}, v{MX}, v{SX0+1}, v{SX0+2}')
    a(f'v_mov_b32 v{PMX+1}, 0\nv_mov_b32 v{PMY}, 0')
    a(f'v_max3_f32 v{M2}, v{SX1}, v{SX1+1}, v{SX1+2}')
    a(f'v_max3_f32 v{MX}, v{MX}, v{SX0+3}, v{SX1+3}')
    a(f'v_max_f32 v{MX}, v{MX}, v{M2}')
    a(f'v_max_f32 v{M2}, v{MX}, v{M2}')
    a(f'v_mov_b64 {vr(R(3),2)}, s[{S_ONE}:{S_ONE+1}]\nv_mov_b64 {vr(R(3)+2,2)}, s[{S_ONE}:{S_ONE+1}]')
    a(f'v_permlane32_swap_b32 v{MX}, v{M2}')
    a(f'v_max_f32 v{MX}, v{MX}, v{M2}')
    a(f'v_max_f32 v{M2}, v{MX}, v{M2}')
    lds_frag_read(a, lg, ('o', 0, 1), 0, B2, ('w', 0))
    a(f'v_permlane16_swap_b32 v{MX}, v{M2}')
    a(f'v_max_f32 v{MX}, v{MX}, v{M2}')
    a(f'v_mul_f32 v{MX}, s{S_SC}, v{MX}')
    stamp(13)
    rs = (SX0, SX0+2, SX1, SX1+2)
    for r in rs + (SM,): a(f'v_pk_fma_f32 {vr(r,2)}, {vr(r,2)}, s[{S_SC}:{S_SC+1}], {vr(MX,2)} op_sel_hi:[1,1,0] neg_lo:[0,0,1] neg_hi:[0,0,1]')
    for k, r in enumerate(rs):
        a(f'v_exp_f32 v{r}, v{r}\nv_exp_f32 v{r+1}, v{r+1}')
        if k: a(f'v_cvt_pk_bf16_f32 v{PX+k-1}, v{rs[k-1]}, v{rs[k-1]+1}')
    a(f'v_exp_f32 v{SM}, v{SM}')
    a(f'v_cvt_pk_bf16_f32 v{PX+3}, v{rs[3]}, v{rs[3]+1}')
    a(f'v_exp_f32 v{SM+1}, v{SM+1}')
    OX = R(4); OY = R(5); ONE = R(3); LS = 60
    vm.wait('vx')
    mf(LS, ONE, PX, True)
    a(f'v_cvt_pk_bf16_f32 v{PMX}, v{SM}, v{SM+1}\nv_cvt_pk_bf16_f32 v{PMY+1}, v{SM}, v{SM+1}')
    mf(OX, VX0, PX, True)
    a(f'v_mfma_f32_16x16x16_bf16 {vr(LS,4)}, {vr(ONE,2)}, {vr(PMX,2)}, {vr(LS,4)}')
    mf(OY, VX1, PX, True)
    a(f'v_mfma_f32_16x16x16_bf16 {vr(OX,4)}, v[56:57], {vr(PMX,2)}, {vr(OX,4)}')
    a(f'v_mfma_f32_16x16x16_bf16 {vr(OY,4)}, v[56:57], {vr(PMY,2)}, {vr(OY,4)}')
    stamp(14)
    lds_frag_read(a, lg, ('o', 1, 1), 1, B0, ('w', 3))
    fill(f2, 99)
    zero(a, range(SX0, SX0 + 4))
    a(f'v_rcp_f32 v{LS}, v{LS}')
    zero(a, range(VX0, VX0 + 8))
    for o in (OX, OY):
        a(f'v_pk_mul_f32 {vr(o,2)}, {vr(o,2)}, {vr(LS,2)} op_sel_hi:[1,0]')
        a(f'v_pk_mul_f32 {vr(o+2,2)}, {vr(o+2,2)}, {vr(LS,2)} op_sel_hi:[1,0]')
        a(f'v_cvt_pk_bf16_f32 v{o}, v{o}, v{o+1}\nv_cvt_pk_bf16_f32 v{o+1}, v{o+2}, v{o+3}')
        if o == OX:
            a(f's_mov_b64 exec, s[{S_MK_KEY}:{S_MK_KEY+1}]')
            a(f'ds_write_b64 v{OW}, {vr(OX,2)} offset:{L_OX}'); lg.issue('ow')
    a(f'ds_write_b64 v{OW2}, {vr(OY,2)} offset:{L_OX}'); lg.issue('ow')
    a('s_mov_b64 exec, -1')
    stamp(15)
    WACC = 12
    zero(a, [12, 14] + list(range(16, 28)))
    lg.wait('ow')
    a('s_barrier')
    stamp(5)
    OA0 = 4; OA1 = 8
    a(f'ds_read_b128 {vr(OA0,4)}, v{ORD} offset:{L_OX}'); lg.issue('oa0')
    a(f'ds_read_b128 {vr(OA1,4)}, v{ORD2} offset:{L_OX}'); lg.issue('oa1')
    lds_frag_read(a, lg, ('o', 3, 1), 0, B1, ('w', 6))
    zero(a, [ORD, ORD2])
    def wacc(t): return WACC + 4 * t
    def post_tile(t):
        d = wacc(t); q = wacc(t - t % 3) + t % 3
        return [f'v_pk_add_f32 {vr(d,2)}, {vr(d,2)}, {vr(d+2,2)}', f'v_cvt_pk_bf16_f32 v{q}, v{d}, v{d+1}']
    def post_group(j):
        ops = post_tile(3*j) + [f'v_mov_b32 v{wacc(3*j)+3}, s{S_TAG}'] + post_tile(3*j+1) + post_tile(3*j+2)
        return ops + [('v', f'buffer_store_dwordx4 {vr(wacc(3*j),4)}, v{V_L16}, {SRD}, s{S_PST} offen offset:{j*1024} {stf}'.rstrip())]
    def wf(t, c):
        if t == 8: return frag_reg(('o8',), c)
        return frag_reg(('o', t // 2, c), t % 2)
    lbuf = {0: B2, 1: B3, 2: B4, 3: B0, 4: B2, 5: B3, 6: B1, 7: B0}
    reload_ = {0: 4, 1: 5, 3: 7}
    seq = [(0,0),(1,0),(2,0),(0,1),(1,1),(2,1), (3,0),(4,0),(5,0),(3,1),(4,1),(5,1), (6,0),(7,0),(8,0),(8,1),(6,1),(7,1)]
    fillers = {k: [] for k in range(40)}
    PL = cfg.get('PL', 2)
    for j_, start in ((0, 8), (1, 14)):
        k = start; cnt = 0
        for op in post_group(j_):
            fillers[k].append(op); cnt += 1
            if cnt % PL == 0: k += 1
    for k_, r_ in enumerate(range(40, 48, 2)): fillers[6 + k_ // 2].append(f'v_mov_b64 v[{r_}:{r_+1}], 0')
    lg.wait('oa0')
    stamp(8)
    for n_, (t, c) in enumerate(seq):
        if n_ == 3: lg.wait('oa1')
        if c == 1 and t != 8:
            lg.wait(('w', t)); b = vr(lbuf[t], 8)
        else: b = wf(t, c)
        smf(wacc(t), OA0 if c == 0 else OA1, b)
        if c == 1 and t in reload_: lds_frag_read(a, lg, ('o', reload_[t]//2, 1), reload_[t] % 2, lbuf[t], ('w', reload_[t]))
        for f in fillers[n_]:
            if isinstance(f, tuple): a(f[1]); vm.issue('pst')
            else: a(f)
    stamp(9)
    for k in range(18, 40):
        for f in fillers[k]:
            if isinstance(f, tuple): a(f[1]); vm.issue('pst')
            else: a(f)
    g2 = post_tile(8) + post_tile(6) + [f'v_mov_b32 v{wacc(6)+3}, s{S_TAG}'] + post_tile(7)
    a(g2[0]); a(g2[2]); a(g2[1]); a(g2[3]); a(g2[4]); a(g2[5]); a(g2[6])
    a(post_group(2)[-1][1]); vm.issue('pst')
    stamp(6)
    if not cfg.get('static'):
        a(f's_add_u32 s{S_VF}, s{S_VF}, {32*8192}\ns_add_u32 s{S_PF}, s{S_PF}, {32*8192}')
    a(f's_add_u32 s{S_KM}, s{S_KM}, {32*4096}\ns_xor_b32 s{S_PST}, s{S_PST}, s{S_PO}')
    a(f's_add_u32 s{S_STEP}, s{S_STEP}, 1')
    a(f's_and_b32 s{S_T0}, s{S_STEP}, 3\ns_lshl_b32 s{S_TAG}, s{S_T0}, 7\ns_add_u32 s{S_TAG}, s{S_TAG}, 0x3f80\ns_lshl_b32 s{S_TGN}, s{S_T0}, 23\ns_add_u32 s{S_TGN}, s{S_TGN}, 0x43000000')
    c0 = sorted(QK_LDS)[0]
    SEL = 36; RACC = 72; RL = 76; RO = 77; RT = 78; RT2 = 79; NEG = 4
    a(f's_bitcmp0_b32 s{S_RED}, 0\ns_cbranch_scc1 NORED{sfx}')
    PP = 12288
    a(f'v_lshrrev_b32 v{RT}, 8, v{V_L16}\nv_mul_u32_u24 v{RL}, {PP}, v{RT}\nv_and_or_b32 v{RL}, v{V_L16}, s{S_F0}, v{RL}')
    a(f's_add_u32 s{S_T2}, s{S_PC}, s{S_RLD}')
    a(f's_mov_b32 s{S_CNT}, 0')
    delay(D1)
    if cfg.get('D1W1'):
        a(f's_cmp_eq_u32 s{S_WV}, 0\ns_cbranch_scc1 NOD1W{sfx}')
        delay(cfg['D1W1'])
        a.label(f'NOD1W{sfx}')
    stamp(10)
    def pl():
        for it in range(8):
            a(f'buffer_load_dwordx4 {vr(4+4*it,4)}, v{RL}, {SRD}, s{S_T2} offen sc1'); vm.issue(('r', it))
            a(f's_add_u32 s{S_T2}, s{S_T2}, {4*PP if it < 7 else -7*4*PP & 0xffffffff}')
    vm.reset(); pl()
    a(f'v_bfe_u32 v{RT2}, v{V_L16}, 4, {4 if NCOPY == 1 else 3}')
    a(f'v_and_b32 v{RO}, 1, v{RT2}\nv_lshlrev_b32 v{RO}, 4, v{RO}')
    a(f'v_mov_b32 v{RACC}, 0x3f80\nv_lshlrev_b32 v{RO}, v{RO}, v{RACC}')
    a(f'v_lshrrev_b32 v{RACC}, 1, v{RT2}')
    for r in range(4):
        a(f'v_cmp_eq_u32 vcc, {r}, v{RACC}')
        zero(a, range(40 + 4*r, 44 + 4*r))
        a(f'v_cndmask_b32 v{SEL+r}, 0, v{RO}, vcc')
    a(f'v_and_b32 v{RO}, 1, v{RT2}\nv_lshlrev_b32 v{RO}, 5, v{RO}\nv_lshl_add_u32 v{RO}, v{RACC}, 10, v{RO}')
    a(f'v_lshl_add_u32 v{RO}, v{RT}, 3, v{RO}')
    a(f'v_add_u32 v{RO}, s{S_RB}, v{RO}')
    if NCOPY > 1: a(f'v_bfe_u32 v{RACC}, v{V_L16}, 7, 1\nv_lshl_add_u32 v{RO}, v{RACC}, 16, v{RO}')
    zero(a, range(56, 64))
    emit_vma(a, V_X, RT2)
    lg.reset()
    lds_frag_read(a, lg, (QK_LDS[c0], c0), 0, T0, 'T')
    a.label(f'RWAIT{sfx}')
    for it in range(8):
        vm.wait(('r', it))
        if it == 0: stamp(11)
        mf(RACC, 4 + 4*it, SEL, it == 0)
    a(f's_add_u32 s{S_T0}, s{S_MN}, s{S_DUP}' if NCOPY == 1 else f's_sub_u32 s{S_T0}, s{S_MN}, s{S_DUP}')
    a(f'v_pk_add_f32 {vr(RT,2)}, {vr(RACC,2)}, {vr(RACC+2,2)}')
    a(f'v_cvt_pk_bf16_f32 v{RACC}, v{RACC}, v{RACC+1}\nv_cvt_pk_bf16_f32 v{RACC+1}, v{RACC+2}, v{RACC+3}')
    a(f'v_add_f32 v{RT}, v{RT}, v{RT2}')
    a(f'v_cmp_neq_f32 vcc, s{S_TAGS}, v{RT}')
    a(f's_mov_b64 exec, s[{S_MK_J8}:{S_MK_J8+1}]')
    a(f's_and_b64 vcc, vcc, s[{S_MK_N6}:{S_MK_N6+1}]')
    a(f's_cbranch_vccnz RCHK{sfx}')
    a.label(f'RGO{sfx}')
    if NCOPY == 1:
        a(f'buffer_store_dwordx2 {vr(RACC,2)}, v{RO}, {SRD}, s{S_MN} offen {stf}'.rstrip())
    else:
        for c in range(NCOPY // 2):
            a(f'buffer_store_dwordx2 {vr(RACC,2)}, v{RO}, {SRD}, s{S_T0} offen {stf}'.rstrip())
            if c < NCOPY // 2 - 1: a(f's_add_u32 s{S_T0}, s{S_T0}, {2*M_CSTR}')
    stamp(7)
    if dbg: a(f's_mov_b32 s53, s{S_CNT}')
    a(f'v_mov_b64 v[{NEG}:{NEG+1}], -1')
    if NCOPY == 1:
        a(f'buffer_store_dwordx2 {vr(NEG,2)}, v{RO}, {SRD}, s{S_MC} offen {stf}'.rstrip())
    else:
        a(f's_sub_u32 s{S_T0}, s{S_MC}, s{S_DUP}')
        for c in range(NCOPY // 2):
            a(f'buffer_store_dwordx2 {vr(NEG,2)}, v{RO}, {SRD}, s{S_T0} offen {stf}'.rstrip())
            if c < NCOPY // 2 - 1: a(f's_add_u32 s{S_T0}, s{S_T0}, {2*M_CSTR}')
    a('s_mov_b64 exec, -1')
    lds_frag_read(a, lg, (QK_LDS[c0], c0), 1, T1, 'T')
    delay(D2R)
    a(f's_branch NEXT{sfx}')
    a.label(f'NORED{sfx}')
    a(f's_cmp_lt_u32 s{S_WV}, 2\ns_cbranch_scc1 NODMA{sfx}')
    a(f's_mov_b32 m0, s{S_KXL}')
    for q in range(4): a(f'buffer_load_dwordx4 v{V_L16}, {SRD}, s{S_KF} offen offset:{q*1024} sc1 lds')
    a.label(f'NODMA{sfx}')
    zero(a, range(40, 64))
    lds_frag_read(a, lg, (QK_LDS[c0], c0), 0, T0, 'T'); lds_frag_read(a, lg, (QK_LDS[c0], c0), 1, T1, 'T')
    emit_vma(a, V_X, 4)
    delay(D2)
    a.label(f'NEXT{sfx}')
    if cfg.get('cprof'):
        a(f's_cmp_lg_u32 s{S_WV}, 3\ns_cbranch_scc1 NCP{sfx}')
        a('s_memrealtime s[60:61]\ns_memtime s[62:63]\ns_waitcnt lgkmcnt(0)')
        a(f's_lshl_b32 s{S_T0}, s{S_H}, 9\ns_lshl_b32 s{S_T1}, s{S_STEP}, 3\ns_add_u32 s{S_T0}, s{S_T0}, s{S_T1}\ns_add_u32 s{S_T0}, s{S_T0}, {WS_DBG + 0xA0000}')
        a('v_mov_b32 v4, s60\nv_mov_b32 v5, s62\nv_mov_b32 v6, 0\ns_mov_b64 exec, 1')
        a(f'buffer_store_dwordx2 v[4:5], v6, {SRD}, s{S_T0} offen\ns_mov_b64 exec, -1')
        a.label(f'NCP{sfx}')
    if dbg:
        a('s_waitcnt lgkmcnt(0)')
        a(f's_sub_u32 s{S_T0}, s{S_STEP}, 1\ns_lshl_b32 s{S_T0}, s{S_T0}, 7\ns_lshl_b32 s{S_T1}, s{S_H}, 2\ns_add_u32 s{S_T0}, s{S_T0}, s{S_T1}\ns_add_u32 s{S_T0}, s{S_T0}, s{S_WV}\ns_lshl_b32 s{S_T0}, s{S_T0}, 6\ns_add_u32 s{S_T0}, s{S_T0}, {WS_DBG}')
        for k in range(8): a(f'v_writelane_b32 v4, s{60+2*k}, {k}')
        a('v_writelane_b32 v4, s52, 8\nv_writelane_b32 v4, s53, 9\nv_writelane_b32 v4, s25, 10')
        a(f'v_lshrrev_b32 v5, 2, v{V_L16}')
        a('s_mov_b64 exec, 0x7ff')
        a(f'buffer_store_dword v4, v5, {SRD}, s{S_T0} offen')
        a('s_mov_b64 exec, -1')
    a(f's_xor_b32 s{S_PC}, s{S_PC}, s{S_PO}\ns_mov_b32 s{S_TAGS}, s{S_TGN}')
    if not cfg.get('static'): a(f's_add_u32 s{S_KF}, s{S_KF}, {32*8192}')
    a(f's_mov_b32 s{S_T0}, s{S_MC}\ns_mov_b32 s{S_MC}, s{S_MN}\ns_mov_b32 s{S_MN}, s{S_MP}\ns_mov_b32 s{S_MP}, s{S_T0}')
    if cfg.get('_kvwait'):
        a(f's_cmp_lg_u32 s{S_STEP}, 12\ns_cbranch_scc1 NKW{sfx}')
        cfg['_kvwait'](a)
        a.label(f'NKW{sfx}')
    a(f's_cmp_lt_u32 s{S_STEP}, 63\ns_cbranch_scc1 STEP{sfx}')
    FA = lambda i: 4 + 4 * i
    a(f's_add_u32 s{S_MC1}, s{S_MC}, 4096\ns_add_u32 s{S_MC2}, s{S_MC}, 8192')
    a(f's_mov_b32 s{S_CNT}, 0')
    a.label(f'FPOLL{sfx}')
    a(f'v_subrev_u32 v41, s{S_ROTB}, v{V_X}')
    for i in range(9): a(f'buffer_load_dwordx4 {vr(FA(i),4)}, v{V_X if i < 3 else 41}, {SRD}, s{msr(i)} offen offset:{aoff(i)} sc1')
    timeout(a)
    a('s_waitcnt vmcnt(0)')
    a(f'v_max_u32 v40, v{FA(0)+1}, v{FA(0)+3}')
    for i in range(1, 9): a(f'v_max3_u32 v40, v40, v{FA(i)+1}, v{FA(i)+3}')
    a('v_cmp_eq_u32 vcc, -1, v40')
    a(f's_cmp_lg_u32 s{S_ABORT}, 0\ns_cbranch_scc1 FGO{sfx}')
    a(f's_cbranch_vccnz FPOLL{sfx}')
    a.label(f'FGO{sfx}')
    klds = [i for i in lds_chunks if QK_LDS[i] == 'k']
    assert len(klds) == 2
    lds_frag_read(a, lg, ('k', klds[0]), 0, T0, 'T'); lds_frag_read(a, lg, ('k', klds[0]), 1, T1, 'T')
    lds_frag_read(a, lg, ('k', klds[1]), 0, 40, 'T')
    for i in range(9):
        if i in klds: continue
        for z in range(2): smf(ACC[f'k{z}'], FA(i), frag_reg(('k', i), z))
    a('s_waitcnt lgkmcnt(0)')
    smf(ACC['k0'], FA(klds[0]), vr(T0, 8)); smf(ACC['k1'], FA(klds[0]), vr(T1, 8)); smf(ACC['k0'], FA(klds[1]), vr(40, 8))
    lds_frag_read(a, lg, ('k', klds[1]), 1, T0, 'T')
    for i in range(9):
        for z in range(2): smf(ACC[f'v{z}'], FA(i), frag_reg(('v', i), z))
    a('s_waitcnt lgkmcnt(0)')
    smf(ACC['k1'], FA(klds[1]), vr(T0, 8))
    a(f'v_lshrrev_b32 v{V_X}, 1, v{V_L16}')
    for nm, d in (('v0', 42), ('v1', 43), ('k0', 40), ('k1', 41)):
        r = ACC[nm]
        a(f'v_pk_add_f32 {vr(r,2)}, {vr(r,2)}, {vr(r+2,2)}')
        a(f'v_cvt_pk_bf16_f32 v{d}, v{r}, v{r+1}')
        if nm == 'v1': a(f'buffer_store_dwordx2 v[42:43], v{V_X}, {SRD}, s{S_KM} offen offset:512 sc1')
    a(f'buffer_store_dwordx2 v[40:41], v{V_X}, {SRD}, s{S_KM} offen sc1')
    a('s_branch CHAIN_DONE')
    a.label(f'REDO{sfx}')
    if dbg: a('s_add_u32 s25, s25, 0x10000')
    a('s_waitcnt vmcnt(0) lgkmcnt(0)')
    a('s_nop 15')
    zero(a, range(40, 64))
    emit_vma(a, V_X, T0)
    a(f'v_subrev_u32 v{T0+1}, s{S_ROTB}, v{V_X}')
    done_v = [(i, z) for i in range(NFULL) for z in range(2)] + [(4, 0), (4, 1)]
    for c in range(9):
        l = f'RD{c}{sfx}'
        dst = AR(c) if c >= 5 else R(3)
        a.label(l)
        a(f'buffer_load_dwordx4 {vr(dst,4)}, v{V_X if c < 3 else T0+1}, {SRD}, s{msr(c)} offen offset:{aoff(c)} sc1')
        timeout(a)
        a(f's_cmp_lg_u32 s{S_ABORT}, 0\ns_cselect_b64 s[{S_T3}:{S_T4}], 0, -1')
        a('s_waitcnt vmcnt(0)')
        a(f'v_max_u32 v{T0+2}, v{dst+1}, v{dst+3}\nv_cmp_eq_u32 vcc, -1, v{T0+2}\ns_and_b64 vcc, vcc, s[{S_T3}:{S_T4}]')
        a(f's_cbranch_vccnz {l}')
        for m in 'qkv':
            for z in range(2):
                if m == 'v' and (c, z) not in done_v: continue
                if LOC[((m, c), z)][0] == 'lds':
                    lds_frag_read(a, lg, (m, c), z, T1, 'T'); a('s_waitcnt lgkmcnt(0)')
                    smf(ACC[f'{m}{z}'], dst, vr(T1, 8))
                else: smf(ACC[f'{m}{z}'], dst, frag_reg((m, c), z))
    a('s_nop 15')
    for ks in range(2):
        for t in range(2): a(f'ds_read_b128 {vr(KX[(t, ks)],4)}, v{V_L16} offset:{L_KX + t*4096 + ks*1024}')
    a(f'v_pk_add_f32 {vr(K0,2)}, {vr(K0,2)}, {vr(K0+2,2)}')
    a(f'v_pk_add_f32 {vr(K1,2)}, {vr(K1,2)}, {vr(K1+2,2)}')
    a(f'v_cvt_pk_bf16_f32 v{K0}, v{K0}, v{K0+1}')
    a(f'v_cvt_pk_bf16_f32 v{K0+2}, v{K1}, v{K1+1}')
    a(f'v_pk_add_f32 {vr(Q0,2)}, {vr(Q0,2)}, {vr(Q0+2,2)}')
    a(f'v_pk_add_f32 {vr(Q1,2)}, {vr(Q1,2)}, {vr(Q1+2,2)}')
    a(f'v_cvt_pk_bf16_f32 v{K0+1}, v{Q0}, v{Q0+1}')
    a(f'v_cvt_pk_bf16_f32 v{K0+3}, v{Q1}, v{Q1+1}')
    a(f'ds_write2st64_b64 v{XB}, {vr(K0,2)}, {vr(K0+2,2)} offset0:{L_KXX//512} offset1:{L_KXX//512+1}')
    a('s_waitcnt lgkmcnt(0)')
    a(f's_branch REDOX{sfx}')
    a.label(f'RCHK{sfx}')
    a('s_mov_b64 exec, -1')
    pl()
    timeout(a)
    a(f's_cmp_eq_u32 s{S_ABORT}, 0\ns_cbranch_scc1 RWAIT{sfx}')
    a('s_waitcnt vmcnt(0)')
    a(f's_mov_b64 exec, s[{S_MK_J8}:{S_MK_J8+1}]')
    a(f's_branch RGO{sfx}')

def next_prep(a, lg):
    for r in range(40, 64): a(f'v_mov_b32 v{r}, 0')
    c0 = sorted(QK_LDS)[0]
    lds_frag_read(a, lg, (QK_LDS[c0], c0), 0, T0, 'T'); lds_frag_read(a, lg, (QK_LDS[c0], c0), 1, T1, 'T')
    emit_vma(a, V_X, 4)

def chain_init(a, P, cfg):
    SRD = f's[{S_WS}:{S_WS+3}]'
    a(f's_mov_b32 s{S_STEP}, 0\ns_mov_b32 s{S_ABORT}, {1 if cfg.get("free") else 0}')
    a(f's_mov_b32 s{S_PC}, {WS_P}\ns_mov_b32 s{S_PO}, {WS_P ^ (WS_P + 0x80000)}')
    a(f's_mul_i32 s{S_T0}, s{S_H}, 12288\ns_add_u32 s{S_PST}, s{S_PC}, s{S_T0}\ns_mul_i32 s{S_T0}, s{S_WV}, 3072\ns_add_u32 s{S_PST}, s{S_PST}, s{S_T0}')
    a(f's_mov_b32 s{S_TAG}, 0x3f80\ns_mov_b32 s{S_TAGS}, 0x43000000\ns_lshl_b32 s{S_ROTB}, s{S_ROT}, 7')
    a(f's_mov_b32 s{S_MK_N6}, 0x00400040\ns_mov_b32 s{S_MK_N6+1}, 0x00400040')
    if cfg.get('free'): a(f's_mov_b64 s[{S_MK_N6}:{S_MK_N6+1}], 0')
    a(f's_mov_b32 s{S_MC}, {WS_M}\ns_mov_b32 s{S_MN}, {WS_M + M_STRIDE}\ns_mov_b32 s{S_MP}, {WS_M + 2*M_STRIDE}')
    a(f's_lshl_b32 s{S_T0}, s{S_H}, 13\ns_lshl_b32 s{S_T1}, s{S_WV}, 11\ns_add_u32 s{S_T1}, s{S_T0}, s{S_T1}')
    a(f's_add_u32 s{S_VF}, s{S_T1}, {WS_VF}')
    a(f's_and_b32 s{S_W2K}, s{S_WV}, 1\ns_lshl_b32 s{S_W2K}, s{S_W2K}, 12\ns_mov_b32 s{S_KXL}, s{S_W2K}')
    a(f's_add_u32 s{S_KF}, s{S_T0}, s{S_W2K}\ns_add_u32 s{S_KF}, s{S_KF}, {WS_KF + 32*8192}')
    a(f's_add_u32 s{S_PF}, s{S_T0}, {WS_VF + 32*8192}\ns_add_u32 s{S_T1}, s{S_T0}, {WS_KF + 2*32*8192}')
    a(f's_cmp_ge_u32 s{S_WV}, 2\ns_cselect_b32 s{S_PF}, s{S_T1}, s{S_PF}\ns_add_u32 s{S_PF}, s{S_PF}, s{S_W2K}\ns_lshl_b32 s{S_W2K}, s{S_WV}, 11')
    a(f's_mul_i32 s{S_W1536}, s{S_WV}, 1536\ns_mov_b32 s{S_ONE}, 0x3f803f80\ns_mov_b32 s{S_ONE+1}, 0x3f803f80')
    a(f's_lshl_b32 s{S_W1K}, s{S_WV}, 10\ns_lshl_b32 s{S_W64}, s{S_WV}, 6\ns_mov_b32 s{S_F0}, 0xf0')
    a(f's_lshl_b32 s{S_T0}, s{S_H}, 12\ns_lshl_b32 s{S_T1}, s{S_WV}, 10\ns_add_u32 s{S_T0}, s{S_T0}, s{S_T1}')
    a(f's_add_u32 s{S_KM}, s{S_T0}, {WS_KM}')
    a(f's_mov_b32 s{S_MK_KEY}, 0xcccccccc\ns_mov_b32 s{S_MK_KEY+1}, 0xcccccccc')
    a(f's_mov_b32 s{S_MK_J8}, 0x003f003f\ns_mov_b32 s{S_MK_J8+1}, 0x003f003f')
    import struct
    c = math.log2(math.e) / math.sqrt(128.0)
    a(f's_mov_b32 s{S_SC}, 0x{struct.unpack("<I", struct.pack("<f", c))[0]:08x}\ns_mov_b32 s{S_SC+1}, s{S_SC}')
    a(f's_mov_b32 s{S_RED}, 0')
    a(f's_lshr_b32 s{S_T0}, s{S_H}, 4\ns_and_b32 s{S_T1}, s{S_H}, 15')
    a(f's_cmp_eq_u32 s{S_WV}, 0\ns_cselect_b32 s{S_RED}, 1, 0')
    l = a.newlabel('RT')
    a(f's_cmp_lg_u32 s{S_WV}, 1\ns_cbranch_scc1 {l}\ns_cmp_ge_u32 s{S_H}, 16\ns_cbranch_scc1 {l}')
    a(f's_mov_b32 s{S_RED}, 1\ns_mov_b32 s{S_T0}, 2')
    a.label(l)
    a(f's_lshr_b32 s{S_T3}, s{S_T1}, 2\ns_and_b32 s{S_T4}, s{S_T1}, 3')
    a(f's_mul_i32 s{S_RLD}, s{S_T3}, 3072\ns_lshl_b32 s{S_T2}, s{S_T0}, 10\ns_add_u32 s{S_RLD}, s{S_RLD}, s{S_T2}\ns_lshl_b32 s{S_T2}, s{S_T4}, 8\ns_add_u32 s{S_RLD}, s{S_RLD}, s{S_T2}')
    a(f's_sub_u32 s{S_T0}, 2, s{S_T0}\ns_mul_i32 s{S_RB}, s{S_T0}, 3072\ns_lshl_b32 s{S_T2}, s{S_T4}, 8\ns_add_u32 s{S_RB}, s{S_RB}, s{S_T2}\ns_lshl_b32 s{S_T2}, s{S_T3}, 6\ns_add_u32 s{S_RB}, s{S_RB}, s{S_T2}\ns_mov_b32 s{S_DUP}, 0')
    if NCOPY > 1:
        a(f's_and_b32 s{S_DUP}, s{S_H}, {NCOPY-1}\ns_lshl_b32 s{S_DUP}, s{S_DUP}, 16')
        for r in (S_MC, S_MN, S_MP): a(f's_add_u32 s{r}, s{r}, s{S_DUP}')
        a(f's_mov_b32 s{S_MK_J8}, 0x3f3f3f3f\ns_mov_b32 s{S_MK_J8+1}, 0x3f3f3f3f')

def mem0_copy(a, P):
    a(f's_mov_b32 s8, s{P["mem0"]}\ns_mov_b32 s9, s{P["mem0"]+1}\ns_mov_b32 s10, 9216\ns_mov_b32 s11, 0x20000')
    a(f's_lshl_b32 s34, s{S_H}, 16\ns_add_u32 s34, s34, {WS_M}')
    for k in range(3):
        a(f'v_add_u32 v12, {k*256}, v0')
        a('v_mul_u32_u24 v13, 911, v12\nv_lshrrev_b32 v13, 16, v13')
        a('v_mul_u32_u24 v14, 72, v13\nv_sub_u32 v14, v12, v14')
        a('v_lshrrev_b32 v15, 1, v14')
        a('v_mul_u32_u24 v16, 57, v15\nv_lshrrev_b32 v16, 9, v16')
        a('v_mul_u32_u24 v17, 9, v16\nv_sub_u32 v17, v15, v17')
        a('v_mul_u32_u24 v18, 43, v17\nv_lshrrev_b32 v18, 7, v18')
        a('v_mul_u32_u24 v19, 3, v18\nv_sub_u32 v19, v17, v19')
        a('v_sub_u32 v18, 2, v18')
        a('v_lshrrev_b32 v20, 1, v13\nv_lshlrev_b32 v20, 8, v20\nv_lshl_add_u32 v20, v16, 6, v20')
        a('v_mul_u32_u24 v21, 3072, v18\nv_add_u32 v20, v20, v21\nv_lshl_add_u32 v20, v19, 10, v20')
        a('v_and_b32 v21, 1, v13\nv_lshl_add_u32 v20, v21, 5, v20\nv_and_b32 v21, 1, v14\nv_lshl_add_u32 v20, v21, 4, v20')
        a('v_lshlrev_b32 v21, 4, v12')
        a('v_cmp_gt_u32 vcc, 576, v12\ns_and_saveexec_b64 s[36:37], vcc')
        a('buffer_load_dwordx4 v[8:11], v21, s[8:11], 0 offen\ns_waitcnt vmcnt(0)')
        a('buffer_store_dwordx4 v[8:11], v20, s[4:7], s34 offen sc1')
        a('s_mov_b64 exec, s[36:37]')

L_TBL = L_QX + 1024
def build_table(a):
    L16 = V_L16
    a(f"""v_and_b32 v8, 0xf0, v{L16}
v_bfe_u32 v4, v{L16}, 8, 2
v_lshl_add_u32 v4, v4, 2, v8
v_lshlrev_b32 v4, 1, v4
v_lshrrev_b32 v8, 8, v{L16}
v_bfe_u32 v9, v{L16}, 6, 2
v_lshl_add_u32 v8, v8, 3, v9
v_bfe_u32 v5, v{L16}, 4, 2
v_lshlrev_b32 v5, 3, v5
v_lshl_add_u32 v5, v8, 5, v5
v_bfe_u32 v8, v{L16}, 6, 2
v_bfe_u32 v7, v{L16}, 4, 1
v_lshl_add_u32 v7, v8, 1, v7
v_lshlrev_b32 v9, 1, v7
v_lshrrev_b32 v8, 9, v{L16}
v_xor_b32 v6, v8, v9
v_lshlrev_b32 v6, 4, v6
v_lshl_add_u32 v6, v7, 8, v6
v_bfe_u32 v8, v{L16}, 8, 1
v_lshl_add_u32 v6, v8, 3, v6
v_lshrrev_b32 v8, 8, v{L16}
v_bfe_u32 v10, v{L16}, 5, 1
v_lshl_add_u32 v8, v8, 1, v10
v_xor_b32 v8, v8, v9
v_lshlrev_b32 v8, 4, v8
v_lshl_add_u32 v7, v7, 8, v8
ds_write_b128 v{L16}, v[4:7] offset:{L_TBL}
s_waitcnt lgkmcnt(0)""")
```

```python
import sys, json
from asmlib import *
from layout import *
import chain as C, gemm1 as G, ffn2 as F, ao as AO

KN = 'parallel_sum__memory_aug_recurrent_mem_tr__geglu_ffn__prompt_kernel'
HEADER = open('parallel_sum__memory_aug_recurrent_mem_tr__geglu_ffn__prompt.s.ref').read().split('; Override launch')[0]

def gen(cfg):
    cfg = dict(cfg); cfg['_prof'] = prof
    a = Asm()
    P = {}
    names = [('x',0),('mem0',8),('Wq',16),('Wk',24),('Wv',32),('Wo',40),('wg',64),('wu',72),('wd',80),('out',88),('dbg',96),('ws',104)]
    a('s_cmp_ge_u32 s2, 256\ns_cbranch_scc1 K_END')
    if cfg.get('perm'): a(f's_mul_i32 s2, s2, {cfg["perm"]}\ns_and_b32 s2, s2, 255')
    for i, (n, off) in enumerate(names):
        P[n] = 72 + 2*i
        a(f's_load_dwordx2 s[{P[n]}:{P[n]+1}], s[0:1], {off}')
    a('s_getreg_b32 s3, hwreg(HW_REG_XCC_ID)')
    a('v_lshrrev_b32 v4, 6, v0')
    a('v_readfirstlane_b32 s13, v4')
    a('s_waitcnt lgkmcnt(0)')
    a(f's_mov_b32 s4, s{P["ws"]}\ns_mov_b32 s5, s{P["ws"]+1}\ns_mov_b32 s6, {WS_SIZE}\ns_mov_b32 s7, 0x20000')
    if cfg.get('prof'): a('s_memrealtime s[100:101]')
    if cfg.get('fakexcc'): a('s_cmp_lt_u32 s2, 128\ns_cselect_b32 s24, 1, 0\ns_cmp_eq_u32 s3, 0\ns_cselect_b32 s3, s24, s3')
    if cfg.get('cpf', 0):
        a('s_getpc_b64 s[24:25]')
        a('s_and_b32 s24, s24, 0xffffff00')
        a('v_lshlrev_b32 v240, 7, v0')
        a(f's_mov_b32 s26, K_END-{KN}')
        a('global_load_dword v241, v240, s[24:25]\nv_add_u32 v240, 0x8000, v240')
        a('v_cmp_gt_u32 vcc, s26, v240\ns_and_saveexec_b64 s[28:29], vcc\ns_cbranch_execz CPF_E')
        a('global_load_dword v242, v240, s[24:25]')
        a.label('CPF_E')
        a('s_mov_b64 exec, s[28:29]')
    a('s_cmp_lt_u32 s3, 8\ns_cselect_b32 s54, s3, 7')
    a('s_lshr_b32 s55, s2, 3\ns_and_b32 s55, s55, 31')
    DBGP = f's[{P["dbg"]}:{P["dbg"]+1}]'
    a('s_cmp_lg_u32 s13, 0\ns_cbranch_scc1 CL_ISSUED')
    a('s_mov_b64 exec, 1')
    a('s_lshl_b32 s27, 1, s55\ns_lshl_b32 s29, s54, 2')
    a('v_mov_b32 v4, s29\nv_mov_b32 v5, s27')
    a(f'global_atomic_or v250, v4, v5, {DBGP} sc0')
    a('s_mov_b64 exec, -1')
    a.label('CL_ISSUED')
    a('s_and_b32 s24, s2, 6\ns_cmp_lg_u32 s24, 2\ns_cbranch_scc1 NO_LN')
    a(f's_lshr_b32 s{G.G_T4}, s2, 3\ns_lshl_b32 s{G.G_T4}, s{G.G_T4}, 1\ns_and_b32 s24, s2, 1\ns_add_u32 s{G.G_T4}, s{G.G_T4}, s24')
    G.layernorm(a, P)
    a.label('NO_LN')
    def resolve(sfx, ldsaddr, firstwait):
        a(f's_cmp_lg_u32 s13, 0\ns_cbranch_scc1 CL_WAIT{sfx}')
        a('s_mov_b32 s25, s55\ns_mov_b32 s26, s54\ns_mov_b32 s28, 0\ns_lshl_b32 s27, 1, s25')
        a('s_mov_b64 exec, 1')
        a(firstwait)
        a(f's_branch CL_CHK{sfx}')
        a.label(f'CL_TRY{sfx}')
        a('s_lshl_b32 s27, 1, s25\ns_lshl_b32 s29, s26, 2')
        a('v_mov_b32 v248, s29\nv_mov_b32 v249, s27')
        a(f'global_atomic_or v250, v248, v249, {DBGP} sc0')
        a('s_waitcnt vmcnt(0)')
        a.label(f'CL_CHK{sfx}')
        a('v_readfirstlane_b32 s30, v250')
        a(f's_and_b32 s31, s30, s27\ns_cbranch_scc0 CL_GOT{sfx}')
        a(f's_not_b32 s31, s30\ns_cbranch_scc0 CL_FULL{sfx}')
        a(f's_ff1_i32_b32 s25, s31\ns_branch CL_TRY{sfx}')
        a.label(f'CL_FULL{sfx}')
        a(f's_add_u32 s28, s28, 1\ns_sub_u32 s26, 8, s28\ns_cmp_gt_u32 s28, 8\ns_cbranch_scc1 CL_NONE{sfx}')
        a('s_mov_b32 s25, 0')
        a(f's_cmp_lg_u32 s26, 0\ns_cbranch_scc1 CL_TRY{sfx}')
        a(f'v_mov_b32 v248, {G.DBG_IMPURE}\nv_mov_b32 v249, 1')
        a(f'global_atomic_or v250, v248, v249, {DBGP} sc0\ns_waitcnt vmcnt(0)')
        a(f's_branch CL_TRY{sfx}')
        a.label(f'CL_NONE{sfx}')
        a('s_mov_b32 s26, 8\ns_mov_b32 s25, 0')
        a.label(f'CL_GOT{sfx}')
        a('s_lshl_b32 s26, s26, 5\ns_add_u32 s26, s26, s25')
        a(f'v_mov_b32 v248, {ldsaddr}\nv_mov_b32 v249, s26\nds_write_b32 v248, v249\ns_waitcnt lgkmcnt(0)')
        a('s_mov_b64 exec, -1')
        a.label(f'CL_WAIT{sfx}')
        a('s_barrier')
        a(f'v_mov_b32 v248, {ldsaddr}\nds_read_b32 v249, v248\ns_waitcnt lgkmcnt(0)')
        a('v_readfirstlane_b32 s26, v249')
        a('s_barrier')
    if cfg.get('spec', 1):
        a(f's_mov_b32 s52, 1\ns_mov_b32 s{C.S_H}, s55')
        a('s_cmp_eq_u32 s54, 0\ns_cbranch_scc1 R_CHAIN2')
    resolve('A', 0, 's_waitcnt vmcnt(0)')
    a.label('ROLE')
    a('s_lshr_b32 s24, s26, 5\ns_and_b32 s28, s26, 31')
    if cfg.get('prof'): a('s_mov_b32 s101, s26')
    a('s_cmp_ge_u32 s24, 8\ns_cbranch_scc1 K_END')
    a('s_cmp_eq_u32 s24, 0\ns_cbranch_scc1 R_CHAIN')
    if cfg.get('warm', 1):
        a('s_sub_u32 s25, s26, 32\ns_mul_i32 s27, s25, 1171\ns_lshr_b32 s27, s27, 16\ns_mul_i32 s29, s27, 56\ns_sub_u32 s25, s25, s29')
        a(f's_cmp_eq_u32 s27, 1\ns_cselect_b64 s[8:9], s[{P["Wk"]}:{P["Wk"]+1}], s[{P["Wq"]}:{P["Wq"]+1}]')
        a(f's_cmp_eq_u32 s27, 2\ns_cselect_b64 s[8:9], s[{P["Wv"]}:{P["Wv"]+1}], s[8:9]')
        a(f's_cmp_eq_u32 s27, 3\ns_cselect_b64 s[8:9], s[{P["Wo"]}:{P["Wo"]+1}], s[8:9]')
        a('s_mov_b32 s10, 4718592\ns_mov_b32 s11, 0x20000')
        a('s_lshl_b32 s25, s25, 15\nv_lshlrev_b32 v4, 7, v0')
        for k in range(3):
            a(f'buffer_load_dword v{200+k}, v4, s[8:11], s25 offen')
            a(f's_add_u32 s25, s25, {56*32768}')
    a('s_cmp_eq_u32 s24, 1\ns_cbranch_scc1 R_AO')
    a(f's_sub_u32 s{G.G_CG}, s24, 2\ns_lshl_b32 s{G.G_CG}, s{G.G_CG}, 2\ns_lshr_b32 s25, s28, 3\ns_add_u32 s{G.G_CG}, s{G.G_CG}, s25\ns_and_b32 s{G.G_RB}, s28, 7')
    G.gemm1(a, P, cfg)
    if cfg.get('prof'): prof(a, 1)
    a(f's_cmp_lt_u32 s{G.G_CG}, 12\ns_cbranch_scc1 R_FFN')
    a(f's_sub_u32 s24, s{G.G_CG}, 12\ns_lshl_b32 s24, s24, 3\ns_add_u32 s24, s24, s{G.G_RB}')
    a(f's_and_b32 s{AO.A_CH}, s24, 1\ns_bfe_u32 s{AO.A_HG}, s24, 0x30001\ns_lshr_b32 s{AO.A_SEG}, s24, 4\ns_add_u32 s{AO.A_SEG}, s{AO.A_SEG}, {2 + cfg.get("S0", 20)}')
    a('s_barrier\ns_branch AO_ENTRY2')
    a.label('R_FFN')
    F.ffn2(a, P, cfg)
    a('s_branch K_DONE')
    a.label('R_AO')
    a(f's_and_b32 s{AO.A_SEG}, s28, 1\ns_bfe_u32 s{AO.A_CH}, s28, 0x10001\ns_lshr_b32 s{AO.A_HG}, s28, 2')
    AO.ao(a, P, cfg)
    a('s_branch K_DONE')
    a.label('R_CHAIN')
    a(f's_mov_b32 s{C.S_H}, s28\ns_mov_b32 s52, 0')
    a.label('R_CHAIN2')
    def hook(vm):
        a('s_cmp_eq_u32 s52, 0\ns_cbranch_scc1 CH_OK')
        resolve('B', 0, 's_waitcnt vmcnt(60)')
        if cfg.get('prof'): a('s_mov_b32 s101, s26')
        a(f's_cmp_eq_u32 s26, s{C.S_H}\ns_cbranch_scc1 CH_OK')
        a('s_waitcnt vmcnt(0)\ns_barrier')
        a('s_lshl_b32 s24, s13, 6\nv_lshrrev_b32 v0, 4, v0\nv_or_b32 v0, s24, v0')
        a('s_branch ROLE')
        a.label('CH_OK')
        a(f's_lshl_b32 s24, s13, 10\nv_add_u32 v40, s24, v{C.V_L16}')
        for r in range(4): a(f'v_mov_b32 v{44+r}, 0')
        a(f's_mul_i32 s25, s{C.S_H}, 12288')
        for b in range(2):
            a(f's_add_u32 s24, s25, {WS_P + b*0x80000}')
            for k in range(3):
                a('buffer_store_dwordx4 v[44:47], v40, s[4:7], s24 offen sc1'); vm.issue('x')
                a('s_add_u32 s24, s24, 4096')
        for r in range(4): a(f'v_mov_b32 v{48+r}, -1')
        a(f's_sub_u32 s24, s{C.S_H}, 1\ns_cmp_gt_u32 s24, 1\ns_cbranch_scc1 NOM')
        a(f's_mul_i32 s24, s{C.S_H}, {M_STRIDE}\ns_add_u32 s24, s24, {WS_M}')
        for k in range(3):
            a('buffer_store_dwordx4 v[48:51], v40, s[4:7], s24 offen sc1')
            a('s_add_u32 s24, s24, 4096')
        a.label('NOM')
    def hook2(vm):
        if cfg.get('pmw', 1):
            a(f'v_lshlrev_b32 v41, 3, v{C.V_L16}')
            a(f's_mul_i32 s24, s{C.S_H}, 12288\ns_and_b32 s25, s13, 1\ns_lshl_b32 s25, s25, 19\ns_add_u32 s24, s24, s25\ns_lshr_b32 s25, s13, 1\ns_lshl_b32 s25, s25, 13\ns_add_u32 s24, s24, s25\ns_add_u32 s24, s24, {WS_P}')
            a('buffer_load_dword v42, v41, s[4:7], s24 offen sc1'); vm.issue('x')
            a(f's_lshl_b32 s24, s13, 13\ns_add_u32 s24, s24, {WS_M + M_STRIDE}')
            a('buffer_load_dword v43, v41, s[4:7], s24 offen sc1'); vm.issue('x')
    C.chain_prologue(a, P, hook, hook2)
    a(f's_cmp_lg_u32 s{C.S_H}, 0\ns_cbranch_scc1 NOM0')
    a(f'v_mov_b32 v22, v0\ns_lshl_b32 s24, s13, 6\nv_lshrrev_b32 v0, 4, v0\nv_or_b32 v0, s24, v0')
    C.mem0_copy(a, P)
    a('v_mov_b32 v0, v22')
    a.label('NOM0')
    C.chain_init(a, P, cfg)
    if cfg.get('prof'): prof(a, 4)
    a('s_waitcnt vmcnt(0)\ns_barrier')
    G.signal(a, P, G.DBG_CHAIN, None)
    W = lambda off, tgt: G.wait_flag(a, P, off, None, tgt, sleep=2, cnt=C.S_CNT)
    G.wait_flag(a, P, 0, None, 32, sleep=2, cnt=C.S_CNT, multi=(G.DBG_CHAIN, 2))
    G.wait_flag(a, P, 0, None, G.KVT_LO, sleep=2, cnt=C.S_CNT, multi=(G.DBG_KV, 2))
    a(f's_sub_u32 s34, s{C.S_KF}, {32*8192}\ns_mov_b32 m0, s{C.S_KXL}')
    for q in range(4): a(f'buffer_load_dwordx4 v{C.V_L16}, s[4:7], s34 offen offset:{q*1024} sc1 lds')
    a(f'v_mov_b32 v4, {G.DBG_IMPURE}')
    a(f'global_load_dword v5, v4, s[{P["dbg"]}:{P["dbg"]+1}] sc1')
    if cfg.get('pmw', 1):
        a(f'v_lshlrev_b32 v6, 3, v{C.V_L16}\ns_mov_b32 m0, {L_QX}')
        a(f's_sub_u32 s34, s{C.S_PF}, {32*8192}\ns_mov_b64 exec, 0xffffffff')
        a('buffer_load_dword v6, s[4:7], s34 offen sc1 lds')
        a('s_mov_b64 exec, -1')
        a('s_waitcnt vmcnt(1)\ns_barrier')
    else: a('s_waitcnt vmcnt(0)\ns_barrier')
    a('v_readfirstlane_b32 s34, v5')
    if cfg.get('prof'): prof(a, 2)
    lg = C.Cnt(a, 'lgkmcnt', 15)
    C.build_table(a)
    C.next_prep(a, lg)
    cfg['_kvwait'] = lambda a: G.wait_flag(a, P, 0, None, 24, sleep=2, cnt=C.S_CNT, multi=(G.DBG_KV + 8, 6))
    if cfg.get('forceslow'): a('s_mov_b32 s34, 1')
    a('s_cmp_lg_u32 s34, 0\ns_cbranch_scc1 STEPS')
    C.chain_loop(a, cfg, 'F', '')
    C.chain_loop(a, cfg, 'S', 'sc1')
    a.label('CHAIN_DONE')
    a.label('K_DONE')
    a('s_waitcnt vmcnt(0) lgkmcnt(0)')
    if cfg.get('prof'): prof(a, 3)
    a.label('K_END')
    a('s_endpgm')
    body, n = a.finalize()
    head = HEADER + f'''; @launch grid=(256,1,1) block=(256,1,1) lds=163840
.amdgcn_target "amdgcn-amd-amdhsa--gfx950"
.text
.globl {KN}
.p2align 8
.type {KN},@function
{KN}:
'''
    tail = f'''.section .rodata,"a"
.p2align 6
.amdhsa_kernel {KN}
  .amdhsa_next_free_vgpr 512
  .amdhsa_next_free_sgpr 102
  .amdhsa_accum_offset 256
  .amdhsa_group_segment_fixed_size 0
  .amdhsa_kernarg_size 112
  .amdhsa_user_sgpr_count 2
  .amdhsa_user_sgpr_kernarg_segment_ptr 1
  .amdhsa_system_sgpr_workgroup_id_x 1
.end_amdhsa_kernel
'''
    return head + body + tail, n

def prof(a, k):
    l = a.newlabel('PR')
    a(f's_cmp_lg_u32 s13, 0\ns_cbranch_scc1 {l}')
    a('s_memrealtime s[98:99]\ns_waitcnt lgkmcnt(0)')
    a(f's_sub_u32 s98, s98, s100\ns_lshl_b32 s99, s2, 6\ns_add_u32 s99, s99, {WS_DBG + 0x80000 + k*8}')
    a('s_mov_b64 exec, 1')
    a('v_mov_b32 v14, s98\nv_mov_b32 v15, s101\nv_mov_b32 v13, 0')
    a('buffer_store_dwordx2 v[14:15], v13, s[4:7], s99 offen')
    a('s_mov_b64 exec, -1')
    a.label(l)

if __name__ == '__main__':
    cfg = json.loads(sys.argv[1]) if len(sys.argv) > 1 else dict(D1=110, D2=310)
    src, n = gen(cfg)
    out = sys.argv[2] if len(sys.argv) > 2 else 'all.s'
    open(out, 'w').write(src)
    print(n, 'instructions', len(src), 'bytes')
```

```python
from asmlib import *
from layout import *
from gemm1 import signal, wait_flag, f32bits, DBG_Q, DBG_KV, DBG_AO, DBG_AOINIT, G_T5, KVT_LO, DBG_CHAIN
import math

A_HG = 12; A_WV = 13; A_CH = 14; A_SEG = 15
A_T0 = 24; A_T1 = 25; A_T2 = 26; A_T3 = 27; A_T4 = 28
A_QO = 16; A_KM = 17; A_AP = 18; A_OB = 19; A_CNT = 20; A_ABORT = 21; A_SC = 22
A_MK = 32
A_NINF = 40
V_LN = 1; V_L16 = 2; V_L8 = 3; V_XW = 4; V_TK = 5; V_AP = 6; V_OL = 7; V_PF = 184
def WF(t, hh, kk):
    n = ((t * 4 + hh) * 4 + kk) * 4
    return (n, 'a') if n < 256 else (192 + n - 256, 'v')
QF = 8; KF = 40; VF = 72; KM = 104; VM = 120; KR = 128
S = 136
PX = 156; PM = 164
TM = 172
ACC = 8
L_KC = 0
L_O = 16384
L_PF = 49152

def ao(a, P, cfg):
    a('; ---- AO ----')
    SRD = 's[4:7]'
    a(f'v_and_b32 v{V_LN}, 63, v0\nv_lshlrev_b32 v{V_L16}, 4, v{V_LN}\nv_lshlrev_b32 v{V_L8}, 3, v{V_LN}')
    a('v_lshlrev_b32 v8, 4, v0')
    for r in range(4): a(f'v_mov_b32 v{12+r}, -1')
    a(f's_lshl_b32 s{A_T0}, s{A_T4}, 18\ns_add_u32 s{A_T0}, s{A_T0}, {WS_KM}\ns_mov_b32 s{A_T1}, 0')
    a.label('AOF')
    a(f'buffer_store_dwordx4 v[12:15], v8, {SRD}, s{A_T0} offen sc1')
    a(f's_add_u32 s{A_T0}, s{A_T0}, 4096\ns_add_u32 s{A_T1}, s{A_T1}, 1\ns_cmp_lt_u32 s{A_T1}, 64\ns_cbranch_scc1 AOF')
    a('s_waitcnt vmcnt(0)\ns_barrier')
    signal(a, P, DBG_AOINIT, None, vtmp=(8, 9))
    a.label('AO_ENTRY2')
    wait_flag(a, P, 0, None, 32, vtmp=(8, 9), sleep=16, multi=(DBG_CHAIN, 2))
    a(f'v_and_b32 v{V_LN}, 63, v0\nv_lshlrev_b32 v{V_L16}, 4, v{V_LN}\nv_lshlrev_b32 v{V_L8}, 3, v{V_LN}')
    a(f's_mov_b32 s8, s{P["Wo"]}\ns_mov_b32 s9, s{P["Wo"]+1}\ns_mov_b32 s10, 4718592\ns_mov_b32 s11, 0x20000')
    a(f'v_lshrrev_b32 v8, 1, v{V_LN}\nv_and_b32 v9, 1, v{V_LN}\nv_lshlrev_b32 v9, 4, v9\nv_mul_u32_u24 v10, 1152, v8\nv_add_u32 v10, v10, v9')
    a(f'v_lshrrev_b32 v8, 4, v{V_LN}\nv_bfe_u32 v9, v{V_LN}, 2, 2\nv_lshl_add_u32 v8, v8, 2, v9\nv_lshlrev_b32 v8, 5, v8\nv_and_b32 v9, 3, v{V_LN}\nv_lshl_add_u32 v11, v9, 3, v8')
    a(f's_mul_i32 s{A_T0}, s{A_WV}, 40960\nv_add_u32 v11, s{A_T0}, v11')
    a(f's_mul_i32 s{A_T1}, s{A_HG}, {4*147456}\ns_mul_i32 s{A_T2}, s{A_CH}, 576\ns_add_u32 s{A_T1}, s{A_T1}, s{A_T2}\ns_lshl_b32 s{A_T2}, s{A_WV}, 5\ns_add_u32 s{A_T1}, s{A_T1}, s{A_T2}')
    a(f's_cmp_lt_u32 s{A_WV}, 2\ns_cselect_b32 s{A_T3}, {4*128}, {3*128}' if False else f's_mov_b32 s{A_T3}, {3*128}\ns_cmp_lt_u32 s{A_WV}, 2\ns_cselect_b32 s{A_T3}, {4*128}, s{A_T3}')
    strips = [(t, hh) for t in range(5) for hh in range(4)]
    D = 9
    def issue(idx):
        t, hh = strips[idx]; b = idx % 10
        for n in range(4):
            a(f's_add_u32 m0, s{A_T0}, {b*4096 + n*1024}')
            if t < 4: a(f's_add_u32 s{A_T2}, s{A_T1}, {hh*147456 + 32*n*1152 + t*128}')
            else: a(f's_add_u32 s{A_T2}, s{A_T1}, {hh*147456 + 32*n*1152}\ns_add_u32 s{A_T2}, s{A_T2}, s{A_T3}')
            a(f'buffer_load_dwordx4 v10, s[8:11], s{A_T2} offen lds')
    def process(idx):
        t, hh = strips[idx]; b = idx % 10
        a(f's_waitcnt vmcnt({4*min(D, len(strips)-1-idx)})')
        for kk in range(4):
            r, ty = WF(t, hh, kk)
            for hf in range(2):
                a(f'ds_read_b64_tr_b16 {vr(r+2*hf,2,ty)}, v11 offset:{b*4096 + (32*kk + 16*hf)*32}')
        a('s_waitcnt lgkmcnt(0)')
    for idx in range(len(strips) + D):
        if idx < len(strips): issue(idx)
        if idx >= D: process(idx - D)
    a('s_barrier')
    c = math.log2(math.e) / math.sqrt(128.0)
    a(f's_mov_b32 s{A_SC}, 0x{f32bits(c):08x}\ns_mov_b32 s{A_SC+1}, s{A_SC}\ns_mov_b32 s{A_NINF}, 0xff800000\ns_mov_b32 s{A_ABORT}, 0')
    a(f'v_lshrrev_b32 v8, 4, v{V_LN}\nv_lshlrev_b32 v8, 2, v8\nv_and_b32 v9, 15, v{V_LN}')
    for r in range(4):
        a(f'v_add_u32 v10, {r}, v8\nv_cmp_le_u32 s[{A_MK+2*r}:{A_MK+2*r+1}], v10, v9')
    a(f's_lshl_b32 s{A_T0}, s{A_WV}, 12')
    a(f'v_lshlrev_b32 v{V_XW}, 5, v9\nv_lshrrev_b32 v10, 4, v{V_LN}\nv_lshl_add_u32 v{V_XW}, v10, 3, v{V_XW}\nv_add_u32 v{V_XW}, s{A_T0}, v{V_XW}')
    a(f'v_bfe_u32 v8, v{V_LN}, 2, 2\nv_lshl_add_u32 v8, v10, 3, v8\nv_lshlrev_b32 v8, 5, v8\nv_and_b32 v11, 3, v{V_LN}\nv_lshl_add_u32 v{V_TK}, v11, 3, v8\nv_add_u32 v{V_TK}, s{A_T0}, v{V_TK}')
    a(f'v_mul_u32_u24 v{V_AP}, 2304, v9\nv_lshl_add_u32 v{V_AP}, v10, 4, v{V_AP}')
    S0 = cfg.get('S0', 20)
    A_HD = 45; A_RBC = 46
    a(f's_lshl_b32 s{A_HD}, s{A_HG}, 2\ns_add_u32 s{A_HD}, s{A_HD}, s{A_WV}\ns_mov_b32 s{A_RBC}, -1')
    def seg_offsets():
        a(f's_lshl_b32 s{A_T1}, s{A_SEG}, 5\ns_add_u32 s{A_T1}, s{A_T1}, s{A_HD}')
        a(f's_lshl_b32 s{A_KM}, s{A_T1}, 12\ns_add_u32 s{A_KM}, s{A_KM}, {WS_KM}')
        a(f's_lshl_b32 s{A_T1}, s{A_SEG}, 3\ns_add_u32 s{A_T1}, s{A_T1}, s{A_HG}\ns_mul_i32 s{A_AP}, s{A_T1}, 73728\ns_mul_i32 s{A_T1}, s{A_CH}, 1152\ns_add_u32 s{A_AP}, s{A_AP}, s{A_T1}\ns_lshl_b32 s{A_T1}, s{A_WV}, 6\ns_add_u32 s{A_AP}, s{A_AP}, s{A_T1}\ns_add_u32 s{A_AP}, s{A_AP}, {WS_AP}')
    def next_seg(r):
        a(f's_cmp_lt_u32 s{r}, {S0}\ns_cselect_b32 s{A_T0}, 2, 8\ns_add_u32 s{r}, s{r}, s{A_T0}')
    seg_offsets()
    a(f's_mov_b32 s{A_OB}, {L_O}')
    if cfg.get('prof'): cfg['_prof'](a, 4)
    A_PFB = 41; A_PSEG = 43; A_PQO = 44
    a(f's_mul_i32 s{A_PFB}, s{A_WV}, 24576\ns_add_u32 s{A_PFB}, s{A_PFB}, {L_PF}')
    a(f'v_add_u32 v{V_PF}, s{A_PFB}, v{V_L16}')
    def prefetch():
        l = a.newlabel('AOPF'); l2 = a.newlabel('AOPF')
        a(f's_cmp_ge_u32 s{A_PSEG}, 64\ns_cbranch_scc1 {l2}')
        a(f's_lshr_b32 s{A_T0}, s{A_PSEG}, 3')
        a(f's_cmp_eq_u32 s{A_T0}, s{A_RBC}\ns_cbranch_scc1 {l}')
        a(f's_mov_b32 s{A_RBC}, s{A_T0}')
        a(f's_cmp_lt_u32 s{A_T0}, 2\ns_cselect_b32 s{A_T1}, {KVT_LO}, 24')
        wait_flag(a, P, DBG_KV, A_T0, f's{A_T1}', vtmp=(TM, TM+1), sleep=8)
        wait_flag(a, P, DBG_Q, A_T0, 24, vtmp=(TM, TM+1), sleep=8)
        a.label(l)
        a(f's_lshl_b32 s{A_PQO}, s{A_PSEG}, 5\ns_add_u32 s{A_PQO}, s{A_PQO}, s{A_HD}\ns_lshl_b32 s{A_PQO}, s{A_PQO}, 13')
        for bi, base in enumerate((WS_QF, WS_KF, WS_VF)):
            for hf in range(2):
                a(f's_add_u32 s{A_T0}, s{A_PQO}, {base + hf*4096}')
                a(f's_add_u32 m0, s{A_PFB}, {bi*8192 + hf*4096}')
                for q in range(4): a(f'buffer_load_dwordx4 v{V_L16}, {SRD}, s{A_T0} offen offset:{q*1024} sc1 lds')
        a.label(l2)
        next_seg(A_PSEG)
    def prefetch_late():
        global TM
        old = TM; TM = 186
        prefetch()
        TM = old
    a(f's_mov_b32 s{A_PSEG}, s{A_SEG}')
    prefetch()
    a('s_waitcnt vmcnt(0)')
    if cfg.get('prof'): cfg['_prof'](a, 5)
    def mf(d, x, y, init): a(f'v_mfma_f32_16x16x32_bf16 {vr(d,4)}, {x}, {y}, {"0" if init else vr(d,4)}')
    a.label('AOL')
    for n in range(24):
        a(f'ds_read_b128 {vr(QF+4*n,4)}, v{V_PF} offset:{n*1024}')
        if n == 14: a('s_waitcnt lgkmcnt(7)')
    a('s_waitcnt lgkmcnt(0)')
    S00 = S; S0M = S+4; S10 = S+8; S11 = S+12; S1M = S+16
    for ks in range(4):
        mf(S00, vr(KF+4*ks,4), vr(QF+4*ks,4), ks == 0)
        mf(S10, vr(KF+4*ks,4), vr(QF+16+4*ks,4), ks == 0)
        mf(S11, vr(KF+16+4*ks,4), vr(QF+16+4*ks,4), ks == 0)
    a(f's_mov_b32 s{A_CNT}, 0')
    a.label('AOP')
    for pw in range(4):
        a(f'buffer_load_dwordx2 {vr(KR+2*pw,2)}, v{V_L8}, {SRD}, s{A_KM} offen offset:{pw*1024} sc1')
        a(f'buffer_load_dwordx2 {vr(VM+2*pw,2)}, v{V_L8}, {SRD}, s{A_KM} offen offset:{pw*1024+512} sc1')
    a(f's_add_u32 s{A_CNT}, s{A_CNT}, 1\ns_cmp_gt_u32 s{A_CNT}, 0x40000\ns_cselect_b32 s{A_ABORT}, 1, s{A_ABORT}')
    a('s_waitcnt vmcnt(0)')
    a(f'v_max3_u32 v{TM}, v{VM}, v{VM+1}, v{VM+2}')
    for r in range(VM+3, VM+15, 2): a(f'v_max3_u32 v{TM}, v{TM}, v{r}, v{r+1}')
    a(f'v_max_u32 v{TM}, v{TM}, v{VM+15}')
    a(f'v_cmp_eq_u32 vcc, -1, v{TM}')
    a(f's_cmp_lg_u32 s{A_ABORT}, 0\ns_cbranch_scc1 AOG')
    a('s_cbranch_vccz AOG')
    a(f's_sleep {cfg.get("ASLEEP", 4)}\ns_branch AOP')
    a.label('AOG')
    for pw in range(4):
        a(f'ds_write2st64_b32 v{V_XW}, v{KR+2*pw}, v{KR+2*pw+1} offset0:{pw*4} offset1:{pw*4+2}')
    a('s_waitcnt lgkmcnt(0)')
    for ks in range(4):
        for hh in range(2): a(f'ds_read_b64_tr_b16 {vr(KM+4*ks+2*hh,2)}, v{V_TK} offset:{ks*1024 + hh*128}')
    PFHERE = True
    for r in range(4):
        a(f'v_mov_b32 v{TM}, s{A_NINF}')
        a(f'v_cndmask_b32 v{S00+r}, v{TM}, v{S00+r}, s[{A_MK+2*r}:{A_MK+2*r+1}]')
        a(f'v_cndmask_b32 v{S11+r}, v{TM}, v{S11+r}, s[{A_MK+2*r}:{A_MK+2*r+1}]')
    for ks in range(4):
        a(f's_waitcnt lgkmcnt({6-2*ks})')
        mf(S0M, vr(KM+4*ks,4), vr(QF+4*ks,4), ks == 0)
        mf(S1M, vr(KM+4*ks,4), vr(QF+16+4*ks,4), ks == 0)
    LS = [TM+4, TM+6]
    for qt in range(2):
        xs = [S00] if qt == 0 else [S10, S11]
        sm = S0M if qt == 0 else S1M
        MX = TM; M2 = TM+1
        a(f'v_max3_f32 v{MX}, v{xs[0]}, v{xs[0]+1}, v{xs[0]+2}')
        a(f'v_max3_f32 v{M2}, v{xs[0]+3}, v{sm}, v{sm+1}')
        if qt:
            a(f'v_max3_f32 v{MX}, v{MX}, v{S11}, v{S11+1}')
            a(f'v_max3_f32 v{M2}, v{M2}, v{S11+2}, v{S11+3}')
        a(f'v_max_f32 v{MX}, v{MX}, v{M2}\nv_max_f32 v{M2}, v{MX}, v{M2}')
        a(f'v_permlane32_swap_b32 v{MX}, v{M2}\nv_max_f32 v{MX}, v{MX}, v{M2}\nv_max_f32 v{M2}, v{MX}, v{M2}')
        a(f'v_permlane16_swap_b32 v{MX}, v{M2}\nv_max_f32 v{MX}, v{MX}, v{M2}')
        prs = [x + o for x in xs for o in (0, 2)] + [sm]
        for r in prs: a(f'v_pk_add_f32 {vr(r,2)}, {vr(r,2)}, {vr(MX,2)} op_sel_hi:[1,0] neg_lo:[0,1] neg_hi:[0,1]')
        for r in prs: a(f'v_exp_f32 v{r}, v{r}\nv_exp_f32 v{r+1}, v{r+1}')
        px = PX + 4*qt; pm = PM + 4*qt
        for k, r in enumerate(prs[:-1]): a(f'v_cvt_pk_bf16_f32 v{px+k}, v{r}, v{r+1}')
        if qt == 0: a(f'v_mov_b64 {vr(px+2,2)}, 0')
        a(f'v_cvt_pk_bf16_f32 v{pm}, v{sm}, v{sm+1}\nv_mov_b64 {vr(pm+1+0,1) if False else vr(pm+2,2)}, 0')
        a(f'v_mov_b32 v{pm+1}, 0\nv_cvt_pk_bf16_f32 v{pm+3}, v{sm}, v{sm+1}')
        l = LS[qt]
        a(f'v_pk_add_f32 {vr(l,2)}, {vr(prs[0],2)}, {vr(prs[1],2)}')
        for r in prs[2:]: a(f'v_pk_add_f32 {vr(l,2)}, {vr(l,2)}, {vr(r,2)}')
        a(f'v_add_f32 v{MX}, v{l}, v{l+1}\nv_add_f32 v{M2}, v{l}, v{l+1}')
        a(f'v_permlane32_swap_b32 v{MX}, v{M2}\nv_add_f32 v{l}, v{MX}, v{M2}\nv_add_f32 v{l+1}, v{MX}, v{M2}')
        a(f'v_permlane16_swap_b32 v{l}, v{l+1}\nv_add_f32 v{l}, v{l}, v{l+1}')
        a(f'v_rcp_f32 v{l}, v{l}')
    prefetch_late()
    O = 8
    for qt in range(2):
        for et in range(8):
            d = O + 32*qt + 4*et
            mf(d, vr(VF+4*et,4), vr(PX+4*qt,4), True)
        for et in range(8):
            d = O + 32*qt + 4*et
            a(f'v_mfma_f32_16x16x16_bf16 {vr(d,4)}, {vr(VM+2*(et//2),2)}, {vr(PM+4*qt+2*(et%2),2)}, {vr(d,4)}')
    a(f's_lshl_b32 s{A_T0}, s{A_WV}, 13\ns_add_u32 s{A_T0}, s{A_T0}, s{A_OB}\nv_add_u32 v{V_OL}, s{A_T0}, v{V_L16}')
    for qt in range(2):
        for kk in range(4):
            d = O + 32*qt + 8*kk
            for r in range(0, 8, 2): a(f'v_pk_mul_f32 {vr(d+r,2)}, {vr(d+r,2)}, {vr(LS[qt],2)} op_sel_hi:[1,0]')
            for r in range(4): a(f'v_cvt_pk_bf16_f32 v{d+r}, v{d+2*r}, v{d+2*r+1}')
            a(f'ds_write_b128 v{V_OL}, {vr(d,4)} offset:{(qt*4+kk)*1024}')
    a('s_waitcnt lgkmcnt(0)\ns_barrier')
    a(f'v_add_u32 v{V_OL}, s{A_OB}, v{V_L16}')
    BR = 48; NB = 8
    seq = [(hh, kk, qt) for hh in range(4) for kk in range(4) for qt in range(2)]
    def rd(n):
        hh, kk, qt = seq[n]
        a(f'ds_read_b128 {vr(BR+4*(n%NB),4)}, v{V_OL} offset:{hh*8192 + (qt*4+kk)*1024}')
    PD = NB - 2
    for n in range(PD): rd(n)
    for n, (hh, kk, qt) in enumerate(seq):
        if n + PD < len(seq): rd(n + PD)
        a(f's_waitcnt lgkmcnt({min(PD, len(seq)-1-n)})')
        for t in range(5):
            r, ty = WF(t, hh, kk)
            mf(ACC + 4*(2*t+qt), vr(r,4,ty), vr(BR+4*(n%NB),4), hh == 0 and kk == 0)
    a(f's_add_u32 s{A_T0}, s{A_AP}, {16*2304}')
    for t in range(4):
        for qt in range(2):
            a(f'buffer_store_dwordx4 {vr(ACC+4*(2*t+qt),4)}, v{V_AP}, {SRD}, s{A_AP if qt == 0 else A_T0} offen offset:{t*256} sc1')
    a(f's_cmp_ge_u32 s{A_WV}, 2\ns_cbranch_scc1 AON5')
    for qt in range(2):
        a(f'buffer_store_dwordx4 {vr(ACC+4*(8+qt),4)}, v{V_AP}, {SRD}, s{A_AP if qt == 0 else A_T0} offen offset:1024 sc1')
    a.label('AON5')
    a('s_waitcnt vmcnt(0)\ns_barrier')
    a(f's_lshl_b32 s{A_T0}, s{A_SEG}, 1\ns_add_u32 s{A_T0}, s{A_T0}, s{A_CH}\ns_lshr_b32 s{A_T1}, s{A_T0}, 3\ns_and_b32 s{A_T0}, s{A_T0}, 7\ns_lshl_b32 s{A_T0}, s{A_T0}, 2\ns_lshl_b32 s{A_T0}, 1, s{A_T0}')
    signal(a, P, DBG_AO, A_T1, val=(A_T0,), vtmp=(8, 9))
    next_seg(A_SEG); seg_offsets()
    a(f's_cmp_lt_u32 s{A_SEG}, 64\ns_cbranch_scc1 AOL')
```

```python
from asmlib import *
from layout import *
import math

class Cnt:
    def __init__(self, a, name, maxv):
        self.a = a; self.name = name; self.q = []; self.maxv = maxv
    def issue(self, tag, n=1):
        for _ in range(n): self.q.append(tag)
    def wait(self, tag):
        idx = max(i for i, t in enumerate(self.q) if t == tag) if tag in self.q else None
        if idx is None: return
        n = len(self.q) - 1 - idx
        assert n <= self.maxv, (self.name, n)
        self.a(f's_waitcnt {self.name}({n})')
        self.q = self.q[idx + 1:]
    def wait_all(self):
        self.a(f's_waitcnt {self.name}(0)'); self.q = []
    def reset(self, q=()): self.q = list(q)

S_WS = 4
S_W = 8
S_H = 12; S_WV = 13; S_STEP = 14; S_ABORT = 15
S_PC = 16; S_PST = 17; S_MC = 18; S_MN = 19; S_MP = 20
S_KF = 21; S_VF = 22; S_KM = 23; S_VM = 24
S_RED = 25; S_TASK = 26; S_CNT = 27
S_MK_KEY = 28; S_MK_J8 = 30
S_SC = 32
S_T0 = 34; S_T1 = 35; S_T3 = 36; S_T4 = 37; S_T2 = 43
S_RB = 38; S_RMA = 39; S_RIS8 = 40; S_RLD = 41; S_PO = 42
S_W512 = 44; S_W4 = 45; S_W2K = 46; S_F0 = 47; S_MK_N6 = 48; S_PF = 50; S_ROT = 51; S_TAG = 54; S_TAGS = 55; S_ROTB = 3; S_DUP = 24; S_CK = 56; S_CK2 = 96; S_CK3 = 98; S_MC1 = 39; S_MC2 = 40; S_W1536 = 26; S_KXL = 58; S_ONE = 8; S_TGN = 59; S_CK4 = 10; S_W1K = 44; S_W64 = 45

V_L16 = 0; V_IDX = 1; V_WL = 2; V_X = 3
def A(i): return 4 + 4 * i
ACC = {'q0': 40, 'q1': 44, 'k0': 48, 'k1': 52, 'v0': 56, 'v1': 60}
T0 = 64; T1 = 72

QK_LDS = {0: 'q', 2: 'k', 4: 'q', 6: 'k', 8: 'q'}
WO_LDS = [(0, 1), (1, 1), (2, 1), (3, 1)]

def build_frag_map():
    slots = []
    for m in 'qkv':
        for i in range(9): slots.append((m, i))
    for p in range(4):
        for c in range(2): slots.append(('o', p, c))
    slots.append(('o8',))
    lds_slots = [(m, i) for i, m in sorted(QK_LDS.items())] + [('o', p, c) for p, c in WO_LDS]
    reg_slots = [s for s in slots if s not in lds_slots]
    assert len(reg_slots) == 27 and len(lds_slots) == 9
    loc = {}
    for n, s in enumerate(reg_slots):
        for z in range(2):
            f = 2 * n + z
            loc[(s, z)] = ('a', 8 * f) if f < 32 else ('v', 80 + 8 * (f - 32))
    for n, s in enumerate(lds_slots):
        for z in range(2): loc[(s, z)] = ('lds', n * 4096 + z * 2048)
    return reg_slots, lds_slots, loc

REG_SLOTS, LDS_SLOTS, LOC = build_frag_map()

def frag_reg(s, z):
    t, r = LOC[(s, z)]
    assert t != 'lds'
    return vr(r, 8, t)

def actual_col(pos):
    c = pos // 64; pw = (pos % 64) // 16; jp = c // 3; tg = c % 3
    return (9 * pw + 3 * (2 - jp) + tg) * 16 + pos % 16
NCOPY = 1
M_CSTR = 0x10000
def m_imm(c): return (c % 4) * 1024

def chain_prologue(a, P, hook=None, hook2=None):
    a('; ---- chain prologue: weights ----')
    a(f'v_and_b32 v4, 63, v0')
    a(f'v_lshlrev_b32 v{V_L16}, 4, v4')
    a('v_lshrrev_b32 v8, 2, v4\nv_and_b32 v9, 3, v4\nv_lshlrev_b32 v9, 4, v9')
    a('v_lshl_add_u32 v5, v8, 13, v9')
    a('v_mul_u32_u24 v6, 1152, v8\nv_add_u32 v6, v6, v9')
    a('v_lshrrev_b32 v8, 1, v4\nv_and_b32 v9, 1, v4\nv_lshlrev_b32 v9, 4, v9')
    a('v_mul_u32_u24 v7, 1152, v8\nv_add_u32 v7, v7, v9')
    a('v_lshrrev_b32 v8, 5, v4\nv_lshlrev_b32 v10, 4, v8')
    a('v_bfe_u32 v8, v4, 3, 1\nv_lshl_add_u32 v10, v8, 3, v10')
    a('v_bfe_u32 v8, v4, 4, 1\nv_lshl_add_u32 v10, v8, 2, v10')
    a('v_bfe_u32 v8, v4, 2, 1\nv_add_u32 v10, v10, v8')
    a('v_and_b32 v9, 3, v4\nv_lshlrev_b32 v9, 3, v9')
    a('v_lshl_add_u32 v11, v10, 6, v9')
    a('v_lshl_add_u32 v12, v10, 5, v9')
    a(f's_mul_i32 s{S_T0}, s{S_WV}, 36864\ns_add_u32 s{S_T0}, s{S_T0}, {L_W}')
    a(f's_lshl_b32 s{S_T1}, s{S_WV}, 12')
    a(f'v_add_u32 v13, s{S_T0}, v11\nv_add_u32 v14, s{S_T1}, v11')
    a(f'v_add_u32 v15, s{S_T0}, v12\nv_add_u32 v16, s{S_T1}, v12')
    a(f'v_add_u32 v{V_WL}, s{S_T0}, v{V_L16}')
    a(f'v_bfe_u32 v8, v4, 1, 1\nv_mul_u32_u24 v8, 0xAAAA, v8\nv_add_u32 v{V_IDX}, 0x4444, v8')
    a(f's_lshl_b32 s{S_T2}, s{S_H}, 8\ns_lshl_b32 s{S_T3}, s{S_WV}, 6\ns_add_u32 s{S_T2}, s{S_T2}, s{S_T3}')
    a(f's_mul_i32 s{S_T3}, s{S_H}, 147456\ns_mul_i32 s{S_T4}, s{S_WV}, 288\ns_add_u32 s{S_T3}, s{S_T3}, s{S_T4}')
    a(f's_add_u32 s{S_ROT}, s{S_H}, s{S_WV}\ns_mul_i32 s{S_CNT}, s{S_ROT}, 43\ns_lshr_b32 s{S_CNT}, s{S_CNT}, 7\ns_mul_i32 s{S_CNT}, s{S_CNT}, 3\ns_sub_u32 s{S_ROT}, s{S_ROT}, s{S_CNT}')
    a(f's_mov_b32 s{S_ROT}, 0')
    order = LDS_SLOTS + REG_SLOTS
    D = 15
    vm = Cnt(a, 'vmcnt', 63); lg = Cnt(a, 'lgkmcnt', 15)
    cur_mat = [None]
    def set_srd(m):
        if cur_mat[0] == m: return
        cur_mat[0] = m
        p = P[{'q': 'Wq', 'k': 'Wk', 'v': 'Wv', 'o': 'Wo', 'o8': 'Wo'}[m]]
        a(f's_mov_b32 s{S_W}, s{p}\ns_mov_b32 s{S_W+1}, s{p+1}\ns_mov_b32 s{S_W+2}, 4718592\ns_mov_b32 s{S_W+3}, 0x20000')
    a(f'v_add_u32 v17, s{S_T1}, v{V_L16}')
    def issue(idx):
        s = order[idx]
        set_srd(s[0])
        for n in range(4):
            if s[0] in 'qkv' and s[0] != 'o':
                a(f's_add_u32 s{S_CNT}, s{S_T2}, {actual_col(s[1]*64 + 16*n)*8192}'); vo = 5
            elif s[0] == 'o':
                a(f's_add_u32 s{S_CNT}, s{S_T3}, {(s[2]*64 + 16*n)*1152 + s[1]*64}'); vo = 6
            else:
                a(f's_add_u32 s{S_CNT}, s{S_T3}, {(32*n)*1152 + 256}'); vo = 7
            if idx < 9:
                a(f's_add_u32 m0, s{S_T0}, {idx*4096 + n*1024}\ns_nop 0')
                a(f'buffer_load_dwordx4 v{vo}, s[{S_W}:{S_W+3}], s{S_CNT} offen lds')
            else:
                t, r = LOC[(s, 0)]
                a(f'buffer_load_dwordx4 {vr(r + 4*n, 4, t)}, v{vo}, s[{S_W}:{S_W+3}], s{S_CNT} offen')
            vm.issue(idx)
    def process(idx):
        s = order[idx]
        vm.wait(idx)
        is8 = s[0] == 'o8'
        inl = idx < 9
        base = (15 if is8 else 13) if inl else (16 if is8 else 14)
        boff = idx * 4096 if inl else 0
        if not inl:
            t, r = LOC[(s, 0)]
            for n in range(4): a(f'ds_write_b128 v17, {vr(r + 4*n, 4, t)} offset:{n*1024}')
            a('s_waitcnt lgkmcnt(0)')
        for z in range(2):
            t, r = LOC[(s, z)]
            if t == 'lds': t, r = 'v', 20 + 8 * z
            for m in range(4):
                if is8: off = boff + (z * 64 + (m >> 1) * 32 + (m & 1) * 2) * 32
                else: off = boff + ((m >> 1) * 32 + (m & 1) * 2) * 64 + z * 32
                a(f'ds_read_b64_tr_b16 {vr(r + 2*m, 2, t)}, v{base} offset:{off}')
        a('s_waitcnt lgkmcnt(0)')
        if inl:
            for q in range(4):
                a(f'ds_write_b128 v{V_WL}, {vr(20 + 4*q, 4)} offset:{boff + q*1024}')
            a('s_waitcnt lgkmcnt(0)')
    for idx in range(36 + D):
        if idx == D and hook: hook(vm)
        if idx == 37 and hook2: hook2(vm)
        if idx >= D: process(idx - D)
        if idx < 36: issue(idx)

def lds_frag_read(a, lg, s, z, dst, tag):
    t, off = LOC[(s, z)]
    assert t == 'lds'
    a(f'ds_read_b128 {vr(dst, 4)}, v{V_WL} offset:{off}')
    a(f'ds_read_b128 {vr(dst+4, 4)}, v{V_WL} offset:{off+1024}')
    lg.issue(tag, 2)

def lds_half_read(a, lg, s, z, dst, tag, h):
    t, off = LOC[(s, z)]
    a(f'ds_read_b128 {vr(dst+4*h, 4)}, v{V_WL} offset:{off+1024*h}')
    lg.issue(tag, 1)

def timeout(a, lbl_ok_branch=None):
    a(f's_add_u32 s{S_CNT}, s{S_CNT}, 1')
    a(f's_cmp_gt_u32 s{S_CNT}, 0x40000')
    a(f's_cselect_b32 s{S_ABORT}, 1, s{S_ABORT}')

def emit_vma(a, dst, tmp):
    a(f'v_bfe_u32 v{tmp}, v{V_L16}, 6, 2')
    a(f'v_lshlrev_b32 v{dst}, 8, v{tmp}')
    a(f'v_lshrrev_b32 v{tmp}, 8, v{V_L16}')
    a(f'v_lshl_add_u32 v{dst}, v{tmp}, 6, v{dst}')
    a(f'v_bfe_u32 v{tmp}, v{V_L16}, 4, 1')
    a(f'v_lshl_add_u32 v{dst}, v{tmp}, 5, v{dst}')
    a(f'v_bfe_u32 v{tmp}, v{V_L16}, 5, 1')
    a(f'v_lshl_add_u32 v{dst}, v{tmp}, 4, v{dst}')

def R(i): return 4 + 4 * i
SLOT = {0: 0, 1: 1, 2: 2, 3: 3, 4: 4, 5: 5, 6: 6, 7: 0, 8: 1}
def AR(c): return R(SLOT[c])

def zero(a, regs):
    regs = sorted(regs); i = 0
    while i < len(regs):
        r = regs[i]
        if r % 2 == 0 and i + 1 < len(regs) and regs[i+1] == r + 1:
            a(f'v_mov_b64 v[{r}:{r+1}], 0'); i += 2
        else:
            a(f'v_mov_b32 v{r}, 0'); i += 1

def chain_loop(a, cfg, sfx, stf):
    NFULL = 4; NP = cfg.get('NP', 3)
    assert 2 <= NP <= 6
    D1 = cfg.get('D1', 0); D2 = cfg.get('D2', 0); D2R = cfg.get('D2R', 0)
    dbg = cfg.get('dbg', False)
    SRD = f's[{S_WS}:{S_WS+3}]'
    vm = Cnt(a, 'vmcnt', 63); lg = Cnt(a, 'lgkmcnt', 15)
    smap = cfg.get('smap', {str(k): k for k in range(8)})
    def stamp(k):
        if dbg and str(k) in smap:
            q = smap[str(k)]
            a(f'{"s_memrealtime" if cfg.get("rt") else "s_memtime"} s[{60+2*q}:{61+2*q}]')
    def smf(d, aa, b): a(f'v_smfmac_f32_16x16x64_bf16 {vr(d,4)}, {vr(aa,4)}, {b}, v{V_IDX}')
    def delay(n):
        if cfg.get('SLEEP', 1):
            if int(n): a(f's_sleep {int(n)}')
            fr = int(round((n - int(n)) * 16))
            if fr: a(f's_nop {fr-1}')
            return
        while n > 0:
            k = min(n, 16); a(f's_nop {k-1}'); n -= k
    def mf(d, x, y, cinit):
        c = vr(d, 4) if not cinit else '0'
        a(f'v_mfma_f32_16x16x32_bf16 {vr(d,4)}, {vr(x,4)}, {vr(y,4)}, {c}')
    L = lambda t: [x for x in t.split('\n') if x.strip()]
    VX0 = 32; VX1 = 36

    a.label(f'STEP{sfx}')
    lg.reset(['T'] * 4)
    a(f's_add_u32 s{S_MC1}, s{S_MC}, 4096\ns_add_u32 s{S_MC2}, s{S_MC}, 8192')
    a(f's_add_u32 m0, s{S_W1536}, {L_KXX}\ns_add_u32 s{S_T0}, s{S_MC}, s{S_W1536}\ns_add_u32 s{S_T0}, s{S_T0}, 3072')
    a(f's_mov_b32 s{S_CNT}, 0')
    def aoff(i): return m_imm(i)
    def msr(i): return (S_MC, S_MC1, S_MC2)[i // 4]
    def ldA(i, reg=None):
        a(f'buffer_load_dwordx4 {vr(AR(i) if reg is None else reg,4)}, v{V_X}, {SRD}, s{msr(i)} offen offset:{aoff(i)} sc1'); vm.issue(('A', i))
    SH = cfg.get('SHARE', 1)
    L_ST = L_KXX - 0
    def st1():
        a(f'buffer_load_dwordx4 v{V_L16}, {SRD}, s{S_T0} offen sc1 lds'); vm.issue('st')
    def st2():
        a(f's_mov_b64 exec, 0xffffffff')
        a(f'buffer_load_dwordx4 v{V_L16}, {SRD}, s{S_T0} offen offset:1024 sc1 lds'); vm.issue('st')
        a('s_mov_b64 exec, -1')
    CK = VX1 + 3
    PM = cfg.get('PM', 'np3')
    SPEC = cfg.get('SPECST', 0) and SH
    tmo = f"""s_add_u32 s{S_CNT}, s{S_CNT}, 1
s_cmp_gt_u32 s{S_CNT}, 0x40000
s_cselect_b32 s{S_ABORT}, 1, s{S_ABORT}
s_cmp_lg_u32 s{S_ABORT}, 0
s_cselect_b64 s[{S_T3}:{S_T4}], 0, -1"""
    a.label(f'POLLM0{sfx}')
    if PM == 'pipe1':
        ldA(0)
        delay(cfg.get('STG', 30))
        a.label(f'POLLM{sfx}')
        ldA(0, R(1))
        a(tmo)
        a('s_waitcnt vmcnt(1)')
        a(f'v_max_u32 v{CK}, v{R(0)+1}, v{R(0)+3}')
        a(f'v_cmp_eq_u32 vcc, -1, v{CK}')
        a(f's_and_b64 vcc, vcc, s[{S_T3}:{S_T4}]')
        a(f's_cbranch_vccz GOTM{sfx}')
        ldA(0)
        a('s_waitcnt vmcnt(1)')
        a(f'v_max_u32 v{CK}, v{R(1)+1}, v{R(1)+3}')
        a(f'v_cmp_eq_u32 vcc, -1, v{CK}')
        a(f's_cbranch_vccnz POLLM{sfx}')
        a(f'v_mov_b64 {vr(R(0),2)}, {vr(R(1),2)}\nv_mov_b64 {vr(R(0)+2,2)}, {vr(R(1)+2,2)}')
        a.label(f'GOTM{sfx}')
        vm.reset()
        ldA(1); ldA(2)
        NC = 1
    else:
        vm.reset()
        for i in range(3): ldA(i)
        if SPEC: st1(); st2()
        a(tmo)
        NC = cfg.get('NC', 3)
        for i in range(NC):
            vm.wait(('A', i))
            if i == 0: a(f'v_max_u32 v{CK}, v{AR(0)+1}, v{AR(0)+3}')
            else: a(f'v_max3_u32 v{CK}, v{CK}, v{AR(i)+1}, v{AR(i)+3}')
        a(f'v_cmp_eq_u32 vcc, -1, v{CK}')
        a(f's_and_b64 vcc, vcc, s[{S_T3}:{S_T4}]')
        a(f's_cbranch_vccnz POLLM0{sfx}')
    stamp(0)
    if dbg: a(f's_mov_b32 s52, s{S_CNT}')
    XB = R(2); TK = R(2) + 1
    fl = ['TBL']
    def bop(m, i, z):
        s = (m, i)
        if LOC[(s, z)][0] == 'lds': return vr(T0 if z == 0 else T1, 8)
        return frag_reg(s, z)
    lds_chunks = sorted(QK_LDS)
    def ldvx(q):
        a(f'buffer_load_dwordx4 {vr(VX0+4*q,4)}, v{V_L16}, {SRD}, s{S_VF} offen offset:{q*1024} sc1'); vm.issue('vx')
    def bar0():
        if SH: vm.wait('st')
        stamp(16)
        a('s_barrier')
        stamp(12)
    def pf1():
        a(f'v_lshlrev_b32 v{V_X}, 3, v{V_L16}')
        a(f's_mov_b32 m0, {L_QX}')
    def pf2():
        a(f's_mov_b64 exec, 0xffffffff')
        a(f'buffer_load_dword v{V_X}, {SRD}, s{S_PF} offen sc1 lds'); vm.issue('pf')
        a('s_mov_b64 exec, -1')
    def rdA(c):
        a(f'ds_read_b128 {vr(AR(c),4)}, v{V_X} offset:{L_ST + (c-3)*1024}'); lg.issue(('A', c))
    if SH:
        if SPEC:
            memq = {0: [lambda: ldvx(0), lambda: ldvx(1)],
                    1: [lambda: None] * cfg.get('B0P', 0) + [bar0, lambda: [rdA(c) for c in (3, 4, 5, 6)], lambda: rdA(7)],
                    2: [lambda: rdA(8)] + ([] if cfg.get('nopf') else [pf1, pf2])}
        else:
            memq = {0: [st1, st2, lambda: ldvx(0), lambda: ldvx(1)],
                    2: [bar0, lambda: [rdA(3), rdA(4)], lambda: [rdA(5), rdA(6)], lambda: [rdA(7), rdA(8)], lambda: None if cfg.get('nopf') else [pf1(), pf2()]]}
    else:
        memq = {0: [lambda: ldA(3), lambda: ldA(4), lambda: ldA(5), lambda: ldA(6), lambda: ldvx(0), lambda: ldvx(1)],
                1: [lambda: ldA(7)], 2: [lambda: ldA(8), bar0] + ([] if cfg.get('nopf') else [pf1, pf2])}
    first_ck = True
    side = []; NS = cfg.get('NS', 1)
    for i in range(9):
        mem = list(memq.get(i, [])); pend = []
        if i >= NC:
            if SH and i >= 3: lg.wait(('A', i))
            else: vm.wait(('A', i))
        if NC <= i <= 2:
            pr = (S_CK4, S_CK) if i == 1 else (S_CK2, S_CK3)
            pend.append(f'v_cmp_eq_u32 s[{pr[0]}:{pr[0]+1}], -1, v{AR(i)+1}'); pend.append(f'v_cmp_eq_u32 s[{pr[1]}:{pr[1]+1}], -1, v{AR(i)+3}')
        if i >= 3:
            if first_ck: pend.append(f'v_max_u32 v{V_X}, v{AR(i)+1}, v{AR(i)+3}'); first_ck = False
            else: pend.append(f'v_max3_u32 v{V_X}, v{V_X}, v{AR(i)+1}, v{AR(i)+3}')
        mats = ['q', 'k'] + (['v'] if i < NFULL else [])
        if i in QK_LDS: mats = [m for m in mats if m != QK_LDS[i]] + [QK_LDS[i]]
        for m in mats:
            for z in range(2):
                isl = i in QK_LDS and m == QK_LDS[i]
                if isl:
                    while any(t_ == ('T', z) for t_, _ in side): side.pop(0)[1]()
                    lg.wait(('T', z) if i else 'T')
                smf(ACC[f'{m}{z}'], AR(i), bop(m, i, z))
                if isl and i != lds_chunks[-1]:
                    nx = lds_chunks[lds_chunks.index(i) + 1]
                    for h_ in range(2):
                        side.append((('T', z), lambda nx=nx, z=z, h_=h_: lds_half_read(a, lg, (QK_LDS[nx], nx), z, T0 if z == 0 else T1, ('T', z), h_)))
                if pend: a(pend.pop(0))
                if mem: mem.pop(0)()
                elif side:
                    for _ in range(NS):
                        if side: side.pop(0)[1]()
                elif fl and i >= 5:
                    fl.pop(0); a(f'ds_read_b128 {vr(R(2),4)}, v{V_L16} offset:{L_TBL}'); lg.issue('tbl')
        assert not mem and not pend
    assert not side
    assert not fl, fl
    stamp(1)
    KX = {(0, 0): 64, (1, 0): 68, (0, 1): 72, (1, 1): 76, (0, 2): R(4), (1, 2): R(5), (0, 3): R(3), (1, 3): 64}
    def ldkx(t, ks):
        a(f'ds_read_b128 {vr(KX[(t, ks)],4)}, v{V_L16} offset:{L_KX + t*4096 + ks*1024}'); lg.issue(('kx', t, ks))
    vrem = [(i, z) for i in range(NFULL, 9) for z in range(2)]
    def vsm(n):
        for _ in range(n):
            if vrem:
                i, z = vrem.pop(0); smf(ACC[f'v{z}'], AR(i), bop('v', i, z))
    a(f'v_cmp_eq_u32 vcc, -1, v{V_X}')
    lg.wait('tbl')
    vsm(1)
    a(f'v_add_u32 v{XB}, s{S_W1K}, v{XB}')
    ldkx(0, 0); ldkx(1, 0); ldkx(0, 1); ldkx(1, 1)
    K0 = ACC['k0']; K1 = ACC['k1']; Q0 = ACC['q0']; Q1 = ACC['q1']
    a(f'v_pk_add_f32 {vr(K0,2)}, {vr(K0,2)}, {vr(K0+2,2)}')
    a(f'v_pk_add_f32 {vr(K1,2)}, {vr(K1,2)}, {vr(K1+2,2)}')
    a(f'v_cvt_pk_bf16_f32 v{K0}, v{K0}, v{K0+1}')
    a(f'v_cvt_pk_bf16_f32 v{K0+2}, v{K1}, v{K1+1}')
    a(f'v_pk_add_f32 {vr(Q0,2)}, {vr(Q0,2)}, {vr(Q0+2,2)}')
    a(f'v_pk_add_f32 {vr(Q1,2)}, {vr(Q1,2)}, {vr(Q1+2,2)}')
    a(f'v_pk_mul_f32 {vr(Q0,2)}, {vr(Q0,2)}, s[{S_SC}:{S_SC+1}]')
    a(f'v_pk_mul_f32 {vr(Q1,2)}, {vr(Q1,2)}, s[{S_SC}:{S_SC+1}]')
    a(f'v_cvt_pk_bf16_f32 v{K0+1}, v{Q0}, v{Q0+1}')
    a(f'v_cvt_pk_bf16_f32 v{K0+3}, v{Q1}, v{Q1+1}')
    a(f'ds_write2st64_b64 v{XB}, {vr(K0,2)}, {vr(K0+2,2)} offset0:{L_KXX//512} offset1:{L_KXX//512+1}'); lg.issue('xw')
    vsm(1)
    if NC == 1:
        for pr in (S_CK4, S_CK, S_CK2, S_CK3): a(f's_or_b64 vcc, vcc, s[{pr}:{pr+1}]')
    a(f's_and_b64 vcc, vcc, s[{S_T3}:{S_T4}]')
    if cfg.get('forceredo'): a(f's_and_b32 s{S_T0}, s{S_STEP}, 7\ns_cmp_eq_u32 s{S_T0}, s{S_WV}\ns_cselect_b64 vcc, -1, vcc')
    a(f's_cbranch_vccnz REDO{sfx}')
    a.label(f'REDOX{sfx}')
    vsm(1)
    a(f'v_lshrrev_b32 v{V_X}, 1, v{V_L16}')
    a(f'v_mov_b32 v{K1}, v{K0}\nv_mov_b32 v{K1+1}, v{K0+2}')
    vsm(1)
    if not cfg.get('nopub'):
        a(f'buffer_store_dwordx2 {vr(K1,2)}, v{V_X}, {SRD}, s{S_KM} offen sc1'); vm.issue('pub')
    ldkx(0, 2); ldkx(1, 2); ldkx(0, 3)
    vsm(cfg.get('VB', 2))
    stamp(17)
    lg.wait('xw')
    stamp(18)
    a('s_barrier')
    stamp(2)
    F = {0: 40, 1: 44, 2: 48, 3: 52}
    def ldf(ks):
        for hh in range(2):
            a(f'ds_read_b64_tr_b16 {vr(F[ks]+2*hh,2)}, v{TK} offset:{L_KXX + ks*1024 + hh*128}'); lg.issue(('f', ks))
    for ks in range(4): ldf(ks)
    vsm(len(vrem))
    stamp(3)
    SX0 = R(6); SX1 = R(0); SM = R(1)
    OW = 14; OW2 = 12; ORD = 15; ORD2 = 13; OT = V_X; OT2 = 62
    PX = 48; PMX = 52; PMY = 54
    f1 = L(f"""v_pk_add_f32 v[56:57], v[56:57], v[58:59]
v_pk_add_f32 v[60:61], v[60:61], v[62:63]
v_cvt_pk_bf16_f32 v56, v56, v57
v_cvt_pk_bf16_f32 v57, v60, v61""")
    f2 = L(f"""v_xor_b32 v{OW}, s{S_W64}, v{OW}
v_xor_b32 v{OW2}, 32, v{OW}
v_xor_b32 v{ORD2}, 128, v{ORD}""")
    def fill(lst, n):
        for _ in range(n):
            if lst: a(lst.pop(0))
    lg.wait(('f', 0))
    mf(SX0, KX[(0, 0)], F[0], True); mf(SX1, KX[(1, 0)], F[0], True)
    ldkx(1, 3)
    mf(SM, F[0], F[0], True)
    lg.wait(('f', 1))
    mf(SX0, KX[(0, 1)], F[1], False); mf(SX1, KX[(1, 1)], F[1], False); fill(f1, 2)
    mf(SM, F[1], F[1], False); fill(f1, 2)
    lg.wait(('f', 2))
    mf(SX0, KX[(0, 2)], F[2], False)
    if not cfg.get('nopub'):
        a(f'buffer_store_dwordx2 v[56:57], v{V_X}, {SRD}, s{S_KM} offen offset:512 sc1'); vm.issue('pub')
    mf(SX1, KX[(1, 2)], F[2], False); fill(f2, 2)
    mf(SM, F[2], F[2], False); fill(f2, 2)
    lg.wait(('f', 3))
    mf(SM, F[3], F[3], False); fill(f2, 2)
    mf(SX0, KX[(0, 3)], F[3], False); fill(f2, 2)
    lg.wait(('kx', 1, 3))
    mf(SX1, KX[(1, 3)], F[3], False)
    B0 = 48; B1 = 56; B2 = 64; B3 = 72
    stamp(4)
    MX = 58; M2 = 59; LS = 60; L2 = 61
    B4 = 40
    lds_frag_read(a, lg, ('o', 1, 1), 0, B4, ('w', 2))
    lds_frag_read(a, lg, ('o', 0, 1), 1, B3, ('w', 1))
    a(f'v_max3_f32 v{MX}, v{SM}, v{SM+1}, v{SX0}')
    a(f'v_max3_f32 v{MX}, v{MX}, v{SX0+1}, v{SX0+2}')
    a(f'v_mov_b32 v{PMX+1}, 0\nv_mov_b32 v{PMY}, 0')
    a(f'v_max3_f32 v{M2}, v{SX1}, v{SX1+1}, v{SX1+2}')
    a(f'v_max3_f32 v{MX}, v{MX}, v{SX0+3}, v{SX1+3}')
    a(f'v_max_f32 v{MX}, v{MX}, v{M2}')
    a(f'v_max_f32 v{M2}, v{MX}, v{M2}')
    a(f'v_mov_b64 {vr(R(3),2)}, s[{S_ONE}:{S_ONE+1}]\nv_mov_b64 {vr(R(3)+2,2)}, s[{S_ONE}:{S_ONE+1}]')
    a(f'v_permlane32_swap_b32 v{MX}, v{M2}')
    a(f'v_max_f32 v{MX}, v{MX}, v{M2}')
    a(f'v_max_f32 v{M2}, v{MX}, v{M2}')
    lds_frag_read(a, lg, ('o', 0, 1), 0, B2, ('w', 0))
    a(f'v_permlane16_swap_b32 v{MX}, v{M2}')
    a(f'v_max_f32 v{MX}, v{MX}, v{M2}')
    stamp(13)
    rs = (SX0, SX0+2, SX1, SX1+2)
    for r in rs + (SM,): a(f'v_pk_add_f32 {vr(r,2)}, {vr(r,2)}, {vr(MX,2)} op_sel_hi:[1,0] neg_lo:[0,1] neg_hi:[0,1]')
    for k, r in enumerate(rs):
        a(f'v_exp_f32 v{r}, v{r}\nv_exp_f32 v{r+1}, v{r+1}')
        if k: a(f'v_cvt_pk_bf16_f32 v{PX+k-1}, v{rs[k-1]}, v{rs[k-1]+1}')
    a(f'v_exp_f32 v{SM}, v{SM}')
    a(f'v_cvt_pk_bf16_f32 v{PX+3}, v{rs[3]}, v{rs[3]+1}')
    a(f'v_exp_f32 v{SM+1}, v{SM+1}')
    OX = R(4); OY = R(5); ONE = R(3); LS = 60
    vm.wait('vx')
    mf(LS, ONE, PX, True)
    a(f'v_cvt_pk_bf16_f32 v{PMX}, v{SM}, v{SM+1}\nv_cvt_pk_bf16_f32 v{PMY+1}, v{SM}, v{SM+1}')
    mf(OX, VX0, PX, True)
    a(f'v_mfma_f32_16x16x16_bf16 {vr(LS,4)}, {vr(ONE,2)}, {vr(PMX,2)}, {vr(LS,4)}')
    mf(OY, VX1, PX, True)
    a(f'v_mfma_f32_16x16x16_bf16 {vr(OX,4)}, v[56:57], {vr(PMX,2)}, {vr(OX,4)}')
    a(f'v_mfma_f32_16x16x16_bf16 {vr(OY,4)}, v[56:57], {vr(PMY,2)}, {vr(OY,4)}')
    stamp(14)
    lds_frag_read(a, lg, ('o', 1, 1), 1, B0, ('w', 3))
    fill(f2, 99)
    zero(a, range(SX0, SX0 + 4))
    a(f'v_rcp_f32 v{LS}, v{LS}')
    zero(a, range(VX0, VX0 + 8))
    for o in (OX, OY):
        a(f'v_pk_mul_f32 {vr(o,2)}, {vr(o,2)}, {vr(LS,2)} op_sel_hi:[1,0]')
        a(f'v_pk_mul_f32 {vr(o+2,2)}, {vr(o+2,2)}, {vr(LS,2)} op_sel_hi:[1,0]')
        a(f'v_cvt_pk_bf16_f32 v{o}, v{o}, v{o+1}\nv_cvt_pk_bf16_f32 v{o+1}, v{o+2}, v{o+3}')
        if o == OX:
            a(f's_mov_b64 exec, s[{S_MK_KEY}:{S_MK_KEY+1}]')
            a(f'ds_write_b64 v{OW}, {vr(OX,2)} offset:{L_OX}'); lg.issue('ow')
    a(f'ds_write_b64 v{OW2}, {vr(OY,2)} offset:{L_OX}'); lg.issue('ow')
    a('s_mov_b64 exec, -1')
    stamp(15)
    WACC = 12
    zero(a, [12, 14] + list(range(16, 28)))
    lg.wait('ow')
    a('s_barrier')
    stamp(5)
    OA0 = 4; OA1 = 8
    a(f'ds_read_b128 {vr(OA0,4)}, v{ORD} offset:{L_OX}'); lg.issue('oa0')
    a(f'ds_read_b128 {vr(OA1,4)}, v{ORD2} offset:{L_OX}'); lg.issue('oa1')
    lds_frag_read(a, lg, ('o', 3, 1), 0, B1, ('w', 6))
    zero(a, [ORD, ORD2])
    def wacc(t): return WACC + 4 * t
    def post_tile(t):
        d = wacc(t); q = wacc(t - t % 3) + t % 3
        return [f'v_pk_add_f32 {vr(d,2)}, {vr(d,2)}, {vr(d+2,2)}', f'v_cvt_pk_bf16_f32 v{q}, v{d}, v{d+1}']
    def post_group(j):
        ops = post_tile(3*j) + [f'v_mov_b32 v{wacc(3*j)+3}, s{S_TAG}'] + post_tile(3*j+1) + post_tile(3*j+2)
        return ops + [('v', f'buffer_store_dwordx4 {vr(wacc(3*j),4)}, v{V_L16}, {SRD}, s{S_PST} offen offset:{j*1024} {stf}'.rstrip())]
    def wf(t, c):
        if t == 8: return frag_reg(('o8',), c)
        return frag_reg(('o', t // 2, c), t % 2)
    lbuf = {0: B2, 1: B3, 2: B4, 3: B0, 4: B2, 5: B3, 6: B1, 7: B0}
    reload_ = {0: 4, 1: 5, 3: 7}; wside = []
    seq = [(0,0),(1,0),(2,0),(0,1),(1,1),(2,1), (3,0),(4,0),(5,0),(3,1),(4,1),(5,1), (6,0),(7,0),(8,0),(8,1),(6,1),(7,1)]
    fillers = {k: [] for k in range(40)}
    PL = cfg.get('PL', 3)
    for j_, start in ((0, cfg.get('PS', 8)), (1, cfg.get('PS', 8) + 6)):
        k = start; cnt = 0
        for op in post_group(j_):
            fillers[k].append(op); cnt += 1
            if cnt % PL == 0: k += 1
    for k_, r_ in enumerate(range(40, 48, 2)): fillers[6 + k_ // 2].append(f'v_mov_b64 v[{r_}:{r_+1}], 0')
    lg.wait('oa0')
    stamp(8)
    for n_, (t, c) in enumerate(seq):
        if n_ == 3: lg.wait('oa1')
        if c == 1 and t != 8:
            lg.wait(('w', t)); b = vr(lbuf[t], 8)
        else: b = wf(t, c)
        smf(wacc(t), OA0 if c == 0 else OA1, b)
        if c == 1 and t in reload_:
            for h_ in range(2): wside.append(lambda t=t, h_=h_: lds_half_read(a, lg, ('o', reload_[t]//2, 1), reload_[t] % 2, lbuf[t], ('w', reload_[t]), h_))
        if wside: wside.pop(0)()
        for f in fillers[n_]:
            if isinstance(f, tuple): a(f[1]); vm.issue('pst')
            else: a(f)
    stamp(9)
    for k in range(18, 40):
        for f in fillers[k]:
            if isinstance(f, tuple): a(f[1]); vm.issue('pst')
            else: a(f)
    g2 = post_tile(8) + post_tile(6) + [f'v_mov_b32 v{wacc(6)+3}, s{S_TAG}'] + post_tile(7)
    a(g2[0]); a(g2[2]); a(g2[1]); a(g2[3]); a(g2[4]); a(g2[5]); a(g2[6])
    a(post_group(2)[-1][1]); vm.issue('pst')
    stamp(6)
    if not cfg.get('static'):
        a(f's_add_u32 s{S_VF}, s{S_VF}, {32*8192}\ns_add_u32 s{S_PF}, s{S_PF}, {32*8192}')
    a(f's_add_u32 s{S_KM}, s{S_KM}, {32*4096}\ns_xor_b32 s{S_PST}, s{S_PST}, s{S_PO}')
    a(f's_add_u32 s{S_STEP}, s{S_STEP}, 1')
    a(f's_and_b32 s{S_T0}, s{S_STEP}, 3\ns_lshl_b32 s{S_TAG}, s{S_T0}, 7\ns_add_u32 s{S_TAG}, s{S_TAG}, 0x3f80\ns_lshl_b32 s{S_TGN}, s{S_T0}, 23\ns_add_u32 s{S_TGN}, s{S_TGN}, 0x43000000')
    c0 = sorted(QK_LDS)[0]
    SEL = 36; RACC = 72; RL = 76; RO = 77; RT = 78; RT2 = 79; NEG = 4
    a(f's_bitcmp0_b32 s{S_RED}, 0\ns_cbranch_scc1 NORED{sfx}')
    PP = 12288
    a(f'v_lshrrev_b32 v{RT}, 8, v{V_L16}\nv_mul_u32_u24 v{RL}, {PP}, v{RT}\nv_and_or_b32 v{RL}, v{V_L16}, s{S_F0}, v{RL}')
    a(f's_add_u32 s{S_T2}, s{S_PC}, s{S_RLD}')
    a(f's_mov_b32 s{S_CNT}, 0')
    delay(D1)
    if cfg.get('D1W1'):
        a(f's_cmp_eq_u32 s{S_WV}, 0\ns_cbranch_scc1 NOD1W{sfx}')
        delay(cfg['D1W1'])
        a.label(f'NOD1W{sfx}')
    stamp(10)
    def pl():
        for it in range(8):
            a(f'buffer_load_dwordx4 {vr(4+4*it,4)}, v{RL}, {SRD}, s{S_T2} offen sc1'); vm.issue(('r', it))
            a(f's_add_u32 s{S_T2}, s{S_T2}, {4*PP if it < 7 else -7*4*PP & 0xffffffff}')
    vm.reset(); pl()
    a(f'v_bfe_u32 v{RT2}, v{V_L16}, 4, {4 if NCOPY == 1 else 3}')
    a(f'v_and_b32 v{RO}, 1, v{RT2}\nv_lshlrev_b32 v{RO}, 4, v{RO}')
    a(f'v_mov_b32 v{RACC}, 0x3f80\nv_lshlrev_b32 v{RO}, v{RO}, v{RACC}')
    a(f'v_lshrrev_b32 v{RACC}, 1, v{RT2}')
    for r in range(4):
        a(f'v_cmp_eq_u32 vcc, {r}, v{RACC}')
        zero(a, range(40 + 4*r, 44 + 4*r))
        a(f'v_cndmask_b32 v{SEL+r}, 0, v{RO}, vcc')
    a(f'v_and_b32 v{RO}, 1, v{RT2}\nv_lshlrev_b32 v{RO}, 5, v{RO}\nv_lshl_add_u32 v{RO}, v{RACC}, 10, v{RO}')
    a(f'v_lshl_add_u32 v{RO}, v{RT}, 3, v{RO}')
    a(f'v_add_u32 v{RO}, s{S_RB}, v{RO}')
    if NCOPY > 1: a(f'v_bfe_u32 v{RACC}, v{V_L16}, 7, 1\nv_lshl_add_u32 v{RO}, v{RACC}, 16, v{RO}')
    zero(a, range(56, 64))
    emit_vma(a, V_X, RT2)
    lg.reset()
    lds_frag_read(a, lg, (QK_LDS[c0], c0), 0, T0, 'T')
    a.label(f'RWAIT{sfx}')
    for it in range(8):
        vm.wait(('r', it))
        if it == 0: stamp(11)
        mf(RACC, 4 + 4*it, SEL, it == 0)
    a(f's_add_u32 s{S_T0}, s{S_MN}, s{S_DUP}' if NCOPY == 1 else f's_sub_u32 s{S_T0}, s{S_MN}, s{S_DUP}')
    a(f'v_pk_add_f32 {vr(RT,2)}, {vr(RACC,2)}, {vr(RACC+2,2)}')
    a(f'v_cvt_pk_bf16_f32 v{RACC}, v{RACC}, v{RACC+1}\nv_cvt_pk_bf16_f32 v{RACC+1}, v{RACC+2}, v{RACC+3}')
    a(f'v_add_f32 v{RT}, v{RT}, v{RT2}')
    a(f'v_cmp_neq_f32 vcc, s{S_TAGS}, v{RT}')
    a(f's_mov_b64 exec, s[{S_MK_J8}:{S_MK_J8+1}]')
    a(f's_and_b64 vcc, vcc, s[{S_MK_N6}:{S_MK_N6+1}]')
    a(f's_cbranch_vccnz RCHK{sfx}')
    a.label(f'RGO{sfx}')
    if NCOPY == 1:
        a(f'buffer_store_dwordx2 {vr(RACC,2)}, v{RO}, {SRD}, s{S_MN} offen {stf}'.rstrip())
    else:
        for c in range(NCOPY // 2):
            a(f'buffer_store_dwordx2 {vr(RACC,2)}, v{RO}, {SRD}, s{S_T0} offen {stf}'.rstrip())
            if c < NCOPY // 2 - 1: a(f's_add_u32 s{S_T0}, s{S_T0}, {2*M_CSTR}')
    stamp(7)
    if dbg: a(f's_mov_b32 s53, s{S_CNT}')
    a(f'v_mov_b64 v[{NEG}:{NEG+1}], -1')
    if NCOPY == 1:
        a(f'buffer_store_dwordx2 {vr(NEG,2)}, v{RO}, {SRD}, s{S_MC} offen {stf}'.rstrip())
    else:
        a(f's_sub_u32 s{S_T0}, s{S_MC}, s{S_DUP}')
        for c in range(NCOPY // 2):
            a(f'buffer_store_dwordx2 {vr(NEG,2)}, v{RO}, {SRD}, s{S_T0} offen {stf}'.rstrip())
            if c < NCOPY // 2 - 1: a(f's_add_u32 s{S_T0}, s{S_T0}, {2*M_CSTR}')
    a('s_mov_b64 exec, -1')
    lds_frag_read(a, lg, (QK_LDS[c0], c0), 1, T1, 'T')
    delay(D2R)
    a(f's_branch NEXT{sfx}')
    a.label(f'NORED{sfx}')
    a(f's_cmp_lt_u32 s{S_WV}, 2\ns_cbranch_scc1 NODMA{sfx}')
    a(f's_mov_b32 m0, s{S_KXL}')
    for q in range(4): a(f'buffer_load_dwordx4 v{V_L16}, {SRD}, s{S_KF} offen offset:{q*1024} sc1 lds')
    a.label(f'NODMA{sfx}')
    zero(a, range(40, 64))
    lds_frag_read(a, lg, (QK_LDS[c0], c0), 0, T0, 'T'); lds_frag_read(a, lg, (QK_LDS[c0], c0), 1, T1, 'T')
    emit_vma(a, V_X, 4)
    delay(D2)
    a.label(f'NEXT{sfx}')
    if cfg.get('cprof'):
        a(f's_cmp_lg_u32 s{S_WV}, 3\ns_cbranch_scc1 NCP{sfx}')
        a('s_memrealtime s[60:61]\ns_memtime s[62:63]\ns_waitcnt lgkmcnt(0)')
        a(f's_lshl_b32 s{S_T0}, s{S_H}, 9\ns_lshl_b32 s{S_T1}, s{S_STEP}, 3\ns_add_u32 s{S_T0}, s{S_T0}, s{S_T1}\ns_add_u32 s{S_T0}, s{S_T0}, {WS_DBG + 0xA0000}')
        a('v_mov_b32 v4, s60\nv_mov_b32 v5, s62\nv_mov_b32 v6, 0\ns_mov_b64 exec, 1')
        a(f'buffer_store_dwordx2 v[4:5], v6, {SRD}, s{S_T0} offen\ns_mov_b64 exec, -1')
        a.label(f'NCP{sfx}')
    if dbg:
        a('s_waitcnt lgkmcnt(0)')
        a(f's_sub_u32 s{S_T0}, s{S_STEP}, 1\ns_lshl_b32 s{S_T0}, s{S_T0}, 7\ns_lshl_b32 s{S_T1}, s{S_H}, 2\ns_add_u32 s{S_T0}, s{S_T0}, s{S_T1}\ns_add_u32 s{S_T0}, s{S_T0}, s{S_WV}\ns_lshl_b32 s{S_T0}, s{S_T0}, 6\ns_add_u32 s{S_T0}, s{S_T0}, {WS_DBG}')
        for k in range(8): a(f'v_writelane_b32 v4, s{60+2*k}, {k}')
        a('v_writelane_b32 v4, s52, 8\nv_writelane_b32 v4, s53, 9\nv_writelane_b32 v4, s25, 10')
        a(f'v_lshrrev_b32 v5, 2, v{V_L16}')
        a('s_mov_b64 exec, 0x7ff')
        a(f'buffer_store_dword v4, v5, {SRD}, s{S_T0} offen')
        a('s_mov_b64 exec, -1')
    a(f's_xor_b32 s{S_PC}, s{S_PC}, s{S_PO}\ns_mov_b32 s{S_TAGS}, s{S_TGN}')
    if not cfg.get('static'): a(f's_add_u32 s{S_KF}, s{S_KF}, {32*8192}')
    a(f's_mov_b32 s{S_T0}, s{S_MC}\ns_mov_b32 s{S_MC}, s{S_MN}\ns_mov_b32 s{S_MN}, s{S_MP}\ns_mov_b32 s{S_MP}, s{S_T0}')
    if cfg.get('_kvwait'):
        a(f's_cmp_lg_u32 s{S_STEP}, 12\ns_cbranch_scc1 NKW{sfx}')
        cfg['_kvwait'](a)
        a.label(f'NKW{sfx}')
    a(f's_cmp_lt_u32 s{S_STEP}, 63\ns_cbranch_scc1 STEP{sfx}')
    FA = lambda i: 4 + 4 * i
    a(f's_add_u32 s{S_MC1}, s{S_MC}, 4096\ns_add_u32 s{S_MC2}, s{S_MC}, 8192')
    a(f's_mov_b32 s{S_CNT}, 0')
    a.label(f'FPOLL{sfx}')
    a(f'v_subrev_u32 v41, s{S_ROTB}, v{V_X}')
    for i in range(9): a(f'buffer_load_dwordx4 {vr(FA(i),4)}, v{V_X if i < 3 else 41}, {SRD}, s{msr(i)} offen offset:{aoff(i)} sc1')
    timeout(a)
    a('s_waitcnt vmcnt(0)')
    a(f'v_max_u32 v40, v{FA(0)+1}, v{FA(0)+3}')
    for i in range(1, 9): a(f'v_max3_u32 v40, v40, v{FA(i)+1}, v{FA(i)+3}')
    a('v_cmp_eq_u32 vcc, -1, v40')
    a(f's_cmp_lg_u32 s{S_ABORT}, 0\ns_cbranch_scc1 FGO{sfx}')
    a(f's_cbranch_vccnz FPOLL{sfx}')
    a.label(f'FGO{sfx}')
    klds = [i for i in lds_chunks if QK_LDS[i] == 'k']
    assert len(klds) == 2
    lds_frag_read(a, lg, ('k', klds[0]), 0, T0, 'T'); lds_frag_read(a, lg, ('k', klds[0]), 1, T1, 'T')
    lds_frag_read(a, lg, ('k', klds[1]), 0, 40, 'T')
    for i in range(9):
        if i in klds: continue
        for z in range(2): smf(ACC[f'k{z}'], FA(i), frag_reg(('k', i), z))
    a('s_waitcnt lgkmcnt(0)')
    smf(ACC['k0'], FA(klds[0]), vr(T0, 8)); smf(ACC['k1'], FA(klds[0]), vr(T1, 8)); smf(ACC['k0'], FA(klds[1]), vr(40, 8))
    lds_frag_read(a, lg, ('k', klds[1]), 1, T0, 'T')
    for i in range(9):
        for z in range(2): smf(ACC[f'v{z}'], FA(i), frag_reg(('v', i), z))
    a('s_waitcnt lgkmcnt(0)')
    smf(ACC['k1'], FA(klds[1]), vr(T0, 8))
    a(f'v_lshrrev_b32 v{V_X}, 1, v{V_L16}')
    for nm, d in (('v0', 42), ('v1', 43), ('k0', 40), ('k1', 41)):
        r = ACC[nm]
        a(f'v_pk_add_f32 {vr(r,2)}, {vr(r,2)}, {vr(r+2,2)}')
        a(f'v_cvt_pk_bf16_f32 v{d}, v{r}, v{r+1}')
        if nm == 'v1': a(f'buffer_store_dwordx2 v[42:43], v{V_X}, {SRD}, s{S_KM} offen offset:512 sc1')
    a(f'buffer_store_dwordx2 v[40:41], v{V_X}, {SRD}, s{S_KM} offen sc1')
    a('s_branch CHAIN_DONE')
    a.label(f'REDO{sfx}')
    if dbg: a('s_add_u32 s25, s25, 0x10000')
    a('s_waitcnt vmcnt(0) lgkmcnt(0)')
    a('s_nop 15')
    zero(a, range(40, 64))
    emit_vma(a, V_X, T0)
    a(f'v_subrev_u32 v{T0+1}, s{S_ROTB}, v{V_X}')
    done_v = [(i, z) for i in range(NFULL) for z in range(2)] + [(4, 0), (4, 1)]
    for c in range(9):
        l = f'RD{c}{sfx}'
        dst = AR(c) if c >= 5 else R(3)
        a.label(l)
        a(f'buffer_load_dwordx4 {vr(dst,4)}, v{V_X if c < 3 else T0+1}, {SRD}, s{msr(c)} offen offset:{aoff(c)} sc1')
        timeout(a)
        a(f's_cmp_lg_u32 s{S_ABORT}, 0\ns_cselect_b64 s[{S_T3}:{S_T4}], 0, -1')
        a('s_waitcnt vmcnt(0)')
        a(f'v_max_u32 v{T0+2}, v{dst+1}, v{dst+3}\nv_cmp_eq_u32 vcc, -1, v{T0+2}\ns_and_b64 vcc, vcc, s[{S_T3}:{S_T4}]')
        a(f's_cbranch_vccnz {l}')
        for m in 'qkv':
            for z in range(2):
                if m == 'v' and (c, z) not in done_v: continue
                if LOC[((m, c), z)][0] == 'lds':
                    lds_frag_read(a, lg, (m, c), z, T1, 'T'); a('s_waitcnt lgkmcnt(0)')
                    smf(ACC[f'{m}{z}'], dst, vr(T1, 8))
                else: smf(ACC[f'{m}{z}'], dst, frag_reg((m, c), z))
    a('s_nop 15')
    for ks in range(2):
        for t in range(2): a(f'ds_read_b128 {vr(KX[(t, ks)],4)}, v{V_L16} offset:{L_KX + t*4096 + ks*1024}')
    a(f'v_pk_add_f32 {vr(K0,2)}, {vr(K0,2)}, {vr(K0+2,2)}')
    a(f'v_pk_add_f32 {vr(K1,2)}, {vr(K1,2)}, {vr(K1+2,2)}')
    a(f'v_cvt_pk_bf16_f32 v{K0}, v{K0}, v{K0+1}')
    a(f'v_cvt_pk_bf16_f32 v{K0+2}, v{K1}, v{K1+1}')
    a(f'v_pk_add_f32 {vr(Q0,2)}, {vr(Q0,2)}, {vr(Q0+2,2)}')
    a(f'v_pk_add_f32 {vr(Q1,2)}, {vr(Q1,2)}, {vr(Q1+2,2)}')
    a(f'v_pk_mul_f32 {vr(Q0,2)}, {vr(Q0,2)}, s[{S_SC}:{S_SC+1}]')
    a(f'v_pk_mul_f32 {vr(Q1,2)}, {vr(Q1,2)}, s[{S_SC}:{S_SC+1}]')
    a(f'v_cvt_pk_bf16_f32 v{K0+1}, v{Q0}, v{Q0+1}')
    a(f'v_cvt_pk_bf16_f32 v{K0+3}, v{Q1}, v{Q1+1}')
    a(f'ds_write2st64_b64 v{XB}, {vr(K0,2)}, {vr(K0+2,2)} offset0:{L_KXX//512} offset1:{L_KXX//512+1}')
    a('s_waitcnt lgkmcnt(0)')
    a(f's_branch REDOX{sfx}')
    a.label(f'RCHK{sfx}')
    a('s_mov_b64 exec, -1')
    a(f's_cmp_lt_u32 s{S_CNT}, 8\ns_cbranch_scc1 RCH2{sfx}')
    a(f's_sub_u32 s{S_T1}, s{S_TAGS}, 0x43000000\ns_lshr_b32 s{S_T1}, s{S_T1}, 16\ns_add_u32 s{S_T1}, s{S_T1}, 0x3f80')
    a(f'v_xor_b32 v{RT}, s{S_T1}, v7')
    for it in range(1, 8): a(f'v_xor_b32 v{RT2}, s{S_T1}, v{7+4*it}\nv_or_b32 v{RT}, v{RT}, v{RT2}')
    a(f'v_cmp_ne_u32 vcc, 0, v{RT}')
    a(f's_cbranch_vccnz RCH2{sfx}')
    a(f's_mov_b64 exec, s[{S_MK_J8}:{S_MK_J8+1}]')
    a(f's_branch RGO{sfx}')
    a.label(f'RCH2{sfx}')
    pl()
    timeout(a)
    a(f's_cmp_eq_u32 s{S_ABORT}, 0\ns_cbranch_scc1 RWAIT{sfx}')
    a('s_waitcnt vmcnt(0)')
    a(f's_mov_b64 exec, s[{S_MK_J8}:{S_MK_J8+1}]')
    a(f's_branch RGO{sfx}')

def next_prep(a, lg):
    for r in range(40, 64): a(f'v_mov_b32 v{r}, 0')
    c0 = sorted(QK_LDS)[0]
    lds_frag_read(a, lg, (QK_LDS[c0], c0), 0, T0, 'T'); lds_frag_read(a, lg, (QK_LDS[c0], c0), 1, T1, 'T')
    emit_vma(a, V_X, 4)

def chain_init(a, P, cfg):
    SRD = f's[{S_WS}:{S_WS+3}]'
    a(f's_mov_b32 s{S_STEP}, 0\ns_mov_b32 s{S_ABORT}, {1 if cfg.get("free") else 0}')
    a(f's_mov_b32 s{S_PC}, {WS_P}\ns_mov_b32 s{S_PO}, {WS_P ^ (WS_P + 0x80000)}')
    a(f's_mul_i32 s{S_T0}, s{S_H}, 12288\ns_add_u32 s{S_PST}, s{S_PC}, s{S_T0}\ns_mul_i32 s{S_T0}, s{S_WV}, 3072\ns_add_u32 s{S_PST}, s{S_PST}, s{S_T0}')
    a(f's_mov_b32 s{S_TAG}, 0x3f80\ns_mov_b32 s{S_TAGS}, 0x43000000\ns_lshl_b32 s{S_ROTB}, s{S_ROT}, 7')
    a(f's_mov_b32 s{S_MK_N6}, 0x00400040\ns_mov_b32 s{S_MK_N6+1}, 0x00400040')
    if cfg.get('free'): a(f's_mov_b64 s[{S_MK_N6}:{S_MK_N6+1}], 0')
    a(f's_mov_b32 s{S_MC}, {WS_M}\ns_mov_b32 s{S_MN}, {WS_M + M_STRIDE}\ns_mov_b32 s{S_MP}, {WS_M + 2*M_STRIDE}')
    a(f's_lshl_b32 s{S_T0}, s{S_H}, 13\ns_lshl_b32 s{S_T1}, s{S_WV}, 11\ns_add_u32 s{S_T1}, s{S_T0}, s{S_T1}')
    a(f's_add_u32 s{S_VF}, s{S_T1}, {WS_VF}')
    a(f's_and_b32 s{S_W2K}, s{S_WV}, 1\ns_lshl_b32 s{S_W2K}, s{S_W2K}, 12\ns_mov_b32 s{S_KXL}, s{S_W2K}')
    a(f's_add_u32 s{S_KF}, s{S_T0}, s{S_W2K}\ns_add_u32 s{S_KF}, s{S_KF}, {WS_KF + 32*8192}')
    a(f's_add_u32 s{S_PF}, s{S_T0}, {WS_VF + 32*8192}\ns_add_u32 s{S_T1}, s{S_T0}, {WS_KF + 2*32*8192}')
    a(f's_cmp_ge_u32 s{S_WV}, 2\ns_cselect_b32 s{S_PF}, s{S_T1}, s{S_PF}\ns_add_u32 s{S_PF}, s{S_PF}, s{S_W2K}\ns_lshl_b32 s{S_W2K}, s{S_WV}, 11')
    a(f's_mul_i32 s{S_W1536}, s{S_WV}, 1536\ns_mov_b32 s{S_ONE}, 0x3f803f80\ns_mov_b32 s{S_ONE+1}, 0x3f803f80')
    a(f's_lshl_b32 s{S_W1K}, s{S_WV}, 10\ns_lshl_b32 s{S_W64}, s{S_WV}, 6\ns_mov_b32 s{S_F0}, 0xf0')
    a(f's_lshl_b32 s{S_T0}, s{S_H}, 12\ns_lshl_b32 s{S_T1}, s{S_WV}, 10\ns_add_u32 s{S_T0}, s{S_T0}, s{S_T1}')
    a(f's_add_u32 s{S_KM}, s{S_T0}, {WS_KM}')
    a(f's_mov_b32 s{S_MK_KEY}, 0xcccccccc\ns_mov_b32 s{S_MK_KEY+1}, 0xcccccccc')
    a(f's_mov_b32 s{S_MK_J8}, 0x003f003f\ns_mov_b32 s{S_MK_J8+1}, 0x003f003f')
    import struct
    c = math.log2(math.e) / math.sqrt(128.0)
    a(f's_mov_b32 s{S_SC}, 0x{struct.unpack("<I", struct.pack("<f", c))[0]:08x}\ns_mov_b32 s{S_SC+1}, s{S_SC}')
    a(f's_mov_b32 s{S_RED}, 0')
    a(f's_lshr_b32 s{S_T0}, s{S_H}, 4\ns_and_b32 s{S_T1}, s{S_H}, 15')
    a(f's_cmp_eq_u32 s{S_WV}, 0\ns_cselect_b32 s{S_RED}, 1, 0')
    l = a.newlabel('RT')
    a(f's_cmp_lg_u32 s{S_WV}, 1\ns_cbranch_scc1 {l}\ns_cmp_ge_u32 s{S_H}, 16\ns_cbranch_scc1 {l}')
    a(f's_mov_b32 s{S_RED}, 1\ns_mov_b32 s{S_T0}, 2')
    a.label(l)
    a(f's_lshr_b32 s{S_T3}, s{S_T1}, 2\ns_and_b32 s{S_T4}, s{S_T1}, 3')
    a(f's_mul_i32 s{S_RLD}, s{S_T3}, 3072\ns_lshl_b32 s{S_T2}, s{S_T0}, 10\ns_add_u32 s{S_RLD}, s{S_RLD}, s{S_T2}\ns_lshl_b32 s{S_T2}, s{S_T4}, 8\ns_add_u32 s{S_RLD}, s{S_RLD}, s{S_T2}')
    a(f's_sub_u32 s{S_T0}, 2, s{S_T0}\ns_mul_i32 s{S_RB}, s{S_T0}, 3072\ns_lshl_b32 s{S_T2}, s{S_T4}, 8\ns_add_u32 s{S_RB}, s{S_RB}, s{S_T2}\ns_lshl_b32 s{S_T2}, s{S_T3}, 6\ns_add_u32 s{S_RB}, s{S_RB}, s{S_T2}\ns_mov_b32 s{S_DUP}, 0')
    if NCOPY > 1:
        a(f's_and_b32 s{S_DUP}, s{S_H}, {NCOPY-1}\ns_lshl_b32 s{S_DUP}, s{S_DUP}, 16')
        for r in (S_MC, S_MN, S_MP): a(f's_add_u32 s{r}, s{r}, s{S_DUP}')
        a(f's_mov_b32 s{S_MK_J8}, 0x3f3f3f3f\ns_mov_b32 s{S_MK_J8+1}, 0x3f3f3f3f')

def mem0_copy(a, P):
    a(f's_mov_b32 s8, s{P["mem0"]}\ns_mov_b32 s9, s{P["mem0"]+1}\ns_mov_b32 s10, 9216\ns_mov_b32 s11, 0x20000')
    a(f's_lshl_b32 s34, s{S_H}, 16\ns_add_u32 s34, s34, {WS_M}')
    for k in range(3):
        a(f'v_add_u32 v12, {k*256}, v0')
        a('v_mul_u32_u24 v13, 911, v12\nv_lshrrev_b32 v13, 16, v13')
        a('v_mul_u32_u24 v14, 72, v13\nv_sub_u32 v14, v12, v14')
        a('v_lshrrev_b32 v15, 1, v14')
        a('v_mul_u32_u24 v16, 57, v15\nv_lshrrev_b32 v16, 9, v16')
        a('v_mul_u32_u24 v17, 9, v16\nv_sub_u32 v17, v15, v17')
        a('v_mul_u32_u24 v18, 43, v17\nv_lshrrev_b32 v18, 7, v18')
        a('v_mul_u32_u24 v19, 3, v18\nv_sub_u32 v19, v17, v19')
        a('v_sub_u32 v18, 2, v18')
        a('v_lshrrev_b32 v20, 1, v13\nv_lshlrev_b32 v20, 8, v20\nv_lshl_add_u32 v20, v16, 6, v20')
        a('v_mul_u32_u24 v21, 3072, v18\nv_add_u32 v20, v20, v21\nv_lshl_add_u32 v20, v19, 10, v20')
        a('v_and_b32 v21, 1, v13\nv_lshl_add_u32 v20, v21, 5, v20\nv_and_b32 v21, 1, v14\nv_lshl_add_u32 v20, v21, 4, v20')
        a('v_lshlrev_b32 v21, 4, v12')
        a('v_cmp_gt_u32 vcc, 576, v12\ns_and_saveexec_b64 s[36:37], vcc')
        a('buffer_load_dwordx4 v[8:11], v21, s[8:11], 0 offen\ns_waitcnt vmcnt(0)')
        a('buffer_store_dwordx4 v[8:11], v20, s[4:7], s34 offen sc1')
        a('s_mov_b64 exec, s[36:37]')

L_TBL = L_QX + 1024
def build_table(a):
    L16 = V_L16
    a(f"""v_and_b32 v8, 0xf0, v{L16}
v_bfe_u32 v4, v{L16}, 8, 2
v_lshl_add_u32 v4, v4, 2, v8
v_lshlrev_b32 v4, 1, v4
v_lshrrev_b32 v8, 8, v{L16}
v_bfe_u32 v9, v{L16}, 6, 2
v_lshl_add_u32 v8, v8, 3, v9
v_bfe_u32 v5, v{L16}, 4, 2
v_lshlrev_b32 v5, 3, v5
v_lshl_add_u32 v5, v8, 5, v5
v_bfe_u32 v8, v{L16}, 6, 2
v_bfe_u32 v7, v{L16}, 4, 1
v_lshl_add_u32 v7, v8, 1, v7
v_lshlrev_b32 v9, 1, v7
v_lshrrev_b32 v8, 9, v{L16}
v_xor_b32 v6, v8, v9
v_lshlrev_b32 v6, 4, v6
v_lshl_add_u32 v6, v7, 8, v6
v_bfe_u32 v8, v{L16}, 8, 1
v_lshl_add_u32 v6, v8, 3, v6
v_lshrrev_b32 v8, 8, v{L16}
v_bfe_u32 v10, v{L16}, 5, 1
v_lshl_add_u32 v8, v8, 1, v10
v_xor_b32 v8, v8, v9
v_lshlrev_b32 v8, 4, v8
v_lshl_add_u32 v7, v7, 8, v8
ds_write_b128 v{L16}, v[4:7] offset:{L_TBL}
s_waitcnt lgkmcnt(0)""")
```

```python
import sys, json
from asmlib import *
from layout import *
import chain as C, gemm1 as G, ffn2 as F, ao as AO

KN = 'parallel_sum__memory_aug_recurrent_mem_tr__geglu_ffn__prompt_kernel'
HEADER = open('parallel_sum__memory_aug_recurrent_mem_tr__geglu_ffn__prompt.s.ref').read().split('; Override launch')[0]

def gen(cfg):
    cfg = dict(cfg); cfg['_prof'] = prof
    a = Asm()
    P = {}
    names = [('x',0),('mem0',8),('Wq',16),('Wk',24),('Wv',32),('Wo',40),('wg',64),('wu',72),('wd',80),('out',88),('dbg',96),('ws',104)]
    a('s_cmp_ge_u32 s2, 256\ns_cbranch_scc1 K_END')
    if cfg.get('perm'): a(f's_mul_i32 s2, s2, {cfg["perm"]}\ns_and_b32 s2, s2, 255')
    for i, (n, off) in enumerate(names):
        P[n] = 72 + 2*i
        a(f's_load_dwordx2 s[{P[n]}:{P[n]+1}], s[0:1], {off}')
    a('s_getreg_b32 s3, hwreg(HW_REG_XCC_ID)')
    a('v_lshrrev_b32 v4, 6, v0')
    a('v_readfirstlane_b32 s13, v4')
    a('s_waitcnt lgkmcnt(0)')
    a(f's_mov_b32 s4, s{P["ws"]}\ns_mov_b32 s5, s{P["ws"]+1}\ns_mov_b32 s6, {WS_SIZE}\ns_mov_b32 s7, 0x20000')
    if cfg.get('prof'): a('s_memrealtime s[100:101]')
    if cfg.get('fakexcc'): a('s_cmp_lt_u32 s2, 128\ns_cselect_b32 s24, 1, 0\ns_cmp_eq_u32 s3, 0\ns_cselect_b32 s3, s24, s3')
    if cfg.get('cpf', 0):
        a('s_getpc_b64 s[24:25]')
        a('s_and_b32 s24, s24, 0xffffff00')
        a('v_lshlrev_b32 v240, 7, v0')
        a(f's_mov_b32 s26, K_END-{KN}')
        a('global_load_dword v241, v240, s[24:25]\nv_add_u32 v240, 0x8000, v240')
        a('v_cmp_gt_u32 vcc, s26, v240\ns_and_saveexec_b64 s[28:29], vcc\ns_cbranch_execz CPF_E')
        a('global_load_dword v242, v240, s[24:25]')
        a.label('CPF_E')
        a('s_mov_b64 exec, s[28:29]')
    if cfg.get('dst'): dstamp(a, P, 15, inv=True, vt=(246, 247))
    a('s_cmp_lt_u32 s3, 8\ns_cselect_b32 s54, s3, 7')
    a('s_lshr_b32 s55, s2, 3\ns_and_b32 s55, s55, 31')
    DBGP = f's[{P["dbg"]}:{P["dbg"]+1}]'
    a('s_cmp_lg_u32 s13, 0\ns_cbranch_scc1 CL_ISSUED')
    a('s_mov_b64 exec, 1')
    a('s_lshl_b32 s27, 1, s55\ns_lshl_b32 s29, s54, 2')
    a('v_mov_b32 v4, s29\nv_mov_b32 v5, s27')
    a(f'global_atomic_or v250, v4, v5, {DBGP} sc0')
    a('s_mov_b64 exec, -1')
    a.label('CL_ISSUED')
    a('s_and_b32 s24, s2, 6\ns_cmp_lg_u32 s24, 2\ns_cbranch_scc1 NO_LN')
    a(f's_lshr_b32 s{G.G_T4}, s2, 3\ns_lshl_b32 s{G.G_T4}, s{G.G_T4}, 1\ns_and_b32 s24, s2, 1\ns_add_u32 s{G.G_T4}, s{G.G_T4}, s24')
    G.layernorm(a, P)
    a.label('NO_LN')
    def resolve(sfx, ldsaddr, firstwait):
        a(f's_cmp_lg_u32 s13, 0\ns_cbranch_scc1 CL_WAIT{sfx}')
        a('s_mov_b32 s25, s55\ns_mov_b32 s26, s54\ns_mov_b32 s28, 0\ns_lshl_b32 s27, 1, s25')
        a('s_mov_b64 exec, 1')
        a(firstwait)
        a(f's_branch CL_CHK{sfx}')
        a.label(f'CL_TRY{sfx}')
        a('s_lshl_b32 s27, 1, s25\ns_lshl_b32 s29, s26, 2')
        a('v_mov_b32 v248, s29\nv_mov_b32 v249, s27')
        a(f'global_atomic_or v250, v248, v249, {DBGP} sc0')
        a('s_waitcnt vmcnt(0)')
        a.label(f'CL_CHK{sfx}')
        a('v_readfirstlane_b32 s30, v250')
        a(f's_and_b32 s31, s30, s27\ns_cbranch_scc0 CL_GOT{sfx}')
        a(f's_not_b32 s31, s30\ns_cbranch_scc0 CL_FULL{sfx}')
        a(f's_ff1_i32_b32 s25, s31\ns_branch CL_TRY{sfx}')
        a.label(f'CL_FULL{sfx}')
        a(f's_add_u32 s28, s28, 1\ns_sub_u32 s26, 8, s28\ns_cmp_gt_u32 s28, 8\ns_cbranch_scc1 CL_NONE{sfx}')
        a('s_mov_b32 s25, 0')
        a(f's_cmp_lg_u32 s26, 0\ns_cbranch_scc1 CL_TRY{sfx}')
        a(f'v_mov_b32 v248, {G.DBG_IMPURE}\nv_mov_b32 v249, 1')
        a(f'global_atomic_or v250, v248, v249, {DBGP} sc0\ns_waitcnt vmcnt(0)')
        a(f's_branch CL_TRY{sfx}')
        a.label(f'CL_NONE{sfx}')
        a('s_mov_b32 s26, 8\ns_mov_b32 s25, 0')
        a.label(f'CL_GOT{sfx}')
        a('s_lshl_b32 s26, s26, 5\ns_add_u32 s26, s26, s25')
        a(f'v_mov_b32 v248, {ldsaddr}\nv_mov_b32 v249, s26\nds_write_b32 v248, v249\ns_waitcnt lgkmcnt(0)')
        a('s_mov_b64 exec, -1')
        a.label(f'CL_WAIT{sfx}')
        a('s_barrier')
        a(f'v_mov_b32 v248, {ldsaddr}\nds_read_b32 v249, v248\ns_waitcnt lgkmcnt(0)')
        a('v_readfirstlane_b32 s26, v249')
        a('s_barrier')
    if cfg.get('spec', 1):
        a(f's_mov_b32 s52, 1\ns_mov_b32 s{C.S_H}, s55')
        a('s_cmp_eq_u32 s54, 0\ns_cbranch_scc1 R_CHAIN2')
    resolve('A', 0, 's_waitcnt vmcnt(0)')
    a.label('ROLE')
    a('s_lshr_b32 s24, s26, 5\ns_and_b32 s28, s26, 31')
    if cfg.get('prof'): a('s_mov_b32 s101, s26')
    a('s_cmp_ge_u32 s24, 8\ns_cbranch_scc1 K_END')
    a('s_cmp_eq_u32 s24, 0\ns_cbranch_scc1 R_CHAIN')
    if cfg.get('warm', 1):
        a('s_sub_u32 s25, s26, 32\ns_mul_i32 s27, s25, 1171\ns_lshr_b32 s27, s27, 16\ns_mul_i32 s29, s27, 56\ns_sub_u32 s25, s25, s29')
        a(f's_cmp_eq_u32 s27, 1\ns_cselect_b64 s[8:9], s[{P["Wk"]}:{P["Wk"]+1}], s[{P["Wq"]}:{P["Wq"]+1}]')
        a(f's_cmp_eq_u32 s27, 2\ns_cselect_b64 s[8:9], s[{P["Wv"]}:{P["Wv"]+1}], s[8:9]')
        a(f's_cmp_eq_u32 s27, 3\ns_cselect_b64 s[8:9], s[{P["Wo"]}:{P["Wo"]+1}], s[8:9]')
        a('s_mov_b32 s10, 4718592\ns_mov_b32 s11, 0x20000')
        a('s_lshl_b32 s25, s25, 15\nv_lshlrev_b32 v4, 7, v0')
        for k in range(3):
            a(f'buffer_load_dword v{200+k}, v4, s[8:11], s25 offen')
            a(f's_add_u32 s25, s25, {56*32768}')
    a('s_cmp_eq_u32 s24, 1\ns_cbranch_scc1 R_AO')
    a(f's_sub_u32 s{G.G_CG}, s24, 2\ns_lshl_b32 s{G.G_CG}, s{G.G_CG}, 2\ns_lshr_b32 s25, s28, 3\ns_add_u32 s{G.G_CG}, s{G.G_CG}, s25\ns_and_b32 s{G.G_RB}, s28, 7')
    G.gemm1(a, P, cfg)
    if cfg.get('prof'): prof(a, 1)
    a(f's_cmp_lt_u32 s{G.G_CG}, 12\ns_cbranch_scc1 R_FFN')
    a(f's_sub_u32 s24, s{G.G_CG}, 12\ns_lshl_b32 s24, s24, 3\ns_add_u32 s24, s24, s{G.G_RB}')
    a(f's_and_b32 s{AO.A_CH}, s24, 1\ns_bfe_u32 s{AO.A_HG}, s24, 0x30001\ns_lshr_b32 s{AO.A_SEG}, s24, 4\ns_add_u32 s{AO.A_SEG}, s{AO.A_SEG}, {2 + cfg.get("S0", 20)}')
    a('s_barrier\ns_branch AO_ENTRY2')
    a.label('R_FFN')
    F.ffn2(a, P, cfg)
    a('s_branch K_DONE')
    a.label('R_AO')
    a(f's_and_b32 s{AO.A_SEG}, s28, 1\ns_bfe_u32 s{AO.A_CH}, s28, 0x10001\ns_lshr_b32 s{AO.A_HG}, s28, 2')
    AO.ao(a, P, cfg)
    a('s_branch K_DONE')
    a.label('R_CHAIN')
    a(f's_mov_b32 s{C.S_H}, s28\ns_mov_b32 s52, 0')
    a.label('R_CHAIN2')
    def hook(vm):
        a('s_cmp_eq_u32 s52, 0\ns_cbranch_scc1 CH_OK')
        resolve('B', 0, 's_waitcnt vmcnt(60)')
        if cfg.get('prof'): a('s_mov_b32 s101, s26')
        a(f's_cmp_eq_u32 s26, s{C.S_H}\ns_cbranch_scc1 CH_OK')
        a('s_waitcnt vmcnt(0)\ns_barrier')
        a('s_lshl_b32 s24, s13, 6\nv_lshrrev_b32 v0, 4, v0\nv_or_b32 v0, s24, v0')
        a('s_branch ROLE')
        a.label('CH_OK')
        a(f's_lshl_b32 s24, s13, 10\nv_add_u32 v40, s24, v{C.V_L16}')
        for r in range(4): a(f'v_mov_b32 v{44+r}, 0')
        a(f's_mul_i32 s25, s{C.S_H}, 12288')
        for b in range(2):
            a(f's_add_u32 s24, s25, {WS_P + b*0x80000}')
            for k in range(3):
                a('buffer_store_dwordx4 v[44:47], v40, s[4:7], s24 offen sc1'); vm.issue('x')
                a('s_add_u32 s24, s24, 4096')
        for r in range(4): a(f'v_mov_b32 v{48+r}, -1')
        a(f's_sub_u32 s24, s{C.S_H}, 1\ns_cmp_gt_u32 s24, 1\ns_cbranch_scc1 NOM')
        a(f's_mul_i32 s24, s{C.S_H}, {M_STRIDE}\ns_add_u32 s24, s24, {WS_M}')
        for k in range(3):
            a('buffer_store_dwordx4 v[48:51], v40, s[4:7], s24 offen sc1')
            a('s_add_u32 s24, s24, 4096')
        a.label('NOM')
    def hook2(vm):
        if cfg.get('pmw', 1):
            a(f'v_lshlrev_b32 v41, 3, v{C.V_L16}')
            a(f's_mul_i32 s24, s{C.S_H}, 12288\ns_and_b32 s25, s13, 1\ns_lshl_b32 s25, s25, 19\ns_add_u32 s24, s24, s25\ns_lshr_b32 s25, s13, 1\ns_lshl_b32 s25, s25, 13\ns_add_u32 s24, s24, s25\ns_add_u32 s24, s24, {WS_P}')
            a('buffer_load_dword v42, v41, s[4:7], s24 offen sc1'); vm.issue('x')
            a(f's_lshl_b32 s24, s13, 13\ns_add_u32 s24, s24, {WS_M + M_STRIDE}')
            a('buffer_load_dword v43, v41, s[4:7], s24 offen sc1'); vm.issue('x')
    C.chain_prologue(a, P, hook, hook2)
    a(f's_cmp_lg_u32 s{C.S_H}, 0\ns_cbranch_scc1 NOM0')
    a(f'v_mov_b32 v22, v0\ns_lshl_b32 s24, s13, 6\nv_lshrrev_b32 v0, 4, v0\nv_or_b32 v0, s24, v0')
    C.mem0_copy(a, P)
    a('v_mov_b32 v0, v22')
    a.label('NOM0')
    C.chain_init(a, P, cfg)
    if cfg.get('dst'): dstamp(a, P, 13, vt=(4, 5))
    if cfg.get('prof'): prof(a, 4)
    a('s_waitcnt vmcnt(0)\ns_barrier')
    G.signal(a, P, G.DBG_CHAIN, None)
    W = lambda off, tgt: G.wait_flag(a, P, off, None, tgt, sleep=2, cnt=C.S_CNT)
    G.wait_flag(a, P, 0, None, 32, sleep=2, cnt=C.S_CNT, multi=(G.DBG_CHAIN, 2))
    G.wait_flag(a, P, 0, None, G.KVT_LO, sleep=2, cnt=C.S_CNT, multi=(G.DBG_KV, 2))
    a(f's_sub_u32 s34, s{C.S_KF}, {32*8192}\ns_mov_b32 m0, s{C.S_KXL}')
    for q in range(4): a(f'buffer_load_dwordx4 v{C.V_L16}, s[4:7], s34 offen offset:{q*1024} sc1 lds')
    a(f'v_mov_b32 v4, {G.DBG_IMPURE}')
    a(f'global_load_dword v5, v4, s[{P["dbg"]}:{P["dbg"]+1}] sc1')
    if cfg.get('pmw', 1):
        a(f'v_lshlrev_b32 v6, 3, v{C.V_L16}\ns_mov_b32 m0, {L_QX}')
        a(f's_sub_u32 s34, s{C.S_PF}, {32*8192}\ns_mov_b64 exec, 0xffffffff')
        a('buffer_load_dword v6, s[4:7], s34 offen sc1 lds')
        a('s_mov_b64 exec, -1')
        a('s_waitcnt vmcnt(1)\ns_barrier')
    else: a('s_waitcnt vmcnt(0)\ns_barrier')
    a('v_readfirstlane_b32 s34, v5')
    if cfg.get('prof'): prof(a, 2)
    lg = C.Cnt(a, 'lgkmcnt', 15)
    if cfg.get('dst'): a('s_mov_b32 s35, s34'); dstamp(a, P, 8, vt=(4, 5))
    C.build_table(a)
    C.next_prep(a, lg)
    cfg['_kvwait'] = lambda a: G.wait_flag(a, P, 0, None, 24, sleep=2, cnt=C.S_CNT, multi=(G.DBG_KV + 8, 6))
    if cfg.get('forceslow'): a('s_mov_b32 s34, 1')
    a('s_cmp_lg_u32 s34, 0\ns_cbranch_scc1 STEPS')
    C.chain_loop(a, cfg, 'F', '')
    C.chain_loop(a, cfg, 'S', 'sc1')
    a.label('CHAIN_DONE')
    if cfg.get('dst'): dstamp(a, P, 9, vt=(4, 5))
    a.label('K_DONE')
    a('s_waitcnt vmcnt(0) lgkmcnt(0)')
    if cfg.get('prof'): prof(a, 3)
    if cfg.get('dst'): dstamp(a, P, 14, vt=(4, 5))
    a.label('K_END')
    a('s_endpgm')
    body, n = a.finalize()
    head = HEADER + f'''; @launch grid=(256,1,1) block=(256,1,1) lds=163840
.amdgcn_target "amdgcn-amd-amdhsa--gfx950"
.text
.globl {KN}
.p2align 8
.type {KN},@function
{KN}:
'''
    tail = f'''.section .rodata,"a"
.p2align 6
.amdhsa_kernel {KN}
  .amdhsa_next_free_vgpr 512
  .amdhsa_next_free_sgpr 102
  .amdhsa_accum_offset 256
  .amdhsa_group_segment_fixed_size 0
  .amdhsa_kernarg_size 112
  .amdhsa_user_sgpr_count 2
  .amdhsa_user_sgpr_kernarg_segment_ptr 1
  .amdhsa_system_sgpr_workgroup_id_x 1
.end_amdhsa_kernel
'''
    return head + body + tail, n

def dstamp(a, P, word, inv=False, vt=(250, 251)):
    l = a.newlabel('DS')
    a(f's_cmp_lg_u32 s13, 0\ns_cbranch_scc1 {l}')
    a('s_memrealtime s[98:99]\ns_waitcnt lgkmcnt(0)')
    if inv: a('s_not_b32 s98, s98')
    a('s_mov_b64 exec, 1')
    a(f'v_mov_b32 v{vt[0]}, {word*4}\nv_mov_b32 v{vt[1]}, s98')
    a(f'global_atomic_umax v{vt[0]}, v{vt[1]}, s[{P["dbg"]}:{P["dbg"]+1}]')
    a('s_mov_b64 exec, -1')
    a.label(l)

def prof(a, k):
    l = a.newlabel('PR')
    a(f's_cmp_lg_u32 s13, 0\ns_cbranch_scc1 {l}')
    a('s_memrealtime s[98:99]\ns_waitcnt lgkmcnt(0)')
    a(f's_sub_u32 s98, s98, s100\ns_lshl_b32 s99, s2, 6\ns_add_u32 s99, s99, {WS_DBG + 0x80000 + k*8}')
    a('s_mov_b64 exec, 1')
    a('v_mov_b32 v14, s98\nv_mov_b32 v15, s101\nv_mov_b32 v13, 0')
    a('buffer_store_dwordx2 v[14:15], v13, s[4:7], s99 offen')
    a('s_mov_b64 exec, -1')
    a.label(l)

if __name__ == '__main__':
    cfg = json.loads(sys.argv[1]) if len(sys.argv) > 1 else dict(D1=110, D2=310)
    src, n = gen(cfg)
    out = sys.argv[2] if len(sys.argv) > 2 else 'all.s'
    open(out, 'w').write(src)
    print(n, 'instructions', len(src), 'bytes')
```

```python
import sys, json
from asmlib import *
from layout import *
import chain as C, gemm1 as G, ffn2 as F, ao as AO

KN = 'parallel_sum__memory_aug_recurrent_mem_tr__geglu_ffn__prompt_kernel'
HEADER = open('parallel_sum__memory_aug_recurrent_mem_tr__geglu_ffn__prompt.s.ref').read().split('; Override launch')[0]

def gen(cfg):
    cfg = dict(cfg); cfg['_prof'] = prof
    a = Asm()
    P = {}
    names = [('x',0),('mem0',8),('Wq',16),('Wk',24),('Wv',32),('Wo',40),('wg',64),('wu',72),('wd',80),('out',88),('dbg',96),('ws',104)]
    a('s_cmp_ge_u32 s2, 256\ns_cbranch_scc1 K_END')
    if cfg.get('perm'): a(f's_mul_i32 s2, s2, {cfg["perm"]}\ns_and_b32 s2, s2, 255')
    for i, (n, off) in enumerate(names):
        P[n] = 72 + 2*i
        a(f's_load_dwordx2 s[{P[n]}:{P[n]+1}], s[0:1], {off}')
    a('s_getreg_b32 s3, hwreg(HW_REG_XCC_ID)')
    a('v_lshrrev_b32 v4, 6, v0')
    a('v_readfirstlane_b32 s13, v4')
    a('s_waitcnt lgkmcnt(0)')
    a(f's_mov_b32 s4, s{P["ws"]}\ns_mov_b32 s5, s{P["ws"]+1}\ns_mov_b32 s6, {WS_SIZE}\ns_mov_b32 s7, 0x20000')
    if cfg.get('prof'): a('s_memrealtime s[100:101]')
    if cfg.get('fakexcc'): a('s_cmp_lt_u32 s2, 128\ns_cselect_b32 s24, 1, 0\ns_cmp_eq_u32 s3, 0\ns_cselect_b32 s3, s24, s3')
    if cfg.get('cpf', 0):
        a('s_getpc_b64 s[24:25]')
        a('s_and_b32 s24, s24, 0xffffff00')
        a('v_lshlrev_b32 v240, 7, v0')
        a(f's_mov_b32 s26, K_END-{KN}')
        a('global_load_dword v241, v240, s[24:25]\nv_add_u32 v240, 0x8000, v240')
        a('v_cmp_gt_u32 vcc, s26, v240\ns_and_saveexec_b64 s[28:29], vcc\ns_cbranch_execz CPF_E')
        a('global_load_dword v242, v240, s[24:25]')
        a.label('CPF_E')
        a('s_mov_b64 exec, s[28:29]')
    if cfg.get('dst'): dstamp(a, P, 15, inv=True, vt=(246, 247))
    a('s_cmp_lt_u32 s3, 8\ns_cselect_b32 s54, s3, 7')
    a('s_lshr_b32 s55, s2, 3\ns_and_b32 s55, s55, 31')
    DBGP = f's[{P["dbg"]}:{P["dbg"]+1}]'
    a('s_cmp_lg_u32 s13, 0\ns_cbranch_scc1 CL_ISSUED')
    a('s_mov_b64 exec, 1')
    a('s_lshl_b32 s27, 1, s55\ns_lshl_b32 s29, s54, 2')
    a('v_mov_b32 v4, s29\nv_mov_b32 v5, s27')
    a(f'global_atomic_or v250, v4, v5, {DBGP} sc0')
    a('s_mov_b64 exec, -1')
    a.label('CL_ISSUED')
    def warm():
        l = a.newlabel('WARM')
        a(f's_cmp_eq_u32 s54, 0\ns_cbranch_scc1 {l}')
        a('s_lshr_b32 s25, s2, 3\ns_mul_i32 s25, s25, 7\ns_and_b32 s27, s2, 7\ns_add_u32 s25, s25, s27\ns_sub_u32 s25, s25, 1\ns_min_u32 s25, s25, 223')
        a('s_mul_i32 s27, s25, 1171\ns_lshr_b32 s27, s27, 16\ns_mul_i32 s29, s27, 56\ns_sub_u32 s25, s25, s29')
        a(f's_cmp_eq_u32 s27, 1\ns_cselect_b64 s[16:17], s[{P["Wk"]}:{P["Wk"]+1}], s[{P["Wq"]}:{P["Wq"]+1}]')
        a(f's_cmp_eq_u32 s27, 2\ns_cselect_b64 s[16:17], s[{P["Wv"]}:{P["Wv"]+1}], s[16:17]')
        a(f's_cmp_eq_u32 s27, 3\ns_cselect_b64 s[16:17], s[{P["Wo"]}:{P["Wo"]+1}], s[16:17]')
        a('s_mov_b32 s18, 4718592\ns_mov_b32 s19, 0x20000')
        a('s_lshl_b32 s25, s25, 15\nv_lshlrev_b32 v199, 7, v0')
        for k in range(3):
            a(f'buffer_load_dword v{200+k}, v199, s[16:19], s25 offen')
            a(f's_add_u32 s25, s25, {56*32768}')
        a.label(l)
    a('s_and_b32 s24, s2, 6\ns_cmp_lg_u32 s24, 2\ns_cbranch_scc1 NO_LN')
    a(f's_lshr_b32 s{G.G_T4}, s2, 3\ns_lshl_b32 s{G.G_T4}, s{G.G_T4}, 1\ns_and_b32 s24, s2, 1\ns_add_u32 s{G.G_T4}, s{G.G_T4}, s24')
    G.layernorm(a, P)
    a.label('NO_LN')
    if cfg.get('warm', 1): warm()
    def resolve(sfx, ldsaddr, firstwait):
        a(f's_cmp_lg_u32 s13, 0\ns_cbranch_scc1 CL_WAIT{sfx}')
        a('s_mov_b32 s25, s55\ns_mov_b32 s26, s54\ns_mov_b32 s28, 0\ns_lshl_b32 s27, 1, s25')
        a('s_mov_b64 exec, 1')
        a(firstwait)
        a(f's_branch CL_CHK{sfx}')
        a.label(f'CL_TRY{sfx}')
        a('s_lshl_b32 s27, 1, s25\ns_lshl_b32 s29, s26, 2')
        a('v_mov_b32 v248, s29\nv_mov_b32 v249, s27')
        a(f'global_atomic_or v250, v248, v249, {DBGP} sc0')
        a('s_waitcnt vmcnt(0)')
        a.label(f'CL_CHK{sfx}')
        a('v_readfirstlane_b32 s30, v250')
        a(f's_and_b32 s31, s30, s27\ns_cbranch_scc0 CL_GOT{sfx}')
        a(f's_not_b32 s31, s30\ns_cbranch_scc0 CL_FULL{sfx}')
        a(f's_ff1_i32_b32 s25, s31\ns_branch CL_TRY{sfx}')
        a.label(f'CL_FULL{sfx}')
        a(f's_add_u32 s28, s28, 1\ns_sub_u32 s26, 8, s28\ns_cmp_gt_u32 s28, 8\ns_cbranch_scc1 CL_NONE{sfx}')
        a('s_mov_b32 s25, 0')
        a(f's_cmp_lg_u32 s26, 0\ns_cbranch_scc1 CL_TRY{sfx}')
        a(f'v_mov_b32 v248, {G.DBG_IMPURE}\nv_mov_b32 v249, 1')
        a(f'global_atomic_or v250, v248, v249, {DBGP} sc0\ns_waitcnt vmcnt(0)')
        a(f's_branch CL_TRY{sfx}')
        a.label(f'CL_NONE{sfx}')
        a('s_mov_b32 s26, 8\ns_mov_b32 s25, 0')
        a.label(f'CL_GOT{sfx}')
        a('s_lshl_b32 s26, s26, 5\ns_add_u32 s26, s26, s25')
        a(f'v_mov_b32 v248, {ldsaddr}\nv_mov_b32 v249, s26\nds_write_b32 v248, v249\ns_waitcnt lgkmcnt(0)')
        a('s_mov_b64 exec, -1')
        a.label(f'CL_WAIT{sfx}')
        a('s_barrier')
        a(f'v_mov_b32 v248, {ldsaddr}\nds_read_b32 v249, v248\ns_waitcnt lgkmcnt(0)')
        a('v_readfirstlane_b32 s26, v249')
        a('s_barrier')
    if cfg.get('spec', 1):
        a(f's_mov_b32 s52, 1\ns_mov_b32 s{C.S_H}, s55')
        a('s_cmp_eq_u32 s54, 0\ns_cbranch_scc1 R_CHAIN2')
    resolve('A', 0, 's_waitcnt vmcnt(0)')
    a.label('ROLE')
    a('s_lshr_b32 s24, s26, 5\ns_and_b32 s28, s26, 31')
    if cfg.get('prof'): a('s_mov_b32 s101, s26')
    a('s_cmp_ge_u32 s24, 8\ns_cbranch_scc1 K_END')
    a('s_cmp_eq_u32 s24, 0\ns_cbranch_scc1 R_CHAIN')
    a('s_cmp_eq_u32 s24, 1\ns_cbranch_scc1 R_AO')
    a(f's_sub_u32 s{G.G_CG}, s24, 2\ns_lshl_b32 s{G.G_CG}, s{G.G_CG}, 2\ns_lshr_b32 s25, s28, 3\ns_add_u32 s{G.G_CG}, s{G.G_CG}, s25\ns_and_b32 s{G.G_RB}, s28, 7')
    G.gemm1(a, P, cfg)
    if cfg.get('prof'): prof(a, 1)
    a(f's_cmp_lt_u32 s{G.G_CG}, 12\ns_cbranch_scc1 R_FFN')
    a(f's_sub_u32 s24, s{G.G_CG}, 12\ns_lshl_b32 s24, s24, 3\ns_add_u32 s24, s24, s{G.G_RB}')
    a(f's_and_b32 s{AO.A_CH}, s24, 1\ns_bfe_u32 s{AO.A_HG}, s24, 0x30001\ns_lshr_b32 s{AO.A_SEG}, s24, 4\ns_add_u32 s{AO.A_SEG}, s{AO.A_SEG}, {2 + cfg.get("S0", 20)}')
    a('s_barrier\ns_branch AO_ENTRY2')
    a.label('R_FFN')
    F.ffn2(a, P, cfg)
    a('s_branch K_DONE')
    a.label('R_AO')
    a(f's_and_b32 s{AO.A_SEG}, s28, 1\ns_bfe_u32 s{AO.A_CH}, s28, 0x10001\ns_lshr_b32 s{AO.A_HG}, s28, 2')
    AO.ao(a, P, cfg)
    a('s_branch K_DONE')
    a.label('R_CHAIN')
    a(f's_mov_b32 s{C.S_H}, s28\ns_mov_b32 s52, 0')
    a.label('R_CHAIN2')
    def hook(vm):
        a('s_cmp_eq_u32 s52, 0\ns_cbranch_scc1 CH_OK')
        resolve('B', 0, 's_waitcnt vmcnt(60)')
        if cfg.get('prof'): a('s_mov_b32 s101, s26')
        a(f's_cmp_eq_u32 s26, s{C.S_H}\ns_cbranch_scc1 CH_OK')
        a('s_waitcnt vmcnt(0)\ns_barrier')
        a('s_lshl_b32 s24, s13, 6\nv_lshrrev_b32 v0, 4, v0\nv_or_b32 v0, s24, v0')
        a('s_branch ROLE')
        a.label('CH_OK')
        a(f's_lshl_b32 s24, s13, 10\nv_add_u32 v40, s24, v{C.V_L16}')
        for r in range(4): a(f'v_mov_b32 v{44+r}, 0')
        a(f's_mul_i32 s25, s{C.S_H}, 12288')
        for b in range(2):
            a(f's_add_u32 s24, s25, {WS_P + b*0x80000}')
            for k in range(3):
                a('buffer_store_dwordx4 v[44:47], v40, s[4:7], s24 offen sc1'); vm.issue('x')
                a('s_add_u32 s24, s24, 4096')
        for r in range(4): a(f'v_mov_b32 v{48+r}, -1')
        a(f's_sub_u32 s24, s{C.S_H}, 1\ns_cmp_gt_u32 s24, 1\ns_cbranch_scc1 NOM')
        a(f's_mul_i32 s24, s{C.S_H}, {M_STRIDE}\ns_add_u32 s24, s24, {WS_M}')
        for k in range(3):
            a('buffer_store_dwordx4 v[48:51], v40, s[4:7], s24 offen sc1')
            a('s_add_u32 s24, s24, 4096')
        a.label('NOM')
    def hook2(vm):
        if cfg.get('pmw', 1):
            a(f'v_lshlrev_b32 v41, 3, v{C.V_L16}')
            a(f's_mul_i32 s24, s{C.S_H}, 12288\ns_and_b32 s25, s13, 1\ns_lshl_b32 s25, s25, 19\ns_add_u32 s24, s24, s25\ns_lshr_b32 s25, s13, 1\ns_lshl_b32 s25, s25, 13\ns_add_u32 s24, s24, s25\ns_add_u32 s24, s24, {WS_P}')
            a('buffer_load_dword v42, v41, s[4:7], s24 offen sc1'); vm.issue('x')
            a(f's_lshl_b32 s24, s13, 13\ns_add_u32 s24, s24, {WS_M + M_STRIDE}')
            a('buffer_load_dword v43, v41, s[4:7], s24 offen sc1'); vm.issue('x')
    C.chain_prologue(a, P, hook, hook2)
    a(f's_cmp_lg_u32 s{C.S_H}, 0\ns_cbranch_scc1 NOM0')
    a(f'v_mov_b32 v22, v0\ns_lshl_b32 s24, s13, 6\nv_lshrrev_b32 v0, 4, v0\nv_or_b32 v0, s24, v0')
    C.mem0_copy(a, P)
    a('v_mov_b32 v0, v22')
    a.label('NOM0')
    C.chain_init(a, P, cfg)
    if cfg.get('dst'): dstamp(a, P, 13, vt=(4, 5))
    if cfg.get('prof'): prof(a, 4)
    a('s_waitcnt vmcnt(0)\ns_barrier')
    G.signal(a, P, G.DBG_CHAIN, None)
    W = lambda off, tgt: G.wait_flag(a, P, off, None, tgt, sleep=2, cnt=C.S_CNT)
    G.wait_flag(a, P, 0, None, 32, sleep=2, cnt=C.S_CNT, multi=(G.DBG_CHAIN, 2))
    G.wait_flag(a, P, 0, None, G.KVT_LO, sleep=2, cnt=C.S_CNT, multi=(G.DBG_KV, 2))
    a(f's_sub_u32 s34, s{C.S_KF}, {32*8192}\ns_mov_b32 m0, s{C.S_KXL}')
    for q in range(4): a(f'buffer_load_dwordx4 v{C.V_L16}, s[4:7], s34 offen offset:{q*1024} sc1 lds')
    a(f'v_mov_b32 v4, {G.DBG_IMPURE}')
    a(f'global_load_dword v5, v4, s[{P["dbg"]}:{P["dbg"]+1}] sc1')
    if cfg.get('pmw', 1):
        a(f'v_lshlrev_b32 v6, 3, v{C.V_L16}\ns_mov_b32 m0, {L_QX}')
        a(f's_sub_u32 s34, s{C.S_PF}, {32*8192}\ns_mov_b64 exec, 0xffffffff')
        a('buffer_load_dword v6, s[4:7], s34 offen sc1 lds')
        a('s_mov_b64 exec, -1')
        a('s_waitcnt vmcnt(1)\ns_barrier')
    else: a('s_waitcnt vmcnt(0)\ns_barrier')
    a('v_readfirstlane_b32 s34, v5')
    if cfg.get('prof'): prof(a, 2)
    lg = C.Cnt(a, 'lgkmcnt', 15)
    if cfg.get('dst'): a('s_mov_b32 s35, s34'); dstamp(a, P, 8, vt=(4, 5))
    C.build_table(a)
    C.next_prep(a, lg)
    cfg['_kvwait'] = lambda a: G.wait_flag(a, P, 0, None, 24, sleep=2, cnt=C.S_CNT, multi=(G.DBG_KV + 8, 6))
    if cfg.get('forceslow'): a('s_mov_b32 s34, 1')
    a('s_cmp_lg_u32 s34, 0\ns_cbranch_scc1 STEPS')
    C.chain_loop(a, cfg, 'F', '')
    C.chain_loop(a, cfg, 'S', 'sc1')
    a.label('CHAIN_DONE')
    if cfg.get('dst'): dstamp(a, P, 9, vt=(4, 5))
    a.label('K_DONE')
    a('s_waitcnt vmcnt(0) lgkmcnt(0)')
    if cfg.get('prof'): prof(a, 3)
    if cfg.get('dst'): dstamp(a, P, 14, vt=(4, 5))
    a.label('K_END')
    a('s_endpgm')
    body, n = a.finalize()
    head = HEADER + f'''; @launch grid=(256,1,1) block=(256,1,1) lds=163840
.amdgcn_target "amdgcn-amd-amdhsa--gfx950"
.text
.globl {KN}
.p2align 8
.type {KN},@function
{KN}:
'''
    tail = f'''.section .rodata,"a"
.p2align 6
.amdhsa_kernel {KN}
  .amdhsa_next_free_vgpr 512
  .amdhsa_next_free_sgpr 102
  .amdhsa_accum_offset 256
  .amdhsa_group_segment_fixed_size 0
  .amdhsa_kernarg_size 112
  .amdhsa_user_sgpr_count 2
  .amdhsa_user_sgpr_kernarg_segment_ptr 1
  .amdhsa_system_sgpr_workgroup_id_x 1
.end_amdhsa_kernel
'''
    return head + body + tail, n

def dstamp(a, P, word, inv=False, vt=(250, 251)):
    l = a.newlabel('DS')
    a(f's_cmp_lg_u32 s13, 0\ns_cbranch_scc1 {l}')
    a('s_memrealtime s[98:99]\ns_waitcnt lgkmcnt(0)')
    if inv: a('s_not_b32 s98, s98')
    a('s_mov_b64 exec, 1')
    a(f'v_mov_b32 v{vt[0]}, {word*4}\nv_mov_b32 v{vt[1]}, s98')
    a(f'global_atomic_umax v{vt[0]}, v{vt[1]}, s[{P["dbg"]}:{P["dbg"]+1}]')
    a('s_mov_b64 exec, -1')
    a.label(l)

def prof(a, k):
    l = a.newlabel('PR')
    a(f's_cmp_lg_u32 s13, 0\ns_cbranch_scc1 {l}')
    a('s_memrealtime s[98:99]\ns_waitcnt lgkmcnt(0)')
    a(f's_sub_u32 s98, s98, s100\ns_lshl_b32 s99, s2, 6\ns_add_u32 s99, s99, {WS_DBG + 0x80000 + k*8}')
    a('s_mov_b64 exec, 1')
    a('v_mov_b32 v14, s98\nv_mov_b32 v15, s101\nv_mov_b32 v13, 0')
    a('buffer_store_dwordx2 v[14:15], v13, s[4:7], s99 offen')
    a('s_mov_b64 exec, -1')
    a.label(l)

if __name__ == '__main__':
    cfg = json.loads(sys.argv[1]) if len(sys.argv) > 1 else dict(D1=110, D2=310)
    src, n = gen(cfg)
    out = sys.argv[2] if len(sys.argv) > 2 else 'all.s'
    open(out, 'w').write(src)
    print(n, 'instructions', len(src), 'bytes')
```

```python
from asmlib import *
from layout import *
import math

class Cnt:
    def __init__(self, a, name, maxv):
        self.a = a; self.name = name; self.q = []; self.maxv = maxv
    def issue(self, tag, n=1):
        for _ in range(n): self.q.append(tag)
    def wait(self, tag):
        idx = max(i for i, t in enumerate(self.q) if t == tag) if tag in self.q else None
        if idx is None: return
        n = len(self.q) - 1 - idx
        assert n <= self.maxv, (self.name, n)
        self.a(f's_waitcnt {self.name}({n})')
        self.q = self.q[idx + 1:]
    def wait_all(self):
        self.a(f's_waitcnt {self.name}(0)'); self.q = []
    def reset(self, q=()): self.q = list(q)

S_WS = 4
S_W = 8
S_H = 12; S_WV = 13; S_STEP = 14; S_ABORT = 15
S_PC = 16; S_PST = 17; S_MC = 18; S_MN = 19; S_MP = 20
S_KF = 21; S_VF = 22; S_KM = 23; S_VM = 24
S_RED = 25; S_TASK = 26; S_CNT = 27
S_MK_KEY = 28; S_MK_J8 = 30
S_SC = 32
S_T0 = 34; S_T1 = 35; S_T3 = 36; S_T4 = 37; S_T2 = 43
S_RB = 38; S_RMA = 39; S_RIS8 = 40; S_RLD = 41; S_PO = 42
S_W512 = 44; S_W4 = 45; S_W2K = 46; S_F0 = 47; S_MK_N6 = 48; S_PF = 50; S_ROT = 51; S_TAG = 54; S_TAGS = 55; S_ROTB = 3; S_DUP = 24; S_CK = 56; S_CK2 = 96; S_CK3 = 98; S_MC1 = 39; S_MC2 = 40; S_W1536 = 26; S_KXL = 58; S_ONE = 8; S_TGN = 59; S_CK4 = 10; S_W1K = 44; S_W64 = 45

V_L16 = 0; V_IDX = 1; V_WL = 2; V_X = 3
def A(i): return 4 + 4 * i
ACC = {'q0': 40, 'q1': 44, 'k0': 48, 'k1': 52, 'v0': 56, 'v1': 60}
T0 = 64; T1 = 72

QK_LDS = {0: 'q', 2: 'k', 4: 'q', 6: 'k', 8: 'q'}
WO_LDS = [(0, 1), (1, 1), (2, 1), (3, 1)]

def build_frag_map():
    slots = []
    for m in 'qkv':
        for i in range(9): slots.append((m, i))
    for p in range(4):
        for c in range(2): slots.append(('o', p, c))
    slots.append(('o8',))
    lds_slots = [(m, i) for i, m in sorted(QK_LDS.items())] + [('o', p, c) for p, c in WO_LDS]
    reg_slots = [s for s in slots if s not in lds_slots]
    assert len(reg_slots) == 27 and len(lds_slots) == 9
    loc = {}
    for n, s in enumerate(reg_slots):
        for z in range(2):
            f = 2 * n + z
            loc[(s, z)] = ('a', 8 * f) if f < 32 else ('v', 80 + 8 * (f - 32))
    for n, s in enumerate(lds_slots):
        for z in range(2): loc[(s, z)] = ('lds', n * 4096 + z * 2048)
    return reg_slots, lds_slots, loc

REG_SLOTS, LDS_SLOTS, LOC = build_frag_map()

def frag_reg(s, z):
    t, r = LOC[(s, z)]
    assert t != 'lds'
    return vr(r, 8, t)

def actual_col(pos):
    c = pos // 64; pw = (pos % 64) // 16; jp = c // 3; tg = c % 3
    return (9 * pw + 3 * (2 - jp) + tg) * 16 + pos % 16
NCOPY = 1
M_CSTR = 0x10000
def m_imm(c): return (c % 4) * 1024

def chain_prologue(a, P, hook=None, hook2=None):
    a('; ---- chain prologue: weights ----')
    a(f'v_and_b32 v4, 63, v0')
    a(f'v_lshlrev_b32 v{V_L16}, 4, v4')
    a('v_lshrrev_b32 v8, 3, v4\nv_and_b32 v9, 7, v4\nv_lshlrev_b32 v9, 4, v9\nv_lshl_add_u32 v5, v8, 13, v9')
    a('v_lshrrev_b32 v8, 5, v4\nv_lshlrev_b32 v10, 4, v8')
    a('v_bfe_u32 v8, v4, 3, 1\nv_lshl_add_u32 v10, v8, 3, v10')
    a('v_bfe_u32 v8, v4, 4, 1\nv_lshl_add_u32 v10, v8, 2, v10')
    a('v_bfe_u32 v8, v4, 2, 1\nv_add_u32 v10, v10, v8')
    a('v_and_b32 v9, 3, v4\nv_lshlrev_b32 v9, 3, v9')
    a(f's_and_b32 s{S_CNT}, s{S_WV}, 1\ns_lshl_b32 s{S_CNT}, s{S_CNT}, 6')
    a(f'v_lshl_add_u32 v11, v10, 7, v9\nv_add_u32 v11, s{S_CNT}, v11')
    a(f's_mul_i32 s{S_T0}, s{S_WV}, 36864\ns_add_u32 s{S_T0}, s{S_T0}, {L_W}')
    a(f's_lshl_b32 s{S_T1}, s{S_WV}, 12')
    a(f's_and_b32 s{S_CNT}, s{S_WV}, 2\ns_lshl_b32 s{S_T4}, s{S_CNT}, 12\nv_add_u32 v14, s{S_T4}, v11')
    a(f's_mul_i32 s{S_T4}, s{S_CNT}, 36864\ns_add_u32 s{S_T4}, s{S_T4}, {L_W}\nv_add_u32 v13, s{S_T4}, v11\nv_add_u32 v15, 36864, v13')
    a(f'v_mul_u32_u24 v12, 1152, v10\nv_add_u32 v12, v12, v9\ns_mul_i32 s{S_T4}, s{S_WV}, 288\ns_add_u32 s{S_T4}, s{S_T4}, {L_W}\nv_add_u32 v12, s{S_T4}, v12\nv_add_u32 v16, 73728, v12')
    a(f'v_add_u32 v{V_WL}, s{S_T0}, v{V_L16}\nv_add_u32 v17, s{S_T1}, v{V_L16}')
    a(f'v_bfe_u32 v8, v4, 1, 1\nv_mul_u32_u24 v8, 0xAAAA, v8\nv_add_u32 v{V_IDX}, 0x4444, v8')
    a(f's_lshl_b32 s{S_T2}, s{S_H}, 8\ns_lshl_b32 s{S_CNT}, s{S_CNT}, 6\ns_add_u32 s{S_T2}, s{S_T2}, s{S_CNT}')
    a(f's_mul_i32 s{S_T3}, s{S_H}, 147456\ns_mul_i32 s{S_T4}, s{S_WV}, 36864\ns_add_u32 s{S_T3}, s{S_T3}, s{S_T4}')
    a(f's_mov_b32 s{S_ROT}, 0\ns_and_b32 s{S_T4}, s{S_WV}, 1')
    vm = Cnt(a, 'vmcnt', 63)
    cur_mat = [None]
    def set_srd(m):
        if cur_mat[0] == m: return
        cur_mat[0] = m
        p = P[{'q': 'Wq', 'k': 'Wk', 'v': 'Wv', 'o': 'Wo'}[m]]
        a(f's_mov_b32 s{S_W}, s{p}\ns_mov_b32 s{S_W+1}, s{p+1}\ns_mov_b32 s{S_W+2}, 4718592\ns_mov_b32 s{S_W+3}, 0x20000')
    qreg = [x for x in REG_SLOTS if x[0] in 'qkv' and x[0] != 'o' and x[0] != 'o8']
    qlds = [x for x in LDS_SLOTS if x[0] != 'o']
    assert len(qreg) == 22 and len(qlds) == 5
    TMPS = qreg[-4:]
    def issue_q(sl):
        set_srd(sl[0])
        for n in range(4):
            o0 = (actual_col(sl[1]*64 + (n >> 1)*16) + 8*(n & 1)) * 8192
            o1 = (actual_col(sl[1]*64 + (2 + (n >> 1))*16) + 8*(n & 1)) * 8192
            a(f's_mov_b32 s{S_CNT}, {o0}\ns_cmp_eq_u32 s{S_T4}, 1\ns_cselect_b32 s{S_CNT}, {o1}, s{S_CNT}\ns_add_u32 s{S_CNT}, s{S_CNT}, s{S_T2}')
            if sl in qlds:
                a(f's_add_u32 m0, s{S_T0}, {LDS_SLOTS.index(sl)*4096 + n*1024}\ns_nop 0')
                a(f'buffer_load_dwordx4 v5, s[{S_W}:{S_W+3}], s{S_CNT} offen lds')
            else:
                t, r = LOC[(sl, 0)]
                a(f'buffer_load_dwordx4 {vr(r + 4*n, 4, t)}, v5, s[{S_W}:{S_W+3}], s{S_CNT} offen')
            vm.issue(sl)
    def process_q(sl):
        vm.wait(sl)
        inl = sl in qlds
        if not inl:
            t, r = LOC[(sl, 0)]
            for n in range(4): a(f'ds_write_b128 v17, {vr(r + 4*n, 4, t)} offset:{n*1024}')
            a('s_waitcnt lgkmcnt(0)')
        a('s_barrier')
        boff = LDS_SLOTS.index(sl) * 4096 if inl else 0
        for z in range(2):
            t, r = LOC[(sl, z)]
            if inl: t, r = 'v', 20 + 8 * z
            for m in range(4):
                if inl: base = 13 if m < 2 else 15; off = boff + (m & 1) * 256 + z * 32
                else: base = 14; off = (m >> 1) * 4096 + (m & 1) * 256 + z * 32
                a(f'ds_read_b64_tr_b16 {vr(r + 2*m, 2, t)}, v{base} offset:{off}')
        a('s_waitcnt lgkmcnt(0)\ns_barrier')
        if inl:
            for q in range(4): a(f'ds_write_b128 v{V_WL}, {vr(20 + 4*q, 4)} offset:{boff + q*1024}')
    set_srd('o')
    for n in range(36):
        if n % 4 == 0: a(f's_add_u32 m0, s{S_T0}, {n*1024}\ns_add_u32 s{S_CNT}, s{S_T3}, {n*1024}\ns_nop 0')
        a(f'buffer_load_dwordx4 v{V_L16}, s[{S_W}:{S_W+3}], s{S_CNT} offen offset:{(n % 4)*1024} lds'); vm.issue('wo')
    pend = list(qreg[:-4]); inflight = []
    for _ in range(6):
        sl = pend.pop(0); issue_q(sl); inflight.append(sl)
    if hook: hook(vm)
    vm.wait('wo')
    a('s_barrier')
    for _ in range(7):
        sl = pend.pop(0); issue_q(sl); inflight.append(sl)
    tmp_of = {}
    k = 0
    for t in range(9):
        for c in range(2):
            key = (('o8',), c) if t == 8 else (('o', t // 2, c), t % 2)
            ty, r = LOC[key]
            if ty == 'lds':
                tt, rr = LOC[(TMPS[k // 2], k % 2)]; tmp_of[key] = (tt, rr); ty, r = tt, rr; k += 1
            for m in range(4):
                off = ((m >> 1) * 32 + (m & 1) * 2) * 1152 + t * 32
                a(f'ds_read_b64_tr_b16 {vr(r + 2*m, 2, ty)}, v{12 if c == 0 else 16} offset:{off}')
            if (t * 2 + c) % 3 == 2: a('s_waitcnt lgkmcnt(0)')
    a('s_waitcnt lgkmcnt(0)\ns_barrier')
    for key, (tt, rr) in tmp_of.items():
        off = LOC[key][1]
        for h_ in range(2): a(f'ds_write_b128 v{V_WL}, {vr(rr + 4*h_, 4, tt)} offset:{off + h_*1024}')
    a('s_waitcnt lgkmcnt(0)')
    pend = qlds + pend + list(TMPS)
    n_done = 0
    while inflight or pend:
        while pend and len(inflight) < 14:
            sl = pend.pop(0); issue_q(sl); inflight.append(sl)
            if not pend and hook2: hook2(vm)
        process_q(inflight.pop(0))
    a('s_waitcnt lgkmcnt(0)')

def lds_frag_read(a, lg, s, z, dst, tag):
    t, off = LOC[(s, z)]
    assert t == 'lds'
    a(f'ds_read_b128 {vr(dst, 4)}, v{V_WL} offset:{off}')
    a(f'ds_read_b128 {vr(dst+4, 4)}, v{V_WL} offset:{off+1024}')
    lg.issue(tag, 2)

def lds_half_read(a, lg, s, z, dst, tag, h):
    t, off = LOC[(s, z)]
    a(f'ds_read_b128 {vr(dst+4*h, 4)}, v{V_WL} offset:{off+1024*h}')
    lg.issue(tag, 1)

def timeout(a, lbl_ok_branch=None):
    a(f's_add_u32 s{S_CNT}, s{S_CNT}, 1')
    a(f's_cmp_gt_u32 s{S_CNT}, 0x40000')
    a(f's_cselect_b32 s{S_ABORT}, 1, s{S_ABORT}')

def emit_vma(a, dst, tmp):
    a(f'v_bfe_u32 v{tmp}, v{V_L16}, 6, 2')
    a(f'v_lshlrev_b32 v{dst}, 8, v{tmp}')
    a(f'v_lshrrev_b32 v{tmp}, 8, v{V_L16}')
    a(f'v_lshl_add_u32 v{dst}, v{tmp}, 6, v{dst}')
    a(f'v_bfe_u32 v{tmp}, v{V_L16}, 4, 1')
    a(f'v_lshl_add_u32 v{dst}, v{tmp}, 5, v{dst}')
    a(f'v_bfe_u32 v{tmp}, v{V_L16}, 5, 1')
    a(f'v_lshl_add_u32 v{dst}, v{tmp}, 4, v{dst}')

def R(i): return 4 + 4 * i
SLOT = {0: 0, 1: 1, 2: 2, 3: 3, 4: 4, 5: 5, 6: 6, 7: 0, 8: 1}
def AR(c): return R(SLOT[c])

def zero(a, regs):
    regs = sorted(regs); i = 0
    while i < len(regs):
        r = regs[i]
        if r % 2 == 0 and i + 1 < len(regs) and regs[i+1] == r + 1:
            a(f'v_mov_b64 v[{r}:{r+1}], 0'); i += 2
        else:
            a(f'v_mov_b32 v{r}, 0'); i += 1

def chain_loop(a, cfg, sfx, stf):
    NFULL = 4; NP = cfg.get('NP', 3)
    assert 2 <= NP <= 6
    D1 = cfg.get('D1', 0); D2 = cfg.get('D2', 0); D2R = cfg.get('D2R', 0)
    dbg = cfg.get('dbg', False)
    SRD = f's[{S_WS}:{S_WS+3}]'
    vm = Cnt(a, 'vmcnt', 63); lg = Cnt(a, 'lgkmcnt', 15)
    smap = cfg.get('smap', {str(k): k for k in range(8)})
    def stamp(k):
        if dbg and str(k) in smap:
            q = smap[str(k)]
            a(f'{"s_memrealtime" if cfg.get("rt") else "s_memtime"} s[{60+2*q}:{61+2*q}]')
    def smf(d, aa, b): a(f'v_smfmac_f32_16x16x64_bf16 {vr(d,4)}, {vr(aa,4)}, {b}, v{V_IDX}')
    def delay(n):
        if cfg.get('SLEEP', 1):
            if int(n): a(f's_sleep {int(n)}')
            fr = int(round((n - int(n)) * 16))
            if fr: a(f's_nop {fr-1}')
            return
        while n > 0:
            k = min(n, 16); a(f's_nop {k-1}'); n -= k
    def mf(d, x, y, cinit):
        c = vr(d, 4) if not cinit else '0'
        a(f'v_mfma_f32_16x16x32_bf16 {vr(d,4)}, {vr(x,4)}, {vr(y,4)}, {c}')
    L = lambda t: [x for x in t.split('\n') if x.strip()]
    VX0 = 32; VX1 = 36

    a.label(f'STEP{sfx}')
    lg.reset(['T'] * 4)
    a(f's_add_u32 s{S_MC1}, s{S_MC}, 4096\ns_add_u32 s{S_MC2}, s{S_MC}, 8192')
    a(f's_add_u32 m0, s{S_W1536}, {L_KXX}\ns_add_u32 s{S_T0}, s{S_MC}, s{S_W1536}\ns_add_u32 s{S_T0}, s{S_T0}, 3072')
    a(f's_mov_b32 s{S_CNT}, 0')
    def aoff(i): return m_imm(i)
    def msr(i): return (S_MC, S_MC1, S_MC2)[i // 4]
    def ldA(i, reg=None):
        a(f'buffer_load_dwordx4 {vr(AR(i) if reg is None else reg,4)}, v{V_X}, {SRD}, s{msr(i)} offen offset:{aoff(i)} sc1'); vm.issue(('A', i))
    SH = cfg.get('SHARE', 1)
    L_ST = L_KXX - 0
    def st1():
        a(f'buffer_load_dwordx4 v{V_L16}, {SRD}, s{S_T0} offen sc1 lds'); vm.issue('st')
    def st2():
        a(f's_mov_b64 exec, 0xffffffff')
        a(f'buffer_load_dwordx4 v{V_L16}, {SRD}, s{S_T0} offen offset:1024 sc1 lds'); vm.issue('st')
        a('s_mov_b64 exec, -1')
    CK = VX1 + 3
    PM = cfg.get('PM', 'np3')
    SPEC = cfg.get('SPECST', 0) and SH
    tmo = f"""s_add_u32 s{S_CNT}, s{S_CNT}, 1
s_cmp_gt_u32 s{S_CNT}, 0x40000
s_cselect_b32 s{S_ABORT}, 1, s{S_ABORT}
s_cmp_lg_u32 s{S_ABORT}, 0
s_cselect_b64 s[{S_T3}:{S_T4}], 0, -1"""
    a.label(f'POLLM0{sfx}')
    if PM == 'pipe1':
        ldA(0)
        delay(cfg.get('STG', 30))
        a.label(f'POLLM{sfx}')
        ldA(0, R(1))
        a(tmo)
        a('s_waitcnt vmcnt(1)')
        a(f'v_max_u32 v{CK}, v{R(0)+1}, v{R(0)+3}')
        a(f'v_cmp_eq_u32 vcc, -1, v{CK}')
        a(f's_and_b64 vcc, vcc, s[{S_T3}:{S_T4}]')
        a(f's_cbranch_vccz GOTM{sfx}')
        ldA(0)
        a('s_waitcnt vmcnt(1)')
        a(f'v_max_u32 v{CK}, v{R(1)+1}, v{R(1)+3}')
        a(f'v_cmp_eq_u32 vcc, -1, v{CK}')
        a(f's_cbranch_vccnz POLLM{sfx}')
        a(f'v_mov_b64 {vr(R(0),2)}, {vr(R(1),2)}\nv_mov_b64 {vr(R(0)+2,2)}, {vr(R(1)+2,2)}')
        a.label(f'GOTM{sfx}')
        vm.reset()
        ldA(1); ldA(2)
        NC = 1
    else:
        vm.reset()
        for i in range(3): ldA(i)
        if SPEC: st1(); st2()
        a(tmo)
        NC = cfg.get('NC', 3)
        for i in range(NC):
            vm.wait(('A', i))
            if i == 0: a(f'v_max_u32 v{CK}, v{AR(0)+1}, v{AR(0)+3}')
            else: a(f'v_max3_u32 v{CK}, v{CK}, v{AR(i)+1}, v{AR(i)+3}')
        a(f'v_cmp_eq_u32 vcc, -1, v{CK}')
        a(f's_and_b64 vcc, vcc, s[{S_T3}:{S_T4}]')
        a(f's_cbranch_vccnz POLLM0{sfx}')
    stamp(0)
    if dbg: a(f's_mov_b32 s52, s{S_CNT}')
    XB = R(2); TK = R(2) + 1
    fl = ['TBL']
    def bop(m, i, z):
        s = (m, i)
        if LOC[(s, z)][0] == 'lds': return vr(T0 if z == 0 else T1, 8)
        return frag_reg(s, z)
    lds_chunks = sorted(QK_LDS)
    def ldvx(q):
        a(f'buffer_load_dwordx4 {vr(VX0+4*q,4)}, v{V_L16}, {SRD}, s{S_VF} offen offset:{q*1024} sc1'); vm.issue('vx')
    def bar0():
        if SH: vm.wait('st')
        stamp(16)
        a('s_barrier')
        stamp(12)
    def pf1():
        a(f'v_lshlrev_b32 v{V_X}, 3, v{V_L16}')
        a(f's_mov_b32 m0, {L_QX}')
    def pf2():
        a(f's_mov_b64 exec, 0xffffffff')
        a(f'buffer_load_dword v{V_X}, {SRD}, s{S_PF} offen sc1 lds'); vm.issue('pf')
        a('s_mov_b64 exec, -1')
    def rdA(c):
        a(f'ds_read_b128 {vr(AR(c),4)}, v{V_X} offset:{L_ST + (c-3)*1024}'); lg.issue(('A', c))
    if SH:
        if SPEC:
            memq = {0: [lambda: ldvx(0), lambda: ldvx(1)],
                    1: [lambda: None] * cfg.get('B0P', 0) + [bar0, lambda: [rdA(c) for c in (3, 4, 5, 6)], lambda: rdA(7)],
                    2: [lambda: rdA(8)] + ([] if cfg.get('nopf') else [pf1, pf2])}
        else:
            memq = {0: [st1, st2, lambda: ldvx(0), lambda: ldvx(1)],
                    2: [bar0, lambda: [rdA(3), rdA(4)], lambda: [rdA(5), rdA(6)], lambda: [rdA(7), rdA(8)], lambda: None if cfg.get('nopf') else [pf1(), pf2()]]}
    else:
        memq = {0: [lambda: ldA(3), lambda: ldA(4), lambda: ldA(5), lambda: ldA(6), lambda: ldvx(0), lambda: ldvx(1)],
                1: [lambda: ldA(7)], 2: [lambda: ldA(8), bar0] + ([] if cfg.get('nopf') else [pf1, pf2])}
    first_ck = True
    side = []; NS = cfg.get('NS', 1)
    for i in range(9):
        mem = list(memq.get(i, [])); pend = []
        if i >= NC:
            if SH and i >= 3: lg.wait(('A', i))
            else: vm.wait(('A', i))
        if NC <= i <= 2:
            pr = (S_CK4, S_CK) if i == 1 else (S_CK2, S_CK3)
            pend.append(f'v_cmp_eq_u32 s[{pr[0]}:{pr[0]+1}], -1, v{AR(i)+1}'); pend.append(f'v_cmp_eq_u32 s[{pr[1]}:{pr[1]+1}], -1, v{AR(i)+3}')
        if i >= 3:
            if first_ck: pend.append(f'v_max_u32 v{V_X}, v{AR(i)+1}, v{AR(i)+3}'); first_ck = False
            else: pend.append(f'v_max3_u32 v{V_X}, v{V_X}, v{AR(i)+1}, v{AR(i)+3}')
        mats = ['q', 'k'] + (['v'] if i < NFULL else [])
        if i in QK_LDS: mats = [m for m in mats if m != QK_LDS[i]] + [QK_LDS[i]]
        for m in mats:
            for z in range(2):
                isl = i in QK_LDS and m == QK_LDS[i]
                if isl:
                    while any(t_ == ('T', z) for t_, _ in side): side.pop(0)[1]()
                    lg.wait(('T', z) if i else 'T')
                smf(ACC[f'{m}{z}'], AR(i), bop(m, i, z))
                if isl and i != lds_chunks[-1]:
                    nx = lds_chunks[lds_chunks.index(i) + 1]
                    for h_ in range(2):
                        side.append((('T', z), lambda nx=nx, z=z, h_=h_: lds_half_read(a, lg, (QK_LDS[nx], nx), z, T0 if z == 0 else T1, ('T', z), h_)))
                if pend: a(pend.pop(0))
                if mem: mem.pop(0)()
                elif side:
                    for _ in range(NS):
                        if side: side.pop(0)[1]()
                elif fl and i >= 5:
                    fl.pop(0); a(f'ds_read_b128 {vr(R(2),4)}, v{V_L16} offset:{L_TBL}'); lg.issue('tbl')
        assert not mem and not pend
    assert not side
    assert not fl, fl
    stamp(1)
    KX = {(0, 0): 64, (1, 0): 68, (0, 1): 72, (1, 1): 76, (0, 2): R(4), (1, 2): R(5), (0, 3): R(3), (1, 3): 64}
    def ldkx(t, ks):
        a(f'ds_read_b128 {vr(KX[(t, ks)],4)}, v{V_L16} offset:{L_KX + t*4096 + ks*1024}'); lg.issue(('kx', t, ks))
    vrem = [(i, z) for i in range(NFULL, 9) for z in range(2)]
    def vsm(n):
        for _ in range(n):
            if vrem:
                i, z = vrem.pop(0); smf(ACC[f'v{z}'], AR(i), bop('v', i, z))
    a(f'v_cmp_eq_u32 vcc, -1, v{V_X}')
    lg.wait('tbl')
    vsm(1)
    a(f'v_add_u32 v{XB}, s{S_W1K}, v{XB}')
    ldkx(0, 0); ldkx(1, 0); ldkx(0, 1); ldkx(1, 1)
    K0 = ACC['k0']; K1 = ACC['k1']; Q0 = ACC['q0']; Q1 = ACC['q1']
    a(f'v_pk_add_f32 {vr(K0,2)}, {vr(K0,2)}, {vr(K0+2,2)}')
    a(f'v_pk_add_f32 {vr(K1,2)}, {vr(K1,2)}, {vr(K1+2,2)}')
    a(f'v_cvt_pk_bf16_f32 v{K0}, v{K0}, v{K0+1}')
    a(f'v_cvt_pk_bf16_f32 v{K0+2}, v{K1}, v{K1+1}')
    a(f'v_pk_add_f32 {vr(Q0,2)}, {vr(Q0,2)}, {vr(Q0+2,2)}')
    a(f'v_pk_add_f32 {vr(Q1,2)}, {vr(Q1,2)}, {vr(Q1+2,2)}')
    a(f'v_pk_mul_f32 {vr(Q0,2)}, {vr(Q0,2)}, s[{S_SC}:{S_SC+1}]')
    a(f'v_pk_mul_f32 {vr(Q1,2)}, {vr(Q1,2)}, s[{S_SC}:{S_SC+1}]')
    a(f'v_cvt_pk_bf16_f32 v{K0+1}, v{Q0}, v{Q0+1}')
    a(f'v_cvt_pk_bf16_f32 v{K0+3}, v{Q1}, v{Q1+1}')
    a(f'ds_write2st64_b64 v{XB}, {vr(K0,2)}, {vr(K0+2,2)} offset0:{L_KXX//512} offset1:{L_KXX//512+1}'); lg.issue('xw')
    vsm(1)
    if NC == 1:
        for pr in (S_CK4, S_CK, S_CK2, S_CK3): a(f's_or_b64 vcc, vcc, s[{pr}:{pr+1}]')
    a(f's_and_b64 vcc, vcc, s[{S_T3}:{S_T4}]')
    if cfg.get('forceredo'): a(f's_and_b32 s{S_T0}, s{S_STEP}, 7\ns_cmp_eq_u32 s{S_T0}, s{S_WV}\ns_cselect_b64 vcc, -1, vcc')
    a(f's_cbranch_vccnz REDO{sfx}')
    a.label(f'REDOX{sfx}')
    vsm(1)
    a(f'v_lshrrev_b32 v{V_X}, 1, v{V_L16}')
    a(f'v_mov_b32 v{K1}, v{K0}\nv_mov_b32 v{K1+1}, v{K0+2}')
    vsm(1)
    if not cfg.get('nopub'):
        a(f'buffer_store_dwordx2 {vr(K1,2)}, v{V_X}, {SRD}, s{S_KM} offen sc1'); vm.issue('pub')
    ldkx(0, 2); ldkx(1, 2); ldkx(0, 3)
    vsm(cfg.get('VB', 2))
    stamp(17)
    lg.wait('xw')
    stamp(18)
    a('s_barrier')
    stamp(2)
    F = {0: 40, 1: 44, 2: 48, 3: 52}
    def ldf(ks):
        for hh in range(2):
            a(f'ds_read_b64_tr_b16 {vr(F[ks]+2*hh,2)}, v{TK} offset:{L_KXX + ks*1024 + hh*128}'); lg.issue(('f', ks))
    for ks in range(4): ldf(ks)
    vsm(len(vrem))
    stamp(3)
    SX0 = R(6); SX1 = R(0); SM = R(1)
    OW = 14; OW2 = 12; ORD = 15; ORD2 = 13; OT = V_X; OT2 = 62
    PX = 48; PMX = 52; PMY = 54
    f1 = L(f"""v_pk_add_f32 v[56:57], v[56:57], v[58:59]
v_pk_add_f32 v[60:61], v[60:61], v[62:63]
v_cvt_pk_bf16_f32 v56, v56, v57
v_cvt_pk_bf16_f32 v57, v60, v61""")
    f2 = L(f"""v_xor_b32 v{OW}, s{S_W64}, v{OW}
v_xor_b32 v{OW2}, 32, v{OW}
v_xor_b32 v{ORD2}, 128, v{ORD}""")
    def fill(lst, n):
        for _ in range(n):
            if lst: a(lst.pop(0))
    lg.wait(('f', 0))
    mf(SX0, KX[(0, 0)], F[0], True); mf(SX1, KX[(1, 0)], F[0], True)
    ldkx(1, 3)
    mf(SM, F[0], F[0], True)
    lg.wait(('f', 1))
    mf(SX0, KX[(0, 1)], F[1], False); mf(SX1, KX[(1, 1)], F[1], False); fill(f1, 2)
    mf(SM, F[1], F[1], False); fill(f1, 2)
    lg.wait(('f', 2))
    mf(SX0, KX[(0, 2)], F[2], False)
    if not cfg.get('nopub'):
        a(f'buffer_store_dwordx2 v[56:57], v{V_X}, {SRD}, s{S_KM} offen offset:512 sc1'); vm.issue('pub')
    mf(SX1, KX[(1, 2)], F[2], False); fill(f2, 2)
    mf(SM, F[2], F[2], False); fill(f2, 2)
    lg.wait(('f', 3))
    mf(SM, F[3], F[3], False); fill(f2, 2)
    mf(SX0, KX[(0, 3)], F[3], False); fill(f2, 2)
    lg.wait(('kx', 1, 3))
    mf(SX1, KX[(1, 3)], F[3], False)
    B0 = 48; B1 = 56; B2 = 64; B3 = 72
    stamp(4)
    MX = 58; M2 = 59; LS = 60; L2 = 61
    B4 = 40
    lds_frag_read(a, lg, ('o', 1, 1), 0, B4, ('w', 2))
    lds_frag_read(a, lg, ('o', 0, 1), 1, B3, ('w', 1))
    a(f'v_max3_f32 v{MX}, v{SM}, v{SM+1}, v{SX0}')
    a(f'v_max3_f32 v{MX}, v{MX}, v{SX0+1}, v{SX0+2}')
    a(f'v_mov_b32 v{PMX+1}, 0\nv_mov_b32 v{PMY}, 0')
    a(f'v_max3_f32 v{M2}, v{SX1}, v{SX1+1}, v{SX1+2}')
    a(f'v_max3_f32 v{MX}, v{MX}, v{SX0+3}, v{SX1+3}')
    a(f'v_max_f32 v{MX}, v{MX}, v{M2}')
    a(f'v_max_f32 v{M2}, v{MX}, v{M2}')
    a(f'v_mov_b64 {vr(R(3),2)}, s[{S_ONE}:{S_ONE+1}]\nv_mov_b64 {vr(R(3)+2,2)}, s[{S_ONE}:{S_ONE+1}]')
    a(f'v_permlane32_swap_b32 v{MX}, v{M2}')
    a(f'v_max_f32 v{MX}, v{MX}, v{M2}')
    a(f'v_max_f32 v{M2}, v{MX}, v{M2}')
    lds_frag_read(a, lg, ('o', 0, 1), 0, B2, ('w', 0))
    a(f'v_permlane16_swap_b32 v{MX}, v{M2}')
    a(f'v_max_f32 v{MX}, v{MX}, v{M2}')
    stamp(13)
    rs = (SX0, SX0+2, SX1, SX1+2)
    for r in rs + (SM,): a(f'v_pk_add_f32 {vr(r,2)}, {vr(r,2)}, {vr(MX,2)} op_sel_hi:[1,0] neg_lo:[0,1] neg_hi:[0,1]')
    for k, r in enumerate(rs):
        a(f'v_exp_f32 v{r}, v{r}\nv_exp_f32 v{r+1}, v{r+1}')
        if k: a(f'v_cvt_pk_bf16_f32 v{PX+k-1}, v{rs[k-1]}, v{rs[k-1]+1}')
    a(f'v_exp_f32 v{SM}, v{SM}')
    a(f'v_cvt_pk_bf16_f32 v{PX+3}, v{rs[3]}, v{rs[3]+1}')
    a(f'v_exp_f32 v{SM+1}, v{SM+1}')
    OX = R(4); OY = R(5); ONE = R(3); LS = 60
    vm.wait('vx')
    mf(LS, ONE, PX, True)
    a(f'v_cvt_pk_bf16_f32 v{PMX}, v{SM}, v{SM+1}\nv_cvt_pk_bf16_f32 v{PMY+1}, v{SM}, v{SM+1}')
    mf(OX, VX0, PX, True)
    a(f'v_mfma_f32_16x16x16_bf16 {vr(LS,4)}, {vr(ONE,2)}, {vr(PMX,2)}, {vr(LS,4)}')
    mf(OY, VX1, PX, True)
    a(f'v_mfma_f32_16x16x16_bf16 {vr(OX,4)}, v[56:57], {vr(PMX,2)}, {vr(OX,4)}')
    a(f'v_mfma_f32_16x16x16_bf16 {vr(OY,4)}, v[56:57], {vr(PMY,2)}, {vr(OY,4)}')
    stamp(14)
    lds_frag_read(a, lg, ('o', 1, 1), 1, B0, ('w', 3))
    fill(f2, 99)
    zero(a, range(SX0, SX0 + 4))
    a(f'v_rcp_f32 v{LS}, v{LS}')
    zero(a, range(VX0, VX0 + 8))
    for o in (OX, OY):
        a(f'v_pk_mul_f32 {vr(o,2)}, {vr(o,2)}, {vr(LS,2)} op_sel_hi:[1,0]')
        a(f'v_pk_mul_f32 {vr(o+2,2)}, {vr(o+2,2)}, {vr(LS,2)} op_sel_hi:[1,0]')
        a(f'v_cvt_pk_bf16_f32 v{o}, v{o}, v{o+1}\nv_cvt_pk_bf16_f32 v{o+1}, v{o+2}, v{o+3}')
        if o == OX:
            a(f's_mov_b64 exec, s[{S_MK_KEY}:{S_MK_KEY+1}]')
            a(f'ds_write_b64 v{OW}, {vr(OX,2)} offset:{L_OX}'); lg.issue('ow')
    a(f'ds_write_b64 v{OW2}, {vr(OY,2)} offset:{L_OX}'); lg.issue('ow')
    a('s_mov_b64 exec, -1')
    stamp(15)
    WACC = 12
    zero(a, [12, 14] + list(range(16, 28)))
    lg.wait('ow')
    a('s_barrier')
    stamp(5)
    OA0 = 4; OA1 = 8
    a(f'ds_read_b128 {vr(OA0,4)}, v{ORD} offset:{L_OX}'); lg.issue('oa0')
    a(f'ds_read_b128 {vr(OA1,4)}, v{ORD2} offset:{L_OX}'); lg.issue('oa1')
    lds_frag_read(a, lg, ('o', 3, 1), 0, B1, ('w', 6))
    zero(a, [ORD, ORD2])
    def wacc(t): return WACC + 4 * t
    def post_tile(t):
        d = wacc(t); q = wacc(t - t % 3) + t % 3
        return [f'v_pk_add_f32 {vr(d,2)}, {vr(d,2)}, {vr(d+2,2)}', f'v_cvt_pk_bf16_f32 v{q}, v{d}, v{d+1}']
    def post_group(j):
        ops = post_tile(3*j) + [f'v_mov_b32 v{wacc(3*j)+3}, s{S_TAG}'] + post_tile(3*j+1) + post_tile(3*j+2)
        return ops + [('v', f'buffer_store_dwordx4 {vr(wacc(3*j),4)}, v{V_L16}, {SRD}, s{S_PST} offen offset:{j*1024} {stf}'.rstrip())]
    def wf(t, c):
        if t == 8: return frag_reg(('o8',), c)
        return frag_reg(('o', t // 2, c), t % 2)
    lbuf = {0: B2, 1: B3, 2: B4, 3: B0, 4: B2, 5: B3, 6: B1, 7: B0}
    reload_ = {0: 4, 1: 5, 3: 7}; wside = []
    seq = [(0,0),(1,0),(2,0),(0,1),(1,1),(2,1), (3,0),(4,0),(5,0),(3,1),(4,1),(5,1), (6,0),(7,0),(8,0),(8,1),(6,1),(7,1)]
    fillers = {k: [] for k in range(40)}
    PL = cfg.get('PL', 3)
    for j_, start in ((0, cfg.get('PS', 8)), (1, cfg.get('PS', 8) + 6)):
        k = start; cnt = 0
        for op in post_group(j_):
            fillers[k].append(op); cnt += 1
            if cnt % PL == 0: k += 1
    for k_, r_ in enumerate(range(40, 48, 2)): fillers[6 + k_ // 2].append(f'v_mov_b64 v[{r_}:{r_+1}], 0')
    lg.wait('oa0')
    stamp(8)
    for n_, (t, c) in enumerate(seq):
        if n_ == 3: lg.wait('oa1')
        if c == 1 and t != 8:
            lg.wait(('w', t)); b = vr(lbuf[t], 8)
        else: b = wf(t, c)
        smf(wacc(t), OA0 if c == 0 else OA1, b)
        if c == 1 and t in reload_:
            for h_ in range(2): wside.append(lambda t=t, h_=h_: lds_half_read(a, lg, ('o', reload_[t]//2, 1), reload_[t] % 2, lbuf[t], ('w', reload_[t]), h_))
        if wside: wside.pop(0)()
        for f in fillers[n_]:
            if isinstance(f, tuple): a(f[1]); vm.issue('pst')
            else: a(f)
    stamp(9)
    for k in range(18, 40):
        for f in fillers[k]:
            if isinstance(f, tuple): a(f[1]); vm.issue('pst')
            else: a(f)
    g2 = post_tile(8) + post_tile(6) + [f'v_mov_b32 v{wacc(6)+3}, s{S_TAG}'] + post_tile(7)
    a(g2[0]); a(g2[2]); a(g2[1]); a(g2[3]); a(g2[4]); a(g2[5]); a(g2[6])
    a(post_group(2)[-1][1]); vm.issue('pst')
    stamp(6)
    if not cfg.get('static'):
        a(f's_add_u32 s{S_VF}, s{S_VF}, {32*8192}\ns_add_u32 s{S_PF}, s{S_PF}, {32*8192}')
    a(f's_add_u32 s{S_KM}, s{S_KM}, {32*4096}\ns_xor_b32 s{S_PST}, s{S_PST}, s{S_PO}')
    a(f's_add_u32 s{S_STEP}, s{S_STEP}, 1')
    a(f's_and_b32 s{S_T0}, s{S_STEP}, 3\ns_lshl_b32 s{S_TAG}, s{S_T0}, 7\ns_add_u32 s{S_TAG}, s{S_TAG}, 0x3f80\ns_lshl_b32 s{S_TGN}, s{S_T0}, 23\ns_add_u32 s{S_TGN}, s{S_TGN}, 0x43000000')
    c0 = sorted(QK_LDS)[0]
    SEL = 36; RACC = 72; RL = 76; RO = 77; RT = 78; RT2 = 79; NEG = 4
    a(f's_bitcmp0_b32 s{S_RED}, 0\ns_cbranch_scc1 NORED{sfx}')
    PP = 12288
    a(f'v_lshrrev_b32 v{RT}, 8, v{V_L16}\nv_mul_u32_u24 v{RL}, {PP}, v{RT}\nv_and_or_b32 v{RL}, v{V_L16}, s{S_F0}, v{RL}')
    a(f's_add_u32 s{S_T2}, s{S_PC}, s{S_RLD}')
    a(f's_mov_b32 s{S_CNT}, 0')
    delay(D1)
    if cfg.get('D1W1'):
        a(f's_cmp_eq_u32 s{S_WV}, 0\ns_cbranch_scc1 NOD1W{sfx}')
        delay(cfg['D1W1'])
        a.label(f'NOD1W{sfx}')
    stamp(10)
    def pl():
        for it in range(8):
            a(f'buffer_load_dwordx4 {vr(4+4*it,4)}, v{RL}, {SRD}, s{S_T2} offen sc1'); vm.issue(('r', it))
            a(f's_add_u32 s{S_T2}, s{S_T2}, {4*PP if it < 7 else -7*4*PP & 0xffffffff}')
    vm.reset(); pl()
    a(f'v_bfe_u32 v{RT2}, v{V_L16}, 4, {4 if NCOPY == 1 else 3}')
    a(f'v_and_b32 v{RO}, 1, v{RT2}\nv_lshlrev_b32 v{RO}, 4, v{RO}')
    a(f'v_mov_b32 v{RACC}, 0x3f80\nv_lshlrev_b32 v{RO}, v{RO}, v{RACC}')
    a(f'v_lshrrev_b32 v{RACC}, 1, v{RT2}')
    for r in range(4):
        a(f'v_cmp_eq_u32 vcc, {r}, v{RACC}')
        zero(a, range(40 + 4*r, 44 + 4*r))
        a(f'v_cndmask_b32 v{SEL+r}, 0, v{RO}, vcc')
    a(f'v_and_b32 v{RO}, 1, v{RT2}\nv_lshlrev_b32 v{RO}, 5, v{RO}\nv_lshl_add_u32 v{RO}, v{RACC}, 10, v{RO}')
    a(f'v_lshl_add_u32 v{RO}, v{RT}, 3, v{RO}')
    a(f'v_add_u32 v{RO}, s{S_RB}, v{RO}')
    if NCOPY > 1: a(f'v_bfe_u32 v{RACC}, v{V_L16}, 7, 1\nv_lshl_add_u32 v{RO}, v{RACC}, 16, v{RO}')
    zero(a, range(56, 64))
    emit_vma(a, V_X, RT2)
    lg.reset()
    lds_frag_read(a, lg, (QK_LDS[c0], c0), 0, T0, 'T')
    a.label(f'RWAIT{sfx}')
    for it in range(8):
        vm.wait(('r', it))
        if it == 0: stamp(11)
        mf(RACC, 4 + 4*it, SEL, it == 0)
    a(f's_add_u32 s{S_T0}, s{S_MN}, s{S_DUP}' if NCOPY == 1 else f's_sub_u32 s{S_T0}, s{S_MN}, s{S_DUP}')
    a(f'v_pk_add_f32 {vr(RT,2)}, {vr(RACC,2)}, {vr(RACC+2,2)}')
    a(f'v_cvt_pk_bf16_f32 v{RACC}, v{RACC}, v{RACC+1}\nv_cvt_pk_bf16_f32 v{RACC+1}, v{RACC+2}, v{RACC+3}')
    a(f'v_add_f32 v{RT}, v{RT}, v{RT2}')
    a(f'v_cmp_neq_f32 vcc, s{S_TAGS}, v{RT}')
    a(f's_mov_b64 exec, s[{S_MK_J8}:{S_MK_J8+1}]')
    a(f's_and_b64 vcc, vcc, s[{S_MK_N6}:{S_MK_N6+1}]')
    a(f's_cbranch_vccnz RCHK{sfx}')
    a.label(f'RGO{sfx}')
    if NCOPY == 1:
        a(f'buffer_store_dwordx2 {vr(RACC,2)}, v{RO}, {SRD}, s{S_MN} offen {stf}'.rstrip())
    else:
        for c in range(NCOPY // 2):
            a(f'buffer_store_dwordx2 {vr(RACC,2)}, v{RO}, {SRD}, s{S_T0} offen {stf}'.rstrip())
            if c < NCOPY // 2 - 1: a(f's_add_u32 s{S_T0}, s{S_T0}, {2*M_CSTR}')
    stamp(7)
    if dbg: a(f's_mov_b32 s53, s{S_CNT}')
    a(f'v_mov_b64 v[{NEG}:{NEG+1}], -1')
    if NCOPY == 1:
        a(f'buffer_store_dwordx2 {vr(NEG,2)}, v{RO}, {SRD}, s{S_MC} offen {stf}'.rstrip())
    else:
        a(f's_sub_u32 s{S_T0}, s{S_MC}, s{S_DUP}')
        for c in range(NCOPY // 2):
            a(f'buffer_store_dwordx2 {vr(NEG,2)}, v{RO}, {SRD}, s{S_T0} offen {stf}'.rstrip())
            if c < NCOPY // 2 - 1: a(f's_add_u32 s{S_T0}, s{S_T0}, {2*M_CSTR}')
    a('s_mov_b64 exec, -1')
    lds_frag_read(a, lg, (QK_LDS[c0], c0), 1, T1, 'T')
    delay(D2R)
    a(f's_branch NEXT{sfx}')
    a.label(f'NORED{sfx}')
    a(f's_cmp_lt_u32 s{S_WV}, 2\ns_cbranch_scc1 NODMA{sfx}')
    a(f's_mov_b32 m0, s{S_KXL}')
    for q in range(4): a(f'buffer_load_dwordx4 v{V_L16}, {SRD}, s{S_KF} offen offset:{q*1024} sc1 lds')
    a.label(f'NODMA{sfx}')
    zero(a, range(40, 64))
    lds_frag_read(a, lg, (QK_LDS[c0], c0), 0, T0, 'T'); lds_frag_read(a, lg, (QK_LDS[c0], c0), 1, T1, 'T')
    emit_vma(a, V_X, 4)
    delay(D2)
    a.label(f'NEXT{sfx}')
    if cfg.get('cprof'):
        a(f's_cmp_lg_u32 s{S_WV}, 3\ns_cbranch_scc1 NCP{sfx}')
        a('s_memrealtime s[60:61]\ns_memtime s[62:63]\ns_waitcnt lgkmcnt(0)')
        a(f's_lshl_b32 s{S_T0}, s{S_H}, 9\ns_lshl_b32 s{S_T1}, s{S_STEP}, 3\ns_add_u32 s{S_T0}, s{S_T0}, s{S_T1}\ns_add_u32 s{S_T0}, s{S_T0}, {WS_DBG + 0xA0000}')
        a('v_mov_b32 v4, s60\nv_mov_b32 v5, s62\nv_mov_b32 v6, 0\ns_mov_b64 exec, 1')
        a(f'buffer_store_dwordx2 v[4:5], v6, {SRD}, s{S_T0} offen\ns_mov_b64 exec, -1')
        a.label(f'NCP{sfx}')
    if dbg:
        a('s_waitcnt lgkmcnt(0)')
        a(f's_sub_u32 s{S_T0}, s{S_STEP}, 1\ns_lshl_b32 s{S_T0}, s{S_T0}, 7\ns_lshl_b32 s{S_T1}, s{S_H}, 2\ns_add_u32 s{S_T0}, s{S_T0}, s{S_T1}\ns_add_u32 s{S_T0}, s{S_T0}, s{S_WV}\ns_lshl_b32 s{S_T0}, s{S_T0}, 6\ns_add_u32 s{S_T0}, s{S_T0}, {WS_DBG}')
        for k in range(8): a(f'v_writelane_b32 v4, s{60+2*k}, {k}')
        a('v_writelane_b32 v4, s52, 8\nv_writelane_b32 v4, s53, 9\nv_writelane_b32 v4, s25, 10')
        a(f'v_lshrrev_b32 v5, 2, v{V_L16}')
        a('s_mov_b64 exec, 0x7ff')
        a(f'buffer_store_dword v4, v5, {SRD}, s{S_T0} offen')
        a('s_mov_b64 exec, -1')
    a(f's_xor_b32 s{S_PC}, s{S_PC}, s{S_PO}\ns_mov_b32 s{S_TAGS}, s{S_TGN}')
    if not cfg.get('static'): a(f's_add_u32 s{S_KF}, s{S_KF}, {32*8192}')
    a(f's_mov_b32 s{S_T0}, s{S_MC}\ns_mov_b32 s{S_MC}, s{S_MN}\ns_mov_b32 s{S_MN}, s{S_MP}\ns_mov_b32 s{S_MP}, s{S_T0}')
    if cfg.get('_kvwait'):
        a(f's_cmp_lg_u32 s{S_STEP}, 12\ns_cbranch_scc1 NKW{sfx}')
        cfg['_kvwait'](a)
        a.label(f'NKW{sfx}')
    a(f's_cmp_lt_u32 s{S_STEP}, 63\ns_cbranch_scc1 STEP{sfx}')
    FA = lambda i: 4 + 4 * i
    a(f's_add_u32 s{S_MC1}, s{S_MC}, 4096\ns_add_u32 s{S_MC2}, s{S_MC}, 8192')
    a(f's_mov_b32 s{S_CNT}, 0')
    a.label(f'FPOLL{sfx}')
    a(f'v_subrev_u32 v41, s{S_ROTB}, v{V_X}')
    for i in range(9): a(f'buffer_load_dwordx4 {vr(FA(i),4)}, v{V_X if i < 3 else 41}, {SRD}, s{msr(i)} offen offset:{aoff(i)} sc1')
    timeout(a)
    a('s_waitcnt vmcnt(0)')
    a(f'v_max_u32 v40, v{FA(0)+1}, v{FA(0)+3}')
    for i in range(1, 9): a(f'v_max3_u32 v40, v40, v{FA(i)+1}, v{FA(i)+3}')
    a('v_cmp_eq_u32 vcc, -1, v40')
    a(f's_cmp_lg_u32 s{S_ABORT}, 0\ns_cbranch_scc1 FGO{sfx}')
    a(f's_cbranch_vccnz FPOLL{sfx}')
    a.label(f'FGO{sfx}')
    klds = [i for i in lds_chunks if QK_LDS[i] == 'k']
    assert len(klds) == 2
    lds_frag_read(a, lg, ('k', klds[0]), 0, T0, 'T'); lds_frag_read(a, lg, ('k', klds[0]), 1, T1, 'T')
    lds_frag_read(a, lg, ('k', klds[1]), 0, 40, 'T')
    for i in range(9):
        if i in klds: continue
        for z in range(2): smf(ACC[f'k{z}'], FA(i), frag_reg(('k', i), z))
    a('s_waitcnt lgkmcnt(0)')
    smf(ACC['k0'], FA(klds[0]), vr(T0, 8)); smf(ACC['k1'], FA(klds[0]), vr(T1, 8)); smf(ACC['k0'], FA(klds[1]), vr(40, 8))
    lds_frag_read(a, lg, ('k', klds[1]), 1, T0, 'T')
    for i in range(9):
        for z in range(2): smf(ACC[f'v{z}'], FA(i), frag_reg(('v', i), z))
    a('s_waitcnt lgkmcnt(0)')
    smf(ACC['k1'], FA(klds[1]), vr(T0, 8))
    a(f'v_lshrrev_b32 v{V_X}, 1, v{V_L16}')
    for nm, d in (('v0', 42), ('v1', 43), ('k0', 40), ('k1', 41)):
        r = ACC[nm]
        a(f'v_pk_add_f32 {vr(r,2)}, {vr(r,2)}, {vr(r+2,2)}')
        a(f'v_cvt_pk_bf16_f32 v{d}, v{r}, v{r+1}')
        if nm == 'v1': a(f'buffer_store_dwordx2 v[42:43], v{V_X}, {SRD}, s{S_KM} offen offset:512 sc1')
    a(f'buffer_store_dwordx2 v[40:41], v{V_X}, {SRD}, s{S_KM} offen sc1')
    a('s_branch CHAIN_DONE')
    a.label(f'REDO{sfx}')
    if dbg: a('s_add_u32 s25, s25, 0x10000')
    a('s_waitcnt vmcnt(0) lgkmcnt(0)')
    a('s_nop 15')
    zero(a, range(40, 64))
    emit_vma(a, V_X, T0)
    a(f'v_subrev_u32 v{T0+1}, s{S_ROTB}, v{V_X}')
    done_v = [(i, z) for i in range(NFULL) for z in range(2)] + [(4, 0), (4, 1)]
    for c in range(9):
        l = f'RD{c}{sfx}'
        dst = AR(c) if c >= 5 else R(3)
        a.label(l)
        a(f'buffer_load_dwordx4 {vr(dst,4)}, v{V_X if c < 3 else T0+1}, {SRD}, s{msr(c)} offen offset:{aoff(c)} sc1')
        timeout(a)
        a(f's_cmp_lg_u32 s{S_ABORT}, 0\ns_cselect_b64 s[{S_T3}:{S_T4}], 0, -1')
        a('s_waitcnt vmcnt(0)')
        a(f'v_max_u32 v{T0+2}, v{dst+1}, v{dst+3}\nv_cmp_eq_u32 vcc, -1, v{T0+2}\ns_and_b64 vcc, vcc, s[{S_T3}:{S_T4}]')
        a(f's_cbranch_vccnz {l}')
        for m in 'qkv':
            for z in range(2):
                if m == 'v' and (c, z) not in done_v: continue
                if LOC[((m, c), z)][0] == 'lds':
                    lds_frag_read(a, lg, (m, c), z, T1, 'T'); a('s_waitcnt lgkmcnt(0)')
                    smf(ACC[f'{m}{z}'], dst, vr(T1, 8))
                else: smf(ACC[f'{m}{z}'], dst, frag_reg((m, c), z))
    a('s_nop 15')
    for ks in range(2):
        for t in range(2): a(f'ds_read_b128 {vr(KX[(t, ks)],4)}, v{V_L16} offset:{L_KX + t*4096 + ks*1024}')
    a(f'v_pk_add_f32 {vr(K0,2)}, {vr(K0,2)}, {vr(K0+2,2)}')
    a(f'v_pk_add_f32 {vr(K1,2)}, {vr(K1,2)}, {vr(K1+2,2)}')
    a(f'v_cvt_pk_bf16_f32 v{K0}, v{K0}, v{K0+1}')
    a(f'v_cvt_pk_bf16_f32 v{K0+2}, v{K1}, v{K1+1}')
    a(f'v_pk_add_f32 {vr(Q0,2)}, {vr(Q0,2)}, {vr(Q0+2,2)}')
    a(f'v_pk_add_f32 {vr(Q1,2)}, {vr(Q1,2)}, {vr(Q1+2,2)}')
    a(f'v_pk_mul_f32 {vr(Q0,2)}, {vr(Q0,2)}, s[{S_SC}:{S_SC+1}]')
    a(f'v_pk_mul_f32 {vr(Q1,2)}, {vr(Q1,2)}, s[{S_SC}:{S_SC+1}]')
    a(f'v_cvt_pk_bf16_f32 v{K0+1}, v{Q0}, v{Q0+1}')
    a(f'v_cvt_pk_bf16_f32 v{K0+3}, v{Q1}, v{Q1+1}')
    a(f'ds_write2st64_b64 v{XB}, {vr(K0,2)}, {vr(K0+2,2)} offset0:{L_KXX//512} offset1:{L_KXX//512+1}')
    a('s_waitcnt lgkmcnt(0)')
    a(f's_branch REDOX{sfx}')
    a.label(f'RCHK{sfx}')
    a('s_mov_b64 exec, -1')
    a(f's_cmp_lt_u32 s{S_CNT}, 8\ns_cbranch_scc1 RCH2{sfx}')
    a(f's_sub_u32 s{S_T1}, s{S_TAGS}, 0x43000000\ns_lshr_b32 s{S_T1}, s{S_T1}, 16\ns_add_u32 s{S_T1}, s{S_T1}, 0x3f80')
    a(f'v_xor_b32 v{RT}, s{S_T1}, v7')
    for it in range(1, 8): a(f'v_xor_b32 v{RT2}, s{S_T1}, v{7+4*it}\nv_or_b32 v{RT}, v{RT}, v{RT2}')
    a(f'v_cmp_ne_u32 vcc, 0, v{RT}')
    a(f's_cbranch_vccnz RCH2{sfx}')
    a(f's_mov_b64 exec, s[{S_MK_J8}:{S_MK_J8+1}]')
    a(f's_branch RGO{sfx}')
    a.label(f'RCH2{sfx}')
    pl()
    timeout(a)
    a(f's_cmp_eq_u32 s{S_ABORT}, 0\ns_cbranch_scc1 RWAIT{sfx}')
    a('s_waitcnt vmcnt(0)')
    a(f's_mov_b64 exec, s[{S_MK_J8}:{S_MK_J8+1}]')
    a(f's_branch RGO{sfx}')

def next_prep(a, lg):
    for r in range(40, 64): a(f'v_mov_b32 v{r}, 0')
    c0 = sorted(QK_LDS)[0]
    lds_frag_read(a, lg, (QK_LDS[c0], c0), 0, T0, 'T'); lds_frag_read(a, lg, (QK_LDS[c0], c0), 1, T1, 'T')
    emit_vma(a, V_X, 4)

def chain_init(a, P, cfg):
    SRD = f's[{S_WS}:{S_WS+3}]'
    a(f's_mov_b32 s{S_STEP}, 0\ns_mov_b32 s{S_ABORT}, {1 if cfg.get("free") else 0}')
    a(f's_mov_b32 s{S_PC}, {WS_P}\ns_mov_b32 s{S_PO}, {WS_P ^ (WS_P + 0x80000)}')
    a(f's_mul_i32 s{S_T0}, s{S_H}, 12288\ns_add_u32 s{S_PST}, s{S_PC}, s{S_T0}\ns_mul_i32 s{S_T0}, s{S_WV}, 3072\ns_add_u32 s{S_PST}, s{S_PST}, s{S_T0}')
    a(f's_mov_b32 s{S_TAG}, 0x3f80\ns_mov_b32 s{S_TAGS}, 0x43000000\ns_lshl_b32 s{S_ROTB}, s{S_ROT}, 7')
    a(f's_mov_b32 s{S_MK_N6}, 0x00400040\ns_mov_b32 s{S_MK_N6+1}, 0x00400040')
    if cfg.get('free'): a(f's_mov_b64 s[{S_MK_N6}:{S_MK_N6+1}], 0')
    a(f's_mov_b32 s{S_MC}, {WS_M}\ns_mov_b32 s{S_MN}, {WS_M + M_STRIDE}\ns_mov_b32 s{S_MP}, {WS_M + 2*M_STRIDE}')
    a(f's_lshl_b32 s{S_T0}, s{S_H}, 13\ns_lshl_b32 s{S_T1}, s{S_WV}, 11\ns_add_u32 s{S_T1}, s{S_T0}, s{S_T1}')
    a(f's_add_u32 s{S_VF}, s{S_T1}, {WS_VF}')
    a(f's_and_b32 s{S_W2K}, s{S_WV}, 1\ns_lshl_b32 s{S_W2K}, s{S_W2K}, 12\ns_mov_b32 s{S_KXL}, s{S_W2K}')
    a(f's_add_u32 s{S_KF}, s{S_T0}, s{S_W2K}\ns_add_u32 s{S_KF}, s{S_KF}, {WS_KF + 32*8192}')
    a(f's_add_u32 s{S_PF}, s{S_T0}, {WS_VF + 32*8192}\ns_add_u32 s{S_T1}, s{S_T0}, {WS_KF + 2*32*8192}')
    a(f's_cmp_ge_u32 s{S_WV}, 2\ns_cselect_b32 s{S_PF}, s{S_T1}, s{S_PF}\ns_add_u32 s{S_PF}, s{S_PF}, s{S_W2K}\ns_lshl_b32 s{S_W2K}, s{S_WV}, 11')
    a(f's_mul_i32 s{S_W1536}, s{S_WV}, 1536\ns_mov_b32 s{S_ONE}, 0x3f803f80\ns_mov_b32 s{S_ONE+1}, 0x3f803f80')
    a(f's_lshl_b32 s{S_W1K}, s{S_WV}, 10\ns_lshl_b32 s{S_W64}, s{S_WV}, 6\ns_mov_b32 s{S_F0}, 0xf0')
    a(f's_lshl_b32 s{S_T0}, s{S_H}, 12\ns_lshl_b32 s{S_T1}, s{S_WV}, 10\ns_add_u32 s{S_T0}, s{S_T0}, s{S_T1}')
    a(f's_add_u32 s{S_KM}, s{S_T0}, {WS_KM}')
    a(f's_mov_b32 s{S_MK_KEY}, 0xcccccccc\ns_mov_b32 s{S_MK_KEY+1}, 0xcccccccc')
    a(f's_mov_b32 s{S_MK_J8}, 0x003f003f\ns_mov_b32 s{S_MK_J8+1}, 0x003f003f')
    import struct
    c = math.log2(math.e) / math.sqrt(128.0)
    a(f's_mov_b32 s{S_SC}, 0x{struct.unpack("<I", struct.pack("<f", c))[0]:08x}\ns_mov_b32 s{S_SC+1}, s{S_SC}')
    a(f's_mov_b32 s{S_RED}, 0')
    a(f's_lshr_b32 s{S_T0}, s{S_H}, 4\ns_and_b32 s{S_T1}, s{S_H}, 15')
    a(f's_cmp_eq_u32 s{S_WV}, 0\ns_cselect_b32 s{S_RED}, 1, 0')
    l = a.newlabel('RT')
    a(f's_cmp_lg_u32 s{S_WV}, 1\ns_cbranch_scc1 {l}\ns_cmp_ge_u32 s{S_H}, 16\ns_cbranch_scc1 {l}')
    a(f's_mov_b32 s{S_RED}, 1\ns_mov_b32 s{S_T0}, 2')
    a.label(l)
    a(f's_lshr_b32 s{S_T3}, s{S_T1}, 2\ns_and_b32 s{S_T4}, s{S_T1}, 3')
    a(f's_mul_i32 s{S_RLD}, s{S_T3}, 3072\ns_lshl_b32 s{S_T2}, s{S_T0}, 10\ns_add_u32 s{S_RLD}, s{S_RLD}, s{S_T2}\ns_lshl_b32 s{S_T2}, s{S_T4}, 8\ns_add_u32 s{S_RLD}, s{S_RLD}, s{S_T2}')
    a(f's_sub_u32 s{S_T0}, 2, s{S_T0}\ns_mul_i32 s{S_RB}, s{S_T0}, 3072\ns_lshl_b32 s{S_T2}, s{S_T4}, 8\ns_add_u32 s{S_RB}, s{S_RB}, s{S_T2}\ns_lshl_b32 s{S_T2}, s{S_T3}, 6\ns_add_u32 s{S_RB}, s{S_RB}, s{S_T2}\ns_mov_b32 s{S_DUP}, 0')
    if NCOPY > 1:
        a(f's_and_b32 s{S_DUP}, s{S_H}, {NCOPY-1}\ns_lshl_b32 s{S_DUP}, s{S_DUP}, 16')
        for r in (S_MC, S_MN, S_MP): a(f's_add_u32 s{r}, s{r}, s{S_DUP}')
        a(f's_mov_b32 s{S_MK_J8}, 0x3f3f3f3f\ns_mov_b32 s{S_MK_J8+1}, 0x3f3f3f3f')

def mem0_copy(a, P, copy=None):
    a(f's_mov_b32 s8, s{P["mem0"]}\ns_mov_b32 s9, s{P["mem0"]+1}\ns_mov_b32 s10, 9216\ns_mov_b32 s11, 0x20000')
    a(f's_lshl_b32 s34, s{S_H}, 16\ns_add_u32 s34, s34, {WS_M}' if copy is None else f's_mov_b32 s34, {WS_M}')
    for k in range(3):
        a(f'v_add_u32 v12, {k*256}, v0')
        a('v_mul_u32_u24 v13, 911, v12\nv_lshrrev_b32 v13, 16, v13')
        a('v_mul_u32_u24 v14, 72, v13\nv_sub_u32 v14, v12, v14')
        a('v_lshrrev_b32 v15, 1, v14')
        a('v_mul_u32_u24 v16, 57, v15\nv_lshrrev_b32 v16, 9, v16')
        a('v_mul_u32_u24 v17, 9, v16\nv_sub_u32 v17, v15, v17')
        a('v_mul_u32_u24 v18, 43, v17\nv_lshrrev_b32 v18, 7, v18')
        a('v_mul_u32_u24 v19, 3, v18\nv_sub_u32 v19, v17, v19')
        a('v_sub_u32 v18, 2, v18')
        a('v_lshrrev_b32 v20, 1, v13\nv_lshlrev_b32 v20, 8, v20\nv_lshl_add_u32 v20, v16, 6, v20')
        a('v_mul_u32_u24 v21, 3072, v18\nv_add_u32 v20, v20, v21\nv_lshl_add_u32 v20, v19, 10, v20')
        a('v_and_b32 v21, 1, v13\nv_lshl_add_u32 v20, v21, 5, v20\nv_and_b32 v21, 1, v14\nv_lshl_add_u32 v20, v21, 4, v20')
        a('v_lshlrev_b32 v21, 4, v12')
        a('v_cmp_gt_u32 vcc, 576, v12\ns_and_saveexec_b64 s[36:37], vcc')
        a('buffer_load_dwordx4 v[8:11], v21, s[8:11], 0 offen\ns_waitcnt vmcnt(0)')
        a('buffer_store_dwordx4 v[8:11], v20, s[4:7], s34 offen sc1')
        a('s_mov_b64 exec, s[36:37]')

L_TBL = L_QX + 1024
def build_table(a):
    L16 = V_L16
    a(f"""v_and_b32 v8, 0xf0, v{L16}
v_bfe_u32 v4, v{L16}, 8, 2
v_lshl_add_u32 v4, v4, 2, v8
v_lshlrev_b32 v4, 1, v4
v_lshrrev_b32 v8, 8, v{L16}
v_bfe_u32 v9, v{L16}, 6, 2
v_lshl_add_u32 v8, v8, 3, v9
v_bfe_u32 v5, v{L16}, 4, 2
v_lshlrev_b32 v5, 3, v5
v_lshl_add_u32 v5, v8, 5, v5
v_bfe_u32 v8, v{L16}, 6, 2
v_bfe_u32 v7, v{L16}, 4, 1
v_lshl_add_u32 v7, v8, 1, v7
v_lshlrev_b32 v9, 1, v7
v_lshrrev_b32 v8, 9, v{L16}
v_xor_b32 v6, v8, v9
v_lshlrev_b32 v6, 4, v6
v_lshl_add_u32 v6, v7, 8, v6
v_bfe_u32 v8, v{L16}, 8, 1
v_lshl_add_u32 v6, v8, 3, v6
v_lshrrev_b32 v8, 8, v{L16}
v_bfe_u32 v10, v{L16}, 5, 1
v_lshl_add_u32 v8, v8, 1, v10
v_xor_b32 v8, v8, v9
v_lshlrev_b32 v8, 4, v8
v_lshl_add_u32 v7, v7, 8, v8
ds_write_b128 v{L16}, v[4:7] offset:{L_TBL}
s_waitcnt lgkmcnt(0)""")
```

```python
from asmlib import *
from layout import *
from gemm1 import signal, wait_flag, f32bits, DBG_Q, DBG_KV, DBG_AO, DBG_AOINIT, G_T5, KVT_LO, DBG_CHAIN
import math
import chain

A_HG = 12; A_WV = 13; A_CH = 14; A_SEG = 15
A_T0 = 24; A_T1 = 25; A_T2 = 26; A_T3 = 27; A_T4 = 28
A_QO = 16; A_KM = 17; A_AP = 18; A_OB = 19; A_CNT = 20; A_ABORT = 21; A_SC = 22
A_MK = 32
A_NINF = 40
V_LN = 1; V_L16 = 2; V_L8 = 3; V_XW = 4; V_TK = 5; V_AP = 6; V_OL = 7; V_PF = 184
def WF(t, hh, kk):
    n = ((t * 4 + hh) * 4 + kk) * 4
    return (n, 'a') if n < 256 else (192 + n - 256, 'v')
QF = 8; KF = 40; VF = 72; KM = 104; VM = 120; KR = 128
S = 136
PX = 156; PM = 164
TM = 172
ACC = 8
L_KC = 0
L_O = 16384
L_PF = 49152

def ao(a, P, cfg):
    a('; ---- AO ----')
    SRD = 's[4:7]'
    a(f'v_and_b32 v{V_LN}, 63, v0\nv_lshlrev_b32 v{V_L16}, 4, v{V_LN}\nv_lshlrev_b32 v{V_L8}, 3, v{V_LN}')
    a('v_lshlrev_b32 v8, 4, v0')
    for r in range(4): a(f'v_mov_b32 v{12+r}, -1')
    a(f's_lshl_b32 s{A_T0}, s{A_T4}, 18\ns_add_u32 s{A_T0}, s{A_T0}, {WS_KM}\ns_mov_b32 s{A_T1}, 0')
    a.label('AOF')
    a(f'buffer_store_dwordx4 v[12:15], v8, {SRD}, s{A_T0} offen sc1')
    a(f's_add_u32 s{A_T0}, s{A_T0}, 4096\ns_add_u32 s{A_T1}, s{A_T1}, 1\ns_cmp_lt_u32 s{A_T1}, 64\ns_cbranch_scc1 AOF')
    a(f's_sub_u32 s{A_T0}, s{A_T4}, 1\ns_cmp_gt_u32 s{A_T0}, 1\ns_cbranch_scc1 AONM')
    a(f's_mul_i32 s{A_T0}, s{A_T4}, {M_STRIDE}\ns_add_u32 s{A_T0}, s{A_T0}, {WS_M}')
    for k in range(3):
        a(f'buffer_store_dwordx4 v[12:15], v8, {SRD}, s{A_T0} offen sc1\ns_add_u32 s{A_T0}, s{A_T0}, 4096')
    a.label('AONM')
    for r in range(4): a(f'v_mov_b32 v{24+r}, 0')
    a(f's_mul_i32 s{A_T1}, s{A_T4}, 12288')
    for b in range(2):
        a(f's_add_u32 s{A_T0}, s{A_T1}, {WS_P + b*0x80000}')
        for k in range(3):
            a(f'buffer_store_dwordx4 v[24:27], v8, {SRD}, s{A_T0} offen sc1\ns_add_u32 s{A_T0}, s{A_T0}, 4096')
    a(f's_cmp_lg_u32 s{A_T4}, 0\ns_cbranch_scc1 AONM0')
    chain.mem0_copy(a, P, 0)
    a.label('AONM0')
    a('s_waitcnt vmcnt(0)\ns_barrier')
    signal(a, P, DBG_AOINIT, None, vtmp=(8, 9))
    a.label('AO_ENTRY2')
    wait_flag(a, P, 0, None, 32, vtmp=(8, 9), sleep=16, multi=(DBG_CHAIN, 2))
    a(f'v_and_b32 v{V_LN}, 63, v0\nv_lshlrev_b32 v{V_L16}, 4, v{V_LN}\nv_lshlrev_b32 v{V_L8}, 3, v{V_LN}')
    a(f's_mov_b32 s8, s{P["Wo"]}\ns_mov_b32 s9, s{P["Wo"]+1}\ns_mov_b32 s10, 4718592\ns_mov_b32 s11, 0x20000')
    a(f'v_lshrrev_b32 v8, 1, v{V_LN}\nv_and_b32 v9, 1, v{V_LN}\nv_lshlrev_b32 v9, 4, v9\nv_mul_u32_u24 v10, 1152, v8\nv_add_u32 v10, v10, v9')
    a(f'v_lshrrev_b32 v8, 4, v{V_LN}\nv_bfe_u32 v9, v{V_LN}, 2, 2\nv_lshl_add_u32 v8, v8, 2, v9\nv_lshlrev_b32 v8, 5, v8\nv_and_b32 v9, 3, v{V_LN}\nv_lshl_add_u32 v11, v9, 3, v8')
    a(f's_mul_i32 s{A_T0}, s{A_WV}, 40960\nv_add_u32 v11, s{A_T0}, v11')
    a(f's_mul_i32 s{A_T1}, s{A_HG}, {4*147456}\ns_mul_i32 s{A_T2}, s{A_CH}, 576\ns_add_u32 s{A_T1}, s{A_T1}, s{A_T2}\ns_lshl_b32 s{A_T2}, s{A_WV}, 5\ns_add_u32 s{A_T1}, s{A_T1}, s{A_T2}')
    a(f's_cmp_lt_u32 s{A_WV}, 2\ns_cselect_b32 s{A_T3}, {4*128}, {3*128}' if False else f's_mov_b32 s{A_T3}, {3*128}\ns_cmp_lt_u32 s{A_WV}, 2\ns_cselect_b32 s{A_T3}, {4*128}, s{A_T3}')
    strips = [(t, hh) for t in range(5) for hh in range(4)]
    D = 9
    def issue(idx):
        t, hh = strips[idx]; b = idx % 10
        for n in range(4):
            a(f's_add_u32 m0, s{A_T0}, {b*4096 + n*1024}')
            if t < 4: a(f's_add_u32 s{A_T2}, s{A_T1}, {hh*147456 + 32*n*1152 + t*128}')
            else: a(f's_add_u32 s{A_T2}, s{A_T1}, {hh*147456 + 32*n*1152}\ns_add_u32 s{A_T2}, s{A_T2}, s{A_T3}')
            a(f'buffer_load_dwordx4 v10, s[8:11], s{A_T2} offen lds')
    def process(idx):
        t, hh = strips[idx]; b = idx % 10
        a(f's_waitcnt vmcnt({4*min(D, len(strips)-1-idx)})')
        for kk in range(4):
            r, ty = WF(t, hh, kk)
            for hf in range(2):
                a(f'ds_read_b64_tr_b16 {vr(r+2*hf,2,ty)}, v11 offset:{b*4096 + (32*kk + 16*hf)*32}')
        a('s_waitcnt lgkmcnt(0)')
    for idx in range(len(strips) + D):
        if idx < len(strips): issue(idx)
        if idx >= D: process(idx - D)
    a('s_barrier')
    c = math.log2(math.e) / math.sqrt(128.0)
    a(f's_mov_b32 s{A_SC}, 0x{f32bits(c):08x}\ns_mov_b32 s{A_SC+1}, s{A_SC}\ns_mov_b32 s{A_NINF}, 0xff800000\ns_mov_b32 s{A_ABORT}, 0')
    a(f'v_lshrrev_b32 v8, 4, v{V_LN}\nv_lshlrev_b32 v8, 2, v8\nv_and_b32 v9, 15, v{V_LN}')
    for r in range(4):
        a(f'v_add_u32 v10, {r}, v8\nv_cmp_le_u32 s[{A_MK+2*r}:{A_MK+2*r+1}], v10, v9')
    a(f's_lshl_b32 s{A_T0}, s{A_WV}, 12')
    a(f'v_lshlrev_b32 v{V_XW}, 5, v9\nv_lshrrev_b32 v10, 4, v{V_LN}\nv_lshl_add_u32 v{V_XW}, v10, 3, v{V_XW}\nv_add_u32 v{V_XW}, s{A_T0}, v{V_XW}')
    a(f'v_bfe_u32 v8, v{V_LN}, 2, 2\nv_lshl_add_u32 v8, v10, 3, v8\nv_lshlrev_b32 v8, 5, v8\nv_and_b32 v11, 3, v{V_LN}\nv_lshl_add_u32 v{V_TK}, v11, 3, v8\nv_add_u32 v{V_TK}, s{A_T0}, v{V_TK}')
    a(f'v_mul_u32_u24 v{V_AP}, 2304, v9\nv_lshl_add_u32 v{V_AP}, v10, 4, v{V_AP}')
    S0 = cfg.get('S0', 20)
    A_HD = 45; A_RBC = 46
    a(f's_lshl_b32 s{A_HD}, s{A_HG}, 2\ns_add_u32 s{A_HD}, s{A_HD}, s{A_WV}\ns_mov_b32 s{A_RBC}, -1')
    def seg_offsets():
        a(f's_lshl_b32 s{A_T1}, s{A_SEG}, 5\ns_add_u32 s{A_T1}, s{A_T1}, s{A_HD}')
        a(f's_lshl_b32 s{A_KM}, s{A_T1}, 12\ns_add_u32 s{A_KM}, s{A_KM}, {WS_KM}')
        a(f's_lshl_b32 s{A_T1}, s{A_SEG}, 3\ns_add_u32 s{A_T1}, s{A_T1}, s{A_HG}\ns_mul_i32 s{A_AP}, s{A_T1}, 73728\ns_mul_i32 s{A_T1}, s{A_CH}, 1152\ns_add_u32 s{A_AP}, s{A_AP}, s{A_T1}\ns_lshl_b32 s{A_T1}, s{A_WV}, 6\ns_add_u32 s{A_AP}, s{A_AP}, s{A_T1}\ns_add_u32 s{A_AP}, s{A_AP}, {WS_AP}')
    def next_seg(r):
        a(f's_cmp_lt_u32 s{r}, {S0}\ns_cselect_b32 s{A_T0}, 2, 8\ns_add_u32 s{r}, s{r}, s{A_T0}')
    seg_offsets()
    a(f's_mov_b32 s{A_OB}, {L_O}')
    if cfg.get('prof') == 1: cfg['_prof'](a, 4)
    A_PFB = 41; A_PSEG = 43; A_PQO = 44
    a(f's_mul_i32 s{A_PFB}, s{A_WV}, 24576\ns_add_u32 s{A_PFB}, s{A_PFB}, {L_PF}')
    a(f'v_add_u32 v{V_PF}, s{A_PFB}, v{V_L16}')
    def prefetch():
        l = a.newlabel('AOPF'); l2 = a.newlabel('AOPF')
        a(f's_cmp_ge_u32 s{A_PSEG}, 64\ns_cbranch_scc1 {l2}')
        a(f's_lshr_b32 s{A_T0}, s{A_PSEG}, 3')
        a(f's_cmp_eq_u32 s{A_T0}, s{A_RBC}\ns_cbranch_scc1 {l}')
        a(f's_mov_b32 s{A_RBC}, s{A_T0}')
        a(f's_cmp_lt_u32 s{A_T0}, 2\ns_cselect_b32 s{A_T1}, {KVT_LO}, 24')
        wait_flag(a, P, DBG_KV, A_T0, f's{A_T1}', vtmp=(TM, TM+1), sleep=8)
        wait_flag(a, P, DBG_Q, A_T0, 24, vtmp=(TM, TM+1), sleep=8)
        a.label(l)
        a(f's_lshl_b32 s{A_PQO}, s{A_PSEG}, 5\ns_add_u32 s{A_PQO}, s{A_PQO}, s{A_HD}\ns_lshl_b32 s{A_PQO}, s{A_PQO}, 13')
        for bi, base in enumerate((WS_QF, WS_KF, WS_VF)):
            for hf in range(2):
                a(f's_add_u32 s{A_T0}, s{A_PQO}, {base + hf*4096}')
                a(f's_add_u32 m0, s{A_PFB}, {bi*8192 + hf*4096}')
                for q in range(4): a(f'buffer_load_dwordx4 v{V_L16}, {SRD}, s{A_T0} offen offset:{q*1024} sc1 lds')
        a.label(l2)
        next_seg(A_PSEG)
    def prefetch_late():
        global TM
        old = TM; TM = 186
        prefetch()
        TM = old
    a(f's_mov_b32 s{A_PSEG}, s{A_SEG}')
    prefetch()
    a('s_waitcnt vmcnt(0)')
    if cfg.get('prof') == 1: cfg['_prof'](a, 5)
    def mf(d, x, y, init): a(f'v_mfma_f32_16x16x32_bf16 {vr(d,4)}, {x}, {y}, {"0" if init else vr(d,4)}')
    a.label('AOL')
    for n in range(24):
        a(f'ds_read_b128 {vr(QF+4*n,4)}, v{V_PF} offset:{n*1024}')
        if n == 14: a('s_waitcnt lgkmcnt(7)')
    a('s_waitcnt lgkmcnt(0)')
    S00 = S; S0M = S+4; S10 = S+8; S11 = S+12; S1M = S+16
    for ks in range(4):
        mf(S00, vr(KF+4*ks,4), vr(QF+4*ks,4), ks == 0)
        mf(S10, vr(KF+4*ks,4), vr(QF+16+4*ks,4), ks == 0)
        mf(S11, vr(KF+16+4*ks,4), vr(QF+16+4*ks,4), ks == 0)
    a(f's_mov_b32 s{A_CNT}, 0')
    a.label('AOP')
    for pw in range(4):
        a(f'buffer_load_dwordx2 {vr(KR+2*pw,2)}, v{V_L8}, {SRD}, s{A_KM} offen offset:{pw*1024} sc1')
        a(f'buffer_load_dwordx2 {vr(VM+2*pw,2)}, v{V_L8}, {SRD}, s{A_KM} offen offset:{pw*1024+512} sc1')
    a(f's_add_u32 s{A_CNT}, s{A_CNT}, 1\ns_cmp_gt_u32 s{A_CNT}, 0x40000\ns_cselect_b32 s{A_ABORT}, 1, s{A_ABORT}')
    a('s_waitcnt vmcnt(0)')
    a(f'v_max3_u32 v{TM}, v{VM}, v{VM+1}, v{VM+2}')
    for r in range(VM+3, VM+15, 2): a(f'v_max3_u32 v{TM}, v{TM}, v{r}, v{r+1}')
    a(f'v_max_u32 v{TM}, v{TM}, v{VM+15}')
    a(f'v_cmp_eq_u32 vcc, -1, v{TM}')
    a(f's_cmp_lg_u32 s{A_ABORT}, 0\ns_cbranch_scc1 AOG')
    a('s_cbranch_vccz AOG')
    a(f's_sleep {cfg.get("ASLEEP", 4)}\ns_branch AOP')
    a.label('AOG')
    for pw in range(4):
        a(f'ds_write2st64_b32 v{V_XW}, v{KR+2*pw}, v{KR+2*pw+1} offset0:{pw*4} offset1:{pw*4+2}')
    a('s_waitcnt lgkmcnt(0)')
    for ks in range(4):
        for hh in range(2): a(f'ds_read_b64_tr_b16 {vr(KM+4*ks+2*hh,2)}, v{V_TK} offset:{ks*1024 + hh*128}')
    PFHERE = True
    for r in range(4):
        a(f'v_mov_b32 v{TM}, s{A_NINF}')
        a(f'v_cndmask_b32 v{S00+r}, v{TM}, v{S00+r}, s[{A_MK+2*r}:{A_MK+2*r+1}]')
        a(f'v_cndmask_b32 v{S11+r}, v{TM}, v{S11+r}, s[{A_MK+2*r}:{A_MK+2*r+1}]')
    for ks in range(4):
        a(f's_waitcnt lgkmcnt({6-2*ks})')
        mf(S0M, vr(KM+4*ks,4), vr(QF+4*ks,4), ks == 0)
        mf(S1M, vr(KM+4*ks,4), vr(QF+16+4*ks,4), ks == 0)
    LS = [TM+4, TM+6]
    for qt in range(2):
        xs = [S00] if qt == 0 else [S10, S11]
        sm = S0M if qt == 0 else S1M
        MX = TM; M2 = TM+1
        a(f'v_max3_f32 v{MX}, v{xs[0]}, v{xs[0]+1}, v{xs[0]+2}')
        a(f'v_max3_f32 v{M2}, v{xs[0]+3}, v{sm}, v{sm+1}')
        if qt:
            a(f'v_max3_f32 v{MX}, v{MX}, v{S11}, v{S11+1}')
            a(f'v_max3_f32 v{M2}, v{M2}, v{S11+2}, v{S11+3}')
        a(f'v_max_f32 v{MX}, v{MX}, v{M2}\nv_max_f32 v{M2}, v{MX}, v{M2}')
        a(f'v_permlane32_swap_b32 v{MX}, v{M2}\nv_max_f32 v{MX}, v{MX}, v{M2}\nv_max_f32 v{M2}, v{MX}, v{M2}')
        a(f'v_permlane16_swap_b32 v{MX}, v{M2}\nv_max_f32 v{MX}, v{MX}, v{M2}')
        prs = [x + o for x in xs for o in (0, 2)] + [sm]
        for r in prs: a(f'v_pk_add_f32 {vr(r,2)}, {vr(r,2)}, {vr(MX,2)} op_sel_hi:[1,0] neg_lo:[0,1] neg_hi:[0,1]')
        for r in prs: a(f'v_exp_f32 v{r}, v{r}\nv_exp_f32 v{r+1}, v{r+1}')
        px = PX + 4*qt; pm = PM + 4*qt
        for k, r in enumerate(prs[:-1]): a(f'v_cvt_pk_bf16_f32 v{px+k}, v{r}, v{r+1}')
        if qt == 0: a(f'v_mov_b64 {vr(px+2,2)}, 0')
        a(f'v_cvt_pk_bf16_f32 v{pm}, v{sm}, v{sm+1}\nv_mov_b64 {vr(pm+1+0,1) if False else vr(pm+2,2)}, 0')
        a(f'v_mov_b32 v{pm+1}, 0\nv_cvt_pk_bf16_f32 v{pm+3}, v{sm}, v{sm+1}')
        l = LS[qt]
        a(f'v_pk_add_f32 {vr(l,2)}, {vr(prs[0],2)}, {vr(prs[1],2)}')
        for r in prs[2:]: a(f'v_pk_add_f32 {vr(l,2)}, {vr(l,2)}, {vr(r,2)}')
        a(f'v_add_f32 v{MX}, v{l}, v{l+1}\nv_add_f32 v{M2}, v{l}, v{l+1}')
        a(f'v_permlane32_swap_b32 v{MX}, v{M2}\nv_add_f32 v{l}, v{MX}, v{M2}\nv_add_f32 v{l+1}, v{MX}, v{M2}')
        a(f'v_permlane16_swap_b32 v{l}, v{l+1}\nv_add_f32 v{l}, v{l}, v{l+1}')
        a(f'v_rcp_f32 v{l}, v{l}')
    prefetch_late()
    O = 8
    for qt in range(2):
        for et in range(8):
            d = O + 32*qt + 4*et
            mf(d, vr(VF+4*et,4), vr(PX+4*qt,4), True)
        for et in range(8):
            d = O + 32*qt + 4*et
            a(f'v_mfma_f32_16x16x16_bf16 {vr(d,4)}, {vr(VM+2*(et//2),2)}, {vr(PM+4*qt+2*(et%2),2)}, {vr(d,4)}')
    a(f's_lshl_b32 s{A_T0}, s{A_WV}, 13\ns_add_u32 s{A_T0}, s{A_T0}, s{A_OB}\nv_add_u32 v{V_OL}, s{A_T0}, v{V_L16}')
    for qt in range(2):
        for kk in range(4):
            d = O + 32*qt + 8*kk
            for r in range(0, 8, 2): a(f'v_pk_mul_f32 {vr(d+r,2)}, {vr(d+r,2)}, {vr(LS[qt],2)} op_sel_hi:[1,0]')
            for r in range(4): a(f'v_cvt_pk_bf16_f32 v{d+r}, v{d+2*r}, v{d+2*r+1}')
            a(f'ds_write_b128 v{V_OL}, {vr(d,4)} offset:{(qt*4+kk)*1024}')
    a('s_waitcnt lgkmcnt(0)\ns_barrier')
    a(f'v_add_u32 v{V_OL}, s{A_OB}, v{V_L16}')
    BR = 48; NB = 8
    seq = [(hh, kk, qt) for hh in range(4) for kk in range(4) for qt in range(2)]
    def rd(n):
        hh, kk, qt = seq[n]
        a(f'ds_read_b128 {vr(BR+4*(n%NB),4)}, v{V_OL} offset:{hh*8192 + (qt*4+kk)*1024}')
    PD = NB - 2
    for n in range(PD): rd(n)
    for n, (hh, kk, qt) in enumerate(seq):
        if n + PD < len(seq): rd(n + PD)
        a(f's_waitcnt lgkmcnt({min(PD, len(seq)-1-n)})')
        for t in range(5):
            r, ty = WF(t, hh, kk)
            mf(ACC + 4*(2*t+qt), vr(r,4,ty), vr(BR+4*(n%NB),4), hh == 0 and kk == 0)
    a(f's_add_u32 s{A_T0}, s{A_AP}, {16*2304}')
    for t in range(4):
        for qt in range(2):
            a(f'buffer_store_dwordx4 {vr(ACC+4*(2*t+qt),4)}, v{V_AP}, {SRD}, s{A_AP if qt == 0 else A_T0} offen offset:{t*256} sc1')
    a(f's_cmp_ge_u32 s{A_WV}, 2\ns_cbranch_scc1 AON5')
    for qt in range(2):
        a(f'buffer_store_dwordx4 {vr(ACC+4*(8+qt),4)}, v{V_AP}, {SRD}, s{A_AP if qt == 0 else A_T0} offen offset:1024 sc1')
    a.label('AON5')
    a('s_waitcnt vmcnt(0)\ns_barrier')
    a(f's_lshl_b32 s{A_T0}, s{A_SEG}, 1\ns_add_u32 s{A_T0}, s{A_T0}, s{A_CH}\ns_lshr_b32 s{A_T1}, s{A_T0}, 3\ns_and_b32 s{A_T0}, s{A_T0}, 7\ns_lshl_b32 s{A_T0}, s{A_T0}, 2\ns_lshl_b32 s{A_T0}, 1, s{A_T0}')
    signal(a, P, DBG_AO, A_T1, val=(A_T0,), vtmp=(8, 9))
    next_seg(A_SEG); seg_offsets()
    a(f's_cmp_lt_u32 s{A_SEG}, 64\ns_cbranch_scc1 AOL')
```

```python
from asmlib import *
from layout import *
from chain import Cnt
import struct, math

def f32bits(x): return struct.unpack('<I', struct.pack('<f', x))[0]

G_CG = 12; G_WV = 13; G_RB = 14; G_I = 15
G_SW = 8
G_SG = 16; G_SU = 20
G_T0 = 24; G_T1 = 25; G_T2 = 26; G_T3 = 27; G_T4 = 28; G_T5 = 29
G_LB = 30
G_C1 = 32; G_C2 = 34; G_ONE = 36
G_DJ = 38
G_CUR = 39
G_DB = 40
G_SO = 41
G_CNT = 42

DBG_LN = 64; DBG_KV = 96; DBG_Q = 128; DBG_H = 160; DBG_AO = 192
KVT_LO = 96
NHELP = 2
DBG_CHAIN = 40; DBG_AOINIT = 44; DBG_IMPURE = 48

def signal(a, P, off_imm, s_idx=None, val=1, vtmp=(4, 5)):
    l = a.newlabel('SIG')
    a(f's_cmp_lg_u32 s13, 0\ns_cbranch_scc1 {l}')
    if s_idx is None: a(f'v_mov_b32 v{vtmp[0]}, {off_imm}')
    else: a(f's_lshl_b32 s{G_T5}, s{s_idx}, 2\ns_add_u32 s{G_T5}, s{G_T5}, {off_imm}\nv_mov_b32 v{vtmp[0]}, s{G_T5}')
    a(f'v_mov_b32 v{vtmp[1]}, {val}' if isinstance(val, int) else f'v_mov_b32 v{vtmp[1]}, s{val[0]}')
    a('s_mov_b64 exec, 1')
    a(f'global_atomic_add v{vtmp[0]}, v{vtmp[1]}, s[{P["dbg"]}:{P["dbg"]+1}]')
    a('s_mov_b64 exec, -1')
    a.label(l)

def wait_flag(a, P, off_imm, s_idx, target, vtmp=(4, 5), sleep=8, shift_s=None, mask=None, cnt=42, multi=None):
    l = a.newlabel('WF'); d = a.newlabel('WFD'); e = a.newlabel('WFE')
    a(f's_cmp_lg_u32 s13, 0\ns_cbranch_scc1 {e}')
    if multi:
        off0, n = multi
        a(f'v_mbcnt_lo_u32_b32 v{vtmp[0]}, -1, 0\nv_lshlrev_b32 v{vtmp[0]}, 2, v{vtmp[0]}\nv_add_u32 v{vtmp[0]}, {off0}, v{vtmp[0]}')
        a(f's_mov_b64 exec, {(1 << n) - 1}')
    else:
        if s_idx is None: a(f'v_mov_b32 v{vtmp[0]}, {off_imm}')
        else: a(f's_lshl_b32 s{G_T5}, s{s_idx}, 2\ns_add_u32 s{G_T5}, s{G_T5}, {off_imm}\nv_mov_b32 v{vtmp[0]}, s{G_T5}')
        a('s_mov_b64 exec, 1')
    a(f's_mov_b32 s{cnt}, 0')
    a.label(l)
    a(f'global_load_dword v{vtmp[1]}, v{vtmp[0]}, s[{P["dbg"]}:{P["dbg"]+1}] sc1')
    a(f's_add_u32 s{cnt}, s{cnt}, 1\ns_cmp_gt_u32 s{cnt}, 0x20000\ns_cbranch_scc1 {d}')
    a('s_waitcnt vmcnt(0)')
    if shift_s is not None: a(f'v_lshrrev_b32 v{vtmp[1]}, s{shift_s}, v{vtmp[1]}\nv_and_b32 v{vtmp[1]}, {mask}, v{vtmp[1]}')
    a(f'v_cmp_gt_u32 vcc, {target}, v{vtmp[1]}')
    a(f's_cbranch_vccz {d}')
    if sleep: a(f's_sleep {sleep}')
    a(f's_branch {l}')
    a.label(d)
    a('s_waitcnt vmcnt(0)')
    a('s_mov_b64 exec, -1')
    a.label(e)
    a('s_barrier')

def rnd_bf16(a, dst, src, tmp=None):
    a(f'v_cvt_pk_bf16_f32 v{dst}, v{src}, v{src}\nv_lshlrev_b32 v{dst}, 16, v{dst}')

def layernorm(a, P):
    a('; ---- layernorm ----')
    a(f's_mov_b32 s8, s{P["x"]}\ns_mov_b32 s9, s{P["x"]+1}\ns_mov_b32 s10, {2048*1152}\ns_mov_b32 s11, 0x20000')
    a('v_and_b32 v1, 63, v0\nv_lshrrev_b32 v2, 3, v1\nv_and_b32 v3, 7, v1')
    a(f's_lshl_b32 s{G_T0}, s{G_T4}, 2\ns_add_u32 s{G_T0}, s{G_T0}, s{G_WV}\ns_lshl_b32 s{G_T0}, s{G_T0}, 3')
    a(f's_mul_i32 s{G_T1}, s{G_T0}, 1152')
    a('v_mul_u32_u24 v4, 1152, v2\nv_lshl_add_u32 v4, v3, 4, v4')
    X = 8; F = 48
    for i in range(9): a(f'buffer_load_dwordx4 {vr(X+4*i,4)}, v4, s[8:11], s{G_T1} offen offset:{i*128}')
    a(f's_lshr_b32 s{G_T2}, s{G_T0}, 5\ns_mul_i32 s{G_T2}, s{G_T2}, 36864\ns_and_b32 s{G_T3}, s{G_T0}, 31\ns_lshl_b32 s{G_T3}, s{G_T3}, 4\ns_add_u32 s{G_T2}, s{G_T2}, s{G_T3}\ns_add_u32 s{G_T2}, s{G_T2}, {WS_XF}')
    a('v_lshrrev_b32 v5, 1, v3\nv_lshlrev_b32 v5, 10, v5\nv_and_b32 v6, 1, v3\nv_lshl_add_u32 v5, v6, 9, v5\nv_lshl_add_u32 v5, v2, 4, v5')
    for i in range(9):
        a(f's_waitcnt vmcnt({8-i})')
        for r in range(4):
            x = X + 4*i + r; f = F + 2*(4*i + r)
            a(f'v_lshlrev_b32 v{f}, 16, v{x}\nv_and_b32 v{f+1}, 0xffff0000, v{x}')
    def red8(v, t):
        a(f'v_add_f32_dpp v{v}, v{v}, v{v} quad_perm:[1,0,3,2] row_mask:0xf bank_mask:0xf')
        a(f'v_add_f32_dpp v{v}, v{v}, v{v} quad_perm:[2,3,0,1] row_mask:0xf bank_mask:0xf')
        a(f'v_add_f32_dpp v{v}, v{v}, v{v} row_half_mirror row_mask:0xf bank_mask:0xf')
    S = 120
    a(f'v_pk_add_f32 {vr(S,2)}, {vr(F,2)}, {vr(F+2,2)}')
    for k in range(2, 36): a(f'v_pk_add_f32 {vr(S,2)}, {vr(S,2)}, {vr(F+2*k,2)}')
    a(f'v_add_f32 v{S}, v{S}, v{S+1}')
    red8(S, S+1)
    a(f'v_mul_f32 v{S}, 0x{f32bits(1/576):08x}, v{S}')
    a(f'v_mov_b32 v{S+1}, v{S}')
    Q = 122; D = 124
    a(f'v_mov_b64 {vr(Q,2)}, 0')
    for k in range(36):
        a(f'v_pk_add_f32 {vr(D,2)}, {vr(F+2*k,2)}, {vr(S,2)} neg_lo:[0,1] neg_hi:[0,1]')
        a(f'v_pk_fma_f32 {vr(Q,2)}, {vr(D,2)}, {vr(D,2)}, {vr(Q,2)}')
    a(f'v_add_f32 v{Q}, v{Q}, v{Q+1}')
    red8(Q, Q+1)
    a(f'v_mul_f32 v{Q}, 0x{f32bits(1/576):08x}, v{Q}')
    rnd_bf16(a, Q, Q)
    a(f'v_add_f32 v{Q}, 0x{f32bits(1e-5):08x}, v{Q}')
    rnd_bf16(a, Q, Q)
    a(f'v_sqrt_f32 v{Q}, v{Q}')
    rnd_bf16(a, Q, Q)
    a(f'v_rcp_f32 v{Q}, v{Q}')
    rnd_bf16(a, S, S)
    a(f'v_mov_b32 v{S+1}, v{S}\nv_mov_b32 v{Q+1}, v{Q}')
    for k in range(36):
        f = F + 2*k
        a(f'v_pk_add_f32 {vr(f,2)}, {vr(f,2)}, {vr(S,2)} neg_lo:[0,1] neg_hi:[0,1]')
        a(f'v_cvt_pk_bf16_f32 v{X+k}, v{f}, v{f+1}')
        a(f'v_lshlrev_b32 v{f}, 16, v{X+k}\nv_and_b32 v{f+1}, 0xffff0000, v{X+k}')
        a(f'v_pk_mul_f32 {vr(f,2)}, {vr(f,2)}, {vr(Q,2)}')
        a(f'v_cvt_pk_bf16_f32 v{X+k}, v{f}, v{f+1}')
        if k % 4 == 3:
            i = k // 4
            a(f'buffer_store_dwordx4 {vr(X+4*i,4)}, v5, s[4:7], s{G_T2} offen sc1')
            a(f's_add_u32 s{G_T2}, s{G_T2}, 4096')
    a('s_waitcnt vmcnt(0)\ns_barrier')
    a(f's_lshr_b32 s{G_T4}, s{G_T4}, 3')
    signal(a, P, DBG_LN, G_T4)

def XR(rt, ks):
    n = (rt * 36 + ks) * 4
    return vr(n, 4, 'a') if n < 256 else vr(224 + n - 256, 4, 'v')
V_LN = 1; V_DQ = 2; V_DG = 3; V_TR = 4; V_SK = 5; V_SV = 6; V_L16 = 7; V_D = 10; V_TRC = 11
ACG = 16; ACU = 48; WB = 80; NWB = 4; ET = 96
G_STEP = 16; G_MSK = 18; G_PT = 20; G_OB = 22; G_SZQ = 23; G_STQ = 31
G_PB = 43; G_O1 = 44; G_O2 = 45; G_P = 46; G_RBC = 47; G_LAST = 48; G_KVP = 49; G_QS = 50

def gemm1(a, P, cfg):
    a('; ---- gemm1 ----')
    a(f'v_and_b32 v{V_LN}, 63, v0\nv_lshlrev_b32 v{V_L16}, 4, v{V_LN}')
    a(f'v_lshrrev_b32 v8, 2, v{V_LN}\nv_and_b32 v9, 3, v{V_LN}\nv_lshlrev_b32 v9, 4, v9')
    a(f'v_lshl_add_u32 v{V_DQ}, v8, 13, v9')
    a(f'v_mul_u32_u24 v{V_DG}, 9216, v8\nv_add_u32 v{V_DG}, v{V_DG}, v9')
    a(f'v_lshrrev_b32 v8, 5, v{V_LN}\nv_bfe_u32 v9, v{V_LN}, 2, 2\nv_lshl_add_u32 v8, v8, 3, v9\nv_lshlrev_b32 v8, 6, v8')
    a(f'v_bfe_u32 v9, v{V_LN}, 4, 1\nv_lshl_add_u32 v8, v9, 5, v8\nv_and_b32 v9, 3, v{V_LN}\nv_lshl_add_u32 v{V_TR}, v9, 3, v8')
    a(f'v_lshrrev_b32 v8, 5, v{V_LN}\nv_and_b32 v9, 15, v{V_LN}\nv_lshlrev_b32 v9, 4, v9\nv_lshl_add_u32 v8, v8, 8, v9\nv_bfe_u32 v9, v{V_LN}, 4, 1')
    a(f'v_lshl_add_u32 v{V_SK}, v9, 12, v8\nv_lshl_add_u32 v{V_SV}, v9, 10, v8')
    a(f's_mov_b32 s{G_SW+3}, 0x20000\ns_mov_b32 s{G_SZQ}, {576*8192}\ns_mov_b32 s{G_STQ}, {16*8192}')
    a(f's_mul_i32 s{G_LB}, s{G_WV}, 9216')
    c1 = -2 * math.log2(math.e) * math.sqrt(2 / math.pi); c2 = c1 * 0.044715
    for sr, v in ((G_C1, c1), (G_C2, c2), (G_ONE, 1.0)):
        a(f's_mov_b32 s{sr}, 0x{f32bits(v):08x}\ns_mov_b32 s{sr+1}, s{sr}')
    pp = lambda n: f's[{P[n]}:{P[n]+1}]'
    def dma_ops():
        pre = f"""s_cmp_lt_u32 s{G_DJ}, s{G_PB}|s_cselect_b32 s{G_T0}, s{G_O1}, s{G_O2}|s_add_u32 s{G_T0}, s{G_T0}, s{G_DJ}
s_min_u32 s{G_T0}, s{G_T0}, 27
s_mul_i32 s{G_T1}, s{G_T0}, 24
s_add_u32 s{G_T1}, s{G_T1}, s{G_CG}
s_lshr_b32 s{G_T2}, s{G_T1}, 7
s_and_b32 s{G_T1}, s{G_T1}, 127
s_lshl_b32 s{G_T1}, s{G_T1}, 6
s_mul_i32 s{G_SO}, s{G_WV}, {144*8192}
s_add_u32 s{G_SO}, s{G_SO}, s{G_T1}
s_cmp_eq_u32 s{G_T2}, 1|s_cselect_b64 s[{G_SW}:{G_SW+1}], {pp('Wv')}, {pp('Wk')}
s_cmp_eq_u32 s{G_T2}, 2|s_cselect_b64 s[{G_SW}:{G_SW+1}], {pp('Wq')}, s[{G_SW}:{G_SW+1}]
s_sub_u32 s{G_T1}, s{G_T0}, 16
s_lshr_b32 s{G_T2}, s{G_T1}, 1
s_mul_i32 s{G_T2}, s{G_T2}, 24
s_add_u32 s{G_T2}, s{G_T2}, s{G_CG}
s_lshl_b32 s{G_T2}, s{G_T2}, 6
s_mul_i32 s{G_T3}, s{G_WV}, {144*9216}
s_add_u32 s{G_T2}, s{G_T2}, s{G_T3}
s_bitcmp1_b32 s{G_T1}, 0|s_cselect_b64 s[{G_PT}:{G_PT+1}], {pp('wu')}, {pp('wg')}
s_cmp_ge_u32 s{G_T0}, 16|s_cselect_b64 s[{G_SW}:{G_SW+1}], s[{G_PT}:{G_PT+1}], s[{G_SW}:{G_SW+1}]|s_cselect_b32 s{G_SO}, s{G_T2}, s{G_SO}|s_cselect_b32 s{G_SW+2}, {576*9216}, s{G_SZQ}|s_cselect_b32 s{G_STEP}, {16*9216}, s{G_STQ}|s_cselect_b64 s[{G_MSK}:{G_MSK+1}], -1, 0
v_cndmask_b32 v{V_D}, v{V_DQ}, v{V_DG}, s[{G_MSK}:{G_MSK+1}]
s_add_u32 s{G_T0}, s{G_DB}, s{G_LB}"""
        ops = [x.replace('|', '\n') for x in pre.split('\n')]
        for n in range(9):
            if cfg.get('g_nodma'): continue
            ops.append(f's_add_u32 m0, s{G_T0}, {n*1024}\ns_nop 0\nbuffer_load_dwordx4 v{V_D}, s[{G_SW}:{G_SW+3}], s{G_SO} offen lds\ns_add_u32 s{G_SO}, s{G_SO}, s{G_STEP}')
        ops.append(f's_add_u32 s{G_DJ}, s{G_DJ}, 1')
        ops.append(f's_add_u32 s{G_DB}, s{G_DB}, 36864\ns_cmp_eq_u32 s{G_DB}, {4*36864}\ns_cselect_b32 s{G_DB}, 0, s{G_DB}')
        return ops
    a(f's_mov_b32 s{G_DJ}, 0\ns_mov_b32 s{G_DB}, 0\ns_mov_b32 s{G_CUR}, 0')
    a(f's_lshr_b32 s{G_T0}, s{G_RB}, 1\ns_mul_i32 s{G_O1}, s{G_T0}, 3\ns_cmp_eq_u32 s{G_T0}, 3\ns_cselect_b32 s{G_PB}, 2, 3')
    a(f's_sub_u32 s{G_O2}, 0, s{G_PB}\ns_add_u32 s{G_LAST}, s{G_PB}, 16\ns_add_u32 s{G_KVP}, s{G_PB}, 11')
    a(f's_cmp_lt_u32 s{G_RB}, 2\ns_cselect_b32 s{G_O2}, 8, s{G_O2}\ns_cselect_b32 s{G_LAST}, 8, s{G_LAST}\ns_cselect_b32 s{G_KVP}, 99, s{G_KVP}')
    a(f's_and_b32 s{G_RBC}, s{G_RB}, 1')
    for _ in range(3):
        for op in dma_ops(): a(op)
    first = [True]
    def load_x():
        wait_flag(a, P, DBG_LN, G_RBC, 8, vtmp=(8, 9), sleep=4)
        if cfg.get('prof') == 2 and first[0]: cfg['_prof'](a, 4)
        first[0] = False
        a(f's_lshl_b32 s{G_T0}, s{G_RBC}, 3\ns_lshl_b32 s{G_T1}, s{G_WV}, 1\ns_add_u32 s{G_T0}, s{G_T0}, s{G_T1}\ns_mul_i32 s{G_T0}, s{G_T0}, 36864\ns_add_u32 s{G_T0}, s{G_T0}, {WS_XF}')
        n = 0
        for rt in range(2):
            for ks in range(36):
                a(f'buffer_load_dwordx4 {XR(rt, ks)}, v{V_L16}, s[4:7], s{G_T0} offen offset:{(n % 4)*1024} sc1')
                n += 1
                if n % 4 == 0: a(f's_add_u32 s{G_T0}, s{G_T0}, 4096')
                if n % 36 == 0 and n < 72: a('s_waitcnt vmcnt(20)')
        a('s_waitcnt vmcnt(0)')
    load_x()
    if cfg.get('prof'): cfg['_prof'](a, 5)

    def tile_start():
        if cfg.get('gprof'): a('s_memtime s[60:61]\ns_waitcnt lgkmcnt(0)\ns_sub_u32 s66, s60, s64\ns_add_u32 s69, s69, s66')
        a('s_waitcnt vmcnt(18)')
        if cfg.get('gprof'): a('s_memtime s[62:63]\ns_waitcnt lgkmcnt(0)\ns_sub_u32 s66, s62, s60\ns_add_u32 s67, s67, s66')
        a('s_barrier')
        if cfg.get('gprof'): a('s_memtime s[64:65]\ns_waitcnt lgkmcnt(0)\ns_sub_u32 s66, s64, s62\ns_add_u32 s68, s68, s66')
        a(f'v_add_u32 v{V_TRC}, s{G_CUR}, v{V_TR}')
        a(f's_add_u32 s{G_CUR}, s{G_CUR}, 36864\ns_cmp_eq_u32 s{G_CUR}, {4*36864}\ns_cselect_b32 s{G_CUR}, 0, s{G_CUR}')
    def body(acc, swapped, dma=True):
        fill = dma_ops() if dma else []
        def rd(ks):
            w = WB + 4 * (ks % NWB)
            a(f'ds_read_b64_tr_b16 {vr(w,2)}, v{V_TRC} offset:{ks*1024}')
            a(f'ds_read_b64_tr_b16 {vr(w+2,2)}, v{V_TRC} offset:{ks*1024+256}')
        PD = NWB - 1; DSP = cfg.get('DSP', 3)
        for ks in range(PD): rd(ks)
        for ks in range(36):
            if ks + PD < 36: rd(ks + PD)
            rem = min(PD, 35 - ks)
            a(f's_waitcnt lgkmcnt({2*rem})')
            w = vr(WB + 4 * (ks % NWB), 4)
            for rt in range(2):
                d = vr(acc + 16*rt, 16); c = d if ks else '0'
                if swapped: a(f'v_mfma_f32_32x32x16_bf16 {d}, {w}, {XR(rt, ks)}, {c}')
                else: a(f'v_mfma_f32_32x32x16_bf16 {d}, {XR(rt, ks)}, {w}, {c}')
                if fill and ks >= 1 and (not fill[0].startswith('s_add_u32 m0') or (2*ks + rt) % DSP == 0): a(fill.pop(0))
        assert not fill
    def pack_swapped(src_fn, rt, store_fn):
        for ai, aq in enumerate((0, 2)):
            t = ET + 8 * (rt % 2) + 4 * ai
            a(f'v_cvt_pk_bf16_f32 v{t}, v{src_fn(4*aq)}, v{src_fn(4*aq+1)}\nv_cvt_pk_bf16_f32 v{t+1}, v{src_fn(4*aq+2)}, v{src_fn(4*aq+3)}')
            a(f'v_cvt_pk_bf16_f32 v{t+2}, v{src_fn(4*aq+4)}, v{src_fn(4*aq+5)}\nv_cvt_pk_bf16_f32 v{t+3}, v{src_fn(4*aq+6)}, v{src_fn(4*aq+7)}')
            a(f'v_permlane32_swap_b32 v{t}, v{t+2}\nv_permlane32_swap_b32 v{t+1}, v{t+3}')
            store_fn(t, ai)
    if cfg.get('gprof'): a('s_memtime s[64:65]\ns_waitcnt lgkmcnt(0)\ns_mov_b32 s67, 0\ns_mov_b32 s68, 0\ns_mov_b32 s69, 0')
    def single_tile(sfx, dma):
        tile_start()
        a(f's_cmp_lt_u32 s{G_P}, s{G_PB}\ns_cselect_b32 s{G_I}, s{G_O1}, s{G_O2}\ns_add_u32 s{G_I}, s{G_I}, s{G_P}')
        a(f's_mul_i32 s{G_T4}, s{G_I}, 24\ns_add_u32 s{G_T4}, s{G_T4}, s{G_CG}')
        a(f's_lshl_b32 s{G_OB}, s{G_RBC}, 3\ns_lshl_b32 s{G_T5}, s{G_WV}, 1\ns_add_u32 s{G_OB}, s{G_OB}, s{G_T5}\ns_lshl_b32 s{G_OB}, s{G_OB}, 18')
        a(f's_bfe_u32 s{G_T5}, s{G_T4}, 0x50002\ns_lshl_b32 s{G_T5}, s{G_T5}, 13\ns_add_u32 s{G_OB}, s{G_OB}, s{G_T5}')
        a(f's_and_b32 s{G_CNT}, s{G_T4}, 3\ns_lshl_b32 s{G_CNT}, s{G_CNT}, 10\ns_add_u32 s{G_OB}, s{G_OB}, s{G_CNT}')
        a(f's_lshr_b32 s{G_T4}, s{G_T4}, 7')
        a(f's_cmp_eq_u32 s{G_T4}, 1\ns_cbranch_scc1 G1V{sfx}')
        a(f's_mov_b32 s{G_T5}, {WS_KF}\ns_cmp_eq_u32 s{G_T4}, 0\ns_cselect_b32 s{G_T4}, s{G_T5}, {WS_QF}')
        a(f's_cselect_b32 s{G_QS}, 1.0, 0x{f32bits(math.log2(math.e) / math.sqrt(128.0)):08x}\ns_mov_b32 s{G_QS+1}, s{G_QS}')
        a(f's_add_u32 s{G_OB}, s{G_OB}, s{G_T4}')
        body(ACG, True, dma)
        for r in range(ACG, ACG + 32, 2): a(f'v_pk_mul_f32 {vr(r,2)}, {vr(r,2)}, s[{G_QS}:{G_QS+1}]')
        for rt in range(2):
            pack_swapped(lambda r: ACG + 16*rt + r, rt,
                         lambda t, ai: a(f'buffer_store_dwordx4 {vr(t,4)}, v{V_SK}, s[4:7], s{G_OB} offen offset:{ai*512} sc1'))
            if rt == 0: a(f's_add_u32 s{G_OB}, s{G_OB}, {32*8192}')
        a(f's_branch G1SE{sfx}')
        a.label(f'G1V{sfx}')
        a(f's_add_u32 s{G_OB}, s{G_OB}, s{G_CNT}\ns_add_u32 s{G_OB}, s{G_OB}, {WS_VF}')
        body(ACG, False, dma)
        for rt in range(2):
            for ap in range(2):
                t = ET + 8 * rt + 4 * ap; s0 = ACG + 16*rt + 4*ap; s1 = s0 + 8
                a(f'v_cvt_pk_bf16_f32 v{t}, v{s0}, v{s0+1}\nv_cvt_pk_bf16_f32 v{t+1}, v{s0+2}, v{s0+3}')
                a(f'v_cvt_pk_bf16_f32 v{t+2}, v{s1}, v{s1+1}\nv_cvt_pk_bf16_f32 v{t+3}, v{s1+2}, v{s1+3}')
                a(f'buffer_store_dwordx4 {vr(t,4)}, v{V_SV}, s[4:7], s{G_OB} offen offset:{ap*512} sc1')
            if rt == 0: a(f's_add_u32 s{G_OB}, s{G_OB}, {32*8192}')
        a.label(f'G1SE{sfx}')
        a(f's_add_u32 s{G_P}, s{G_P}, 1')
    a(f's_mov_b32 s{G_P}, 0')
    a.label('G1A')
    single_tile('A', False)
    a(f's_cmp_lt_u32 s{G_P}, s{G_PB}\ns_cbranch_scc1 G1A')
    a('s_waitcnt vmcnt(0)\ns_barrier')
    signal(a, P, DBG_KV, G_RBC, vtmp=(8, 9))
    if cfg.get('prof'): cfg['_prof'](a, 6)
    for k in range(3):
        if k == 2: a(f's_cmp_lt_u32 s{G_PB}, 3\ns_cbranch_scc1 G1P')
        for op in dma_ops(): a(op)
    a.label('G1P')
    a(f's_cmp_lt_u32 s{G_RB}, 2\ns_cbranch_scc1 G1S')
    a(f's_mov_b32 s{G_RBC}, s{G_RB}')
    load_x()
    a.label('G1S')
    single_tile('B', True)
    a(f's_cmp_lg_u32 s{G_P}, s{G_KVP}\ns_cbranch_scc1 G1F2')
    a('s_waitcnt vmcnt(0)\ns_barrier')
    signal(a, P, DBG_KV, G_RBC, vtmp=(8, 9))
    a.label('G1F2')
    a(f's_cmp_lt_u32 s{G_P}, s{G_LAST}\ns_cbranch_scc1 G1S')
    a('s_waitcnt vmcnt(0)\ns_barrier')
    signal(a, P, DBG_Q, G_RB, vtmp=(8, 9))
    if cfg.get('prof'): cfg['_prof'](a, 7)
    a(f's_mov_b32 s{G_I}, 0')
    a.label('G1G')
    tile_start(); body(ACG, True)
    tile_start(); body(ACU, True)
    a(f's_lshl_b32 s{G_OB}, s{G_RB}, 3\ns_lshl_b32 s{G_T5}, s{G_WV}, 1\ns_add_u32 s{G_OB}, s{G_OB}, s{G_T5}\ns_mul_i32 s{G_OB}, s{G_OB}, {288*1024}')
    a(f's_mul_i32 s{G_T4}, s{G_I}, 24\ns_add_u32 s{G_T4}, s{G_T4}, s{G_CG}\ns_lshl_b32 s{G_T4}, s{G_T4}, 11\ns_add_u32 s{G_OB}, s{G_OB}, s{G_T4}\ns_add_u32 s{G_OB}, s{G_OB}, {WS_HF}')
    T = 112
    for rt in range(2):
        for q in range(0, 16, 4):
            prs = [(ACG + 16*rt + q + o, ACU + 16*rt + q + o, T + o) for o in (0, 2)]
            for g, u, t in prs: a(f'v_pk_mul_f32 {vr(t,2)}, {vr(g,2)}, {vr(g,2)}')
            for g, u, t in prs: a(f'v_pk_fma_f32 {vr(t,2)}, {vr(t,2)}, s[{G_C2}:{G_C2+1}], {vr(T+4,2)}') if False else a(f'v_pk_mul_f32 {vr(t,2)}, {vr(t,2)}, s[{G_C2}:{G_C2+1}]')
            for g, u, t in prs: a(f'v_pk_add_f32 {vr(t,2)}, {vr(t,2)}, s[{G_C1}:{G_C1+1}]')
            for g, u, t in prs: a(f'v_pk_mul_f32 {vr(t,2)}, {vr(t,2)}, {vr(g,2)}')
            for g, u, t in prs: a(f'v_exp_f32 v{t}, v{t}\nv_exp_f32 v{t+1}, v{t+1}')
            for g, u, t in prs: a(f'v_pk_add_f32 {vr(t,2)}, {vr(t,2)}, s[{G_ONE}:{G_ONE+1}]')
            for g, u, t in prs: a(f'v_rcp_f32 v{t}, v{t}\nv_rcp_f32 v{t+1}, v{t+1}')
            for g, u, t in prs: a(f'v_pk_mul_f32 {vr(g,2)}, {vr(g,2)}, {vr(u,2)}')
            for g, u, t in prs: a(f'v_pk_mul_f32 {vr(g,2)}, {vr(g,2)}, {vr(t,2)}')
        pack_swapped(lambda r: ACG + 16*rt + r, rt,
                     lambda t, ai: a(f'buffer_store_dwordx4 {vr(t,4)}, v{V_L16}, s[4:7], s{G_OB} offen offset:{ai*1024} {cfg.get("g_st", "sc1")}'))
        if rt == 0: a(f's_add_u32 s{G_OB}, s{G_OB}, {288*1024}')
    a(f's_add_u32 s{G_I}, s{G_I}, 1\ns_cmp_lt_u32 s{G_I}, 6\ns_cbranch_scc1 G1G')
    a('s_waitcnt vmcnt(0)\ns_barrier')
    signal(a, P, DBG_H, G_RB, vtmp=(8, 9))
    if cfg.get('gprof'):
        a(f's_lshl_b32 s59, s2, 6\ns_lshl_b32 s58, s13, 4\ns_add_u32 s59, s59, s58\ns_add_u32 s59, s59, {WS_DBG + 0x90000}')
        a('v_mov_b32 v12, s67\nv_mov_b32 v13, s68\nv_mov_b32 v14, s69\nv_mov_b32 v15, 0\nv_mov_b32 v8, 0\ns_mov_b64 exec, 1')
        a('buffer_store_dwordx4 v[12:15], v8, s[4:7], s59 offen\ns_mov_b64 exec, -1')
```

```python
import sys, json
from asmlib import *
from layout import *
import chain as C, gemm1 as G, ffn2 as F, ao as AO

KN = 'parallel_sum__memory_aug_recurrent_mem_tr__geglu_ffn__prompt_kernel'
HEADER = open('parallel_sum__memory_aug_recurrent_mem_tr__geglu_ffn__prompt.s.ref').read().split('; Override launch')[0]

def gen(cfg):
    cfg = dict(cfg); cfg['_prof'] = prof
    a = Asm()
    P = {}
    names = [('x',0),('mem0',8),('Wq',16),('Wk',24),('Wv',32),('Wo',40),('wg',64),('wu',72),('wd',80),('out',88),('dbg',96),('ws',104)]
    a('s_cmp_ge_u32 s2, 256\ns_cbranch_scc1 K_END')
    if cfg.get('perm'): a(f's_mul_i32 s2, s2, {cfg["perm"]}\ns_and_b32 s2, s2, 255')
    for i, (n, off) in enumerate(names):
        P[n] = 72 + 2*i
        a(f's_load_dwordx2 s[{P[n]}:{P[n]+1}], s[0:1], {off}')
    a('s_getreg_b32 s3, hwreg(HW_REG_XCC_ID)')
    a('v_lshrrev_b32 v4, 6, v0')
    a('v_readfirstlane_b32 s13, v4')
    a('s_waitcnt lgkmcnt(0)')
    a(f's_mov_b32 s4, s{P["ws"]}\ns_mov_b32 s5, s{P["ws"]+1}\ns_mov_b32 s6, {WS_SIZE}\ns_mov_b32 s7, 0x20000')
    if cfg.get('prof'): a('s_memrealtime s[100:101]')
    if cfg.get('fakexcc'): a('s_cmp_lt_u32 s2, 128\ns_cselect_b32 s24, 1, 0\ns_cmp_eq_u32 s3, 0\ns_cselect_b32 s3, s24, s3')
    if cfg.get('cpf', 0):
        a('s_getpc_b64 s[24:25]')
        a('s_and_b32 s24, s24, 0xffffff00')
        a('v_lshlrev_b32 v240, 7, v0')
        a(f's_mov_b32 s26, K_END-{KN}')
        a('global_load_dword v241, v240, s[24:25]\nv_add_u32 v240, 0x8000, v240')
        a('v_cmp_gt_u32 vcc, s26, v240\ns_and_saveexec_b64 s[28:29], vcc\ns_cbranch_execz CPF_E')
        a('global_load_dword v242, v240, s[24:25]')
        a.label('CPF_E')
        a('s_mov_b64 exec, s[28:29]')
    if cfg.get('dst'): dstamp(a, P, 15, inv=True, vt=(246, 247))
    a('s_cmp_lt_u32 s3, 8\ns_cselect_b32 s54, s3, 7')
    a('s_lshr_b32 s55, s2, 3\ns_and_b32 s55, s55, 31')
    DBGP = f's[{P["dbg"]}:{P["dbg"]+1}]'
    a('s_cmp_lg_u32 s13, 0\ns_cbranch_scc1 CL_ISSUED')
    a('s_mov_b64 exec, 1')
    a('s_lshl_b32 s27, 1, s55\ns_lshl_b32 s29, s54, 2')
    a('v_mov_b32 v4, s29\nv_mov_b32 v5, s27')
    a(f'global_atomic_or v250, v4, v5, {DBGP} sc0')
    a('s_mov_b64 exec, -1')
    a.label('CL_ISSUED')
    def warm():
        l = a.newlabel('WARM')
        a(f's_cmp_eq_u32 s54, 0\ns_cbranch_scc1 {l}')
        a('s_lshr_b32 s25, s2, 3\ns_mul_i32 s25, s25, 7\ns_and_b32 s27, s2, 7\ns_add_u32 s25, s25, s27\ns_sub_u32 s25, s25, 1\ns_min_u32 s25, s25, 223')
        a('s_mul_i32 s27, s25, 1171\ns_lshr_b32 s27, s27, 16\ns_mul_i32 s29, s27, 56\ns_sub_u32 s25, s25, s29')
        a(f's_cmp_eq_u32 s27, 1\ns_cselect_b64 s[16:17], s[{P["Wk"]}:{P["Wk"]+1}], s[{P["Wq"]}:{P["Wq"]+1}]')
        a(f's_cmp_eq_u32 s27, 2\ns_cselect_b64 s[16:17], s[{P["Wv"]}:{P["Wv"]+1}], s[16:17]')
        a(f's_cmp_eq_u32 s27, 3\ns_cselect_b64 s[16:17], s[{P["Wo"]}:{P["Wo"]+1}], s[16:17]')
        a('s_mov_b32 s18, 4718592\ns_mov_b32 s19, 0x20000')
        a('s_lshl_b32 s25, s25, 15\nv_lshlrev_b32 v199, 7, v0')
        for k in range(3):
            a(f'buffer_load_dword v{200+k}, v199, s[16:19], s25 offen')
            a(f's_add_u32 s25, s25, {56*32768}')
        a.label(l)
    a('s_and_b32 s24, s2, 6\ns_cmp_lg_u32 s24, 2\ns_cbranch_scc1 NO_LN')
    a(f's_lshr_b32 s{G.G_T4}, s2, 3\ns_lshl_b32 s{G.G_T4}, s{G.G_T4}, 1\ns_and_b32 s24, s2, 1\ns_add_u32 s{G.G_T4}, s{G.G_T4}, s24')
    G.layernorm(a, P)
    a.label('NO_LN')
    if cfg.get('warm', 1): warm()
    def resolve(sfx, ldsaddr, firstwait):
        a(f's_cmp_lg_u32 s13, 0\ns_cbranch_scc1 CL_WAIT{sfx}')
        a('s_mov_b32 s25, s55\ns_mov_b32 s26, s54\ns_mov_b32 s28, 0\ns_lshl_b32 s27, 1, s25')
        a('s_mov_b64 exec, 1')
        a(firstwait)
        a(f's_branch CL_CHK{sfx}')
        a.label(f'CL_TRY{sfx}')
        a('s_lshl_b32 s27, 1, s25\ns_lshl_b32 s29, s26, 2')
        a('v_mov_b32 v248, s29\nv_mov_b32 v249, s27')
        a(f'global_atomic_or v250, v248, v249, {DBGP} sc0')
        a('s_waitcnt vmcnt(0)')
        a.label(f'CL_CHK{sfx}')
        a('v_readfirstlane_b32 s30, v250')
        a(f's_and_b32 s31, s30, s27\ns_cbranch_scc0 CL_GOT{sfx}')
        a(f's_not_b32 s31, s30\ns_cbranch_scc0 CL_FULL{sfx}')
        a(f's_ff1_i32_b32 s25, s31\ns_branch CL_TRY{sfx}')
        a.label(f'CL_FULL{sfx}')
        a(f's_add_u32 s28, s28, 1\ns_sub_u32 s26, 8, s28\ns_cmp_gt_u32 s28, 8\ns_cbranch_scc1 CL_NONE{sfx}')
        a('s_mov_b32 s25, 0')
        a(f's_cmp_lg_u32 s26, 0\ns_cbranch_scc1 CL_TRY{sfx}')
        a(f'v_mov_b32 v248, {G.DBG_IMPURE}\nv_mov_b32 v249, 1')
        a(f'global_atomic_or v250, v248, v249, {DBGP} sc0\ns_waitcnt vmcnt(0)')
        a(f's_branch CL_TRY{sfx}')
        a.label(f'CL_NONE{sfx}')
        a('s_mov_b32 s26, 8\ns_mov_b32 s25, 0')
        a.label(f'CL_GOT{sfx}')
        a('s_lshl_b32 s26, s26, 5\ns_add_u32 s26, s26, s25')
        a(f'v_mov_b32 v248, {ldsaddr}\nv_mov_b32 v249, s26\nds_write_b32 v248, v249\ns_waitcnt lgkmcnt(0)')
        a('s_mov_b64 exec, -1')
        a.label(f'CL_WAIT{sfx}')
        a('s_barrier')
        a(f'v_mov_b32 v248, {ldsaddr}\nds_read_b32 v249, v248\ns_waitcnt lgkmcnt(0)')
        a('v_readfirstlane_b32 s26, v249')
        a('s_barrier')
    if cfg.get('spec', 1):
        a(f's_mov_b32 s52, 1\ns_mov_b32 s{C.S_H}, s55')
        a('s_cmp_eq_u32 s54, 0\ns_cbranch_scc1 R_CHAIN2')
    resolve('A', 0, 's_waitcnt vmcnt(0)')
    a.label('ROLE')
    a('s_lshr_b32 s24, s26, 5\ns_and_b32 s28, s26, 31')
    if cfg.get('prof'): a('s_mov_b32 s101, s26')
    a('s_cmp_ge_u32 s24, 8\ns_cbranch_scc1 K_END')
    a('s_cmp_eq_u32 s24, 0\ns_cbranch_scc1 R_CHAIN')
    a('s_cmp_eq_u32 s24, 1\ns_cbranch_scc1 R_AO')
    a(f's_sub_u32 s{G.G_CG}, s24, 2\ns_lshl_b32 s{G.G_CG}, s{G.G_CG}, 2\ns_lshr_b32 s25, s28, 3\ns_add_u32 s{G.G_CG}, s{G.G_CG}, s25\ns_and_b32 s{G.G_RB}, s28, 7')
    G.gemm1(a, P, cfg)
    if cfg.get('prof'): prof(a, 1)
    a(f's_cmp_lt_u32 s{G.G_CG}, 12\ns_cbranch_scc1 R_FFN')
    a(f's_sub_u32 s24, s{G.G_CG}, 12\ns_lshl_b32 s24, s24, 3\ns_add_u32 s24, s24, s{G.G_RB}')
    a(f's_and_b32 s{AO.A_CH}, s24, 1\ns_bfe_u32 s{AO.A_HG}, s24, 0x30001\ns_lshr_b32 s{AO.A_SEG}, s24, 4\ns_add_u32 s{AO.A_SEG}, s{AO.A_SEG}, {2 + cfg.get("S0", 20)}')
    a('s_barrier\ns_branch AO_ENTRY2')
    a.label('R_FFN')
    F.ffn2(a, P, cfg)
    a('s_branch K_DONE')
    a.label('R_AO')
    a(f's_and_b32 s{AO.A_SEG}, s28, 1\ns_bfe_u32 s{AO.A_CH}, s28, 0x10001\ns_lshr_b32 s{AO.A_HG}, s28, 2')
    AO.ao(a, P, cfg)
    a('s_branch K_DONE')
    a.label('R_CHAIN')
    a(f's_mov_b32 s{C.S_H}, s28\ns_mov_b32 s52, 0')
    a.label('R_CHAIN2')
    def hook(vm):
        a('s_cmp_eq_u32 s52, 0\ns_cbranch_scc1 CH_OK')
        resolve('B', 0, 's_waitcnt vmcnt(60)')
        if cfg.get('prof'): a('s_mov_b32 s101, s26')
        a(f's_cmp_eq_u32 s26, s{C.S_H}\ns_cbranch_scc1 CH_OK')
        a('s_waitcnt vmcnt(0)\ns_barrier')
        a('s_lshl_b32 s24, s13, 6\nv_lshrrev_b32 v0, 4, v0\nv_or_b32 v0, s24, v0')
        a('s_branch ROLE')
        a.label('CH_OK')
    def flags_wait(sfx, words, vo=44):
        a(f'v_mov_b32 v{vo}, 0\nv_mov_b32 v{vo+1}, 0')
        for n_, (off, tgt) in enumerate(words):
            a(f's_mov_b32 s43, {off}\nv_writelane_b32 v{vo}, s43, {n_}\ns_mov_b32 s43, {tgt}\nv_writelane_b32 v{vo+1}, s43, {n_}')
        a(f's_cmp_lg_u32 s13, 0\ns_cbranch_scc1 FE{sfx}')
        a(f's_mov_b32 s27, 0\ns_mov_b64 exec, {(1 << len(words)) - 1}')
        a.label(f'FW{sfx}')
        a(f'global_load_dword v{vo+2}, v{vo}, {DBGP} sc1')
        a(f's_add_u32 s27, s27, 1\ns_cmp_gt_u32 s27, 0x20000\ns_cbranch_scc1 FD{sfx}')
        a('s_waitcnt vmcnt(0)')
        a(f'v_cmp_gt_u32 vcc, v{vo+1}, v{vo+2}')
        a(f's_cbranch_vccz FD{sfx}')
        a(f's_sleep {cfg.get("FWS", 6)}\ns_branch FW{sfx}')
        a.label(f'FD{sfx}')
        a('s_waitcnt vmcnt(0)\ns_mov_b64 exec, -1')
        a.label(f'FE{sfx}')
        a('s_barrier')
    C.chain_prologue(a, P, hook, None)
    C.chain_init(a, P, cfg)
    if cfg.get('dst'): dstamp(a, P, 13, vt=(4, 5))
    if cfg.get('prof'): prof(a, 4)
    a('s_barrier')
    G.signal(a, P, G.DBG_CHAIN, None)
    flags_wait('0', [(0, 0xffffffff), (G.DBG_AOINIT, 32), (G.DBG_KV, G.KVT_LO), (G.DBG_KV + 4, G.KVT_LO)])
    a(f'v_mov_b32 v4, {G.DBG_IMPURE}')
    a(f'global_load_dword v5, v4, {DBGP} sc1')
    a(f's_sub_u32 s35, s{C.S_KF}, {32*8192}\ns_mov_b32 m0, s{C.S_KXL}')
    for q in range(4): a(f'buffer_load_dwordx4 v{C.V_L16}, s[4:7], s35 offen offset:{q*1024} sc1 lds')
    a(f'v_lshlrev_b32 v6, 3, v{C.V_L16}\ns_mov_b32 m0, {L_QX}')
    a(f's_sub_u32 s35, s{C.S_PF}, {32*8192}\ns_mov_b64 exec, 0xffffffff')
    a('buffer_load_dword v6, s[4:7], s35 offen sc1 lds')
    a('s_mov_b64 exec, -1')
    if cfg.get('pmw', 1):
        a(f's_mul_i32 s43, s{C.S_H}, 12288\ns_and_b32 s27, s13, 1\ns_lshl_b32 s27, s27, 19\ns_add_u32 s43, s43, s27\ns_lshr_b32 s27, s13, 1\ns_lshl_b32 s27, s27, 13\ns_add_u32 s43, s43, s27\ns_add_u32 s43, s43, {WS_P}')
        a('buffer_load_dword v6, s[4:7], s43 offen sc1 lds')
        a(f's_lshl_b32 s43, s13, 13\ns_add_u32 s43, s43, {WS_M + M_STRIDE}')
        a('buffer_load_dword v6, s[4:7], s43 offen sc1 lds')
        a('s_waitcnt vmcnt(7)')
    else: a('s_waitcnt vmcnt(5)')
    a('v_readfirstlane_b32 s34, v5')
    if cfg.get('prof'): prof(a, 2)
    lg = C.Cnt(a, 'lgkmcnt', 15)
    if cfg.get('dst'): a('s_mov_b32 s35, s34'); dstamp(a, P, 8, vt=(4, 5))
    C.build_table(a)
    C.next_prep(a, lg)
    cfg['_kvwait'] = lambda a: G.wait_flag(a, P, 0, None, 24, sleep=2, cnt=C.S_CNT, multi=(G.DBG_KV + 8, 6))
    if cfg.get('forceslow'): a('s_mov_b32 s34, 1')
    a('s_cmp_lg_u32 s34, 0\ns_cbranch_scc1 STEPS')
    C.chain_loop(a, cfg, 'F', '')
    C.chain_loop(a, cfg, 'S', 'sc1')
    a.label('CHAIN_DONE')
    if cfg.get('dst'): dstamp(a, P, 9, vt=(4, 5))
    a.label('K_DONE')
    a('s_waitcnt vmcnt(0) lgkmcnt(0)')
    if cfg.get('prof'): prof(a, 3)
    if cfg.get('dst'): dstamp(a, P, 14, vt=(4, 5))
    a.label('K_END')
    a('s_endpgm')
    body, n = a.finalize()
    head = HEADER + f'''; @launch grid=(256,1,1) block=(256,1,1) lds=163840
.amdgcn_target "amdgcn-amd-amdhsa--gfx950"
.text
.globl {KN}
.p2align 8
.type {KN},@function
{KN}:
'''
    tail = f'''.section .rodata,"a"
.p2align 6
.amdhsa_kernel {KN}
  .amdhsa_next_free_vgpr 512
  .amdhsa_next_free_sgpr 102
  .amdhsa_accum_offset 256
  .amdhsa_group_segment_fixed_size 0
  .amdhsa_kernarg_size 112
  .amdhsa_user_sgpr_count 2
  .amdhsa_user_sgpr_kernarg_segment_ptr 1
  .amdhsa_system_sgpr_workgroup_id_x 1
.end_amdhsa_kernel
'''
    return head + body + tail, n

def dstamp(a, P, word, inv=False, vt=(250, 251)):
    l = a.newlabel('DS')
    a(f's_cmp_lg_u32 s13, 0\ns_cbranch_scc1 {l}')
    a('s_memrealtime s[98:99]\ns_waitcnt lgkmcnt(0)')
    if inv: a('s_not_b32 s98, s98')
    a('s_mov_b64 exec, 1')
    a(f'v_mov_b32 v{vt[0]}, {word*4}\nv_mov_b32 v{vt[1]}, s98')
    a(f'global_atomic_umax v{vt[0]}, v{vt[1]}, s[{P["dbg"]}:{P["dbg"]+1}]')
    a('s_mov_b64 exec, -1')
    a.label(l)

def prof(a, k):
    l = a.newlabel('PR')
    a(f's_cmp_lg_u32 s13, 0\ns_cbranch_scc1 {l}')
    a('s_memrealtime s[98:99]\ns_waitcnt lgkmcnt(0)')
    a(f's_sub_u32 s98, s98, s100\ns_lshl_b32 s99, s2, 6\ns_add_u32 s99, s99, {WS_DBG + 0x80000 + k*8}')
    a('s_mov_b64 exec, 1')
    a('v_mov_b32 v14, s98\nv_mov_b32 v15, s101\nv_mov_b32 v13, 0')
    a('buffer_store_dwordx2 v[14:15], v13, s[4:7], s99 offen')
    a('s_mov_b64 exec, -1')
    a.label(l)

if __name__ == '__main__':
    cfg = json.loads(sys.argv[1]) if len(sys.argv) > 1 else dict(D1=110, D2=310)
    src, n = gen(cfg)
    out = sys.argv[2] if len(sys.argv) > 2 else 'all.s'
    open(out, 'w').write(src)
    print(n, 'instructions', len(src), 'bytes')
```

```python
from asmlib import *
from layout import *
import math

class Cnt:
    def __init__(self, a, name, maxv):
        self.a = a; self.name = name; self.q = []; self.maxv = maxv
    def issue(self, tag, n=1):
        for _ in range(n): self.q.append(tag)
    def wait(self, tag):
        idx = max(i for i, t in enumerate(self.q) if t == tag) if tag in self.q else None
        if idx is None: return
        n = len(self.q) - 1 - idx
        assert n <= self.maxv, (self.name, n)
        self.a(f's_waitcnt {self.name}({n})')
        self.q = self.q[idx + 1:]
    def wait_all(self):
        self.a(f's_waitcnt {self.name}(0)'); self.q = []
    def reset(self, q=()): self.q = list(q)

S_WS = 4
S_W = 8
S_H = 12; S_WV = 13; S_STEP = 14; S_ABORT = 15
S_PC = 16; S_PST = 17; S_MC = 18; S_MN = 19; S_MP = 20
S_KF = 21; S_VF = 22; S_KM = 23; S_VM = 24
S_RED = 25; S_TASK = 26; S_CNT = 27
S_MK_KEY = 28; S_MK_J8 = 30
S_SC = 32
S_T0 = 34; S_T1 = 35; S_T3 = 36; S_T4 = 37; S_T2 = 43
S_RB = 38; S_RMA = 39; S_RIS8 = 40; S_RLD = 41; S_PO = 42
S_W512 = 44; S_W4 = 45; S_W2K = 46; S_F0 = 47; S_MK_N6 = 48; S_PF = 50; S_ROT = 51; S_TAG = 54; S_TAGS = 55; S_ROTB = 3; S_DUP = 24; S_CK = 56; S_CK2 = 96; S_CK3 = 98; S_MC1 = 39; S_MC2 = 40; S_W1536 = 26; S_KXL = 58; S_ONE = 8; S_TGN = 59; S_CK4 = 10; S_W1K = 44; S_W64 = 45

V_L16 = 0; V_IDX = 1; V_WL = 2; V_X = 3
def A(i): return 4 + 4 * i
ACC = {'q0': 40, 'q1': 44, 'k0': 48, 'k1': 52, 'v0': 56, 'v1': 60}
T0 = 64; T1 = 72

QK_LDS = {0: 'q', 2: 'k', 4: 'q', 6: 'k', 8: 'q'}
WO_LDS = [(0, 1), (1, 1), (2, 1), (3, 1)]

def build_frag_map():
    slots = []
    for m in 'qkv':
        for i in range(9): slots.append((m, i))
    for p in range(4):
        for c in range(2): slots.append(('o', p, c))
    slots.append(('o8',))
    lds_slots = [(m, i) for i, m in sorted(QK_LDS.items())] + [('o', p, c) for p, c in WO_LDS]
    reg_slots = [s for s in slots if s not in lds_slots]
    assert len(reg_slots) == 27 and len(lds_slots) == 9
    loc = {}
    for n, s in enumerate(reg_slots):
        for z in range(2):
            f = 2 * n + z
            loc[(s, z)] = ('a', 8 * f) if f < 32 else ('v', 80 + 8 * (f - 32))
    for n, s in enumerate(lds_slots):
        for z in range(2): loc[(s, z)] = ('lds', n * 4096 + z * 2048)
    return reg_slots, lds_slots, loc

REG_SLOTS, LDS_SLOTS, LOC = build_frag_map()

def frag_reg(s, z):
    t, r = LOC[(s, z)]
    assert t != 'lds'
    return vr(r, 8, t)

def actual_col(pos):
    c = pos // 64; pw = (pos % 64) // 16; jp = c // 3; tg = c % 3
    return (9 * pw + 3 * (2 - jp) + tg) * 16 + pos % 16
NCOPY = 1
M_CSTR = 0x10000
def m_imm(c): return (c % 4) * 1024

def chain_prologue(a, P, hook=None, hook2=None):
    a('; ---- chain prologue: weights ----')
    a(f'v_and_b32 v4, 63, v0')
    a(f'v_lshlrev_b32 v{V_L16}, 4, v4')
    a('v_lshrrev_b32 v8, 3, v4\nv_and_b32 v9, 7, v4\nv_lshlrev_b32 v9, 4, v9\nv_lshl_add_u32 v5, v8, 13, v9')
    a('v_lshrrev_b32 v8, 5, v4\nv_lshlrev_b32 v10, 4, v8')
    a('v_bfe_u32 v8, v4, 3, 1\nv_lshl_add_u32 v10, v8, 3, v10')
    a('v_bfe_u32 v8, v4, 4, 1\nv_lshl_add_u32 v10, v8, 2, v10')
    a('v_bfe_u32 v8, v4, 2, 1\nv_add_u32 v10, v10, v8')
    a('v_and_b32 v9, 3, v4\nv_lshlrev_b32 v9, 3, v9')
    a(f's_and_b32 s{S_CNT}, s{S_WV}, 1\ns_lshl_b32 s{S_CNT}, s{S_CNT}, 6')
    a(f'v_lshl_add_u32 v11, v10, 7, v9\nv_add_u32 v11, s{S_CNT}, v11')
    a(f's_mul_i32 s{S_T0}, s{S_WV}, 36864\ns_add_u32 s{S_T0}, s{S_T0}, {L_W}')
    a(f's_lshl_b32 s{S_T1}, s{S_WV}, 12')
    a(f's_and_b32 s{S_CNT}, s{S_WV}, 2\ns_lshl_b32 s{S_T4}, s{S_CNT}, 12\nv_add_u32 v14, s{S_T4}, v11')
    a(f's_mul_i32 s{S_T4}, s{S_CNT}, 36864\ns_add_u32 s{S_T4}, s{S_T4}, {L_W}\nv_add_u32 v13, s{S_T4}, v11\nv_add_u32 v15, 36864, v13')
    a(f'v_mul_u32_u24 v12, 1152, v10\nv_add_u32 v12, v12, v9\ns_mul_i32 s{S_T4}, s{S_WV}, 288\ns_add_u32 s{S_T4}, s{S_T4}, {L_W}\nv_add_u32 v12, s{S_T4}, v12\nv_add_u32 v16, 73728, v12')
    a(f'v_add_u32 v{V_WL}, s{S_T0}, v{V_L16}\nv_add_u32 v17, s{S_T1}, v{V_L16}')
    a(f'v_bfe_u32 v8, v4, 1, 1\nv_mul_u32_u24 v8, 0xAAAA, v8\nv_add_u32 v{V_IDX}, 0x4444, v8')
    a(f's_lshl_b32 s{S_T2}, s{S_H}, 8\ns_lshl_b32 s{S_CNT}, s{S_CNT}, 6\ns_add_u32 s{S_T2}, s{S_T2}, s{S_CNT}')
    a(f's_mul_i32 s{S_T3}, s{S_H}, 147456\ns_mul_i32 s{S_T4}, s{S_WV}, 36864\ns_add_u32 s{S_T3}, s{S_T3}, s{S_T4}')
    a(f's_mov_b32 s{S_ROT}, 0\ns_and_b32 s{S_T4}, s{S_WV}, 1')
    vm = Cnt(a, 'vmcnt', 63)
    cur_mat = [None]
    def set_srd(m):
        if cur_mat[0] == m: return
        cur_mat[0] = m
        p = P[{'q': 'Wq', 'k': 'Wk', 'v': 'Wv', 'o': 'Wo'}[m]]
        a(f's_mov_b32 s{S_W}, s{p}\ns_mov_b32 s{S_W+1}, s{p+1}\ns_mov_b32 s{S_W+2}, 4718592\ns_mov_b32 s{S_W+3}, 0x20000')
    qreg = [x for x in REG_SLOTS if x[0] in 'qkv' and x[0] != 'o' and x[0] != 'o8']
    qlds = [x for x in LDS_SLOTS if x[0] != 'o']
    assert len(qreg) == 22 and len(qlds) == 5
    TMPS = qreg[-4:]
    def issue_q(sl):
        set_srd(sl[0])
        for n in range(4):
            o0 = (actual_col(sl[1]*64 + (n >> 1)*16) + 8*(n & 1)) * 8192
            o1 = (actual_col(sl[1]*64 + (2 + (n >> 1))*16) + 8*(n & 1)) * 8192
            a(f's_mov_b32 s{S_CNT}, {o0}\ns_cmp_eq_u32 s{S_T4}, 1\ns_cselect_b32 s{S_CNT}, {o1}, s{S_CNT}\ns_add_u32 s{S_CNT}, s{S_CNT}, s{S_T2}')
            if sl in qlds:
                a(f's_add_u32 m0, s{S_T0}, {LDS_SLOTS.index(sl)*4096 + n*1024}\ns_nop 0')
                a(f'buffer_load_dwordx4 v5, s[{S_W}:{S_W+3}], s{S_CNT} offen lds')
            else:
                t, r = LOC[(sl, 0)]
                a(f'buffer_load_dwordx4 {vr(r + 4*n, 4, t)}, v5, s[{S_W}:{S_W+3}], s{S_CNT} offen')
            vm.issue(sl)
    def process_q(sl):
        vm.wait(sl)
        inl = sl in qlds
        if not inl:
            t, r = LOC[(sl, 0)]
            for n in range(4): a(f'ds_write_b128 v17, {vr(r + 4*n, 4, t)} offset:{n*1024}')
            a('s_waitcnt lgkmcnt(0)')
        a('s_barrier')
        boff = LDS_SLOTS.index(sl) * 4096 if inl else 0
        for z in range(2):
            t, r = LOC[(sl, z)]
            if inl: t, r = 'v', 20 + 8 * z
            for m in range(4):
                if inl: base = 13 if m < 2 else 15; off = boff + (m & 1) * 256 + z * 32
                else: base = 14; off = (m >> 1) * 4096 + (m & 1) * 256 + z * 32
                a(f'ds_read_b64_tr_b16 {vr(r + 2*m, 2, t)}, v{base} offset:{off}')
        a('s_waitcnt lgkmcnt(0)\ns_barrier')
        if inl:
            for q in range(4): a(f'ds_write_b128 v{V_WL}, {vr(20 + 4*q, 4)} offset:{boff + q*1024}')
    set_srd('o')
    for n in range(36):
        if n % 4 == 0: a(f's_add_u32 m0, s{S_T0}, {n*1024}\ns_add_u32 s{S_CNT}, s{S_T3}, {n*1024}\ns_nop 0')
        a(f'buffer_load_dwordx4 v{V_L16}, s[{S_W}:{S_W+3}], s{S_CNT} offen offset:{(n % 4)*1024} lds'); vm.issue('wo')
    pend = list(qreg[:-4]); inflight = []
    for _ in range(6):
        sl = pend.pop(0); issue_q(sl); inflight.append(sl)
    if hook: hook(vm)
    vm.wait('wo')
    a('s_barrier')
    for _ in range(7):
        sl = pend.pop(0); issue_q(sl); inflight.append(sl)
    tmp_of = {}
    k = 0
    for t in range(9):
        for c in range(2):
            key = (('o8',), c) if t == 8 else (('o', t // 2, c), t % 2)
            ty, r = LOC[key]
            if ty == 'lds':
                tt, rr = LOC[(TMPS[k // 2], k % 2)]; tmp_of[key] = (tt, rr); ty, r = tt, rr; k += 1
            for m in range(4):
                off = ((m >> 1) * 32 + (m & 1) * 2) * 1152 + t * 32
                a(f'ds_read_b64_tr_b16 {vr(r + 2*m, 2, ty)}, v{12 if c == 0 else 16} offset:{off}')
            if (t * 2 + c) % 3 == 2: a('s_waitcnt lgkmcnt(0)')
    a('s_waitcnt lgkmcnt(0)\ns_barrier')
    for key, (tt, rr) in tmp_of.items():
        off = LOC[key][1]
        for h_ in range(2): a(f'ds_write_b128 v{V_WL}, {vr(rr + 4*h_, 4, tt)} offset:{off + h_*1024}')
    a('s_waitcnt lgkmcnt(0)')
    pend = qlds + pend + list(TMPS)
    n_done = 0
    while inflight or pend:
        while pend and len(inflight) < 14:
            sl = pend.pop(0); issue_q(sl); inflight.append(sl)
            if not pend and hook2: hook2(vm)
        process_q(inflight.pop(0))
    a('s_waitcnt lgkmcnt(0)')

def lds_frag_read(a, lg, s, z, dst, tag):
    t, off = LOC[(s, z)]
    assert t == 'lds'
    a(f'ds_read_b128 {vr(dst, 4)}, v{V_WL} offset:{off}')
    a(f'ds_read_b128 {vr(dst+4, 4)}, v{V_WL} offset:{off+1024}')
    lg.issue(tag, 2)

def lds_half_read(a, lg, s, z, dst, tag, h):
    t, off = LOC[(s, z)]
    a(f'ds_read_b128 {vr(dst+4*h, 4)}, v{V_WL} offset:{off+1024*h}')
    lg.issue(tag, 1)

def timeout(a, lbl_ok_branch=None):
    a(f's_add_u32 s{S_CNT}, s{S_CNT}, 1')
    a(f's_cmp_gt_u32 s{S_CNT}, 0x40000')
    a(f's_cselect_b32 s{S_ABORT}, 1, s{S_ABORT}')

def emit_vma(a, dst, tmp):
    a(f'v_bfe_u32 v{tmp}, v{V_L16}, 6, 2')
    a(f'v_lshlrev_b32 v{dst}, 8, v{tmp}')
    a(f'v_lshrrev_b32 v{tmp}, 8, v{V_L16}')
    a(f'v_lshl_add_u32 v{dst}, v{tmp}, 6, v{dst}')
    a(f'v_bfe_u32 v{tmp}, v{V_L16}, 4, 1')
    a(f'v_lshl_add_u32 v{dst}, v{tmp}, 5, v{dst}')
    a(f'v_bfe_u32 v{tmp}, v{V_L16}, 5, 1')
    a(f'v_lshl_add_u32 v{dst}, v{tmp}, 4, v{dst}')

def R(i): return 4 + 4 * i
SLOT = {0: 0, 1: 1, 2: 2, 3: 3, 4: 4, 5: 5, 6: 6, 7: 0, 8: 1}
def AR(c): return R(SLOT[c])

def zero(a, regs):
    regs = sorted(regs); i = 0
    while i < len(regs):
        r = regs[i]
        if r % 2 == 0 and i + 1 < len(regs) and regs[i+1] == r + 1:
            a(f'v_mov_b64 v[{r}:{r+1}], 0'); i += 2
        else:
            a(f'v_mov_b32 v{r}, 0'); i += 1

def chain_loop(a, cfg, sfx, stf):
    NFULL = 4; NP = cfg.get('NP', 3)
    assert 2 <= NP <= 6
    D1 = cfg.get('D1', 0); D2 = cfg.get('D2', 0); D2R = cfg.get('D2R', 0)
    dbg = cfg.get('dbg', False)
    SRD = f's[{S_WS}:{S_WS+3}]'
    vm = Cnt(a, 'vmcnt', 63); lg = Cnt(a, 'lgkmcnt', 15)
    smap = cfg.get('smap', {str(k): k for k in range(8)})
    def stamp(k):
        if dbg and str(k) in smap:
            q = smap[str(k)]
            a(f'{"s_memrealtime" if cfg.get("rt") else "s_memtime"} s[{60+2*q}:{61+2*q}]')
    def smf(d, aa, b): a(f'v_smfmac_f32_16x16x64_bf16 {vr(d,4)}, {vr(aa,4)}, {b}, v{V_IDX}')
    def delay(n):
        if cfg.get('SLEEP', 1):
            if int(n): a(f's_sleep {int(n)}')
            fr = int(round((n - int(n)) * 16))
            if fr: a(f's_nop {fr-1}')
            return
        while n > 0:
            k = min(n, 16); a(f's_nop {k-1}'); n -= k
    def mf(d, x, y, cinit):
        c = vr(d, 4) if not cinit else '0'
        a(f'v_mfma_f32_16x16x32_bf16 {vr(d,4)}, {vr(x,4)}, {vr(y,4)}, {c}')
    L = lambda t: [x for x in t.split('\n') if x.strip()]
    VX0 = 32; VX1 = 36

    a.label(f'STEP{sfx}')
    lg.reset(['T'] * 4)
    a(f's_add_u32 s{S_MC1}, s{S_MC}, 4096\ns_add_u32 s{S_MC2}, s{S_MC}, 8192')
    a(f's_add_u32 m0, s{S_W1536}, {L_KXX}\ns_add_u32 s{S_T0}, s{S_MC}, s{S_W1536}\ns_add_u32 s{S_T0}, s{S_T0}, 3072')
    a(f's_mov_b32 s{S_CNT}, 0')
    def aoff(i): return m_imm(i)
    def msr(i): return (S_MC, S_MC1, S_MC2)[i // 4]
    def ldA(i, reg=None):
        a(f'buffer_load_dwordx4 {vr(AR(i) if reg is None else reg,4)}, v{V_X}, {SRD}, s{msr(i)} offen offset:{aoff(i)} sc1'); vm.issue(('A', i))
    SH = cfg.get('SHARE', 1)
    L_ST = L_KXX - 0
    def st1():
        a(f'buffer_load_dwordx4 v{V_L16}, {SRD}, s{S_T0} offen sc1 lds'); vm.issue('st')
    def st2():
        a(f's_mov_b64 exec, 0xffffffff')
        a(f'buffer_load_dwordx4 v{V_L16}, {SRD}, s{S_T0} offen offset:1024 sc1 lds'); vm.issue('st')
        a('s_mov_b64 exec, -1')
    CK = VX1 + 3
    PM = cfg.get('PM', 'np3')
    SPEC = cfg.get('SPECST', 0) and SH
    tmo = f"""s_add_u32 s{S_CNT}, s{S_CNT}, 1
s_cmp_gt_u32 s{S_CNT}, 0x40000
s_cselect_b32 s{S_ABORT}, 1, s{S_ABORT}
s_cmp_lg_u32 s{S_ABORT}, 0
s_cselect_b64 s[{S_T3}:{S_T4}], 0, -1"""
    a.label(f'POLLM0{sfx}')
    if PM == 'pipe1':
        ldA(0)
        delay(cfg.get('STG', 30))
        a.label(f'POLLM{sfx}')
        ldA(0, R(1))
        a(tmo)
        a('s_waitcnt vmcnt(1)')
        a(f'v_max_u32 v{CK}, v{R(0)+1}, v{R(0)+3}')
        a(f'v_cmp_eq_u32 vcc, -1, v{CK}')
        a(f's_and_b64 vcc, vcc, s[{S_T3}:{S_T4}]')
        a(f's_cbranch_vccz GOTM{sfx}')
        ldA(0)
        a('s_waitcnt vmcnt(1)')
        a(f'v_max_u32 v{CK}, v{R(1)+1}, v{R(1)+3}')
        a(f'v_cmp_eq_u32 vcc, -1, v{CK}')
        a(f's_cbranch_vccnz POLLM{sfx}')
        a(f'v_mov_b64 {vr(R(0),2)}, {vr(R(1),2)}\nv_mov_b64 {vr(R(0)+2,2)}, {vr(R(1)+2,2)}')
        a.label(f'GOTM{sfx}')
        vm.reset()
        ldA(1); ldA(2)
        NC = 1
    else:
        vm.reset()
        for i in range(3): ldA(i)
        if SPEC: st1(); st2()
        a(tmo)
        NC = cfg.get('NC', 3)
        for i in range(NC):
            vm.wait(('A', i))
            if i == 0: a(f'v_max_u32 v{CK}, v{AR(0)+1}, v{AR(0)+3}')
            else: a(f'v_max3_u32 v{CK}, v{CK}, v{AR(i)+1}, v{AR(i)+3}')
        a(f'v_cmp_eq_u32 vcc, -1, v{CK}')
        a(f's_and_b64 vcc, vcc, s[{S_T3}:{S_T4}]')
        a(f's_cbranch_vccnz POLLM0{sfx}')
    stamp(0)
    if dbg: a(f's_mov_b32 s52, s{S_CNT}')
    XB = R(2); TK = R(2) + 1
    fl = ['TBL']
    def bop(m, i, z):
        s = (m, i)
        if LOC[(s, z)][0] == 'lds': return vr(T0 if z == 0 else T1, 8)
        return frag_reg(s, z)
    lds_chunks = sorted(QK_LDS)
    def ldvx(q):
        a(f'buffer_load_dwordx4 {vr(VX0+4*q,4)}, v{V_L16}, {SRD}, s{S_VF} offen offset:{q*1024} sc1'); vm.issue('vx')
    def bar0():
        if SH: vm.wait('st')
        stamp(16)
        a('s_barrier')
        stamp(12)
    def pf1():
        a(f'v_lshlrev_b32 v{V_X}, 3, v{V_L16}')
        a(f's_mov_b32 m0, {L_QX}')
    def pf2():
        a(f's_mov_b64 exec, 0xffffffff')
        a(f'buffer_load_dword v{V_X}, {SRD}, s{S_PF} offen sc1 lds'); vm.issue('pf')
        a('s_mov_b64 exec, -1')
    def rdA(c):
        a(f'ds_read_b128 {vr(AR(c),4)}, v{V_X} offset:{L_ST + (c-3)*1024}'); lg.issue(('A', c))
    if SH:
        if SPEC:
            memq = {0: [lambda: ldvx(0), lambda: ldvx(1)],
                    1: [lambda: None] * cfg.get('B0P', 0) + [bar0, lambda: [rdA(c) for c in (3, 4, 5, 6)], lambda: rdA(7)],
                    2: [lambda: rdA(8)] + ([] if cfg.get('nopf') else [pf1, pf2])}
        else:
            memq = {0: [st1, st2, lambda: ldvx(0), lambda: ldvx(1)],
                    2: [bar0, lambda: [rdA(3), rdA(4)], lambda: [rdA(5), rdA(6)], lambda: [rdA(7), rdA(8)], lambda: None if cfg.get('nopf') else [pf1(), pf2()]]}
    else:
        memq = {0: [lambda: ldA(3), lambda: ldA(4), lambda: ldA(5), lambda: ldA(6), lambda: ldvx(0), lambda: ldvx(1)],
                1: [lambda: ldA(7)], 2: [lambda: ldA(8), bar0] + ([] if cfg.get('nopf') else [pf1, pf2])}
    first_ck = True
    side = []; NS = cfg.get('NS', 1)
    for i in range(9):
        mem = list(memq.get(i, [])); pend = []
        if i >= NC:
            if SH and i >= 3: lg.wait(('A', i))
            else: vm.wait(('A', i))
        if NC <= i <= 2:
            pr = (S_CK4, S_CK) if i == 1 else (S_CK2, S_CK3)
            pend.append(f'v_cmp_eq_u32 s[{pr[0]}:{pr[0]+1}], -1, v{AR(i)+1}'); pend.append(f'v_cmp_eq_u32 s[{pr[1]}:{pr[1]+1}], -1, v{AR(i)+3}')
        if i >= 3:
            if first_ck: pend.append(f'v_max_u32 v{V_X}, v{AR(i)+1}, v{AR(i)+3}'); first_ck = False
            else: pend.append(f'v_max3_u32 v{V_X}, v{V_X}, v{AR(i)+1}, v{AR(i)+3}')
        mats = ['q', 'k'] + (['v'] if i < NFULL else [])
        if i in QK_LDS: mats = [m for m in mats if m != QK_LDS[i]] + [QK_LDS[i]]
        for m in mats:
            for z in range(2):
                isl = i in QK_LDS and m == QK_LDS[i]
                if isl:
                    while any(t_ == ('T', z) for t_, _ in side): side.pop(0)[1]()
                    lg.wait(('T', z) if i else 'T')
                smf(ACC[f'{m}{z}'], AR(i), bop(m, i, z))
                if isl and i != lds_chunks[-1]:
                    nx = lds_chunks[lds_chunks.index(i) + 1]
                    for h_ in range(2):
                        side.append((('T', z), lambda nx=nx, z=z, h_=h_: lds_half_read(a, lg, (QK_LDS[nx], nx), z, T0 if z == 0 else T1, ('T', z), h_)))
                if pend: a(pend.pop(0))
                if mem: mem.pop(0)()
                elif side:
                    for _ in range(NS):
                        if side: side.pop(0)[1]()
                elif fl and i >= 5:
                    fl.pop(0); a(f'ds_read_b128 {vr(R(2),4)}, v{V_L16} offset:{L_TBL}'); lg.issue('tbl')
        assert not mem and not pend
    assert not side
    assert not fl, fl
    stamp(1)
    KX = {(0, 0): 64, (1, 0): 68, (0, 1): 72, (1, 1): 76, (0, 2): R(4), (1, 2): R(5), (0, 3): R(3), (1, 3): 64}
    def ldkx(t, ks):
        a(f'ds_read_b128 {vr(KX[(t, ks)],4)}, v{V_L16} offset:{L_KX + t*4096 + ks*1024}'); lg.issue(('kx', t, ks))
    vrem = [(i, z) for i in range(NFULL, 9) for z in range(2)]
    def vsm(n):
        for _ in range(n):
            if vrem:
                i, z = vrem.pop(0); smf(ACC[f'v{z}'], AR(i), bop('v', i, z))
    a(f'v_cmp_eq_u32 vcc, -1, v{V_X}')
    lg.wait('tbl')
    vsm(1)
    a(f'v_add_u32 v{XB}, s{S_W1K}, v{XB}')
    K0 = ACC['k0']; K1 = ACC['k1']; Q0 = ACC['q0']; Q1 = ACC['q1']
    a(f'v_pk_add_f32 {vr(K0,2)}, {vr(K0,2)}, {vr(K0+2,2)}')
    a(f'v_pk_add_f32 {vr(K1,2)}, {vr(K1,2)}, {vr(K1+2,2)}')
    a(f'v_cvt_pk_bf16_f32 v{K0}, v{K0}, v{K0+1}')
    a(f'v_cvt_pk_bf16_f32 v{K0+2}, v{K1}, v{K1+1}')
    a(f'v_pk_add_f32 {vr(Q0,2)}, {vr(Q0,2)}, {vr(Q0+2,2)}')
    a(f'v_pk_add_f32 {vr(Q1,2)}, {vr(Q1,2)}, {vr(Q1+2,2)}')
    a(f'v_pk_mul_f32 {vr(Q0,2)}, {vr(Q0,2)}, s[{S_SC}:{S_SC+1}]')
    a(f'v_pk_mul_f32 {vr(Q1,2)}, {vr(Q1,2)}, s[{S_SC}:{S_SC+1}]')
    a(f'v_cvt_pk_bf16_f32 v{K0+1}, v{Q0}, v{Q0+1}')
    a(f'v_cvt_pk_bf16_f32 v{K0+3}, v{Q1}, v{Q1+1}')
    a(f'ds_write2st64_b64 v{XB}, {vr(K0,2)}, {vr(K0+2,2)} offset0:{L_KXX//512} offset1:{L_KXX//512+1}'); lg.issue('xw')
    vsm(1)
    ldkx(0, 0); ldkx(1, 0)
    if NC == 1:
        for pr in (S_CK4, S_CK, S_CK2, S_CK3): a(f's_or_b64 vcc, vcc, s[{pr}:{pr+1}]')
    a(f's_and_b64 vcc, vcc, s[{S_T3}:{S_T4}]')
    if cfg.get('forceredo'): a(f's_and_b32 s{S_T0}, s{S_STEP}, 7\ns_cmp_eq_u32 s{S_T0}, s{S_WV}\ns_cselect_b64 vcc, -1, vcc')
    a(f's_cbranch_vccnz REDO{sfx}')
    a.label(f'REDOX{sfx}')
    vsm(1)
    ldkx(0, 1); ldkx(1, 1)
    a(f'v_lshrrev_b32 v{V_X}, 1, v{V_L16}')
    a(f'v_mov_b32 v{K1}, v{K0}\nv_mov_b32 v{K1+1}, v{K0+2}')
    vsm(1)
    if not cfg.get('nopub'):
        a(f'buffer_store_dwordx2 {vr(K1,2)}, v{V_X}, {SRD}, s{S_KM} offen sc1'); vm.issue('pub')
    ldkx(0, 2); ldkx(1, 2); ldkx(0, 3)
    vsm(cfg.get('VB', 2))
    stamp(17)
    lg.wait('xw')
    stamp(18)
    a('s_barrier')
    stamp(2)
    F = {0: 40, 1: 44, 2: 48, 3: 52}
    def ldf(ks):
        for hh in range(2):
            a(f'ds_read_b64_tr_b16 {vr(F[ks]+2*hh,2)}, v{TK} offset:{L_KXX + ks*1024 + hh*128}'); lg.issue(('f', ks))
    for ks in range(4): ldf(ks)
    vsm(len(vrem))
    stamp(3)
    SX0 = R(6); SX1 = R(0); SM = R(1)
    OW = 14; OW2 = 12; ORD = 15; ORD2 = 13; OT = V_X; OT2 = 62
    PX = 48; PMX = 52; PMY = 54
    f1 = L(f"""v_pk_add_f32 v[56:57], v[56:57], v[58:59]
v_pk_add_f32 v[60:61], v[60:61], v[62:63]
v_cvt_pk_bf16_f32 v56, v56, v57
v_cvt_pk_bf16_f32 v57, v60, v61""")
    f2 = L(f"""v_xor_b32 v{OW}, s{S_W64}, v{OW}
v_xor_b32 v{OW2}, 32, v{OW}
v_xor_b32 v{ORD2}, 128, v{ORD}""")
    def fill(lst, n):
        for _ in range(n):
            if lst: a(lst.pop(0))
    lg.wait(('f', 0))
    mf(SX0, KX[(0, 0)], F[0], True); mf(SX1, KX[(1, 0)], F[0], True)
    ldkx(1, 3)
    mf(SM, F[0], F[0], True)
    lg.wait(('f', 1))
    mf(SX0, KX[(0, 1)], F[1], False); mf(SX1, KX[(1, 1)], F[1], False); fill(f1, 2)
    mf(SM, F[1], F[1], False); fill(f1, 2)
    lg.wait(('f', 2))
    mf(SX0, KX[(0, 2)], F[2], False)
    if not cfg.get('nopub'):
        a(f'buffer_store_dwordx2 v[56:57], v{V_X}, {SRD}, s{S_KM} offen offset:512 sc1'); vm.issue('pub')
    mf(SX1, KX[(1, 2)], F[2], False); fill(f2, 2)
    mf(SM, F[2], F[2], False); fill(f2, 2)
    lg.wait(('f', 3))
    mf(SM, F[3], F[3], False); fill(f2, 2)
    mf(SX0, KX[(0, 3)], F[3], False); fill(f2, 2)
    lg.wait(('kx', 1, 3))
    mf(SX1, KX[(1, 3)], F[3], False)
    B0 = 48; B1 = 56; B2 = 64; B3 = 72
    stamp(4)
    MX = 58; M2 = 59; LS = 60; L2 = 61
    B4 = 40
    lds_frag_read(a, lg, ('o', 1, 1), 0, B4, ('w', 2))
    lds_frag_read(a, lg, ('o', 0, 1), 1, B3, ('w', 1))
    a(f'v_max3_f32 v{MX}, v{SM}, v{SM+1}, v{SX0}')
    a(f'v_max3_f32 v{MX}, v{MX}, v{SX0+1}, v{SX0+2}')
    a(f'v_mov_b32 v{PMX+1}, 0\nv_mov_b32 v{PMY}, 0')
    a(f'v_max3_f32 v{M2}, v{SX1}, v{SX1+1}, v{SX1+2}')
    a(f'v_max3_f32 v{MX}, v{MX}, v{SX0+3}, v{SX1+3}')
    a(f'v_max_f32 v{MX}, v{MX}, v{M2}')
    a(f'v_max_f32 v{M2}, v{MX}, v{M2}')
    a(f'v_mov_b64 {vr(R(3),2)}, s[{S_ONE}:{S_ONE+1}]\nv_mov_b64 {vr(R(3)+2,2)}, s[{S_ONE}:{S_ONE+1}]')
    a(f'v_permlane32_swap_b32 v{MX}, v{M2}')
    a(f'v_max_f32 v{MX}, v{MX}, v{M2}')
    a(f'v_max_f32 v{M2}, v{MX}, v{M2}')
    lds_frag_read(a, lg, ('o', 0, 1), 0, B2, ('w', 0))
    a(f'v_permlane16_swap_b32 v{MX}, v{M2}')
    a(f'v_max_f32 v{MX}, v{MX}, v{M2}')
    stamp(13)
    rs = (SX0, SX0+2, SX1, SX1+2)
    for r in rs + (SM,): a(f'v_pk_add_f32 {vr(r,2)}, {vr(r,2)}, {vr(MX,2)} op_sel_hi:[1,0] neg_lo:[0,1] neg_hi:[0,1]')
    for k, r in enumerate(rs):
        a(f'v_exp_f32 v{r}, v{r}\nv_exp_f32 v{r+1}, v{r+1}')
        if k: a(f'v_cvt_pk_bf16_f32 v{PX+k-1}, v{rs[k-1]}, v{rs[k-1]+1}')
    a(f'v_exp_f32 v{SM}, v{SM}')
    a(f'v_cvt_pk_bf16_f32 v{PX+3}, v{rs[3]}, v{rs[3]+1}')
    a(f'v_exp_f32 v{SM+1}, v{SM+1}')
    OX = R(4); OY = R(5); ONE = R(3); LS = 60
    vm.wait('vx')
    mf(LS, ONE, PX, True)
    a(f'v_cvt_pk_bf16_f32 v{PMX}, v{SM}, v{SM+1}\nv_cvt_pk_bf16_f32 v{PMY+1}, v{SM}, v{SM+1}')
    mf(OX, VX0, PX, True)
    a(f'v_mfma_f32_16x16x16_bf16 {vr(LS,4)}, {vr(ONE,2)}, {vr(PMX,2)}, {vr(LS,4)}')
    mf(OY, VX1, PX, True)
    a(f'v_mfma_f32_16x16x16_bf16 {vr(OX,4)}, v[56:57], {vr(PMX,2)}, {vr(OX,4)}')
    a(f'v_mfma_f32_16x16x16_bf16 {vr(OY,4)}, v[56:57], {vr(PMY,2)}, {vr(OY,4)}')
    stamp(14)
    lds_frag_read(a, lg, ('o', 1, 1), 1, B0, ('w', 3))
    fill(f2, 99)
    zero(a, range(SX0, SX0 + 4))
    a(f'v_rcp_f32 v{LS}, v{LS}')
    zero(a, range(VX0, VX0 + 8))
    for o in (OX, OY):
        a(f'v_pk_mul_f32 {vr(o,2)}, {vr(o,2)}, {vr(LS,2)} op_sel_hi:[1,0]')
        a(f'v_pk_mul_f32 {vr(o+2,2)}, {vr(o+2,2)}, {vr(LS,2)} op_sel_hi:[1,0]')
        a(f'v_cvt_pk_bf16_f32 v{o}, v{o}, v{o+1}\nv_cvt_pk_bf16_f32 v{o+1}, v{o+2}, v{o+3}')
        if o == OX:
            a(f's_mov_b64 exec, s[{S_MK_KEY}:{S_MK_KEY+1}]')
            a(f'ds_write_b64 v{OW}, {vr(OX,2)} offset:{L_OX}'); lg.issue('ow')
    a(f'ds_write_b64 v{OW2}, {vr(OY,2)} offset:{L_OX}'); lg.issue('ow')
    a('s_mov_b64 exec, -1')
    stamp(15)
    WACC = 12
    zero(a, [12, 14] + list(range(16, 28)))
    lg.wait('ow')
    a('s_barrier')
    stamp(5)
    OA0 = 4; OA1 = 8
    a(f'ds_read_b128 {vr(OA0,4)}, v{ORD} offset:{L_OX}'); lg.issue('oa0')
    a(f'ds_read_b128 {vr(OA1,4)}, v{ORD2} offset:{L_OX}'); lg.issue('oa1')
    lds_frag_read(a, lg, ('o', 3, 1), 0, B1, ('w', 6))
    zero(a, [ORD, ORD2])
    def wacc(t): return WACC + 4 * t
    def post_tile(t):
        d = wacc(t); q = wacc(t - t % 3) + t % 3
        return [f'v_pk_add_f32 {vr(d,2)}, {vr(d,2)}, {vr(d+2,2)}', f'v_cvt_pk_bf16_f32 v{q}, v{d}, v{d+1}']
    def post_group(j):
        ops = post_tile(3*j) + [f'v_mov_b32 v{wacc(3*j)+3}, s{S_TAG}'] + post_tile(3*j+1) + post_tile(3*j+2)
        return ops + [('v', f'buffer_store_dwordx4 {vr(wacc(3*j),4)}, v{V_L16}, {SRD}, s{S_PST} offen offset:{j*1024} {stf}'.rstrip())]
    def wf(t, c):
        if t == 8: return frag_reg(('o8',), c)
        return frag_reg(('o', t // 2, c), t % 2)
    lbuf = {0: B2, 1: B3, 2: B4, 3: B0, 4: B2, 5: B3, 6: B1, 7: B0}
    reload_ = {0: 4, 1: 5, 3: 7}; wside = []
    seq = [(0,0),(1,0),(2,0),(0,1),(1,1),(2,1), (3,0),(4,0),(5,0),(3,1),(4,1),(5,1), (6,0),(7,0),(8,0),(8,1),(6,1),(7,1)]
    fillers = {k: [] for k in range(40)}
    PL = cfg.get('PL', 3)
    for j_, start in ((0, cfg.get('PS', 8)), (1, cfg.get('PS', 8) + 6)):
        k = start; cnt = 0
        for op in post_group(j_):
            fillers[k].append(op); cnt += 1
            if cnt % PL == 0: k += 1
    for k_, r_ in enumerate(range(40, 48, 2)): fillers[6 + k_ // 2].append(f'v_mov_b64 v[{r_}:{r_+1}], 0')
    lg.wait('oa0')
    stamp(8)
    for n_, (t, c) in enumerate(seq):
        if n_ == 3: lg.wait('oa1')
        if c == 1 and t != 8:
            lg.wait(('w', t)); b = vr(lbuf[t], 8)
        else: b = wf(t, c)
        smf(wacc(t), OA0 if c == 0 else OA1, b)
        if c == 1 and t in reload_:
            for h_ in range(2): wside.append(lambda t=t, h_=h_: lds_half_read(a, lg, ('o', reload_[t]//2, 1), reload_[t] % 2, lbuf[t], ('w', reload_[t]), h_))
        if wside: wside.pop(0)()
        for f in fillers[n_]:
            if isinstance(f, tuple): a(f[1]); vm.issue('pst')
            else: a(f)
    stamp(9)
    for k in range(18, 40):
        for f in fillers[k]:
            if isinstance(f, tuple): a(f[1]); vm.issue('pst')
            else: a(f)
    g2 = post_tile(8) + post_tile(6) + [f'v_mov_b32 v{wacc(6)+3}, s{S_TAG}'] + post_tile(7)
    a(g2[0]); a(g2[2]); a(g2[1]); a(g2[3]); a(g2[4]); a(g2[5]); a(g2[6])
    a(post_group(2)[-1][1]); vm.issue('pst')
    stamp(6)
    if not cfg.get('static'):
        a(f's_add_u32 s{S_VF}, s{S_VF}, {32*8192}\ns_add_u32 s{S_PF}, s{S_PF}, {32*8192}')
    a(f's_add_u32 s{S_KM}, s{S_KM}, {32*4096}\ns_xor_b32 s{S_PST}, s{S_PST}, s{S_PO}')
    a(f's_add_u32 s{S_STEP}, s{S_STEP}, 1')
    a(f's_and_b32 s{S_T0}, s{S_STEP}, 3\ns_lshl_b32 s{S_TAG}, s{S_T0}, 7\ns_add_u32 s{S_TAG}, s{S_TAG}, 0x3f80\ns_lshl_b32 s{S_TGN}, s{S_T0}, 23\ns_add_u32 s{S_TGN}, s{S_TGN}, 0x43000000')
    c0 = sorted(QK_LDS)[0]
    SEL = 36; RACC = 72; RL = 76; RO = 77; RT = 78; RT2 = 79; NEG = 4
    a(f's_bitcmp0_b32 s{S_RED}, 0\ns_cbranch_scc1 NORED{sfx}')
    PP = 12288
    a(f'v_lshrrev_b32 v{RT}, 8, v{V_L16}\nv_mul_u32_u24 v{RL}, {PP}, v{RT}\nv_and_or_b32 v{RL}, v{V_L16}, s{S_F0}, v{RL}')
    a(f's_add_u32 s{S_T2}, s{S_PC}, s{S_RLD}')
    a(f's_mov_b32 s{S_CNT}, 0')
    delay(D1)
    if cfg.get('D1W1'):
        a(f's_cmp_eq_u32 s{S_WV}, 0\ns_cbranch_scc1 NOD1W{sfx}')
        delay(cfg['D1W1'])
        a.label(f'NOD1W{sfx}')
    stamp(10)
    def pl():
        for it in range(8):
            a(f'buffer_load_dwordx4 {vr(4+4*it,4)}, v{RL}, {SRD}, s{S_T2} offen sc1'); vm.issue(('r', it))
            a(f's_add_u32 s{S_T2}, s{S_T2}, {4*PP if it < 7 else -7*4*PP & 0xffffffff}')
    vm.reset(); pl()
    a(f'v_bfe_u32 v{RT2}, v{V_L16}, 4, {4 if NCOPY == 1 else 3}')
    a(f'v_and_b32 v{RO}, 1, v{RT2}\nv_lshlrev_b32 v{RO}, 4, v{RO}')
    a(f'v_mov_b32 v{RACC}, 0x3f80\nv_lshlrev_b32 v{RO}, v{RO}, v{RACC}')
    a(f'v_lshrrev_b32 v{RACC}, 1, v{RT2}')
    for r in range(4):
        a(f'v_cmp_eq_u32 vcc, {r}, v{RACC}')
        zero(a, range(40 + 4*r, 44 + 4*r))
        a(f'v_cndmask_b32 v{SEL+r}, 0, v{RO}, vcc')
    a(f'v_and_b32 v{RO}, 1, v{RT2}\nv_lshlrev_b32 v{RO}, 5, v{RO}\nv_lshl_add_u32 v{RO}, v{RACC}, 10, v{RO}')
    a(f'v_lshl_add_u32 v{RO}, v{RT}, 3, v{RO}')
    a(f'v_add_u32 v{RO}, s{S_RB}, v{RO}')
    if NCOPY > 1: a(f'v_bfe_u32 v{RACC}, v{V_L16}, 7, 1\nv_lshl_add_u32 v{RO}, v{RACC}, 16, v{RO}')
    zero(a, range(56, 64))
    emit_vma(a, V_X, RT2)
    lg.reset()
    lds_frag_read(a, lg, (QK_LDS[c0], c0), 0, T0, 'T')
    a.label(f'RWAIT{sfx}')
    for it in range(8):
        vm.wait(('r', it))
        if it == 0: stamp(11)
        mf(RACC, 4 + 4*it, SEL, it == 0)
    a(f's_add_u32 s{S_T0}, s{S_MN}, s{S_DUP}' if NCOPY == 1 else f's_sub_u32 s{S_T0}, s{S_MN}, s{S_DUP}')
    a(f'v_pk_add_f32 {vr(RT,2)}, {vr(RACC,2)}, {vr(RACC+2,2)}')
    a(f'v_cvt_pk_bf16_f32 v{RACC}, v{RACC}, v{RACC+1}\nv_cvt_pk_bf16_f32 v{RACC+1}, v{RACC+2}, v{RACC+3}')
    a(f'v_add_f32 v{RT}, v{RT}, v{RT2}')
    a(f'v_cmp_neq_f32 vcc, s{S_TAGS}, v{RT}')
    a(f's_and_b64 vcc, vcc, s[{S_MK_N6}:{S_MK_N6+1}]')
    a(f's_cselect_b64 exec, 0, s[{S_MK_J8}:{S_MK_J8+1}]')
    a(f'buffer_store_dwordx2 {vr(RACC,2)}, v{RO}, {SRD}, s{S_MN} offen {stf}'.rstrip())
    a(f's_cbranch_scc1 RCHK{sfx}')
    a(f's_branch RG2{sfx}')
    a.label(f'RGO{sfx}')
    a(f'buffer_store_dwordx2 {vr(RACC,2)}, v{RO}, {SRD}, s{S_MN} offen {stf}'.rstrip())
    a.label(f'RG2{sfx}')
    if NCOPY == 1:
        pass
    else:
        for c in range(NCOPY // 2):
            a(f'buffer_store_dwordx2 {vr(RACC,2)}, v{RO}, {SRD}, s{S_T0} offen {stf}'.rstrip())
            if c < NCOPY // 2 - 1: a(f's_add_u32 s{S_T0}, s{S_T0}, {2*M_CSTR}')
    stamp(7)
    if dbg: a(f's_mov_b32 s53, s{S_CNT}')
    a(f'v_mov_b64 v[{NEG}:{NEG+1}], -1')
    if NCOPY == 1:
        a(f'buffer_store_dwordx2 {vr(NEG,2)}, v{RO}, {SRD}, s{S_MC} offen {stf}'.rstrip())
    else:
        a(f's_sub_u32 s{S_T0}, s{S_MC}, s{S_DUP}')
        for c in range(NCOPY // 2):
            a(f'buffer_store_dwordx2 {vr(NEG,2)}, v{RO}, {SRD}, s{S_T0} offen {stf}'.rstrip())
            if c < NCOPY // 2 - 1: a(f's_add_u32 s{S_T0}, s{S_T0}, {2*M_CSTR}')
    a('s_mov_b64 exec, -1')
    lds_frag_read(a, lg, (QK_LDS[c0], c0), 1, T1, 'T')
    delay(D2R)
    a(f's_branch NEXT{sfx}')
    a.label(f'NORED{sfx}')
    a(f's_cmp_lt_u32 s{S_WV}, 2\ns_cbranch_scc1 NODMA{sfx}')
    a(f's_mov_b32 m0, s{S_KXL}')
    for q in range(4): a(f'buffer_load_dwordx4 v{V_L16}, {SRD}, s{S_KF} offen offset:{q*1024} sc1 lds')
    a.label(f'NODMA{sfx}')
    zero(a, range(40, 64))
    lds_frag_read(a, lg, (QK_LDS[c0], c0), 0, T0, 'T'); lds_frag_read(a, lg, (QK_LDS[c0], c0), 1, T1, 'T')
    emit_vma(a, V_X, 4)
    delay(D2)
    a.label(f'NEXT{sfx}')
    if cfg.get('cprof'):
        a(f's_cmp_lg_u32 s{S_WV}, 3\ns_cbranch_scc1 NCP{sfx}')
        a('s_memrealtime s[60:61]\ns_memtime s[62:63]\ns_waitcnt lgkmcnt(0)')
        a(f's_lshl_b32 s{S_T0}, s{S_H}, 9\ns_lshl_b32 s{S_T1}, s{S_STEP}, 3\ns_add_u32 s{S_T0}, s{S_T0}, s{S_T1}\ns_add_u32 s{S_T0}, s{S_T0}, {WS_DBG + 0xA0000}')
        a('v_mov_b32 v4, s60\nv_mov_b32 v5, s62\nv_mov_b32 v6, 0\ns_mov_b64 exec, 1')
        a(f'buffer_store_dwordx2 v[4:5], v6, {SRD}, s{S_T0} offen\ns_mov_b64 exec, -1')
        a.label(f'NCP{sfx}')
    if dbg:
        a('s_waitcnt lgkmcnt(0)')
        a(f's_sub_u32 s{S_T0}, s{S_STEP}, 1\ns_lshl_b32 s{S_T0}, s{S_T0}, 7\ns_lshl_b32 s{S_T1}, s{S_H}, 2\ns_add_u32 s{S_T0}, s{S_T0}, s{S_T1}\ns_add_u32 s{S_T0}, s{S_T0}, s{S_WV}\ns_lshl_b32 s{S_T0}, s{S_T0}, 6\ns_add_u32 s{S_T0}, s{S_T0}, {WS_DBG}')
        for k in range(8): a(f'v_writelane_b32 v4, s{60+2*k}, {k}')
        a('v_writelane_b32 v4, s52, 8\nv_writelane_b32 v4, s53, 9\nv_writelane_b32 v4, s25, 10')
        a(f'v_lshrrev_b32 v5, 2, v{V_L16}')
        a('s_mov_b64 exec, 0x7ff')
        a(f'buffer_store_dword v4, v5, {SRD}, s{S_T0} offen')
        a('s_mov_b64 exec, -1')
    a(f's_xor_b32 s{S_PC}, s{S_PC}, s{S_PO}\ns_mov_b32 s{S_TAGS}, s{S_TGN}')
    if not cfg.get('static'): a(f's_add_u32 s{S_KF}, s{S_KF}, {32*8192}')
    a(f's_mov_b32 s{S_T0}, s{S_MC}\ns_mov_b32 s{S_MC}, s{S_MN}\ns_mov_b32 s{S_MN}, s{S_MP}\ns_mov_b32 s{S_MP}, s{S_T0}')
    if cfg.get('_kvwait'):
        a(f's_cmp_lg_u32 s{S_STEP}, 12\ns_cbranch_scc1 NKW{sfx}')
        cfg['_kvwait'](a)
        a.label(f'NKW{sfx}')
    a(f's_cmp_lt_u32 s{S_STEP}, 63\ns_cbranch_scc1 STEP{sfx}')
    FA = lambda i: 4 + 4 * i
    a(f's_add_u32 s{S_MC1}, s{S_MC}, 4096\ns_add_u32 s{S_MC2}, s{S_MC}, 8192')
    a(f's_mov_b32 s{S_CNT}, 0')
    a.label(f'FPOLL{sfx}')
    a(f'v_subrev_u32 v41, s{S_ROTB}, v{V_X}')
    for i in range(9): a(f'buffer_load_dwordx4 {vr(FA(i),4)}, v{V_X if i < 3 else 41}, {SRD}, s{msr(i)} offen offset:{aoff(i)} sc1')
    timeout(a)
    a('s_waitcnt vmcnt(0)')
    a(f'v_max_u32 v40, v{FA(0)+1}, v{FA(0)+3}')
    for i in range(1, 9): a(f'v_max3_u32 v40, v40, v{FA(i)+1}, v{FA(i)+3}')
    a('v_cmp_eq_u32 vcc, -1, v40')
    a(f's_cmp_lg_u32 s{S_ABORT}, 0\ns_cbranch_scc1 FGO{sfx}')
    a(f's_cbranch_vccnz FPOLL{sfx}')
    a.label(f'FGO{sfx}')
    klds = [i for i in lds_chunks if QK_LDS[i] == 'k']
    assert len(klds) == 2
    lds_frag_read(a, lg, ('k', klds[0]), 0, T0, 'T'); lds_frag_read(a, lg, ('k', klds[0]), 1, T1, 'T')
    lds_frag_read(a, lg, ('k', klds[1]), 0, 40, 'T')
    for i in range(9):
        if i in klds: continue
        for z in range(2): smf(ACC[f'k{z}'], FA(i), frag_reg(('k', i), z))
    a('s_waitcnt lgkmcnt(0)')
    smf(ACC['k0'], FA(klds[0]), vr(T0, 8)); smf(ACC['k1'], FA(klds[0]), vr(T1, 8)); smf(ACC['k0'], FA(klds[1]), vr(40, 8))
    lds_frag_read(a, lg, ('k', klds[1]), 1, T0, 'T')
    for i in range(9):
        for z in range(2): smf(ACC[f'v{z}'], FA(i), frag_reg(('v', i), z))
    a('s_waitcnt lgkmcnt(0)')
    smf(ACC['k1'], FA(klds[1]), vr(T0, 8))
    a(f'v_lshrrev_b32 v{V_X}, 1, v{V_L16}')
    for nm, d in (('v0', 42), ('v1', 43), ('k0', 40), ('k1', 41)):
        r = ACC[nm]
        a(f'v_pk_add_f32 {vr(r,2)}, {vr(r,2)}, {vr(r+2,2)}')
        a(f'v_cvt_pk_bf16_f32 v{d}, v{r}, v{r+1}')
        if nm == 'v1': a(f'buffer_store_dwordx2 v[42:43], v{V_X}, {SRD}, s{S_KM} offen offset:512 sc1')
    a(f'buffer_store_dwordx2 v[40:41], v{V_X}, {SRD}, s{S_KM} offen sc1')
    a('s_branch CHAIN_DONE')
    a.label(f'REDO{sfx}')
    if dbg: a('s_add_u32 s25, s25, 0x10000')
    a('s_waitcnt vmcnt(0) lgkmcnt(0)')
    a('s_nop 15')
    zero(a, range(40, 64))
    emit_vma(a, V_X, T0)
    a(f'v_subrev_u32 v{T0+1}, s{S_ROTB}, v{V_X}')
    done_v = [(i, z) for i in range(NFULL) for z in range(2)] + [(4, 0), (4, 1)]
    for c in range(9):
        l = f'RD{c}{sfx}'
        dst = AR(c) if c >= 5 else R(3)
        a.label(l)
        a(f'buffer_load_dwordx4 {vr(dst,4)}, v{V_X if c < 3 else T0+1}, {SRD}, s{msr(c)} offen offset:{aoff(c)} sc1')
        timeout(a)
        a(f's_cmp_lg_u32 s{S_ABORT}, 0\ns_cselect_b64 s[{S_T3}:{S_T4}], 0, -1')
        a('s_waitcnt vmcnt(0)')
        a(f'v_max_u32 v{T0+2}, v{dst+1}, v{dst+3}\nv_cmp_eq_u32 vcc, -1, v{T0+2}\ns_and_b64 vcc, vcc, s[{S_T3}:{S_T4}]')
        a(f's_cbranch_vccnz {l}')
        for m in 'qkv':
            for z in range(2):
                if m == 'v' and (c, z) not in done_v: continue
                if LOC[((m, c), z)][0] == 'lds':
                    lds_frag_read(a, lg, (m, c), z, T1, 'T'); a('s_waitcnt lgkmcnt(0)')
                    smf(ACC[f'{m}{z}'], dst, vr(T1, 8))
                else: smf(ACC[f'{m}{z}'], dst, frag_reg((m, c), z))
    a('s_nop 15')
    for ks in range(2):
        for t in range(2): a(f'ds_read_b128 {vr(KX[(t, ks)],4)}, v{V_L16} offset:{L_KX + t*4096 + ks*1024}')
    a(f'v_pk_add_f32 {vr(K0,2)}, {vr(K0,2)}, {vr(K0+2,2)}')
    a(f'v_pk_add_f32 {vr(K1,2)}, {vr(K1,2)}, {vr(K1+2,2)}')
    a(f'v_cvt_pk_bf16_f32 v{K0}, v{K0}, v{K0+1}')
    a(f'v_cvt_pk_bf16_f32 v{K0+2}, v{K1}, v{K1+1}')
    a(f'v_pk_add_f32 {vr(Q0,2)}, {vr(Q0,2)}, {vr(Q0+2,2)}')
    a(f'v_pk_add_f32 {vr(Q1,2)}, {vr(Q1,2)}, {vr(Q1+2,2)}')
    a(f'v_pk_mul_f32 {vr(Q0,2)}, {vr(Q0,2)}, s[{S_SC}:{S_SC+1}]')
    a(f'v_pk_mul_f32 {vr(Q1,2)}, {vr(Q1,2)}, s[{S_SC}:{S_SC+1}]')
    a(f'v_cvt_pk_bf16_f32 v{K0+1}, v{Q0}, v{Q0+1}')
    a(f'v_cvt_pk_bf16_f32 v{K0+3}, v{Q1}, v{Q1+1}')
    a(f'ds_write2st64_b64 v{XB}, {vr(K0,2)}, {vr(K0+2,2)} offset0:{L_KXX//512} offset1:{L_KXX//512+1}')
    a('s_waitcnt lgkmcnt(0)')
    a(f's_branch REDOX{sfx}')
    a.label(f'RCHK{sfx}')
    a('s_mov_b64 exec, -1')
    a(f's_cmp_lt_u32 s{S_CNT}, 8\ns_cbranch_scc1 RCH2{sfx}')
    a(f's_sub_u32 s{S_T1}, s{S_TAGS}, 0x43000000\ns_lshr_b32 s{S_T1}, s{S_T1}, 16\ns_add_u32 s{S_T1}, s{S_T1}, 0x3f80')
    a(f'v_xor_b32 v{RT}, s{S_T1}, v7')
    for it in range(1, 8): a(f'v_xor_b32 v{RT2}, s{S_T1}, v{7+4*it}\nv_or_b32 v{RT}, v{RT}, v{RT2}')
    a(f'v_cmp_ne_u32 vcc, 0, v{RT}')
    a(f's_cbranch_vccnz RCH2{sfx}')
    a(f's_mov_b64 exec, s[{S_MK_J8}:{S_MK_J8+1}]')
    a(f's_branch RGO{sfx}')
    a.label(f'RCH2{sfx}')
    pl()
    timeout(a)
    a(f's_cmp_eq_u32 s{S_ABORT}, 0\ns_cbranch_scc1 RWAIT{sfx}')
    a('s_waitcnt vmcnt(0)')
    a(f's_mov_b64 exec, s[{S_MK_J8}:{S_MK_J8+1}]')
    a(f's_branch RGO{sfx}')

def next_prep(a, lg):
    for r in range(40, 64): a(f'v_mov_b32 v{r}, 0')
    c0 = sorted(QK_LDS)[0]
    lds_frag_read(a, lg, (QK_LDS[c0], c0), 0, T0, 'T'); lds_frag_read(a, lg, (QK_LDS[c0], c0), 1, T1, 'T')
    emit_vma(a, V_X, 4)

def chain_init(a, P, cfg):
    SRD = f's[{S_WS}:{S_WS+3}]'
    a(f's_mov_b32 s{S_STEP}, 0\ns_mov_b32 s{S_ABORT}, {1 if cfg.get("free") else 0}')
    a(f's_mov_b32 s{S_PC}, {WS_P}\ns_mov_b32 s{S_PO}, {WS_P ^ (WS_P + 0x80000)}')
    a(f's_mul_i32 s{S_T0}, s{S_H}, 12288\ns_add_u32 s{S_PST}, s{S_PC}, s{S_T0}\ns_mul_i32 s{S_T0}, s{S_WV}, 3072\ns_add_u32 s{S_PST}, s{S_PST}, s{S_T0}')
    a(f's_mov_b32 s{S_TAG}, 0x3f80\ns_mov_b32 s{S_TAGS}, 0x43000000\ns_lshl_b32 s{S_ROTB}, s{S_ROT}, 7')
    a(f's_mov_b32 s{S_MK_N6}, 0x00400040\ns_mov_b32 s{S_MK_N6+1}, 0x00400040')
    if cfg.get('free'): a(f's_mov_b64 s[{S_MK_N6}:{S_MK_N6+1}], 0')
    a(f's_mov_b32 s{S_MC}, {WS_M}\ns_mov_b32 s{S_MN}, {WS_M + M_STRIDE}\ns_mov_b32 s{S_MP}, {WS_M + 2*M_STRIDE}')
    a(f's_lshl_b32 s{S_T0}, s{S_H}, 13\ns_lshl_b32 s{S_T1}, s{S_WV}, 11\ns_add_u32 s{S_T1}, s{S_T0}, s{S_T1}')
    a(f's_add_u32 s{S_VF}, s{S_T1}, {WS_VF}')
    a(f's_and_b32 s{S_W2K}, s{S_WV}, 1\ns_lshl_b32 s{S_W2K}, s{S_W2K}, 12\ns_mov_b32 s{S_KXL}, s{S_W2K}')
    a(f's_add_u32 s{S_KF}, s{S_T0}, s{S_W2K}\ns_add_u32 s{S_KF}, s{S_KF}, {WS_KF + 32*8192}')
    a(f's_add_u32 s{S_PF}, s{S_T0}, {WS_VF + 32*8192}\ns_add_u32 s{S_T1}, s{S_T0}, {WS_KF + 2*32*8192}')
    a(f's_cmp_ge_u32 s{S_WV}, 2\ns_cselect_b32 s{S_PF}, s{S_T1}, s{S_PF}\ns_add_u32 s{S_PF}, s{S_PF}, s{S_W2K}\ns_lshl_b32 s{S_W2K}, s{S_WV}, 11')
    a(f's_mul_i32 s{S_W1536}, s{S_WV}, 1536\ns_mov_b32 s{S_ONE}, 0x3f803f80\ns_mov_b32 s{S_ONE+1}, 0x3f803f80')
    a(f's_lshl_b32 s{S_W1K}, s{S_WV}, 10\ns_lshl_b32 s{S_W64}, s{S_WV}, 6\ns_mov_b32 s{S_F0}, 0xf0')
    a(f's_lshl_b32 s{S_T0}, s{S_H}, 12\ns_lshl_b32 s{S_T1}, s{S_WV}, 10\ns_add_u32 s{S_T0}, s{S_T0}, s{S_T1}')
    a(f's_add_u32 s{S_KM}, s{S_T0}, {WS_KM}')
    a(f's_mov_b32 s{S_MK_KEY}, 0xcccccccc\ns_mov_b32 s{S_MK_KEY+1}, 0xcccccccc')
    a(f's_mov_b32 s{S_MK_J8}, 0x003f003f\ns_mov_b32 s{S_MK_J8+1}, 0x003f003f')
    import struct
    c = math.log2(math.e) / math.sqrt(128.0)
    a(f's_mov_b32 s{S_SC}, 0x{struct.unpack("<I", struct.pack("<f", c))[0]:08x}\ns_mov_b32 s{S_SC+1}, s{S_SC}')
    a(f's_mov_b32 s{S_RED}, 0')
    a(f's_lshr_b32 s{S_T0}, s{S_H}, 4\ns_and_b32 s{S_T1}, s{S_H}, 15')
    a(f's_cmp_eq_u32 s{S_WV}, 0\ns_cselect_b32 s{S_RED}, 1, 0')
    l = a.newlabel('RT')
    a(f's_cmp_lg_u32 s{S_WV}, 1\ns_cbranch_scc1 {l}\ns_cmp_ge_u32 s{S_H}, 16\ns_cbranch_scc1 {l}')
    a(f's_mov_b32 s{S_RED}, 1\ns_mov_b32 s{S_T0}, 2')
    a.label(l)
    a(f's_lshr_b32 s{S_T3}, s{S_T1}, 2\ns_and_b32 s{S_T4}, s{S_T1}, 3')
    a(f's_mul_i32 s{S_RLD}, s{S_T3}, 3072\ns_lshl_b32 s{S_T2}, s{S_T0}, 10\ns_add_u32 s{S_RLD}, s{S_RLD}, s{S_T2}\ns_lshl_b32 s{S_T2}, s{S_T4}, 8\ns_add_u32 s{S_RLD}, s{S_RLD}, s{S_T2}')
    a(f's_sub_u32 s{S_T0}, 2, s{S_T0}\ns_mul_i32 s{S_RB}, s{S_T0}, 3072\ns_lshl_b32 s{S_T2}, s{S_T4}, 8\ns_add_u32 s{S_RB}, s{S_RB}, s{S_T2}\ns_lshl_b32 s{S_T2}, s{S_T3}, 6\ns_add_u32 s{S_RB}, s{S_RB}, s{S_T2}\ns_mov_b32 s{S_DUP}, 0')
    if NCOPY > 1:
        a(f's_and_b32 s{S_DUP}, s{S_H}, {NCOPY-1}\ns_lshl_b32 s{S_DUP}, s{S_DUP}, 16')
        for r in (S_MC, S_MN, S_MP): a(f's_add_u32 s{r}, s{r}, s{S_DUP}')
        a(f's_mov_b32 s{S_MK_J8}, 0x3f3f3f3f\ns_mov_b32 s{S_MK_J8+1}, 0x3f3f3f3f')

def mem0_copy(a, P, copy=None):
    a(f's_mov_b32 s8, s{P["mem0"]}\ns_mov_b32 s9, s{P["mem0"]+1}\ns_mov_b32 s10, 9216\ns_mov_b32 s11, 0x20000')
    a(f's_lshl_b32 s34, s{S_H}, 16\ns_add_u32 s34, s34, {WS_M}' if copy is None else f's_mov_b32 s34, {WS_M}')
    for k in range(3):
        a(f'v_add_u32 v12, {k*256}, v0')
        a('v_mul_u32_u24 v13, 911, v12\nv_lshrrev_b32 v13, 16, v13')
        a('v_mul_u32_u24 v14, 72, v13\nv_sub_u32 v14, v12, v14')
        a('v_lshrrev_b32 v15, 1, v14')
        a('v_mul_u32_u24 v16, 57, v15\nv_lshrrev_b32 v16, 9, v16')
        a('v_mul_u32_u24 v17, 9, v16\nv_sub_u32 v17, v15, v17')
        a('v_mul_u32_u24 v18, 43, v17\nv_lshrrev_b32 v18, 7, v18')
        a('v_mul_u32_u24 v19, 3, v18\nv_sub_u32 v19, v17, v19')
        a('v_sub_u32 v18, 2, v18')
        a('v_lshrrev_b32 v20, 1, v13\nv_lshlrev_b32 v20, 8, v20\nv_lshl_add_u32 v20, v16, 6, v20')
        a('v_mul_u32_u24 v21, 3072, v18\nv_add_u32 v20, v20, v21\nv_lshl_add_u32 v20, v19, 10, v20')
        a('v_and_b32 v21, 1, v13\nv_lshl_add_u32 v20, v21, 5, v20\nv_and_b32 v21, 1, v14\nv_lshl_add_u32 v20, v21, 4, v20')
        a('v_lshlrev_b32 v21, 4, v12')
        a('v_cmp_gt_u32 vcc, 576, v12\ns_and_saveexec_b64 s[36:37], vcc')
        a('buffer_load_dwordx4 v[8:11], v21, s[8:11], 0 offen\ns_waitcnt vmcnt(0)')
        a('buffer_store_dwordx4 v[8:11], v20, s[4:7], s34 offen sc1')
        a('s_mov_b64 exec, s[36:37]')

L_TBL = L_QX + 1024
def build_table(a):
    L16 = V_L16
    a(f"""v_and_b32 v8, 0xf0, v{L16}
v_bfe_u32 v4, v{L16}, 8, 2
v_lshl_add_u32 v4, v4, 2, v8
v_lshlrev_b32 v4, 1, v4
v_lshrrev_b32 v8, 8, v{L16}
v_bfe_u32 v9, v{L16}, 6, 2
v_lshl_add_u32 v8, v8, 3, v9
v_bfe_u32 v5, v{L16}, 4, 2
v_lshlrev_b32 v5, 3, v5
v_lshl_add_u32 v5, v8, 5, v5
v_bfe_u32 v8, v{L16}, 6, 2
v_bfe_u32 v7, v{L16}, 4, 1
v_lshl_add_u32 v7, v8, 1, v7
v_lshlrev_b32 v9, 1, v7
v_lshrrev_b32 v8, 9, v{L16}
v_xor_b32 v6, v8, v9
v_lshlrev_b32 v6, 4, v6
v_lshl_add_u32 v6, v7, 8, v6
v_bfe_u32 v8, v{L16}, 8, 1
v_lshl_add_u32 v6, v8, 3, v6
v_lshrrev_b32 v8, 8, v{L16}
v_bfe_u32 v10, v{L16}, 5, 1
v_lshl_add_u32 v8, v8, 1, v10
v_xor_b32 v8, v8, v9
v_lshlrev_b32 v8, 4, v8
v_lshl_add_u32 v7, v7, 8, v8
ds_write_b128 v{L16}, v[4:7] offset:{L_TBL}
s_waitcnt lgkmcnt(0)""")
```

```python
from asmlib import *
from layout import *
from chain import Cnt
import struct, math

def f32bits(x): return struct.unpack('<I', struct.pack('<f', x))[0]

G_CG = 12; G_WV = 13; G_RB = 14; G_I = 15
G_SW = 8
G_SG = 16; G_SU = 20
G_T0 = 24; G_T1 = 25; G_T2 = 26; G_T3 = 27; G_T4 = 28; G_T5 = 29
G_LB = 30
G_C1 = 32; G_C2 = 34; G_ONE = 36
G_DJ = 38
G_CUR = 39
G_DB = 40
G_SO = 41
G_CNT = 42

DBG_LN = 64; DBG_KV = 96; DBG_Q = 128; DBG_H = 160; DBG_AO = 192
KVT_LO = 96
NHELP = 2
DBG_CHAIN = 40; DBG_AOINIT = 44; DBG_IMPURE = 48

def signal(a, P, off_imm, s_idx=None, val=1, vtmp=(4, 5)):
    l = a.newlabel('SIG')
    a(f's_cmp_lg_u32 s13, 0\ns_cbranch_scc1 {l}')
    if s_idx is None: a(f'v_mov_b32 v{vtmp[0]}, {off_imm}')
    else: a(f's_lshl_b32 s{G_T5}, s{s_idx}, 2\ns_add_u32 s{G_T5}, s{G_T5}, {off_imm}\nv_mov_b32 v{vtmp[0]}, s{G_T5}')
    a(f'v_mov_b32 v{vtmp[1]}, {val}' if isinstance(val, int) else f'v_mov_b32 v{vtmp[1]}, s{val[0]}')
    a('s_mov_b64 exec, 1')
    a(f'global_atomic_add v{vtmp[0]}, v{vtmp[1]}, s[{P["dbg"]}:{P["dbg"]+1}]')
    a('s_mov_b64 exec, -1')
    a.label(l)

def wait_flag(a, P, off_imm, s_idx, target, vtmp=(4, 5), sleep=8, shift_s=None, mask=None, cnt=42, multi=None):
    l = a.newlabel('WF'); d = a.newlabel('WFD'); e = a.newlabel('WFE')
    a(f's_cmp_lg_u32 s13, 0\ns_cbranch_scc1 {e}')
    if multi:
        off0, n = multi
        a(f'v_mbcnt_lo_u32_b32 v{vtmp[0]}, -1, 0\nv_lshlrev_b32 v{vtmp[0]}, 2, v{vtmp[0]}\nv_add_u32 v{vtmp[0]}, {off0}, v{vtmp[0]}')
        a(f's_mov_b64 exec, {(1 << n) - 1}')
    else:
        if s_idx is None: a(f'v_mov_b32 v{vtmp[0]}, {off_imm}')
        else: a(f's_lshl_b32 s{G_T5}, s{s_idx}, 2\ns_add_u32 s{G_T5}, s{G_T5}, {off_imm}\nv_mov_b32 v{vtmp[0]}, s{G_T5}')
        a('s_mov_b64 exec, 1')
    a(f's_mov_b32 s{cnt}, 0')
    a.label(l)
    a(f'global_load_dword v{vtmp[1]}, v{vtmp[0]}, s[{P["dbg"]}:{P["dbg"]+1}] sc1')
    a(f's_add_u32 s{cnt}, s{cnt}, 1\ns_cmp_gt_u32 s{cnt}, 0x20000\ns_cbranch_scc1 {d}')
    a('s_waitcnt vmcnt(0)')
    if shift_s is not None: a(f'v_lshrrev_b32 v{vtmp[1]}, s{shift_s}, v{vtmp[1]}\nv_and_b32 v{vtmp[1]}, {mask}, v{vtmp[1]}')
    a(f'v_cmp_gt_u32 vcc, {target}, v{vtmp[1]}')
    a(f's_cbranch_vccz {d}')
    if sleep: a(f's_sleep {sleep}')
    a(f's_branch {l}')
    a.label(d)
    a('s_waitcnt vmcnt(0)')
    a('s_mov_b64 exec, -1')
    a.label(e)
    a('s_barrier')

def rnd_bf16(a, dst, src, tmp=None):
    a(f'v_cvt_pk_bf16_f32 v{dst}, v{src}, v{src}\nv_lshlrev_b32 v{dst}, 16, v{dst}')

def layernorm(a, P):
    a('; ---- layernorm ----')
    a(f's_mov_b32 s8, s{P["x"]}\ns_mov_b32 s9, s{P["x"]+1}\ns_mov_b32 s10, {2048*1152}\ns_mov_b32 s11, 0x20000')
    a('v_and_b32 v1, 63, v0\nv_lshrrev_b32 v2, 3, v1\nv_and_b32 v3, 7, v1')
    a(f's_lshl_b32 s{G_T0}, s{G_T4}, 2\ns_add_u32 s{G_T0}, s{G_T0}, s{G_WV}\ns_lshl_b32 s{G_T0}, s{G_T0}, 3')
    a(f's_mul_i32 s{G_T1}, s{G_T0}, 1152')
    a('v_mul_u32_u24 v4, 1152, v2\nv_lshl_add_u32 v4, v3, 4, v4')
    X = 8; F = 48
    for i in range(9): a(f'buffer_load_dwordx4 {vr(X+4*i,4)}, v4, s[8:11], s{G_T1} offen offset:{i*128}')
    a(f's_lshr_b32 s{G_T2}, s{G_T0}, 5\ns_mul_i32 s{G_T2}, s{G_T2}, 36864\ns_and_b32 s{G_T3}, s{G_T0}, 31\ns_lshl_b32 s{G_T3}, s{G_T3}, 4\ns_add_u32 s{G_T2}, s{G_T2}, s{G_T3}\ns_add_u32 s{G_T2}, s{G_T2}, {WS_XF}')
    a('v_lshrrev_b32 v5, 1, v3\nv_lshlrev_b32 v5, 10, v5\nv_and_b32 v6, 1, v3\nv_lshl_add_u32 v5, v6, 9, v5\nv_lshl_add_u32 v5, v2, 4, v5')
    for i in range(9):
        a(f's_waitcnt vmcnt({8-i})')
        for r in range(4):
            x = X + 4*i + r; f = F + 2*(4*i + r)
            a(f'v_lshlrev_b32 v{f}, 16, v{x}\nv_and_b32 v{f+1}, 0xffff0000, v{x}')
    def red8(v, t):
        a(f'v_add_f32_dpp v{v}, v{v}, v{v} quad_perm:[1,0,3,2] row_mask:0xf bank_mask:0xf')
        a(f'v_add_f32_dpp v{v}, v{v}, v{v} quad_perm:[2,3,0,1] row_mask:0xf bank_mask:0xf')
        a(f'v_add_f32_dpp v{v}, v{v}, v{v} row_half_mirror row_mask:0xf bank_mask:0xf')
    S = 120
    a(f'v_pk_add_f32 {vr(S,2)}, {vr(F,2)}, {vr(F+2,2)}')
    for k in range(2, 36): a(f'v_pk_add_f32 {vr(S,2)}, {vr(S,2)}, {vr(F+2*k,2)}')
    a(f'v_add_f32 v{S}, v{S}, v{S+1}')
    red8(S, S+1)
    a(f'v_mul_f32 v{S}, 0x{f32bits(1/576):08x}, v{S}')
    a(f'v_mov_b32 v{S+1}, v{S}')
    Q = 122; D = 124
    a(f'v_mov_b64 {vr(Q,2)}, 0')
    for k in range(36):
        a(f'v_pk_add_f32 {vr(D,2)}, {vr(F+2*k,2)}, {vr(S,2)} neg_lo:[0,1] neg_hi:[0,1]')
        a(f'v_pk_fma_f32 {vr(Q,2)}, {vr(D,2)}, {vr(D,2)}, {vr(Q,2)}')
    a(f'v_add_f32 v{Q}, v{Q}, v{Q+1}')
    red8(Q, Q+1)
    a(f'v_mul_f32 v{Q}, 0x{f32bits(1/576):08x}, v{Q}')
    rnd_bf16(a, Q, Q)
    a(f'v_add_f32 v{Q}, 0x{f32bits(1e-5):08x}, v{Q}')
    rnd_bf16(a, Q, Q)
    a(f'v_sqrt_f32 v{Q}, v{Q}')
    rnd_bf16(a, Q, Q)
    a(f'v_rcp_f32 v{Q}, v{Q}')
    rnd_bf16(a, S, S)
    a(f'v_mov_b32 v{S+1}, v{S}\nv_mov_b32 v{Q+1}, v{Q}')
    for k in range(36):
        f = F + 2*k
        a(f'v_pk_add_f32 {vr(f,2)}, {vr(f,2)}, {vr(S,2)} neg_lo:[0,1] neg_hi:[0,1]')
        a(f'v_cvt_pk_bf16_f32 v{X+k}, v{f}, v{f+1}')
        a(f'v_lshlrev_b32 v{f}, 16, v{X+k}\nv_and_b32 v{f+1}, 0xffff0000, v{X+k}')
        a(f'v_pk_mul_f32 {vr(f,2)}, {vr(f,2)}, {vr(Q,2)}')
        a(f'v_cvt_pk_bf16_f32 v{X+k}, v{f}, v{f+1}')
        if k % 4 == 3:
            i = k // 4
            a(f'buffer_store_dwordx4 {vr(X+4*i,4)}, v5, s[4:7], s{G_T2} offen sc1')
            a(f's_add_u32 s{G_T2}, s{G_T2}, 4096')
    a('s_waitcnt vmcnt(0)\ns_barrier')
    a(f's_lshr_b32 s{G_T4}, s{G_T4}, 3')
    signal(a, P, DBG_LN, G_T4)

def XR(rt, ks):
    n = (rt * 36 + ks) * 4
    return vr(n, 4, 'a') if n < 256 else vr(224 + n - 256, 4, 'v')
V_LN = 1; V_DQ = 2; V_DG = 3; V_TR = 4; V_SK = 5; V_SV = 6; V_L16 = 7; V_D = 10; V_TRC = 11
ACG = 16; ACU = 48; WB = 80; NWB = 4; ET = 96
G_STEP = 16; G_MSK = 18; G_PT = 20; G_OB = 22; G_SZQ = 23; G_STQ = 31
G_PB = 43; G_O1 = 44; G_O2 = 45; G_P = 46; G_RBC = 47; G_LAST = 48; G_KVP = 49; G_QS = 50

def gemm1(a, P, cfg):
    a('; ---- gemm1 ----')
    a(f'v_and_b32 v{V_LN}, 63, v0\nv_lshlrev_b32 v{V_L16}, 4, v{V_LN}')
    a(f'v_lshrrev_b32 v8, 2, v{V_LN}\nv_and_b32 v9, 3, v{V_LN}\nv_lshlrev_b32 v9, 4, v9')
    a(f'v_lshl_add_u32 v{V_DQ}, v8, 13, v9')
    a(f'v_mul_u32_u24 v{V_DG}, 9216, v8\nv_add_u32 v{V_DG}, v{V_DG}, v9')
    a(f'v_lshrrev_b32 v8, 5, v{V_LN}\nv_bfe_u32 v9, v{V_LN}, 2, 2\nv_lshl_add_u32 v8, v8, 3, v9\nv_lshlrev_b32 v8, 6, v8')
    a(f'v_bfe_u32 v9, v{V_LN}, 4, 1\nv_lshl_add_u32 v8, v9, 5, v8\nv_and_b32 v9, 3, v{V_LN}\nv_lshl_add_u32 v{V_TR}, v9, 3, v8')
    a(f'v_lshrrev_b32 v8, 5, v{V_LN}\nv_and_b32 v9, 15, v{V_LN}\nv_lshlrev_b32 v9, 4, v9\nv_lshl_add_u32 v8, v8, 8, v9\nv_bfe_u32 v9, v{V_LN}, 4, 1')
    a(f'v_lshl_add_u32 v{V_SK}, v9, 12, v8\nv_lshl_add_u32 v{V_SV}, v9, 10, v8')
    a(f's_mov_b32 s{G_SW+3}, 0x20000\ns_mov_b32 s{G_SZQ}, {576*8192}\ns_mov_b32 s{G_STQ}, {16*8192}')
    a(f's_mul_i32 s{G_LB}, s{G_WV}, 9216')
    c1 = -2 * math.log2(math.e) * math.sqrt(2 / math.pi); c2 = c1 * 0.044715
    for sr, v in ((G_C1, c1), (G_C2, c2), (G_ONE, 1.0)):
        a(f's_mov_b32 s{sr}, 0x{f32bits(v):08x}\ns_mov_b32 s{sr+1}, s{sr}')
    pp = lambda n: f's[{P[n]}:{P[n]+1}]'
    def dma_ops():
        pre = f"""s_cmp_lt_u32 s{G_DJ}, s{G_PB}|s_cselect_b32 s{G_T0}, s{G_O1}, s{G_O2}|s_add_u32 s{G_T0}, s{G_T0}, s{G_DJ}
s_min_u32 s{G_T0}, s{G_T0}, 27
s_mul_i32 s{G_T1}, s{G_T0}, 24
s_add_u32 s{G_T1}, s{G_T1}, s{G_CG}
s_lshr_b32 s{G_T2}, s{G_T1}, 7
s_and_b32 s{G_T1}, s{G_T1}, 127
s_lshl_b32 s{G_T1}, s{G_T1}, 6
s_mul_i32 s{G_SO}, s{G_WV}, {144*8192}
s_add_u32 s{G_SO}, s{G_SO}, s{G_T1}
s_cmp_eq_u32 s{G_T2}, 1|s_cselect_b64 s[{G_SW}:{G_SW+1}], {pp('Wv')}, {pp('Wk')}
s_cmp_eq_u32 s{G_T2}, 2|s_cselect_b64 s[{G_SW}:{G_SW+1}], {pp('Wq')}, s[{G_SW}:{G_SW+1}]
s_sub_u32 s{G_T1}, s{G_T0}, 16
s_lshr_b32 s{G_T2}, s{G_T1}, 1
s_mul_i32 s{G_T2}, s{G_T2}, 24
s_add_u32 s{G_T2}, s{G_T2}, s{G_CG}
s_lshl_b32 s{G_T2}, s{G_T2}, 6
s_mul_i32 s{G_T3}, s{G_WV}, {144*9216}
s_add_u32 s{G_T2}, s{G_T2}, s{G_T3}
s_bitcmp1_b32 s{G_T1}, 0|s_cselect_b64 s[{G_PT}:{G_PT+1}], {pp('wu')}, {pp('wg')}
s_cmp_ge_u32 s{G_T0}, 16|s_cselect_b64 s[{G_SW}:{G_SW+1}], s[{G_PT}:{G_PT+1}], s[{G_SW}:{G_SW+1}]|s_cselect_b32 s{G_SO}, s{G_T2}, s{G_SO}|s_cselect_b32 s{G_SW+2}, {576*9216}, s{G_SZQ}|s_cselect_b32 s{G_STEP}, {16*9216}, s{G_STQ}|s_cselect_b64 s[{G_MSK}:{G_MSK+1}], -1, 0
v_cndmask_b32 v{V_D}, v{V_DQ}, v{V_DG}, s[{G_MSK}:{G_MSK+1}]
s_add_u32 s{G_T0}, s{G_DB}, s{G_LB}"""
        ops = [x.replace('|', '\n') for x in pre.split('\n')]
        for n in range(9):
            if cfg.get('g_nodma'): continue
            ops.append(f's_add_u32 m0, s{G_T0}, {n*1024}\ns_nop 0\nbuffer_load_dwordx4 v{V_D}, s[{G_SW}:{G_SW+3}], s{G_SO} offen lds\ns_add_u32 s{G_SO}, s{G_SO}, s{G_STEP}')
        ops.append(f's_add_u32 s{G_DJ}, s{G_DJ}, 1')
        ops.append(f's_add_u32 s{G_DB}, s{G_DB}, 36864\ns_cmp_eq_u32 s{G_DB}, {4*36864}\ns_cselect_b32 s{G_DB}, 0, s{G_DB}')
        return ops
    a(f's_mov_b32 s{G_DJ}, 0\ns_mov_b32 s{G_DB}, 0\ns_mov_b32 s{G_CUR}, 0')
    a(f's_lshr_b32 s{G_T0}, s{G_RB}, 1\ns_mul_i32 s{G_O1}, s{G_T0}, 3\ns_cmp_eq_u32 s{G_T0}, 3\ns_cselect_b32 s{G_PB}, 2, 3')
    a(f's_sub_u32 s{G_O2}, 0, s{G_PB}\ns_add_u32 s{G_LAST}, s{G_PB}, 16\ns_add_u32 s{G_KVP}, s{G_PB}, 11')
    a(f's_cmp_lt_u32 s{G_RB}, 2\ns_cselect_b32 s{G_O2}, 8, s{G_O2}\ns_cselect_b32 s{G_LAST}, 8, s{G_LAST}\ns_cselect_b32 s{G_KVP}, 99, s{G_KVP}')
    a(f's_and_b32 s{G_RBC}, s{G_RB}, 1')
    for _ in range(3):
        for op in dma_ops(): a(op)
    first = [True]
    def load_x(wait=True):
        wait_flag(a, P, DBG_LN, G_RBC, 8, vtmp=(8, 9), sleep=4)
        if cfg.get('prof') == 2 and first[0]: cfg['_prof'](a, 4)
        first[0] = False
        a(f's_lshl_b32 s{G_T0}, s{G_RBC}, 3\ns_lshl_b32 s{G_T1}, s{G_WV}, 1\ns_add_u32 s{G_T0}, s{G_T0}, s{G_T1}\ns_mul_i32 s{G_T0}, s{G_T0}, 36864\ns_add_u32 s{G_T0}, s{G_T0}, {WS_XF}')
        a(f's_add_u32 s{G_T1}, s{G_T0}, 36864')
        for ks in range(36):
            for rt in range(2):
                a(f'buffer_load_dwordx4 {XR(rt, ks)}, v{V_L16}, s[4:7], s{G_T0 if rt == 0 else G_T1} offen offset:{(ks % 4)*1024} sc1')
            if ks % 4 == 3: a(f's_add_u32 s{G_T0}, s{G_T0}, 4096\ns_add_u32 s{G_T1}, s{G_T1}, 4096')
            if ks == 24: a('s_waitcnt vmcnt(40)')
        if wait: a('s_waitcnt vmcnt(0)')
    a('s_waitcnt vmcnt(0)')
    load_x(False)
    if cfg.get('prof') == 3: cfg['_prof'](a, 5)

    def tile_start(vw=True):
        if cfg.get('gprof'): a('s_memtime s[60:61]\ns_waitcnt lgkmcnt(0)\ns_sub_u32 s66, s60, s64\ns_add_u32 s69, s69, s66')
        if vw: a('s_waitcnt vmcnt(18)')
        if cfg.get('gprof'): a('s_memtime s[62:63]\ns_waitcnt lgkmcnt(0)\ns_sub_u32 s66, s62, s60\ns_add_u32 s67, s67, s66')
        a('s_barrier')
        if cfg.get('gprof'): a('s_memtime s[64:65]\ns_waitcnt lgkmcnt(0)\ns_sub_u32 s66, s64, s62\ns_add_u32 s68, s68, s66')
        a(f'v_add_u32 v{V_TRC}, s{G_CUR}, v{V_TR}')
        a(f's_add_u32 s{G_CUR}, s{G_CUR}, 36864\ns_cmp_eq_u32 s{G_CUR}, {4*36864}\ns_cselect_b32 s{G_CUR}, 0, s{G_CUR}')
    def body(acc, swapped, dma=True):
        fill = dma_ops() if dma else []
        def rd(ks):
            w = WB + 4 * (ks % NWB)
            a(f'ds_read_b64_tr_b16 {vr(w,2)}, v{V_TRC} offset:{ks*1024}')
            a(f'ds_read_b64_tr_b16 {vr(w+2,2)}, v{V_TRC} offset:{ks*1024+256}')
        PD = NWB - 1; DSP = cfg.get('DSP', 3)
        for ks in range(PD): rd(ks)
        for ks in range(36):
            if ks + PD < 36: rd(ks + PD)
            rem = min(PD, 35 - ks)
            a(f's_waitcnt lgkmcnt({2*rem})')
            if not dma: a(f's_waitcnt vmcnt({min(63, 2*(35-ks))})')
            w = vr(WB + 4 * (ks % NWB), 4)
            for rt in range(2):
                d = vr(acc + 16*rt, 16); c = d if ks else '0'
                if swapped: a(f'v_mfma_f32_32x32x16_bf16 {d}, {w}, {XR(rt, ks)}, {c}')
                else: a(f'v_mfma_f32_32x32x16_bf16 {d}, {XR(rt, ks)}, {w}, {c}')
                if fill and ks >= 1 and (not fill[0].startswith('s_add_u32 m0') or (2*ks + rt) % DSP == 0): a(fill.pop(0))
        assert not fill
    def pack_swapped(src_fn, rt, store_fn):
        for ai, aq in enumerate((0, 2)):
            t = ET + 8 * (rt % 2) + 4 * ai
            a(f'v_cvt_pk_bf16_f32 v{t}, v{src_fn(4*aq)}, v{src_fn(4*aq+1)}\nv_cvt_pk_bf16_f32 v{t+1}, v{src_fn(4*aq+2)}, v{src_fn(4*aq+3)}')
            a(f'v_cvt_pk_bf16_f32 v{t+2}, v{src_fn(4*aq+4)}, v{src_fn(4*aq+5)}\nv_cvt_pk_bf16_f32 v{t+3}, v{src_fn(4*aq+6)}, v{src_fn(4*aq+7)}')
            a(f'v_permlane32_swap_b32 v{t}, v{t+2}\nv_permlane32_swap_b32 v{t+1}, v{t+3}')
            store_fn(t, ai)
    if cfg.get('gprof'): a('s_memtime s[64:65]\ns_waitcnt lgkmcnt(0)\ns_mov_b32 s67, 0\ns_mov_b32 s68, 0\ns_mov_b32 s69, 0')
    def single_tile(sfx, dma):
        tile_start(dma)
        a(f's_cmp_lt_u32 s{G_P}, s{G_PB}\ns_cselect_b32 s{G_I}, s{G_O1}, s{G_O2}\ns_add_u32 s{G_I}, s{G_I}, s{G_P}')
        a(f's_mul_i32 s{G_T4}, s{G_I}, 24\ns_add_u32 s{G_T4}, s{G_T4}, s{G_CG}')
        a(f's_lshl_b32 s{G_OB}, s{G_RBC}, 3\ns_lshl_b32 s{G_T5}, s{G_WV}, 1\ns_add_u32 s{G_OB}, s{G_OB}, s{G_T5}\ns_lshl_b32 s{G_OB}, s{G_OB}, 18')
        a(f's_bfe_u32 s{G_T5}, s{G_T4}, 0x50002\ns_lshl_b32 s{G_T5}, s{G_T5}, 13\ns_add_u32 s{G_OB}, s{G_OB}, s{G_T5}')
        a(f's_and_b32 s{G_CNT}, s{G_T4}, 3\ns_lshl_b32 s{G_CNT}, s{G_CNT}, 10\ns_add_u32 s{G_OB}, s{G_OB}, s{G_CNT}')
        a(f's_lshr_b32 s{G_T4}, s{G_T4}, 7')
        a(f's_cmp_eq_u32 s{G_T4}, 1\ns_cbranch_scc1 G1V{sfx}')
        a(f's_mov_b32 s{G_T5}, {WS_KF}\ns_cmp_eq_u32 s{G_T4}, 0\ns_cselect_b32 s{G_T4}, s{G_T5}, {WS_QF}')
        a(f's_cselect_b32 s{G_QS}, 1.0, 0x{f32bits(math.log2(math.e) / math.sqrt(128.0)):08x}\ns_mov_b32 s{G_QS+1}, s{G_QS}')
        a(f's_add_u32 s{G_OB}, s{G_OB}, s{G_T4}')
        body(ACG, True, dma)
        for r in range(ACG, ACG + 32, 2): a(f'v_pk_mul_f32 {vr(r,2)}, {vr(r,2)}, s[{G_QS}:{G_QS+1}]')
        for rt in range(2):
            pack_swapped(lambda r: ACG + 16*rt + r, rt,
                         lambda t, ai: a(f'buffer_store_dwordx4 {vr(t,4)}, v{V_SK}, s[4:7], s{G_OB} offen offset:{ai*512} sc1'))
            if rt == 0: a(f's_add_u32 s{G_OB}, s{G_OB}, {32*8192}')
        a(f's_branch G1SE{sfx}')
        a.label(f'G1V{sfx}')
        a(f's_add_u32 s{G_OB}, s{G_OB}, s{G_CNT}\ns_add_u32 s{G_OB}, s{G_OB}, {WS_VF}')
        body(ACG, False, dma)
        for rt in range(2):
            for ap in range(2):
                t = ET + 8 * rt + 4 * ap; s0 = ACG + 16*rt + 4*ap; s1 = s0 + 8
                a(f'v_cvt_pk_bf16_f32 v{t}, v{s0}, v{s0+1}\nv_cvt_pk_bf16_f32 v{t+1}, v{s0+2}, v{s0+3}')
                a(f'v_cvt_pk_bf16_f32 v{t+2}, v{s1}, v{s1+1}\nv_cvt_pk_bf16_f32 v{t+3}, v{s1+2}, v{s1+3}')
                a(f'buffer_store_dwordx4 {vr(t,4)}, v{V_SV}, s[4:7], s{G_OB} offen offset:{ap*512} sc1')
            if rt == 0: a(f's_add_u32 s{G_OB}, s{G_OB}, {32*8192}')
        a.label(f'G1SE{sfx}')
        a(f's_add_u32 s{G_P}, s{G_P}, 1')
    a(f's_mov_b32 s{G_P}, 0')
    a.label('G1A')
    single_tile('A', False)
    a(f's_cmp_lt_u32 s{G_P}, s{G_PB}\ns_cbranch_scc1 G1A')
    a('s_waitcnt vmcnt(0)\ns_barrier')
    signal(a, P, DBG_KV, G_RBC, vtmp=(8, 9))
    if cfg.get('prof'): cfg['_prof'](a, 6)
    for k in range(3):
        if k == 2: a(f's_cmp_lt_u32 s{G_PB}, 3\ns_cbranch_scc1 G1P')
        for op in dma_ops(): a(op)
    a.label('G1P')
    a(f's_cmp_lt_u32 s{G_RB}, 2\ns_cbranch_scc1 G1S')
    a(f's_mov_b32 s{G_RBC}, s{G_RB}')
    load_x()
    a.label('G1S')
    single_tile('B', True)
    a(f's_cmp_lg_u32 s{G_P}, s{G_KVP}\ns_cbranch_scc1 G1F2')
    a('s_waitcnt vmcnt(0)\ns_barrier')
    signal(a, P, DBG_KV, G_RBC, vtmp=(8, 9))
    a.label('G1F2')
    a(f's_cmp_lt_u32 s{G_P}, s{G_LAST}\ns_cbranch_scc1 G1S')
    a('s_waitcnt vmcnt(0)\ns_barrier')
    signal(a, P, DBG_Q, G_RB, vtmp=(8, 9))
    if cfg.get('prof'): cfg['_prof'](a, 7)
    a(f's_mov_b32 s{G_I}, 0')
    a.label('G1G')
    tile_start(); body(ACG, True)
    tile_start(); body(ACU, True)
    a(f's_lshl_b32 s{G_OB}, s{G_RB}, 3\ns_lshl_b32 s{G_T5}, s{G_WV}, 1\ns_add_u32 s{G_OB}, s{G_OB}, s{G_T5}\ns_mul_i32 s{G_OB}, s{G_OB}, {288*1024}')
    a(f's_mul_i32 s{G_T4}, s{G_I}, 24\ns_add_u32 s{G_T4}, s{G_T4}, s{G_CG}\ns_lshl_b32 s{G_T4}, s{G_T4}, 11\ns_add_u32 s{G_OB}, s{G_OB}, s{G_T4}\ns_add_u32 s{G_OB}, s{G_OB}, {WS_HF}')
    T = 112
    for rt in range(2):
        for q in range(0, 16, 4):
            prs = [(ACG + 16*rt + q + o, ACU + 16*rt + q + o, T + o) for o in (0, 2)]
            for g, u, t in prs: a(f'v_pk_mul_f32 {vr(t,2)}, {vr(g,2)}, {vr(g,2)}')
            for g, u, t in prs: a(f'v_pk_fma_f32 {vr(t,2)}, {vr(t,2)}, s[{G_C2}:{G_C2+1}], {vr(T+4,2)}') if False else a(f'v_pk_mul_f32 {vr(t,2)}, {vr(t,2)}, s[{G_C2}:{G_C2+1}]')
            for g, u, t in prs: a(f'v_pk_add_f32 {vr(t,2)}, {vr(t,2)}, s[{G_C1}:{G_C1+1}]')
            for g, u, t in prs: a(f'v_pk_mul_f32 {vr(t,2)}, {vr(t,2)}, {vr(g,2)}')
            for g, u, t in prs: a(f'v_exp_f32 v{t}, v{t}\nv_exp_f32 v{t+1}, v{t+1}')
            for g, u, t in prs: a(f'v_pk_add_f32 {vr(t,2)}, {vr(t,2)}, s[{G_ONE}:{G_ONE+1}]')
            for g, u, t in prs: a(f'v_rcp_f32 v{t}, v{t}\nv_rcp_f32 v{t+1}, v{t+1}')
            for g, u, t in prs: a(f'v_pk_mul_f32 {vr(g,2)}, {vr(g,2)}, {vr(u,2)}')
            for g, u, t in prs: a(f'v_pk_mul_f32 {vr(g,2)}, {vr(g,2)}, {vr(t,2)}')
        pack_swapped(lambda r: ACG + 16*rt + r, rt,
                     lambda t, ai: a(f'buffer_store_dwordx4 {vr(t,4)}, v{V_L16}, s[4:7], s{G_OB} offen offset:{ai*1024} {cfg.get("g_st", "sc1")}'))
        if rt == 0: a(f's_add_u32 s{G_OB}, s{G_OB}, {288*1024}')
    a(f's_add_u32 s{G_I}, s{G_I}, 1\ns_cmp_lt_u32 s{G_I}, 6\ns_cbranch_scc1 G1G')
    a('s_waitcnt vmcnt(0)\ns_barrier')
    signal(a, P, DBG_H, G_RB, vtmp=(8, 9))
    if cfg.get('gprof'):
        a(f's_lshl_b32 s59, s2, 6\ns_lshl_b32 s58, s13, 4\ns_add_u32 s59, s59, s58\ns_add_u32 s59, s59, {WS_DBG + 0x90000}')
        a('v_mov_b32 v12, s67\nv_mov_b32 v13, s68\nv_mov_b32 v14, s69\nv_mov_b32 v15, 0\nv_mov_b32 v8, 0\ns_mov_b64 exec, 1')
        a('buffer_store_dwordx4 v[12:15], v8, s[4:7], s59 offen\ns_mov_b64 exec, -1')
```

```python
import sys, json
from asmlib import *
from layout import *
import chain as C, gemm1 as G, ffn2 as F, ao as AO

KN = 'parallel_sum__memory_aug_recurrent_mem_tr__geglu_ffn__prompt_kernel'
HEADER = open('parallel_sum__memory_aug_recurrent_mem_tr__geglu_ffn__prompt.s.ref').read().split('; Override launch')[0]

def gen(cfg):
    cfg = dict(cfg); cfg['_prof'] = prof
    a = Asm()
    P = {}
    names = [('x',0),('mem0',8),('Wq',16),('Wk',24),('Wv',32),('Wo',40),('wg',64),('wu',72),('wd',80),('out',88),('dbg',96),('ws',104)]
    a('s_cmp_ge_u32 s2, 256\ns_cbranch_scc1 K_END')
    if cfg.get('perm'): a(f's_mul_i32 s2, s2, {cfg["perm"]}\ns_and_b32 s2, s2, 255')
    for i, (n, off) in enumerate(names):
        P[n] = 72 + 2*i
        a(f's_load_dwordx2 s[{P[n]}:{P[n]+1}], s[0:1], {off}')
    a('s_getreg_b32 s3, hwreg(HW_REG_XCC_ID)')
    a('v_lshrrev_b32 v4, 6, v0')
    a('v_readfirstlane_b32 s13, v4')
    a('s_waitcnt lgkmcnt(0)')
    a(f's_mov_b32 s4, s{P["ws"]}\ns_mov_b32 s5, s{P["ws"]+1}\ns_mov_b32 s6, {WS_SIZE}\ns_mov_b32 s7, 0x20000')
    if cfg.get('prof'): a('s_memrealtime s[100:101]')
    if cfg.get('fakexcc'): a('s_cmp_lt_u32 s2, 128\ns_cselect_b32 s24, 1, 0\ns_cmp_eq_u32 s3, 0\ns_cselect_b32 s3, s24, s3')
    if cfg.get('cpf', 0):
        a('s_getpc_b64 s[24:25]')
        a('s_and_b32 s24, s24, 0xffffff00')
        a('v_lshlrev_b32 v240, 7, v0')
        a(f's_mov_b32 s26, K_END-{KN}')
        a('global_load_dword v241, v240, s[24:25]\nv_add_u32 v240, 0x8000, v240')
        a('v_cmp_gt_u32 vcc, s26, v240\ns_and_saveexec_b64 s[28:29], vcc\ns_cbranch_execz CPF_E')
        a('global_load_dword v242, v240, s[24:25]')
        a.label('CPF_E')
        a('s_mov_b64 exec, s[28:29]')
    if cfg.get('dst'): a('s_memrealtime s[96:97]')
    a('s_cmp_lt_u32 s3, 8\ns_cselect_b32 s54, s3, 7')
    a('s_lshr_b32 s55, s2, 3\ns_and_b32 s55, s55, 31')
    DBGP = f's[{P["dbg"]}:{P["dbg"]+1}]'
    a('s_cmp_lg_u32 s13, 0\ns_cbranch_scc1 CL_ISSUED')
    a('s_mov_b64 exec, 1')
    a('s_lshl_b32 s27, 1, s55\ns_lshl_b32 s29, s54, 2')
    a('v_mov_b32 v4, s29\nv_mov_b32 v5, s27')
    a(f'global_atomic_or v250, v4, v5, {DBGP} sc0')
    a('s_mov_b64 exec, -1')
    a.label('CL_ISSUED')
    def warm():
        l = a.newlabel('WARM')
        a(f's_cmp_eq_u32 s54, 0\ns_cbranch_scc1 {l}')
        a('s_lshr_b32 s25, s2, 3\ns_mul_i32 s25, s25, 7\ns_and_b32 s27, s2, 7\ns_add_u32 s25, s25, s27\ns_sub_u32 s25, s25, 1\ns_min_u32 s25, s25, 223')
        a('s_mul_i32 s27, s25, 1171\ns_lshr_b32 s27, s27, 16\ns_mul_i32 s29, s27, 56\ns_sub_u32 s25, s25, s29')
        a(f's_cmp_eq_u32 s27, 1\ns_cselect_b64 s[16:17], s[{P["Wk"]}:{P["Wk"]+1}], s[{P["Wq"]}:{P["Wq"]+1}]')
        a(f's_cmp_eq_u32 s27, 2\ns_cselect_b64 s[16:17], s[{P["Wv"]}:{P["Wv"]+1}], s[16:17]')
        a(f's_cmp_eq_u32 s27, 3\ns_cselect_b64 s[16:17], s[{P["Wo"]}:{P["Wo"]+1}], s[16:17]')
        a('s_mov_b32 s18, 4718592\ns_mov_b32 s19, 0x20000')
        a('s_lshl_b32 s25, s25, 15\nv_lshlrev_b32 v199, 7, v0')
        for k in range(3):
            a(f'buffer_load_dword v{200+k}, v199, s[16:19], s25 offen')
            a(f's_add_u32 s25, s25, {56*32768}')
        a.label(l)
    a('s_and_b32 s24, s2, 7\ns_cmp_lg_u32 s24, 1\ns_cbranch_scc1 NO_LN')
    a('s_lshr_b32 s44, s2, 3\ns_mov_b32 s45, 1')
    a('s_cmp_lt_u32 s44, 16\ns_cbranch_scc1 LN_GO')
    a('s_sub_u32 s44, s44, 16\ns_mul_i32 s44, s44, 3\ns_add_u32 s44, s44, 16\ns_mov_b32 s45, 3')
    a.label('LN_GO')
    a(f's_mov_b32 s{G.G_T4}, s44')
    G.layernorm(a, P)
    a('s_add_u32 s44, s44, 1\ns_sub_u32 s45, s45, 1\ns_cmp_lg_u32 s45, 0\ns_cbranch_scc1 LN_GO')
    a.label('NO_LN')
    if cfg.get('warm', 0): warm()
    def resolve(sfx, ldsaddr, firstwait):
        a(f's_cmp_lg_u32 s13, 0\ns_cbranch_scc1 CL_WAIT{sfx}')
        a('s_mov_b32 s25, s55\ns_mov_b32 s26, s54\ns_mov_b32 s28, 0\ns_lshl_b32 s27, 1, s25')
        a('s_mov_b64 exec, 1')
        a(firstwait)
        a(f's_branch CL_CHK{sfx}')
        a.label(f'CL_TRY{sfx}')
        a('s_lshl_b32 s27, 1, s25\ns_lshl_b32 s29, s26, 2')
        a('v_mov_b32 v248, s29\nv_mov_b32 v249, s27')
        a(f'global_atomic_or v250, v248, v249, {DBGP} sc0')
        a('s_waitcnt vmcnt(0)')
        a.label(f'CL_CHK{sfx}')
        a('v_readfirstlane_b32 s30, v250')
        a(f's_and_b32 s31, s30, s27\ns_cbranch_scc0 CL_GOT{sfx}')
        a(f's_not_b32 s31, s30\ns_cbranch_scc0 CL_FULL{sfx}')
        a(f's_ff1_i32_b32 s25, s31\ns_branch CL_TRY{sfx}')
        a.label(f'CL_FULL{sfx}')
        a(f's_add_u32 s28, s28, 1\ns_sub_u32 s26, 8, s28\ns_cmp_gt_u32 s28, 8\ns_cbranch_scc1 CL_NONE{sfx}')
        a('s_mov_b32 s25, 0')
        a(f's_cmp_lg_u32 s26, 0\ns_cbranch_scc1 CL_TRY{sfx}')
        a(f'v_mov_b32 v248, {G.DBG_IMPURE}\nv_mov_b32 v249, 1')
        a(f'global_atomic_or v250, v248, v249, {DBGP} sc0\ns_waitcnt vmcnt(0)')
        a(f's_branch CL_TRY{sfx}')
        a.label(f'CL_NONE{sfx}')
        a('s_mov_b32 s26, 8\ns_mov_b32 s25, 0')
        a.label(f'CL_GOT{sfx}')
        a('s_lshl_b32 s26, s26, 5\ns_add_u32 s26, s26, s25')
        a(f'v_mov_b32 v248, {ldsaddr}\nv_mov_b32 v249, s26\nds_write_b32 v248, v249\ns_waitcnt lgkmcnt(0)')
        a('s_mov_b64 exec, -1')
        a.label(f'CL_WAIT{sfx}')
        a('s_barrier')
        a(f'v_mov_b32 v248, {ldsaddr}\nds_read_b32 v249, v248\ns_waitcnt lgkmcnt(0)')
        a('v_readfirstlane_b32 s26, v249')
        a('s_barrier')
    if cfg.get('spec', 1):
        a(f's_mov_b32 s52, 1\ns_mov_b32 s{C.S_H}, s55')
        a('s_cmp_eq_u32 s54, 0\ns_cbranch_scc1 R_CHAIN2')
    resolve('A', 0, 's_waitcnt vmcnt(0)')
    a.label('ROLE')
    a('s_lshr_b32 s24, s26, 5\ns_and_b32 s28, s26, 31')
    if cfg.get('prof'): a('s_mov_b32 s101, s26')
    a('s_cmp_ge_u32 s24, 8\ns_cbranch_scc1 K_END')
    a('s_cmp_eq_u32 s24, 0\ns_cbranch_scc1 R_CHAIN')
    a('s_cmp_eq_u32 s24, 1\ns_cbranch_scc1 R_AO')
    a(f's_sub_u32 s{G.G_CG}, s24, 2\ns_lshl_b32 s{G.G_CG}, s{G.G_CG}, 2\ns_lshr_b32 s25, s28, 3\ns_add_u32 s{G.G_CG}, s{G.G_CG}, s25\ns_and_b32 s{G.G_RB}, s28, 7')
    G.gemm1(a, P, cfg)
    if cfg.get('prof'): prof(a, 1)
    a(f's_cmp_lt_u32 s{G.G_CG}, 12\ns_cbranch_scc1 R_FFN')
    a(f's_sub_u32 s24, s{G.G_CG}, 12\ns_lshl_b32 s24, s24, 3\ns_add_u32 s24, s24, s{G.G_RB}')
    a(f's_and_b32 s{AO.A_CH}, s24, 1\ns_bfe_u32 s{AO.A_HG}, s24, 0x30001\ns_lshr_b32 s{AO.A_SEG}, s24, 4\ns_add_u32 s{AO.A_SEG}, s{AO.A_SEG}, {2 + cfg.get("S0", 20)}')
    a('s_barrier\ns_branch AO_ENTRY2')
    a.label('R_FFN')
    F.ffn2(a, P, cfg)
    if cfg.get('dst'):
        a('s_waitcnt vmcnt(0)\ns_sub_u32 s24, 15, s16\ns_add_u32 s24, s24, s17'); dstamp(a, P, 14, vt=(4, 5), cond='s24')
    a('s_branch K_DONE')
    a.label('R_AO')
    a(f's_and_b32 s{AO.A_SEG}, s28, 1\ns_bfe_u32 s{AO.A_CH}, s28, 0x10001\ns_lshr_b32 s{AO.A_HG}, s28, 2')
    AO.ao(a, P, cfg)
    a('s_branch K_DONE')
    a.label('R_CHAIN')
    a(f's_mov_b32 s{C.S_H}, s28\ns_mov_b32 s52, 0')
    a.label('R_CHAIN2')
    def hook(vm):
        a('s_cmp_eq_u32 s52, 0\ns_cbranch_scc1 CH_OK')
        resolve('B', 0, 's_waitcnt vmcnt(60)')
        if cfg.get('prof'): a('s_mov_b32 s101, s26')
        a(f's_cmp_eq_u32 s26, s{C.S_H}\ns_cbranch_scc1 CH_OK')
        a('s_waitcnt vmcnt(0)\ns_barrier')
        a('s_lshl_b32 s24, s13, 6\nv_lshrrev_b32 v0, 4, v0\nv_or_b32 v0, s24, v0')
        a('s_branch ROLE')
        a.label('CH_OK')
    def flags_wait(sfx, words, vo=44):
        a(f'v_mov_b32 v{vo}, 0\nv_mov_b32 v{vo+1}, 0')
        for n_, (off, tgt) in enumerate(words):
            a(f's_mov_b32 s43, {off}\nv_writelane_b32 v{vo}, s43, {n_}\ns_mov_b32 s43, {tgt}\nv_writelane_b32 v{vo+1}, s43, {n_}')
        a(f's_cmp_lg_u32 s13, 0\ns_cbranch_scc1 FE{sfx}')
        a(f's_mov_b32 s27, 0\ns_mov_b64 exec, {(1 << len(words)) - 1}')
        a.label(f'FW{sfx}')
        a(f'global_load_dword v{vo+2}, v{vo}, {DBGP} sc1')
        a(f's_add_u32 s27, s27, 1\ns_cmp_gt_u32 s27, 0x20000\ns_cbranch_scc1 FD{sfx}')
        a('s_waitcnt vmcnt(0)')
        a(f'v_cmp_gt_u32 vcc, v{vo+1}, v{vo+2}')
        a(f's_cbranch_vccz FD{sfx}')
        a(f's_sleep {cfg.get("FWS", 6)}\ns_branch FW{sfx}')
        a.label(f'FD{sfx}')
        a('s_waitcnt vmcnt(0)\ns_mov_b64 exec, -1')
        a.label(f'FE{sfx}')
        a('s_barrier')
    C.chain_prologue(a, P, hook, None)
    C.chain_init(a, P, cfg)
    if cfg.get('dst'): dstamp(a, P, 13, vt=(4, 5), also=15)
    if cfg.get('prof'): prof(a, 4)
    a('s_barrier')
    G.signal(a, P, G.DBG_CHAIN, None)
    flags_wait('0', [(0, 0xffffffff), (G.DBG_AOINIT, 32), (G.DBG_KV, G.KVT_LO), (G.DBG_KV + 4, G.KVT_LO)])
    a(f'v_mov_b32 v4, {G.DBG_IMPURE}')
    a(f'global_load_dword v5, v4, {DBGP} sc1')
    a(f's_sub_u32 s35, s{C.S_KF}, {32*8192}\ns_mov_b32 m0, s{C.S_KXL}')
    for q in range(4): a(f'buffer_load_dwordx4 v{C.V_L16}, s[4:7], s35 offen offset:{q*1024} sc1 lds')
    a(f'v_lshlrev_b32 v6, 3, v{C.V_L16}\ns_mov_b32 m0, {L_QX}')
    a(f's_sub_u32 s35, s{C.S_PF}, {32*8192}\ns_mov_b64 exec, 0xffffffff')
    a('buffer_load_dword v6, s[4:7], s35 offen sc1 lds')
    a('s_mov_b64 exec, -1')
    if cfg.get('pmw', 1):
        a(f's_mul_i32 s43, s{C.S_H}, 12288\ns_and_b32 s27, s13, 1\ns_lshl_b32 s27, s27, 19\ns_add_u32 s43, s43, s27\ns_lshr_b32 s27, s13, 1\ns_lshl_b32 s27, s27, 13\ns_add_u32 s43, s43, s27\ns_add_u32 s43, s43, {WS_P}')
        a('buffer_load_dword v6, s[4:7], s43 offen sc1 lds')
        a(f's_lshl_b32 s43, s13, 13\ns_add_u32 s43, s43, {WS_M + M_STRIDE}')
        a('buffer_load_dword v6, s[4:7], s43 offen sc1 lds')
        a('s_waitcnt vmcnt(7)')
    else: a('s_waitcnt vmcnt(5)')
    a('v_readfirstlane_b32 s34, v5')
    if cfg.get('prof'): prof(a, 2)
    lg = C.Cnt(a, 'lgkmcnt', 15)
    if cfg.get('dst'): a('s_mov_b32 s35, s34'); dstamp(a, P, 8, vt=(4, 5))
    C.build_table(a)
    C.next_prep(a, lg)
    cfg['_kvwait'] = lambda a: G.wait_flag(a, P, 0, None, 24, sleep=2, cnt=C.S_CNT, multi=(G.DBG_KV + 8, 6))
    if cfg.get('forceslow'): a('s_mov_b32 s34, 1')
    a('s_cmp_lg_u32 s34, 0\ns_cbranch_scc1 STEPS')
    C.chain_loop(a, cfg, 'F', '')
    C.chain_loop(a, cfg, 'S', 'sc1')
    a.label('CHAIN_DONE')
    if cfg.get('dst'): dstamp(a, P, 9, vt=(4, 5))
    a.label('K_DONE')
    a('s_waitcnt vmcnt(0) lgkmcnt(0)')
    if cfg.get('prof'): prof(a, 3)
    a.label('K_END')
    a('s_endpgm')
    body, n = a.finalize()
    head = HEADER + f'''; @launch grid=(256,1,1) block=(256,1,1) lds=163840
.amdgcn_target "amdgcn-amd-amdhsa--gfx950"
.text
.globl {KN}
.p2align 8
.type {KN},@function
{KN}:
'''
    tail = f'''.section .rodata,"a"
.p2align 6
.amdhsa_kernel {KN}
  .amdhsa_next_free_vgpr 512
  .amdhsa_next_free_sgpr 102
  .amdhsa_accum_offset 256
  .amdhsa_group_segment_fixed_size 0
  .amdhsa_kernarg_size 112
  .amdhsa_user_sgpr_count 2
  .amdhsa_user_sgpr_kernarg_segment_ptr 1
  .amdhsa_system_sgpr_workgroup_id_x 1
.end_amdhsa_kernel
'''
    return head + body + tail, n

def dstamp(a, P, word, inv=False, vt=(250, 251), cond='s12', also=None):
    l = a.newlabel('DS')
    a(f's_cmp_lg_u32 s13, 0\ns_cbranch_scc1 {l}')
    a(f's_cmp_lg_u32 {cond}, 0\ns_cbranch_scc1 {l}')
    a('s_memrealtime s[98:99]\ns_waitcnt lgkmcnt(0)')
    a('s_mov_b64 exec, 1')
    a(f'v_mov_b32 v{vt[0]}, {word*4}\nv_mov_b32 v{vt[1]}, s98')
    a(f'global_store_dword v{vt[0]}, v{vt[1]}, s[{P["dbg"]}:{P["dbg"]+1}] sc1')
    if also:
        a(f'v_mov_b32 v{vt[0]}, {also*4}\nv_mov_b32 v{vt[1]}, s96')
        a(f'global_store_dword v{vt[0]}, v{vt[1]}, s[{P["dbg"]}:{P["dbg"]+1}] sc1')
    a('s_mov_b64 exec, -1')
    a.label(l)

def prof(a, k):
    l = a.newlabel('PR')
    a(f's_cmp_lg_u32 s13, 0\ns_cbranch_scc1 {l}')
    a('s_memrealtime s[98:99]\ns_waitcnt lgkmcnt(0)')
    a(f's_sub_u32 s98, s98, s100\ns_lshl_b32 s99, s2, 6\ns_add_u32 s99, s99, {WS_DBG + 0x80000 + k*8}')
    a('s_mov_b64 exec, 1')
    a('v_mov_b32 v14, s98\nv_mov_b32 v15, s101\nv_mov_b32 v13, 0')
    a('buffer_store_dwordx2 v[14:15], v13, s[4:7], s99 offen')
    a('s_mov_b64 exec, -1')
    a.label(l)

if __name__ == '__main__':
    cfg = json.loads(sys.argv[1]) if len(sys.argv) > 1 else dict(D1=110, D2=310)
    src, n = gen(cfg)
    out = sys.argv[2] if len(sys.argv) > 2 else 'all.s'
    open(out, 'w').write(src)
    print(n, 'instructions', len(src), 'bytes')
```

```python
from asmlib import *
from layout import *
from gemm1 import signal, wait_flag, f32bits, DBG_Q, DBG_KV, DBG_AO, DBG_AOINIT, G_T5, KVT_LO, DBG_CHAIN
import math
import chain

A_HG = 12; A_WV = 13; A_CH = 14; A_SEG = 15
A_T0 = 24; A_T1 = 25; A_T2 = 26; A_T3 = 27; A_T4 = 28
A_QO = 16; A_KM = 17; A_AP = 18; A_OB = 19; A_CNT = 20; A_ABORT = 21; A_SC = 22
A_MK = 32
A_NINF = 40
V_LN = 1; V_L16 = 2; V_L8 = 3; V_XW = 4; V_TK = 5; V_AP = 6; V_OL = 7; V_PF = 184
def WF(t, hh, kk):
    n = ((t * 4 + hh) * 4 + kk) * 4
    return (n, 'a') if n < 256 else (192 + n - 256, 'v')
QF = 8; KF = 40; VF = 72; KM = 104; VM = 120; KR = 128
S = 136
PX = 156; PM = 164
TM = 172
ACC = 8
L_KC = 0
L_O = 16384
L_PF = 49152

def ao(a, P, cfg):
    a('; ---- AO ----')
    SRD = 's[4:7]'
    a(f'v_and_b32 v{V_LN}, 63, v0\nv_lshlrev_b32 v{V_L16}, 4, v{V_LN}\nv_lshlrev_b32 v{V_L8}, 3, v{V_LN}')
    a('v_lshlrev_b32 v8, 4, v0')
    for r in range(4): a(f'v_mov_b32 v{12+r}, -1')
    a(f's_sub_u32 s{A_T0}, s{A_T4}, 1\ns_cmp_gt_u32 s{A_T0}, 1\ns_cbranch_scc1 AONM')
    a(f's_mul_i32 s{A_T0}, s{A_T4}, {M_STRIDE}\ns_add_u32 s{A_T0}, s{A_T0}, {WS_M}')
    for k in range(3):
        a(f'buffer_store_dwordx4 v[12:15], v8, {SRD}, s{A_T0} offen sc1\ns_add_u32 s{A_T0}, s{A_T0}, 4096')
    a.label('AONM')
    for r in range(4): a(f'v_mov_b32 v{24+r}, 0')
    a(f's_mul_i32 s{A_T1}, s{A_T4}, 12288')
    for b in range(2):
        a(f's_add_u32 s{A_T0}, s{A_T1}, {WS_P + b*0x80000}')
        for k in range(3):
            a(f'buffer_store_dwordx4 v[24:27], v8, {SRD}, s{A_T0} offen sc1\ns_add_u32 s{A_T0}, s{A_T0}, 4096')
    a(f's_cmp_lg_u32 s{A_T4}, 0\ns_cbranch_scc1 AONM0')
    chain.mem0_copy(a, P, 0)
    a.label('AONM0')
    a('s_waitcnt vmcnt(0)\ns_barrier')
    signal(a, P, DBG_AOINIT, None, vtmp=(8, 9))
    cfg['_ln_rest']()
    a.label('AO_ENTRY2')
    wait_flag(a, P, DBG_CHAIN, None, 32, vtmp=(8, 9), sleep=16)
    wait_flag(a, P, 0, None, KVT_LO, vtmp=(8, 9), sleep=8, multi=(DBG_KV, 2))
    a(f'v_and_b32 v{V_LN}, 63, v0\nv_lshlrev_b32 v{V_L16}, 4, v{V_LN}\nv_lshlrev_b32 v{V_L8}, 3, v{V_LN}')
    a(f's_mov_b32 s8, s{P["Wo"]}\ns_mov_b32 s9, s{P["Wo"]+1}\ns_mov_b32 s10, 4718592\ns_mov_b32 s11, 0x20000')
    a(f'v_lshrrev_b32 v8, 1, v{V_LN}\nv_and_b32 v9, 1, v{V_LN}\nv_lshlrev_b32 v9, 4, v9\nv_mul_u32_u24 v10, 1152, v8\nv_add_u32 v10, v10, v9')
    a(f'v_lshrrev_b32 v8, 4, v{V_LN}\nv_bfe_u32 v9, v{V_LN}, 2, 2\nv_lshl_add_u32 v8, v8, 2, v9\nv_lshlrev_b32 v8, 5, v8\nv_and_b32 v9, 3, v{V_LN}\nv_lshl_add_u32 v11, v9, 3, v8')
    a(f's_mul_i32 s{A_T0}, s{A_WV}, 40960\nv_add_u32 v11, s{A_T0}, v11')
    a(f's_mul_i32 s{A_T1}, s{A_HG}, {4*147456}\ns_mul_i32 s{A_T2}, s{A_CH}, 576\ns_add_u32 s{A_T1}, s{A_T1}, s{A_T2}\ns_lshl_b32 s{A_T2}, s{A_WV}, 5\ns_add_u32 s{A_T1}, s{A_T1}, s{A_T2}')
    a(f's_cmp_lt_u32 s{A_WV}, 2\ns_cselect_b32 s{A_T3}, {4*128}, {3*128}' if False else f's_mov_b32 s{A_T3}, {3*128}\ns_cmp_lt_u32 s{A_WV}, 2\ns_cselect_b32 s{A_T3}, {4*128}, s{A_T3}')
    strips = [(t, hh) for t in range(5) for hh in range(4)]
    D = 9
    def issue(idx):
        t, hh = strips[idx]; b = idx % 10
        for n in range(4):
            a(f's_add_u32 m0, s{A_T0}, {b*4096 + n*1024}')
            if t < 4: a(f's_add_u32 s{A_T2}, s{A_T1}, {hh*147456 + 32*n*1152 + t*128}')
            else: a(f's_add_u32 s{A_T2}, s{A_T1}, {hh*147456 + 32*n*1152}\ns_add_u32 s{A_T2}, s{A_T2}, s{A_T3}')
            a(f'buffer_load_dwordx4 v10, s[8:11], s{A_T2} offen lds')
    def process(idx):
        t, hh = strips[idx]; b = idx % 10
        a(f's_waitcnt vmcnt({4*min(D, len(strips)-1-idx)})')
        for kk in range(4):
            r, ty = WF(t, hh, kk)
            for hf in range(2):
                a(f'ds_read_b64_tr_b16 {vr(r+2*hf,2,ty)}, v11 offset:{b*4096 + (32*kk + 16*hf)*32}')
        a('s_waitcnt lgkmcnt(0)')
    for idx in range(len(strips) + D):
        if idx < len(strips): issue(idx)
        if idx >= D: process(idx - D)
    a('s_barrier')
    c = math.log2(math.e) / math.sqrt(128.0)
    a(f's_mov_b32 s{A_SC}, 0x{f32bits(c):08x}\ns_mov_b32 s{A_SC+1}, s{A_SC}\ns_mov_b32 s{A_NINF}, 0xff800000\ns_mov_b32 s{A_ABORT}, 0')
    a(f'v_lshrrev_b32 v8, 4, v{V_LN}\nv_lshlrev_b32 v8, 2, v8\nv_and_b32 v9, 15, v{V_LN}')
    for r in range(4):
        a(f'v_add_u32 v10, {r}, v8\nv_cmp_le_u32 s[{A_MK+2*r}:{A_MK+2*r+1}], v10, v9')
    a(f's_lshl_b32 s{A_T0}, s{A_WV}, 12')
    a(f'v_lshlrev_b32 v{V_XW}, 5, v9\nv_lshrrev_b32 v10, 4, v{V_LN}\nv_lshl_add_u32 v{V_XW}, v10, 3, v{V_XW}\nv_add_u32 v{V_XW}, s{A_T0}, v{V_XW}')
    a(f'v_bfe_u32 v8, v{V_LN}, 2, 2\nv_lshl_add_u32 v8, v10, 3, v8\nv_lshlrev_b32 v8, 5, v8\nv_and_b32 v11, 3, v{V_LN}\nv_lshl_add_u32 v{V_TK}, v11, 3, v8\nv_add_u32 v{V_TK}, s{A_T0}, v{V_TK}')
    a(f'v_mul_u32_u24 v{V_AP}, 2304, v9\nv_lshl_add_u32 v{V_AP}, v10, 4, v{V_AP}')
    S0 = cfg.get('S0', 20)
    A_HD = 45; A_RBC = 46
    a(f's_lshl_b32 s{A_HD}, s{A_HG}, 2\ns_add_u32 s{A_HD}, s{A_HD}, s{A_WV}\ns_mov_b32 s{A_RBC}, -1')
    def seg_offsets():
        a(f's_lshl_b32 s{A_T1}, s{A_SEG}, 5\ns_add_u32 s{A_T1}, s{A_T1}, s{A_HD}')
        a(f's_lshl_b32 s{A_KM}, s{A_T1}, 12\ns_add_u32 s{A_KM}, s{A_KM}, {WS_KM}')
        a(f's_lshl_b32 s{A_T1}, s{A_SEG}, 3\ns_add_u32 s{A_T1}, s{A_T1}, s{A_HG}\ns_mul_i32 s{A_AP}, s{A_T1}, 73728\ns_mul_i32 s{A_T1}, s{A_CH}, 1152\ns_add_u32 s{A_AP}, s{A_AP}, s{A_T1}\ns_lshl_b32 s{A_T1}, s{A_WV}, 6\ns_add_u32 s{A_AP}, s{A_AP}, s{A_T1}\ns_add_u32 s{A_AP}, s{A_AP}, {WS_AP}')
    def next_seg(r):
        a(f's_cmp_lt_u32 s{r}, {S0}\ns_cselect_b32 s{A_T0}, 2, 8\ns_add_u32 s{r}, s{r}, s{A_T0}')
    seg_offsets()
    a(f's_mov_b32 s{A_OB}, {L_O}')
    if cfg.get('prof') == 1: cfg['_prof'](a, 4)
    A_PFB = 41; A_PSEG = 43; A_PQO = 44
    a(f's_mul_i32 s{A_PFB}, s{A_WV}, 24576\ns_add_u32 s{A_PFB}, s{A_PFB}, {L_PF}')
    a(f'v_add_u32 v{V_PF}, s{A_PFB}, v{V_L16}')
    def prefetch():
        l = a.newlabel('AOPF'); l2 = a.newlabel('AOPF')
        a(f's_cmp_ge_u32 s{A_PSEG}, 64\ns_cbranch_scc1 {l2}')
        a(f's_lshr_b32 s{A_T0}, s{A_PSEG}, 3')
        a(f's_cmp_eq_u32 s{A_T0}, s{A_RBC}\ns_cbranch_scc1 {l}')
        a(f's_mov_b32 s{A_RBC}, s{A_T0}')
        a(f's_cmp_lt_u32 s{A_T0}, 2\ns_cselect_b32 s{A_T1}, {KVT_LO}, 24')
        wait_flag(a, P, DBG_KV, A_T0, f's{A_T1}', vtmp=(TM, TM+1), sleep=8)
        wait_flag(a, P, DBG_Q, A_T0, 24, vtmp=(TM, TM+1), sleep=8)
        a.label(l)
        a(f's_lshl_b32 s{A_PQO}, s{A_PSEG}, 5\ns_add_u32 s{A_PQO}, s{A_PQO}, s{A_HD}\ns_lshl_b32 s{A_PQO}, s{A_PQO}, 13')
        for bi, base in enumerate((WS_QF, WS_KF, WS_VF)):
            for hf in range(2):
                a(f's_add_u32 s{A_T0}, s{A_PQO}, {base + hf*4096}')
                a(f's_add_u32 m0, s{A_PFB}, {bi*8192 + hf*4096}')
                for q in range(4): a(f'buffer_load_dwordx4 v{V_L16}, {SRD}, s{A_T0} offen offset:{q*1024} sc1 lds')
        a.label(l2)
        next_seg(A_PSEG)
    def prefetch_late():
        global TM
        old = TM; TM = 186
        prefetch()
        TM = old
    a(f's_mov_b32 s{A_PSEG}, s{A_SEG}')
    prefetch()
    a('s_waitcnt vmcnt(0)')
    if cfg.get('prof') == 1: cfg['_prof'](a, 5)
    def mf(d, x, y, init): a(f'v_mfma_f32_16x16x32_bf16 {vr(d,4)}, {x}, {y}, {"0" if init else vr(d,4)}')
    a.label('AOL')
    for n in range(24):
        a(f'ds_read_b128 {vr(QF+4*n,4)}, v{V_PF} offset:{n*1024}')
        if n == 14: a('s_waitcnt lgkmcnt(7)')
    a('s_waitcnt lgkmcnt(0)')
    S00 = S; S0M = S+4; S10 = S+8; S11 = S+12; S1M = S+16
    for ks in range(4):
        mf(S00, vr(KF+4*ks,4), vr(QF+4*ks,4), ks == 0)
        mf(S10, vr(KF+4*ks,4), vr(QF+16+4*ks,4), ks == 0)
        mf(S11, vr(KF+16+4*ks,4), vr(QF+16+4*ks,4), ks == 0)
    a(f's_mov_b32 s{A_CNT}, 0')
    a.label('AOP')
    for pw in range(4):
        a(f'buffer_load_dwordx2 {vr(KR+2*pw,2)}, v{V_L8}, {SRD}, s{A_KM} offen offset:{pw*1024} sc1')
        a(f'buffer_load_dwordx2 {vr(VM+2*pw,2)}, v{V_L8}, {SRD}, s{A_KM} offen offset:{pw*1024+512} sc1')
    a(f's_add_u32 s{A_CNT}, s{A_CNT}, 1\ns_cmp_gt_u32 s{A_CNT}, 0x40000\ns_cselect_b32 s{A_ABORT}, 1, s{A_ABORT}')
    a('s_waitcnt vmcnt(0)')
    a(f'v_max3_u32 v{TM}, v{VM}, v{VM+1}, v{VM+2}')
    for r in range(VM+3, VM+15, 2): a(f'v_max3_u32 v{TM}, v{TM}, v{r}, v{r+1}')
    a(f'v_max_u32 v{TM}, v{TM}, v{VM+15}')
    a(f'v_cmp_eq_u32 vcc, -1, v{TM}')
    a(f's_cmp_lg_u32 s{A_ABORT}, 0\ns_cbranch_scc1 AOG')
    a('s_cbranch_vccz AOG')
    a(f's_sleep {cfg.get("ASLEEP", 4)}\ns_branch AOP')
    a.label('AOG')
    for pw in range(4):
        a(f'ds_write2st64_b32 v{V_XW}, v{KR+2*pw}, v{KR+2*pw+1} offset0:{pw*4} offset1:{pw*4+2}')
    a('s_waitcnt lgkmcnt(0)')
    for ks in range(4):
        for hh in range(2): a(f'ds_read_b64_tr_b16 {vr(KM+4*ks+2*hh,2)}, v{V_TK} offset:{ks*1024 + hh*128}')
    PFHERE = True
    for r in range(4):
        a(f'v_mov_b32 v{TM}, s{A_NINF}')
        a(f'v_cndmask_b32 v{S00+r}, v{TM}, v{S00+r}, s[{A_MK+2*r}:{A_MK+2*r+1}]')
        a(f'v_cndmask_b32 v{S11+r}, v{TM}, v{S11+r}, s[{A_MK+2*r}:{A_MK+2*r+1}]')
    for ks in range(4):
        a(f's_waitcnt lgkmcnt({6-2*ks})')
        mf(S0M, vr(KM+4*ks,4), vr(QF+4*ks,4), ks == 0)
        mf(S1M, vr(KM+4*ks,4), vr(QF+16+4*ks,4), ks == 0)
    LS = [TM+4, TM+6]
    for qt in range(2):
        xs = [S00] if qt == 0 else [S10, S11]
        sm = S0M if qt == 0 else S1M
        MX = TM; M2 = TM+1
        a(f'v_max3_f32 v{MX}, v{xs[0]}, v{xs[0]+1}, v{xs[0]+2}')
        a(f'v_max3_f32 v{M2}, v{xs[0]+3}, v{sm}, v{sm+1}')
        if qt:
            a(f'v_max3_f32 v{MX}, v{MX}, v{S11}, v{S11+1}')
            a(f'v_max3_f32 v{M2}, v{M2}, v{S11+2}, v{S11+3}')
        a(f'v_max_f32 v{MX}, v{MX}, v{M2}\nv_max_f32 v{M2}, v{MX}, v{M2}')
        a(f'v_permlane32_swap_b32 v{MX}, v{M2}\nv_max_f32 v{MX}, v{MX}, v{M2}\nv_max_f32 v{M2}, v{MX}, v{M2}')
        a(f'v_permlane16_swap_b32 v{MX}, v{M2}\nv_max_f32 v{MX}, v{MX}, v{M2}')
        prs = [x + o for x in xs for o in (0, 2)] + [sm]
        for r in prs: a(f'v_pk_add_f32 {vr(r,2)}, {vr(r,2)}, {vr(MX,2)} op_sel_hi:[1,0] neg_lo:[0,1] neg_hi:[0,1]')
        for r in prs: a(f'v_exp_f32 v{r}, v{r}\nv_exp_f32 v{r+1}, v{r+1}')
        px = PX + 4*qt; pm = PM + 4*qt
        for k, r in enumerate(prs[:-1]): a(f'v_cvt_pk_bf16_f32 v{px+k}, v{r}, v{r+1}')
        if qt == 0: a(f'v_mov_b64 {vr(px+2,2)}, 0')
        a(f'v_cvt_pk_bf16_f32 v{pm}, v{sm}, v{sm+1}\nv_mov_b64 {vr(pm+1+0,1) if False else vr(pm+2,2)}, 0')
        a(f'v_mov_b32 v{pm+1}, 0\nv_cvt_pk_bf16_f32 v{pm+3}, v{sm}, v{sm+1}')
        l = LS[qt]
        a(f'v_pk_add_f32 {vr(l,2)}, {vr(prs[0],2)}, {vr(prs[1],2)}')
        for r in prs[2:]: a(f'v_pk_add_f32 {vr(l,2)}, {vr(l,2)}, {vr(r,2)}')
        a(f'v_add_f32 v{MX}, v{l}, v{l+1}\nv_add_f32 v{M2}, v{l}, v{l+1}')
        a(f'v_permlane32_swap_b32 v{MX}, v{M2}\nv_add_f32 v{l}, v{MX}, v{M2}\nv_add_f32 v{l+1}, v{MX}, v{M2}')
        a(f'v_permlane16_swap_b32 v{l}, v{l+1}\nv_add_f32 v{l}, v{l}, v{l+1}')
        a(f'v_rcp_f32 v{l}, v{l}')
    prefetch_late()
    O = 8
    for qt in range(2):
        for et in range(8):
            d = O + 32*qt + 4*et
            mf(d, vr(VF+4*et,4), vr(PX+4*qt,4), True)
        for et in range(8):
            d = O + 32*qt + 4*et
            a(f'v_mfma_f32_16x16x16_bf16 {vr(d,4)}, {vr(VM+2*(et//2),2)}, {vr(PM+4*qt+2*(et%2),2)}, {vr(d,4)}')
    a(f's_lshl_b32 s{A_T0}, s{A_WV}, 13\ns_add_u32 s{A_T0}, s{A_T0}, s{A_OB}\nv_add_u32 v{V_OL}, s{A_T0}, v{V_L16}')
    for qt in range(2):
        for kk in range(4):
            d = O + 32*qt + 8*kk
            for r in range(0, 8, 2): a(f'v_pk_mul_f32 {vr(d+r,2)}, {vr(d+r,2)}, {vr(LS[qt],2)} op_sel_hi:[1,0]')
            for r in range(4): a(f'v_cvt_pk_bf16_f32 v{d+r}, v{d+2*r}, v{d+2*r+1}')
            a(f'ds_write_b128 v{V_OL}, {vr(d,4)} offset:{(qt*4+kk)*1024}')
    a('s_waitcnt lgkmcnt(0)\ns_barrier')
    a(f'v_add_u32 v{V_OL}, s{A_OB}, v{V_L16}')
    BR = 48; NB = 8
    seq = [(hh, kk, qt) for hh in range(4) for kk in range(4) for qt in range(2)]
    def rd(n):
        hh, kk, qt = seq[n]
        a(f'ds_read_b128 {vr(BR+4*(n%NB),4)}, v{V_OL} offset:{hh*8192 + (qt*4+kk)*1024}')
    PD = NB - 2
    for n in range(PD): rd(n)
    for n, (hh, kk, qt) in enumerate(seq):
        if n + PD < len(seq): rd(n + PD)
        a(f's_waitcnt lgkmcnt({min(PD, len(seq)-1-n)})')
        for t in range(5):
            r, ty = WF(t, hh, kk)
            mf(ACC + 4*(2*t+qt), vr(r,4,ty), vr(BR+4*(n%NB),4), hh == 0 and kk == 0)
    a(f's_add_u32 s{A_T0}, s{A_AP}, {16*2304}')
    for t in range(4):
        for qt in range(2):
            a(f'buffer_store_dwordx4 {vr(ACC+4*(2*t+qt),4)}, v{V_AP}, {SRD}, s{A_AP if qt == 0 else A_T0} offen offset:{t*256} sc1')
    a(f's_cmp_ge_u32 s{A_WV}, 2\ns_cbranch_scc1 AON5')
    for qt in range(2):
        a(f'buffer_store_dwordx4 {vr(ACC+4*(8+qt),4)}, v{V_AP}, {SRD}, s{A_AP if qt == 0 else A_T0} offen offset:1024 sc1')
    a.label('AON5')
    a('s_waitcnt vmcnt(0)\ns_barrier')
    a(f's_lshl_b32 s{A_T0}, s{A_SEG}, 1\ns_add_u32 s{A_T0}, s{A_T0}, s{A_CH}\ns_lshr_b32 s{A_T1}, s{A_T0}, 3\ns_and_b32 s{A_T0}, s{A_T0}, 7\ns_lshl_b32 s{A_T0}, s{A_T0}, 2\ns_lshl_b32 s{A_T0}, 1, s{A_T0}')
    signal(a, P, DBG_AO, A_T1, val=(A_T0,), vtmp=(8, 9))
    next_seg(A_SEG); seg_offsets()
    a(f's_cmp_lt_u32 s{A_SEG}, 64\ns_cbranch_scc1 AOL')
```

```python
import sys, json
from asmlib import *
from layout import *
import chain as C, gemm1 as G, ffn2 as F, ao as AO

KN = 'parallel_sum__memory_aug_recurrent_mem_tr__geglu_ffn__prompt_kernel'
HEADER = open('parallel_sum__memory_aug_recurrent_mem_tr__geglu_ffn__prompt.s.ref').read().split('; Override launch')[0]

def gen(cfg):
    cfg = dict(cfg); cfg['_prof'] = prof
    a = Asm()
    P = {}
    names = [('x',0),('mem0',8),('Wq',16),('Wk',24),('Wv',32),('Wo',40),('wg',64),('wu',72),('wd',80),('out',88),('dbg',96),('ws',104)]
    a('s_cmp_ge_u32 s2, 256\ns_cbranch_scc1 K_END')
    if cfg.get('perm'): a(f's_mul_i32 s2, s2, {cfg["perm"]}\ns_and_b32 s2, s2, 255')
    for i, (n, off) in enumerate(names):
        P[n] = 72 + 2*i
        a(f's_load_dwordx2 s[{P[n]}:{P[n]+1}], s[0:1], {off}')
    a('s_getreg_b32 s3, hwreg(HW_REG_XCC_ID)')
    a('v_lshrrev_b32 v4, 6, v0')
    a('v_readfirstlane_b32 s13, v4')
    a('s_waitcnt lgkmcnt(0)')
    a(f's_mov_b32 s4, s{P["ws"]}\ns_mov_b32 s5, s{P["ws"]+1}\ns_mov_b32 s6, {WS_SIZE}\ns_mov_b32 s7, 0x20000')
    if cfg.get('prof'): a('s_memrealtime s[100:101]')
    if cfg.get('fakexcc'): a('s_cmp_lt_u32 s2, 128\ns_cselect_b32 s24, 1, 0\ns_cmp_eq_u32 s3, 0\ns_cselect_b32 s3, s24, s3')
    if cfg.get('cpf', 0):
        a('s_getpc_b64 s[24:25]')
        a('s_and_b32 s24, s24, 0xffffff00')
        a('v_lshlrev_b32 v240, 7, v0')
        a(f's_mov_b32 s26, K_END-{KN}')
        a('global_load_dword v241, v240, s[24:25]\nv_add_u32 v240, 0x8000, v240')
        a('v_cmp_gt_u32 vcc, s26, v240\ns_and_saveexec_b64 s[28:29], vcc\ns_cbranch_execz CPF_E')
        a('global_load_dword v242, v240, s[24:25]')
        a.label('CPF_E')
        a('s_mov_b64 exec, s[28:29]')
    if cfg.get('dst'): a('s_memrealtime s[96:97]')
    a('s_cmp_lt_u32 s3, 8\ns_cselect_b32 s54, s3, 7')
    a('s_lshr_b32 s55, s2, 3\ns_and_b32 s55, s55, 31')
    DBGP = f's[{P["dbg"]}:{P["dbg"]+1}]'
    a('s_cmp_lg_u32 s13, 0\ns_cbranch_scc1 CL_ISSUED')
    a('s_mov_b64 exec, 1')
    a('s_lshl_b32 s27, 1, s55\ns_lshl_b32 s29, s54, 2')
    a('v_mov_b32 v4, s29\nv_mov_b32 v5, s27')
    a(f'global_atomic_or v250, v4, v5, {DBGP} sc0')
    a('s_mov_b64 exec, -1')
    a.label('CL_ISSUED')
    def warm():
        l = a.newlabel('WARM')
        a(f's_cmp_eq_u32 s54, 0\ns_cbranch_scc1 {l}')
        a('s_lshr_b32 s25, s2, 3\ns_mul_i32 s25, s25, 7\ns_and_b32 s27, s2, 7\ns_add_u32 s25, s25, s27\ns_sub_u32 s25, s25, 1\ns_min_u32 s25, s25, 223')
        a('s_mul_i32 s27, s25, 1171\ns_lshr_b32 s27, s27, 16\ns_mul_i32 s29, s27, 56\ns_sub_u32 s25, s25, s29')
        a(f's_cmp_eq_u32 s27, 1\ns_cselect_b64 s[16:17], s[{P["Wk"]}:{P["Wk"]+1}], s[{P["Wq"]}:{P["Wq"]+1}]')
        a(f's_cmp_eq_u32 s27, 2\ns_cselect_b64 s[16:17], s[{P["Wv"]}:{P["Wv"]+1}], s[16:17]')
        a(f's_cmp_eq_u32 s27, 3\ns_cselect_b64 s[16:17], s[{P["Wo"]}:{P["Wo"]+1}], s[16:17]')
        a('s_mov_b32 s18, 4718592\ns_mov_b32 s19, 0x20000')
        a('s_lshl_b32 s25, s25, 15\nv_lshlrev_b32 v199, 7, v0')
        for k in range(3):
            a(f'buffer_load_dword v{200+k}, v199, s[16:19], s25 offen')
            a(f's_add_u32 s25, s25, {56*32768}')
        a.label(l)
    a('s_and_b32 s24, s2, 7\ns_cmp_lg_u32 s24, 1\ns_cbranch_scc1 NO_LN')
    a(f's_lshr_b32 s{G.G_T4}, s2, 3\ns_cmp_ge_u32 s{G.G_T4}, 16\ns_cbranch_scc1 NO_LN')
    a('s_mov_b32 s45, 0')
    a.label('LN_GO')
    G.layernorm(a, P)
    a('s_cmp_eq_u32 s45, 1\ns_cbranch_scc1 LN_RET1\ns_cmp_eq_u32 s45, 2\ns_cbranch_scc1 LN_RET2')
    a.label('NO_LN')
    if cfg.get('warm', 0): warm()
    def resolve(sfx, ldsaddr, firstwait):
        a(f's_cmp_lg_u32 s13, 0\ns_cbranch_scc1 CL_WAIT{sfx}')
        a('s_mov_b32 s25, s55\ns_mov_b32 s26, s54\ns_mov_b32 s28, 0\ns_lshl_b32 s27, 1, s25')
        a('s_mov_b64 exec, 1')
        a(firstwait)
        a(f's_branch CL_CHK{sfx}')
        a.label(f'CL_TRY{sfx}')
        a('s_lshl_b32 s27, 1, s25\ns_lshl_b32 s29, s26, 2')
        a('v_mov_b32 v248, s29\nv_mov_b32 v249, s27')
        a(f'global_atomic_or v250, v248, v249, {DBGP} sc0')
        a('s_waitcnt vmcnt(0)')
        a.label(f'CL_CHK{sfx}')
        a('v_readfirstlane_b32 s30, v250')
        a(f's_and_b32 s31, s30, s27\ns_cbranch_scc0 CL_GOT{sfx}')
        a(f's_not_b32 s31, s30\ns_cbranch_scc0 CL_FULL{sfx}')
        a(f's_ff1_i32_b32 s25, s31\ns_branch CL_TRY{sfx}')
        a.label(f'CL_FULL{sfx}')
        a(f's_add_u32 s28, s28, 1\ns_sub_u32 s26, 8, s28\ns_cmp_gt_u32 s28, 8\ns_cbranch_scc1 CL_NONE{sfx}')
        a('s_mov_b32 s25, 0')
        a(f's_cmp_lg_u32 s26, 0\ns_cbranch_scc1 CL_TRY{sfx}')
        a(f'v_mov_b32 v248, {G.DBG_IMPURE}\nv_mov_b32 v249, 1')
        a(f'global_atomic_or v250, v248, v249, {DBGP} sc0\ns_waitcnt vmcnt(0)')
        a(f's_branch CL_TRY{sfx}')
        a.label(f'CL_NONE{sfx}')
        a('s_mov_b32 s26, 8\ns_mov_b32 s25, 0')
        a.label(f'CL_GOT{sfx}')
        a('s_lshl_b32 s26, s26, 5\ns_add_u32 s26, s26, s25')
        a(f'v_mov_b32 v248, {ldsaddr}\nv_mov_b32 v249, s26\nds_write_b32 v248, v249\ns_waitcnt lgkmcnt(0)')
        a('s_mov_b64 exec, -1')
        a.label(f'CL_WAIT{sfx}')
        a('s_barrier')
        a(f'v_mov_b32 v248, {ldsaddr}\nds_read_b32 v249, v248\ns_waitcnt lgkmcnt(0)')
        a('v_readfirstlane_b32 s26, v249')
        a('s_barrier')
    if cfg.get('spec', 1):
        a(f's_mov_b32 s52, 1\ns_mov_b32 s{C.S_H}, s55')
        a('s_cmp_eq_u32 s54, 0\ns_cbranch_scc1 R_CHAIN2')
    resolve('A', 0, 's_waitcnt vmcnt(0)')
    a.label('ROLE')
    a('s_lshr_b32 s24, s26, 5\ns_and_b32 s28, s26, 31')
    if cfg.get('prof'): a('s_mov_b32 s101, s26')
    a('s_cmp_ge_u32 s24, 8\ns_cbranch_scc1 K_END')
    a('s_cmp_eq_u32 s24, 0\ns_cbranch_scc1 R_CHAIN')
    a('s_cmp_eq_u32 s24, 1\ns_cbranch_scc1 R_AO')
    a(f's_sub_u32 s{G.G_CG}, s24, 2\ns_lshl_b32 s{G.G_CG}, s{G.G_CG}, 2\ns_lshr_b32 s25, s28, 3\ns_add_u32 s{G.G_CG}, s{G.G_CG}, s25\ns_and_b32 s{G.G_RB}, s28, 7')
    a(f's_lshl_b32 s24, s{G.G_CG}, 3\ns_add_u32 s24, s24, s{G.G_RB}\nv_lshlrev_b32 v8, 4, v0')
    for r in range(4): a(f'v_mov_b32 v{12+r}, -1')
    a(f's_lshl_b32 s25, s24, 12\ns_add_u32 s25, s25, {WS_KM}')
    for k in range(11):
        if k == 10: a('s_cmp_ge_u32 s24, 128\ns_cbranch_scc1 KVMF')
        a(f'buffer_store_dwordx4 v[12:15], v8, s[4:7], s25 offen sc1\ns_add_u32 s25, s25, {192*4096}')
    a.label('KVMF')
    G.gemm1(a, P, cfg)
    if cfg.get('prof'): prof(a, 1)
    a(f's_cmp_lt_u32 s{G.G_CG}, 12\ns_cbranch_scc1 R_FFN')
    a(f's_sub_u32 s24, s{G.G_CG}, 12\ns_lshl_b32 s24, s24, 3\ns_add_u32 s24, s24, s{G.G_RB}')
    a(f's_and_b32 s{AO.A_CH}, s24, 1\ns_bfe_u32 s{AO.A_HG}, s24, 0x30001\ns_lshr_b32 s{AO.A_SEG}, s24, 4\ns_add_u32 s{AO.A_SEG}, s{AO.A_SEG}, {2 + cfg.get("S0", 20)}')
    a('s_barrier\ns_branch AO_ENTRY2')
    a.label('R_FFN')
    F.ffn2(a, P, cfg)
    if cfg.get('dst'):
        a('s_waitcnt vmcnt(0)\ns_sub_u32 s24, 15, s16\ns_add_u32 s24, s24, s17'); dstamp(a, P, 14, vt=(4, 5), cond='s24')
    a('s_branch K_DONE')
    a.label('R_AO')
    a(f's_and_b32 s{AO.A_SEG}, s28, 1\ns_bfe_u32 s{AO.A_CH}, s28, 0x10001\ns_lshr_b32 s{AO.A_HG}, s28, 2')
    def ln_rest():
        a(f's_add_u32 s{G.G_T4}, s46, 16\ns_mov_b32 s45, 1\ns_branch LN_GO')
        a.label('LN_RET1')
        a('s_cmp_ge_u32 s46, 16\ns_cbranch_scc1 LN_RET2')
        a(f's_add_u32 s{G.G_T4}, s46, 48\ns_mov_b32 s45, 2\ns_branch LN_GO')
        a.label('LN_RET2')
    cfg['_ln_rest'] = ln_rest
    a('s_mov_b32 s46, s28')
    AO.ao(a, P, cfg)
    a('s_branch K_DONE')
    a.label('R_CHAIN')
    a(f's_mov_b32 s{C.S_H}, s28\ns_mov_b32 s52, 0')
    a.label('R_CHAIN2')
    def hook(vm):
        a('s_cmp_eq_u32 s52, 0\ns_cbranch_scc1 CH_OK')
        resolve('B', 0, 's_waitcnt vmcnt(60)')
        if cfg.get('prof'): a('s_mov_b32 s101, s26')
        a(f's_cmp_eq_u32 s26, s{C.S_H}\ns_cbranch_scc1 CH_OK')
        a('s_waitcnt vmcnt(0)\ns_barrier')
        a('s_lshl_b32 s24, s13, 6\nv_lshrrev_b32 v0, 4, v0\nv_or_b32 v0, s24, v0')
        a('s_branch ROLE')
        a.label('CH_OK')
    def flags_wait(sfx, words, vo=44):
        a(f'v_mov_b32 v{vo}, 0\nv_mov_b32 v{vo+1}, 0')
        for n_, (off, tgt) in enumerate(words):
            a(f's_mov_b32 s43, {off}\nv_writelane_b32 v{vo}, s43, {n_}\ns_mov_b32 s43, {tgt}\nv_writelane_b32 v{vo+1}, s43, {n_}')
        a(f's_cmp_lg_u32 s13, 0\ns_cbranch_scc1 FE{sfx}')
        a(f's_mov_b32 s27, 0\ns_mov_b64 exec, {(1 << len(words)) - 1}')
        a.label(f'FW{sfx}')
        a(f'global_load_dword v{vo+2}, v{vo}, {DBGP} sc1')
        a(f's_add_u32 s27, s27, 1\ns_cmp_gt_u32 s27, 0x20000\ns_cbranch_scc1 FD{sfx}')
        a('s_waitcnt vmcnt(0)')
        a(f'v_cmp_gt_u32 vcc, v{vo+1}, v{vo+2}')
        a(f's_cbranch_vccz FD{sfx}')
        a(f's_sleep {cfg.get("FWS", 6)}\ns_branch FW{sfx}')
        a.label(f'FD{sfx}')
        a('s_waitcnt vmcnt(0)\ns_mov_b64 exec, -1')
        a.label(f'FE{sfx}')
        a('s_barrier')
    C.chain_prologue(a, P, hook, None)
    C.chain_init(a, P, cfg)
    if cfg.get('dst'): dstamp(a, P, 13, vt=(4, 5), also=15)
    if cfg.get('prof'): prof(a, 4)
    a('s_barrier')
    G.signal(a, P, G.DBG_CHAIN, None)
    flags_wait('0', [(0, 0xffffffff), (G.DBG_AOINIT, 32), (G.DBG_KV, G.KVT_LO), (G.DBG_KV + 4, G.KVT_LO)])
    a(f'v_mov_b32 v4, {G.DBG_IMPURE}')
    a(f'global_load_dword v5, v4, {DBGP} sc1')
    a(f's_sub_u32 s35, s{C.S_KF}, {32*8192}\ns_mov_b32 m0, s{C.S_KXL}')
    for q in range(4): a(f'buffer_load_dwordx4 v{C.V_L16}, s[4:7], s35 offen offset:{q*1024} sc1 lds')
    a(f'v_lshlrev_b32 v6, 3, v{C.V_L16}\ns_mov_b32 m0, {L_QX}')
    a(f's_sub_u32 s35, s{C.S_PF}, {32*8192}\ns_mov_b64 exec, 0xffffffff')
    a('buffer_load_dword v6, s[4:7], s35 offen sc1 lds')
    a('s_mov_b64 exec, -1')
    if cfg.get('pmw', 1):
        a(f's_mul_i32 s43, s{C.S_H}, 12288\ns_and_b32 s27, s13, 1\ns_lshl_b32 s27, s27, 19\ns_add_u32 s43, s43, s27\ns_lshr_b32 s27, s13, 1\ns_lshl_b32 s27, s27, 13\ns_add_u32 s43, s43, s27\ns_add_u32 s43, s43, {WS_P}')
        a('buffer_load_dword v6, s[4:7], s43 offen sc1 lds')
        a(f's_lshl_b32 s43, s13, 13\ns_add_u32 s43, s43, {WS_M + M_STRIDE}')
        a('buffer_load_dword v6, s[4:7], s43 offen sc1 lds')
        a('s_waitcnt vmcnt(7)')
    else: a('s_waitcnt vmcnt(5)')
    a('v_readfirstlane_b32 s34, v5')
    if cfg.get('prof'): prof(a, 2)
    lg = C.Cnt(a, 'lgkmcnt', 15)
    if cfg.get('dst'): a('s_mov_b32 s35, s34'); dstamp(a, P, 8, vt=(4, 5))
    C.build_table(a)
    C.next_prep(a, lg)
    cfg['_kvwait'] = lambda a: G.wait_flag(a, P, 0, None, 24, sleep=2, cnt=C.S_CNT, multi=(G.DBG_KV + 8, 6))
    if cfg.get('forceslow'): a('s_mov_b32 s34, 1')
    a('s_cmp_lg_u32 s34, 0\ns_cbranch_scc1 STEPS')
    C.chain_loop(a, cfg, 'F', '')
    C.chain_loop(a, cfg, 'S', 'sc1')
    a.label('CHAIN_DONE')
    if cfg.get('dst'): dstamp(a, P, 9, vt=(4, 5))
    a.label('K_DONE')
    a('s_waitcnt vmcnt(0) lgkmcnt(0)')
    if cfg.get('prof'): prof(a, 3)
    a.label('K_END')
    a('s_endpgm')
    body, n = a.finalize()
    head = HEADER + f'''; @launch grid=(256,1,1) block=(256,1,1) lds=163840
.amdgcn_target "amdgcn-amd-amdhsa--gfx950"
.text
.globl {KN}
.p2align 8
.type {KN},@function
{KN}:
'''
    tail = f'''.section .rodata,"a"
.p2align 6
.amdhsa_kernel {KN}
  .amdhsa_next_free_vgpr 512
  .amdhsa_next_free_sgpr 102
  .amdhsa_accum_offset 256
  .amdhsa_group_segment_fixed_size 0
  .amdhsa_kernarg_size 112
  .amdhsa_user_sgpr_count 2
  .amdhsa_user_sgpr_kernarg_segment_ptr 1
  .amdhsa_system_sgpr_workgroup_id_x 1
.end_amdhsa_kernel
'''
    return head + body + tail, n

def dstamp(a, P, word, inv=False, vt=(250, 251), cond='s12', also=None):
    l = a.newlabel('DS')
    a(f's_cmp_lg_u32 s13, 0\ns_cbranch_scc1 {l}')
    a(f's_cmp_lg_u32 {cond}, 0\ns_cbranch_scc1 {l}')
    a('s_memrealtime s[98:99]\ns_waitcnt lgkmcnt(0)')
    a('s_mov_b64 exec, 1')
    a(f'v_mov_b32 v{vt[0]}, {word*4}\nv_mov_b32 v{vt[1]}, s98')
    a(f'global_store_dword v{vt[0]}, v{vt[1]}, s[{P["dbg"]}:{P["dbg"]+1}] sc1')
    if also:
        a(f'v_mov_b32 v{vt[0]}, {also*4}\nv_mov_b32 v{vt[1]}, s96')
        a(f'global_store_dword v{vt[0]}, v{vt[1]}, s[{P["dbg"]}:{P["dbg"]+1}] sc1')
    a('s_mov_b64 exec, -1')
    a.label(l)

def prof(a, k):
    l = a.newlabel('PR')
    a(f's_cmp_lg_u32 s13, 0\ns_cbranch_scc1 {l}')
    a('s_memrealtime s[98:99]\ns_waitcnt lgkmcnt(0)')
    a(f's_sub_u32 s98, s98, s100\ns_lshl_b32 s99, s2, 6\ns_add_u32 s99, s99, {WS_DBG + 0x80000 + k*8}')
    a('s_mov_b64 exec, 1')
    a('v_mov_b32 v14, s98\nv_mov_b32 v15, s101\nv_mov_b32 v13, 0')
    a('buffer_store_dwordx2 v[14:15], v13, s[4:7], s99 offen')
    a('s_mov_b64 exec, -1')
    a.label(l)

if __name__ == '__main__':
    cfg = json.loads(sys.argv[1]) if len(sys.argv) > 1 else dict(D1=110, D2=310)
    src, n = gen(cfg)
    out = sys.argv[2] if len(sys.argv) > 2 else 'all.s'
    open(out, 'w').write(src)
    print(n, 'instructions', len(src), 'bytes')
```

```python
from asmlib import *
from layout import *
from chain import Cnt
import struct, math

def f32bits(x): return struct.unpack('<I', struct.pack('<f', x))[0]

G_CG = 12; G_WV = 13; G_RB = 14; G_I = 15
G_SW = 8
G_SG = 16; G_SU = 20
G_T0 = 24; G_T1 = 25; G_T2 = 26; G_T3 = 27; G_T4 = 28; G_T5 = 29
G_LB = 30
G_C1 = 32; G_C2 = 34; G_ONE = 36
G_DJ = 38
G_CUR = 39
G_DB = 40
G_SO = 41
G_CNT = 42

DBG_LN = 64; DBG_KV = 96; DBG_Q = 128; DBG_H = 160; DBG_AO = 192
KVT_LO = 96
NHELP = 2
DBG_CHAIN = 40; DBG_AOINIT = 44; DBG_IMPURE = 48

def signal(a, P, off_imm, s_idx=None, val=1, vtmp=(4, 5)):
    l = a.newlabel('SIG')
    a(f's_cmp_lg_u32 s13, 0\ns_cbranch_scc1 {l}')
    if s_idx is None: a(f'v_mov_b32 v{vtmp[0]}, {off_imm}')
    else: a(f's_lshl_b32 s{G_T5}, s{s_idx}, 2\ns_add_u32 s{G_T5}, s{G_T5}, {off_imm}\nv_mov_b32 v{vtmp[0]}, s{G_T5}')
    a(f'v_mov_b32 v{vtmp[1]}, {val}' if isinstance(val, int) else f'v_mov_b32 v{vtmp[1]}, s{val[0]}')
    a('s_mov_b64 exec, 1')
    a(f'global_atomic_add v{vtmp[0]}, v{vtmp[1]}, s[{P["dbg"]}:{P["dbg"]+1}]')
    a('s_mov_b64 exec, -1')
    a.label(l)

def wait_flag(a, P, off_imm, s_idx, target, vtmp=(4, 5), sleep=8, shift_s=None, mask=None, cnt=42, multi=None):
    l = a.newlabel('WF'); d = a.newlabel('WFD'); e = a.newlabel('WFE')
    a(f's_cmp_lg_u32 s13, 0\ns_cbranch_scc1 {e}')
    if multi:
        off0, n = multi
        a(f'v_mbcnt_lo_u32_b32 v{vtmp[0]}, -1, 0\nv_lshlrev_b32 v{vtmp[0]}, 2, v{vtmp[0]}\nv_add_u32 v{vtmp[0]}, {off0}, v{vtmp[0]}')
        a(f's_mov_b64 exec, {(1 << n) - 1}')
    else:
        if s_idx is None: a(f'v_mov_b32 v{vtmp[0]}, {off_imm}')
        else: a(f's_lshl_b32 s{G_T5}, s{s_idx}, 2\ns_add_u32 s{G_T5}, s{G_T5}, {off_imm}\nv_mov_b32 v{vtmp[0]}, s{G_T5}')
        a('s_mov_b64 exec, 1')
    a(f's_mov_b32 s{cnt}, 0')
    a.label(l)
    a(f'global_load_dword v{vtmp[1]}, v{vtmp[0]}, s[{P["dbg"]}:{P["dbg"]+1}] sc1')
    a(f's_add_u32 s{cnt}, s{cnt}, 1\ns_cmp_gt_u32 s{cnt}, 0x20000\ns_cbranch_scc1 {d}')
    a('s_waitcnt vmcnt(0)')
    if shift_s is not None: a(f'v_lshrrev_b32 v{vtmp[1]}, s{shift_s}, v{vtmp[1]}\nv_and_b32 v{vtmp[1]}, {mask}, v{vtmp[1]}')
    a(f'v_cmp_gt_u32 vcc, {target}, v{vtmp[1]}')
    a(f's_cbranch_vccz {d}')
    if sleep: a(f's_sleep {sleep}')
    a(f's_branch {l}')
    a.label(d)
    a('s_waitcnt vmcnt(0)')
    a('s_mov_b64 exec, -1')
    a.label(e)
    a('s_barrier')

def rnd_bf16(a, dst, src, tmp=None):
    a(f'v_cvt_pk_bf16_f32 v{dst}, v{src}, v{src}\nv_lshlrev_b32 v{dst}, 16, v{dst}')

def layernorm(a, P):
    a('; ---- layernorm ----')
    a(f's_mov_b32 s8, s{P["x"]}\ns_mov_b32 s9, s{P["x"]+1}\ns_mov_b32 s10, {2048*1152}\ns_mov_b32 s11, 0x20000')
    a('v_and_b32 v1, 63, v0\nv_lshrrev_b32 v2, 3, v1\nv_and_b32 v3, 7, v1')
    a(f's_lshl_b32 s{G_T0}, s{G_T4}, 2\ns_add_u32 s{G_T0}, s{G_T0}, s{G_WV}\ns_lshl_b32 s{G_T0}, s{G_T0}, 3')
    a(f's_mul_i32 s{G_T1}, s{G_T0}, 1152')
    a('v_mul_u32_u24 v4, 1152, v2\nv_lshl_add_u32 v4, v3, 4, v4')
    X = 8; F = 48
    for i in range(9): a(f'buffer_load_dwordx4 {vr(X+4*i,4)}, v4, s[8:11], s{G_T1} offen offset:{i*128}')
    a(f's_lshr_b32 s{G_T2}, s{G_T0}, 5\ns_mul_i32 s{G_T2}, s{G_T2}, 36864\ns_and_b32 s{G_T3}, s{G_T0}, 31\ns_lshl_b32 s{G_T3}, s{G_T3}, 4\ns_add_u32 s{G_T2}, s{G_T2}, s{G_T3}\ns_add_u32 s{G_T2}, s{G_T2}, {WS_XF}')
    a('v_lshrrev_b32 v5, 1, v3\nv_lshlrev_b32 v5, 10, v5\nv_and_b32 v6, 1, v3\nv_lshl_add_u32 v5, v6, 9, v5\nv_lshl_add_u32 v5, v2, 4, v5')
    for i in range(9):
        a(f's_waitcnt vmcnt({8-i})')
        for r in range(4):
            x = X + 4*i + r; f = F + 2*(4*i + r)
            a(f'v_lshlrev_b32 v{f}, 16, v{x}\nv_and_b32 v{f+1}, 0xffff0000, v{x}')
    def red8(v, t):
        a(f'v_add_f32_dpp v{v}, v{v}, v{v} quad_perm:[1,0,3,2] row_mask:0xf bank_mask:0xf')
        a(f'v_add_f32_dpp v{v}, v{v}, v{v} quad_perm:[2,3,0,1] row_mask:0xf bank_mask:0xf')
        a(f'v_add_f32_dpp v{v}, v{v}, v{v} row_half_mirror row_mask:0xf bank_mask:0xf')
    S = 120
    a(f'v_pk_add_f32 {vr(S,2)}, {vr(F,2)}, {vr(F+2,2)}')
    for k in range(2, 36): a(f'v_pk_add_f32 {vr(S,2)}, {vr(S,2)}, {vr(F+2*k,2)}')
    a(f'v_add_f32 v{S}, v{S}, v{S+1}')
    red8(S, S+1)
    a(f'v_mul_f32 v{S}, 0x{f32bits(1/576):08x}, v{S}')
    a(f'v_mov_b32 v{S+1}, v{S}')
    Q = 122; D = 124
    a(f'v_mov_b64 {vr(Q,2)}, 0')
    for k in range(36):
        a(f'v_pk_add_f32 {vr(D,2)}, {vr(F+2*k,2)}, {vr(S,2)} neg_lo:[0,1] neg_hi:[0,1]')
        a(f'v_pk_fma_f32 {vr(Q,2)}, {vr(D,2)}, {vr(D,2)}, {vr(Q,2)}')
    a(f'v_add_f32 v{Q}, v{Q}, v{Q+1}')
    red8(Q, Q+1)
    a(f'v_mul_f32 v{Q}, 0x{f32bits(1/576):08x}, v{Q}')
    rnd_bf16(a, Q, Q)
    a(f'v_add_f32 v{Q}, 0x{f32bits(1e-5):08x}, v{Q}')
    rnd_bf16(a, Q, Q)
    a(f'v_sqrt_f32 v{Q}, v{Q}')
    rnd_bf16(a, Q, Q)
    a(f'v_rcp_f32 v{Q}, v{Q}')
    rnd_bf16(a, S, S)
    a(f'v_mov_b32 v{S+1}, v{S}\nv_mov_b32 v{Q+1}, v{Q}')
    for k in range(36):
        f = F + 2*k
        a(f'v_pk_add_f32 {vr(f,2)}, {vr(f,2)}, {vr(S,2)} neg_lo:[0,1] neg_hi:[0,1]')
        a(f'v_cvt_pk_bf16_f32 v{X+k}, v{f}, v{f+1}')
        a(f'v_lshlrev_b32 v{f}, 16, v{X+k}\nv_and_b32 v{f+1}, 0xffff0000, v{X+k}')
        a(f'v_pk_mul_f32 {vr(f,2)}, {vr(f,2)}, {vr(Q,2)}')
        a(f'v_cvt_pk_bf16_f32 v{X+k}, v{f}, v{f+1}')
        if k % 4 == 3:
            i = k // 4
            a(f'buffer_store_dwordx4 {vr(X+4*i,4)}, v5, s[4:7], s{G_T2} offen sc1')
            a(f's_add_u32 s{G_T2}, s{G_T2}, 4096')
    a('s_waitcnt vmcnt(0)\ns_barrier')
    a(f's_lshr_b32 s{G_T4}, s{G_T4}, 3')
    signal(a, P, DBG_LN, G_T4)

def XR(rt, ks):
    n = (rt * 36 + ks) * 4
    return vr(n, 4, 'a') if n < 256 else vr(224 + n - 256, 4, 'v')
V_LN = 1; V_DQ = 2; V_DG = 3; V_TR = 4; V_SK = 5; V_SV = 6; V_L16 = 7; V_D = 10; V_TRC = 11
ACG = 16; ACU = 48; WB = 80; NWB = 4; ET = 96
G_STEP = 16; G_MSK = 18; G_PT = 20; G_OB = 22; G_SZQ = 23; G_STQ = 31
G_PB = 43; G_O1 = 44; G_O2 = 45; G_P = 46; G_RBC = 47; G_LAST = 48; G_KVP = 49; G_QS = 50

def gemm1(a, P, cfg):
    a('; ---- gemm1 ----')
    a(f'v_and_b32 v{V_LN}, 63, v0\nv_lshlrev_b32 v{V_L16}, 4, v{V_LN}')
    a(f'v_lshrrev_b32 v8, 2, v{V_LN}\nv_and_b32 v9, 3, v{V_LN}\nv_lshlrev_b32 v9, 4, v9')
    a(f'v_lshl_add_u32 v{V_DQ}, v8, 13, v9')
    a(f'v_mul_u32_u24 v{V_DG}, 9216, v8\nv_add_u32 v{V_DG}, v{V_DG}, v9')
    a(f'v_lshrrev_b32 v8, 5, v{V_LN}\nv_bfe_u32 v9, v{V_LN}, 2, 2\nv_lshl_add_u32 v8, v8, 3, v9\nv_lshlrev_b32 v8, 6, v8')
    a(f'v_bfe_u32 v9, v{V_LN}, 4, 1\nv_lshl_add_u32 v8, v9, 5, v8\nv_and_b32 v9, 3, v{V_LN}\nv_lshl_add_u32 v{V_TR}, v9, 3, v8')
    a(f'v_lshrrev_b32 v8, 5, v{V_LN}\nv_and_b32 v9, 15, v{V_LN}\nv_lshlrev_b32 v9, 4, v9\nv_lshl_add_u32 v8, v8, 8, v9\nv_bfe_u32 v9, v{V_LN}, 4, 1')
    a(f'v_lshl_add_u32 v{V_SK}, v9, 12, v8\nv_lshl_add_u32 v{V_SV}, v9, 10, v8')
    a(f's_mov_b32 s{G_SW+3}, 0x20000\ns_mov_b32 s{G_SZQ}, {576*8192}\ns_mov_b32 s{G_STQ}, {16*8192}')
    a(f's_mul_i32 s{G_LB}, s{G_WV}, 9216')
    c1 = -2 * math.log2(math.e) * math.sqrt(2 / math.pi); c2 = c1 * 0.044715
    for sr, v in ((G_C1, c1), (G_C2, c2), (G_ONE, 1.0)):
        a(f's_mov_b32 s{sr}, 0x{f32bits(v):08x}\ns_mov_b32 s{sr+1}, s{sr}')
    pp = lambda n: f's[{P[n]}:{P[n]+1}]'
    def dma_ops():
        pre = f"""s_cmp_lt_u32 s{G_DJ}, s{G_PB}|s_cselect_b32 s{G_T0}, s{G_O1}, s{G_O2}|s_add_u32 s{G_T0}, s{G_T0}, s{G_DJ}
s_min_u32 s{G_T0}, s{G_T0}, 27
s_mul_i32 s{G_T1}, s{G_T0}, 24
s_add_u32 s{G_T1}, s{G_T1}, s{G_CG}
s_lshr_b32 s{G_T2}, s{G_T1}, 7
s_and_b32 s{G_T1}, s{G_T1}, 127
s_lshl_b32 s{G_T1}, s{G_T1}, 6
s_mul_i32 s{G_SO}, s{G_WV}, {144*8192}
s_add_u32 s{G_SO}, s{G_SO}, s{G_T1}
s_cmp_eq_u32 s{G_T2}, 1|s_cselect_b64 s[{G_SW}:{G_SW+1}], {pp('Wv')}, {pp('Wk')}
s_cmp_eq_u32 s{G_T2}, 2|s_cselect_b64 s[{G_SW}:{G_SW+1}], {pp('Wq')}, s[{G_SW}:{G_SW+1}]
s_sub_u32 s{G_T1}, s{G_T0}, 16
s_lshr_b32 s{G_T2}, s{G_T1}, 1
s_mul_i32 s{G_T2}, s{G_T2}, 24
s_add_u32 s{G_T2}, s{G_T2}, s{G_CG}
s_lshl_b32 s{G_T2}, s{G_T2}, 6
s_mul_i32 s{G_T3}, s{G_WV}, {144*9216}
s_add_u32 s{G_T2}, s{G_T2}, s{G_T3}
s_bitcmp1_b32 s{G_T1}, 0|s_cselect_b64 s[{G_PT}:{G_PT+1}], {pp('wu')}, {pp('wg')}
s_cmp_ge_u32 s{G_T0}, 16|s_cselect_b64 s[{G_SW}:{G_SW+1}], s[{G_PT}:{G_PT+1}], s[{G_SW}:{G_SW+1}]|s_cselect_b32 s{G_SO}, s{G_T2}, s{G_SO}|s_cselect_b32 s{G_SW+2}, {576*9216}, s{G_SZQ}|s_cselect_b32 s{G_STEP}, {16*9216}, s{G_STQ}|s_cselect_b64 s[{G_MSK}:{G_MSK+1}], -1, 0
v_cndmask_b32 v{V_D}, v{V_DQ}, v{V_DG}, s[{G_MSK}:{G_MSK+1}]
s_add_u32 s{G_T0}, s{G_DB}, s{G_LB}"""
        ops = [x.replace('|', '\n') for x in pre.split('\n')]
        for n in range(9):
            if cfg.get('g_nodma'): continue
            ops.append(f's_add_u32 m0, s{G_T0}, {n*1024}\ns_nop 0\nbuffer_load_dwordx4 v{V_D}, s[{G_SW}:{G_SW+3}], s{G_SO} offen lds\ns_add_u32 s{G_SO}, s{G_SO}, s{G_STEP}')
        ops.append(f's_add_u32 s{G_DJ}, s{G_DJ}, 1')
        ops.append(f's_add_u32 s{G_DB}, s{G_DB}, 36864\ns_cmp_eq_u32 s{G_DB}, {4*36864}\ns_cselect_b32 s{G_DB}, 0, s{G_DB}')
        return ops
    a(f's_mov_b32 s{G_DJ}, 0\ns_mov_b32 s{G_DB}, 0\ns_mov_b32 s{G_CUR}, 0')
    a(f's_lshr_b32 s{G_T0}, s{G_RB}, 1\ns_mul_i32 s{G_O1}, s{G_T0}, 3\ns_cmp_eq_u32 s{G_T0}, 3\ns_cselect_b32 s{G_PB}, 2, 3')
    a(f's_sub_u32 s{G_O2}, 0, s{G_PB}\ns_add_u32 s{G_LAST}, s{G_PB}, 16\ns_add_u32 s{G_KVP}, s{G_PB}, 11')
    a(f's_cmp_lt_u32 s{G_RB}, 2\ns_cselect_b32 s{G_O2}, 8, s{G_O2}\ns_cselect_b32 s{G_LAST}, 8, s{G_LAST}\ns_cselect_b32 s{G_KVP}, 99, s{G_KVP}')
    a(f's_and_b32 s{G_RBC}, s{G_RB}, 1')
    for _ in range(3):
        for op in dma_ops(): a(op)
    first = [True]
    def load_x(wait=True):
        wait_flag(a, P, DBG_LN, G_RBC, 8, vtmp=(8, 9), sleep=4)
        if cfg.get('prof') == 2 and first[0]: cfg['_prof'](a, 4)
        if cfg.get('dst') == 2 and first[0]:
            a(f's_cmp_lg_u32 s{G_RB}, 3\ns_cbranch_scc1 NAM2'); cfg['_amax'](a, P, 9); a.label('NAM2')
        first[0] = False
        a(f's_lshl_b32 s{G_T0}, s{G_RBC}, 3\ns_lshl_b32 s{G_T1}, s{G_WV}, 1\ns_add_u32 s{G_T0}, s{G_T0}, s{G_T1}\ns_mul_i32 s{G_T0}, s{G_T0}, 36864\ns_add_u32 s{G_T0}, s{G_T0}, {WS_XF}')
        a(f's_add_u32 s{G_T1}, s{G_T0}, 36864')
        for ks in range(36):
            for rt in range(2):
                a(f'buffer_load_dwordx4 {XR(rt, ks)}, v{V_L16}, s[4:7], s{G_T0 if rt == 0 else G_T1} offen offset:{(ks % 4)*1024} sc1')
            if ks % 4 == 3: a(f's_add_u32 s{G_T0}, s{G_T0}, 4096\ns_add_u32 s{G_T1}, s{G_T1}, 4096')
            if ks == 24: a('s_waitcnt vmcnt(40)')
        if wait: a('s_waitcnt vmcnt(0)')
    a('s_waitcnt vmcnt(0)')
    load_x(False)
    if cfg.get('prof') == 3: cfg['_prof'](a, 5)

    def tile_start(vw=True):
        if cfg.get('gprof'): a('s_memtime s[60:61]\ns_waitcnt lgkmcnt(0)\ns_sub_u32 s66, s60, s64\ns_add_u32 s69, s69, s66')
        if vw: a('s_waitcnt vmcnt(18)')
        if cfg.get('gprof'): a('s_memtime s[62:63]\ns_waitcnt lgkmcnt(0)\ns_sub_u32 s66, s62, s60\ns_add_u32 s67, s67, s66')
        a('s_barrier')
        if cfg.get('gprof'): a('s_memtime s[64:65]\ns_waitcnt lgkmcnt(0)\ns_sub_u32 s66, s64, s62\ns_add_u32 s68, s68, s66')
        a(f'v_add_u32 v{V_TRC}, s{G_CUR}, v{V_TR}')
        a(f's_add_u32 s{G_CUR}, s{G_CUR}, 36864\ns_cmp_eq_u32 s{G_CUR}, {4*36864}\ns_cselect_b32 s{G_CUR}, 0, s{G_CUR}')
    def body(acc, swapped, dma=True):
        fill = dma_ops() if dma else []
        def rd(ks):
            w = WB + 4 * (ks % NWB)
            a(f'ds_read_b64_tr_b16 {vr(w,2)}, v{V_TRC} offset:{ks*1024}')
            a(f'ds_read_b64_tr_b16 {vr(w+2,2)}, v{V_TRC} offset:{ks*1024+256}')
        PD = NWB - 1; DSP = cfg.get('DSP', 3)
        for ks in range(PD): rd(ks)
        for ks in range(36):
            if ks + PD < 36: rd(ks + PD)
            rem = min(PD, 35 - ks)
            a(f's_waitcnt lgkmcnt({2*rem})')
            if not dma: a(f's_waitcnt vmcnt({min(63, 2*(35-ks))})')
            w = vr(WB + 4 * (ks % NWB), 4)
            for rt in range(2):
                d = vr(acc + 16*rt, 16); c = d if ks else '0'
                if swapped: a(f'v_mfma_f32_32x32x16_bf16 {d}, {w}, {XR(rt, ks)}, {c}')
                else: a(f'v_mfma_f32_32x32x16_bf16 {d}, {XR(rt, ks)}, {w}, {c}')
                if fill and ks >= 1 and (not fill[0].startswith('s_add_u32 m0') or (2*ks + rt) % DSP == 0): a(fill.pop(0))
        assert not fill
    def pack_swapped(src_fn, rt, store_fn):
        for ai, aq in enumerate((0, 2)):
            t = ET + 8 * (rt % 2) + 4 * ai
            a(f'v_cvt_pk_bf16_f32 v{t}, v{src_fn(4*aq)}, v{src_fn(4*aq+1)}\nv_cvt_pk_bf16_f32 v{t+1}, v{src_fn(4*aq+2)}, v{src_fn(4*aq+3)}')
            a(f'v_cvt_pk_bf16_f32 v{t+2}, v{src_fn(4*aq+4)}, v{src_fn(4*aq+5)}\nv_cvt_pk_bf16_f32 v{t+3}, v{src_fn(4*aq+6)}, v{src_fn(4*aq+7)}')
            a(f'v_permlane32_swap_b32 v{t}, v{t+2}\nv_permlane32_swap_b32 v{t+1}, v{t+3}')
            store_fn(t, ai)
    if cfg.get('gprof'): a('s_memtime s[64:65]\ns_waitcnt lgkmcnt(0)\ns_mov_b32 s67, 0\ns_mov_b32 s68, 0\ns_mov_b32 s69, 0')
    def single_tile(sfx, dma):
        tile_start(dma)
        a(f's_cmp_lt_u32 s{G_P}, s{G_PB}\ns_cselect_b32 s{G_I}, s{G_O1}, s{G_O2}\ns_add_u32 s{G_I}, s{G_I}, s{G_P}')
        a(f's_mul_i32 s{G_T4}, s{G_I}, 24\ns_add_u32 s{G_T4}, s{G_T4}, s{G_CG}')
        a(f's_lshl_b32 s{G_OB}, s{G_RBC}, 3\ns_lshl_b32 s{G_T5}, s{G_WV}, 1\ns_add_u32 s{G_OB}, s{G_OB}, s{G_T5}\ns_lshl_b32 s{G_OB}, s{G_OB}, 18')
        a(f's_bfe_u32 s{G_T5}, s{G_T4}, 0x50002\ns_lshl_b32 s{G_T5}, s{G_T5}, 13\ns_add_u32 s{G_OB}, s{G_OB}, s{G_T5}')
        a(f's_and_b32 s{G_CNT}, s{G_T4}, 3\ns_lshl_b32 s{G_CNT}, s{G_CNT}, 10\ns_add_u32 s{G_OB}, s{G_OB}, s{G_CNT}')
        a(f's_lshr_b32 s{G_T4}, s{G_T4}, 7')
        a(f's_cmp_eq_u32 s{G_T4}, 1\ns_cbranch_scc1 G1V{sfx}')
        a(f's_mov_b32 s{G_T5}, {WS_KF}\ns_cmp_eq_u32 s{G_T4}, 0\ns_cselect_b32 s{G_T4}, s{G_T5}, {WS_QF}')
        a(f's_cselect_b32 s{G_QS}, 1.0, 0x{f32bits(math.log2(math.e) / math.sqrt(128.0)):08x}\ns_mov_b32 s{G_QS+1}, s{G_QS}')
        a(f's_add_u32 s{G_OB}, s{G_OB}, s{G_T4}')
        body(ACG, True, dma)
        for r in range(ACG, ACG + 32, 2): a(f'v_pk_mul_f32 {vr(r,2)}, {vr(r,2)}, s[{G_QS}:{G_QS+1}]')
        for rt in range(2):
            pack_swapped(lambda r: ACG + 16*rt + r, rt,
                         lambda t, ai: a(f'buffer_store_dwordx4 {vr(t,4)}, v{V_SK}, s[4:7], s{G_OB} offen offset:{ai*512} sc1'))
            if rt == 0: a(f's_add_u32 s{G_OB}, s{G_OB}, {32*8192}')
        a(f's_branch G1SE{sfx}')
        a.label(f'G1V{sfx}')
        a(f's_add_u32 s{G_OB}, s{G_OB}, s{G_CNT}\ns_add_u32 s{G_OB}, s{G_OB}, {WS_VF}')
        body(ACG, False, dma)
        for rt in range(2):
            for ap in range(2):
                t = ET + 8 * rt + 4 * ap; s0 = ACG + 16*rt + 4*ap; s1 = s0 + 8
                a(f'v_cvt_pk_bf16_f32 v{t}, v{s0}, v{s0+1}\nv_cvt_pk_bf16_f32 v{t+1}, v{s0+2}, v{s0+3}')
                a(f'v_cvt_pk_bf16_f32 v{t+2}, v{s1}, v{s1+1}\nv_cvt_pk_bf16_f32 v{t+3}, v{s1+2}, v{s1+3}')
                a(f'buffer_store_dwordx4 {vr(t,4)}, v{V_SV}, s[4:7], s{G_OB} offen offset:{ap*512} sc1')
            if rt == 0: a(f's_add_u32 s{G_OB}, s{G_OB}, {32*8192}')
        a.label(f'G1SE{sfx}')
        a(f's_add_u32 s{G_P}, s{G_P}, 1')
    a(f's_mov_b32 s{G_P}, 0')
    a.label('G1A')
    single_tile('A', False)
    a(f's_cmp_lt_u32 s{G_P}, s{G_PB}\ns_cbranch_scc1 G1A')
    a('s_waitcnt vmcnt(0)\ns_barrier')
    signal(a, P, DBG_KV, G_RBC, vtmp=(8, 9))
    if cfg.get('prof'): cfg['_prof'](a, 6)
    if cfg.get('dst') == 2:
        a(f's_cmp_lg_u32 s{G_RB}, 3\ns_cbranch_scc1 NAM1'); cfg['_amax'](a, P, 14); a.label('NAM1')
    for k in range(3):
        if k == 2: a(f's_cmp_lt_u32 s{G_PB}, 3\ns_cbranch_scc1 G1P')
        for op in dma_ops(): a(op)
    a.label('G1P')
    a(f's_cmp_lt_u32 s{G_RB}, 2\ns_cbranch_scc1 G1S')
    a(f's_mov_b32 s{G_RBC}, s{G_RB}')
    load_x()
    a.label('G1S')
    single_tile('B', True)
    a(f's_cmp_lg_u32 s{G_P}, s{G_KVP}\ns_cbranch_scc1 G1F2')
    a('s_waitcnt vmcnt(0)\ns_barrier')
    signal(a, P, DBG_KV, G_RBC, vtmp=(8, 9))
    a.label('G1F2')
    a(f's_cmp_lt_u32 s{G_P}, s{G_LAST}\ns_cbranch_scc1 G1S')
    a('s_waitcnt vmcnt(0)\ns_barrier')
    signal(a, P, DBG_Q, G_RB, vtmp=(8, 9))
    if cfg.get('prof'): cfg['_prof'](a, 7)
    a(f's_mov_b32 s{G_I}, 0')
    a.label('G1G')
    tile_start(); body(ACG, True)
    tile_start(); body(ACU, True)
    a(f's_lshl_b32 s{G_OB}, s{G_RB}, 3\ns_lshl_b32 s{G_T5}, s{G_WV}, 1\ns_add_u32 s{G_OB}, s{G_OB}, s{G_T5}\ns_mul_i32 s{G_OB}, s{G_OB}, {288*1024}')
    a(f's_mul_i32 s{G_T4}, s{G_I}, 24\ns_add_u32 s{G_T4}, s{G_T4}, s{G_CG}\ns_lshl_b32 s{G_T4}, s{G_T4}, 11\ns_add_u32 s{G_OB}, s{G_OB}, s{G_T4}\ns_add_u32 s{G_OB}, s{G_OB}, {WS_HF}')
    T = 112
    for rt in range(2):
        for q in range(0, 16, 4):
            prs = [(ACG + 16*rt + q + o, ACU + 16*rt + q + o, T + o) for o in (0, 2)]
            for g, u, t in prs: a(f'v_pk_mul_f32 {vr(t,2)}, {vr(g,2)}, {vr(g,2)}')
            for g, u, t in prs: a(f'v_pk_fma_f32 {vr(t,2)}, {vr(t,2)}, s[{G_C2}:{G_C2+1}], {vr(T+4,2)}') if False else a(f'v_pk_mul_f32 {vr(t,2)}, {vr(t,2)}, s[{G_C2}:{G_C2+1}]')
            for g, u, t in prs: a(f'v_pk_add_f32 {vr(t,2)}, {vr(t,2)}, s[{G_C1}:{G_C1+1}]')
            for g, u, t in prs: a(f'v_pk_mul_f32 {vr(t,2)}, {vr(t,2)}, {vr(g,2)}')
            for g, u, t in prs: a(f'v_exp_f32 v{t}, v{t}\nv_exp_f32 v{t+1}, v{t+1}')
            for g, u, t in prs: a(f'v_pk_add_f32 {vr(t,2)}, {vr(t,2)}, s[{G_ONE}:{G_ONE+1}]')
            for g, u, t in prs: a(f'v_rcp_f32 v{t}, v{t}\nv_rcp_f32 v{t+1}, v{t+1}')
            for g, u, t in prs: a(f'v_pk_mul_f32 {vr(g,2)}, {vr(g,2)}, {vr(u,2)}')
            for g, u, t in prs: a(f'v_pk_mul_f32 {vr(g,2)}, {vr(g,2)}, {vr(t,2)}')
        pack_swapped(lambda r: ACG + 16*rt + r, rt,
                     lambda t, ai: a(f'buffer_store_dwordx4 {vr(t,4)}, v{V_L16}, s[4:7], s{G_OB} offen offset:{ai*1024} {cfg.get("g_st", "sc1")}'))
        if rt == 0: a(f's_add_u32 s{G_OB}, s{G_OB}, {288*1024}')
    a(f's_add_u32 s{G_I}, s{G_I}, 1\ns_cmp_lt_u32 s{G_I}, 6\ns_cbranch_scc1 G1G')
    a('s_waitcnt vmcnt(0)\ns_barrier')
    signal(a, P, DBG_H, G_RB, vtmp=(8, 9))
    if cfg.get('gprof'):
        a(f's_lshl_b32 s59, s2, 6\ns_lshl_b32 s58, s13, 4\ns_add_u32 s59, s59, s58\ns_add_u32 s59, s59, {WS_DBG + 0x90000}')
        a('v_mov_b32 v12, s67\nv_mov_b32 v13, s68\nv_mov_b32 v14, s69\nv_mov_b32 v15, 0\nv_mov_b32 v8, 0\ns_mov_b64 exec, 1')
        a('buffer_store_dwordx4 v[12:15], v8, s[4:7], s59 offen\ns_mov_b64 exec, -1')
```

```python
import sys, json
from asmlib import *
from layout import *
import chain as C, gemm1 as G, ffn2 as F, ao as AO

KN = 'parallel_sum__memory_aug_recurrent_mem_tr__geglu_ffn__prompt_kernel'
HEADER = open('parallel_sum__memory_aug_recurrent_mem_tr__geglu_ffn__prompt.s.ref').read().split('; Override launch')[0]

def gen(cfg):
    cfg = dict(cfg); cfg['_prof'] = prof; cfg['_amax'] = amax
    a = Asm()
    P = {}
    names = [('x',0),('mem0',8),('Wq',16),('Wk',24),('Wv',32),('Wo',40),('wg',64),('wu',72),('wd',80),('out',88),('dbg',96),('ws',104)]
    a('s_cmp_ge_u32 s2, 256\ns_cbranch_scc1 K_END')
    if cfg.get('perm'): a(f's_mul_i32 s2, s2, {cfg["perm"]}\ns_and_b32 s2, s2, 255')
    for i, (n, off) in enumerate(names):
        P[n] = 72 + 2*i
        a(f's_load_dwordx2 s[{P[n]}:{P[n]+1}], s[0:1], {off}')
    a('s_getreg_b32 s3, hwreg(HW_REG_XCC_ID)')
    a('v_lshrrev_b32 v4, 6, v0')
    a('v_readfirstlane_b32 s13, v4')
    a('s_waitcnt lgkmcnt(0)')
    a(f's_mov_b32 s4, s{P["ws"]}\ns_mov_b32 s5, s{P["ws"]+1}\ns_mov_b32 s6, {WS_SIZE}\ns_mov_b32 s7, 0x20000')
    if cfg.get('prof'): a('s_memrealtime s[100:101]')
    if cfg.get('fakexcc'): a('s_cmp_lt_u32 s2, 128\ns_cselect_b32 s24, 1, 0\ns_cmp_eq_u32 s3, 0\ns_cselect_b32 s3, s24, s3')
    if cfg.get('cpf', 1):
        a('s_cmp_lg_u32 s13, 3\ns_cbranch_scc1 CPF_X')
        a('s_getpc_b64 s[24:25]')
        a('s_and_b32 s24, s24, 0xffffff00')
        a('s_lshr_b32 s26, s2, 3\ns_and_b32 s26, s26, 31\ns_mul_i32 s26, s26, 2560')
        a('v_and_b32 v240, 63, v0\nv_lshlrev_b32 v240, 7, v240\nv_add_u32 v240, s26, v240')
        a(f's_mov_b32 s26, K_END-{KN}')
        a('v_cmp_gt_u32 vcc, s26, v240\ns_and_b64 vcc, vcc, 0xfffff\ns_and_saveexec_b64 s[28:29], vcc\ns_cbranch_execz CPF_E')
        a('global_load_dword v242, v240, s[24:25]')
        a.label('CPF_E')
        a('s_mov_b64 exec, s[28:29]')
        a.label('CPF_X')
    if cfg.get('dst'): a('s_memrealtime s[96:97]')
    a('s_cmp_lt_u32 s3, 8\ns_cselect_b32 s54, s3, 7')
    a('s_lshr_b32 s55, s2, 3\ns_and_b32 s55, s55, 31')
    DBGP = f's[{P["dbg"]}:{P["dbg"]+1}]'
    a('s_cmp_lg_u32 s13, 0\ns_cbranch_scc1 CL_ISSUED')
    a('s_mov_b64 exec, 1')
    a('s_lshl_b32 s27, 1, s55\ns_lshl_b32 s29, s54, 2')
    a('v_mov_b32 v4, s29\nv_mov_b32 v5, s27')
    a(f'global_atomic_or v250, v4, v5, {DBGP} sc0')
    a('s_mov_b64 exec, -1')
    a.label('CL_ISSUED')
    def warm():
        l = a.newlabel('WARM')
        a(f's_cmp_eq_u32 s54, 0\ns_cbranch_scc1 {l}')
        a('s_lshr_b32 s25, s2, 3\ns_mul_i32 s25, s25, 7\ns_and_b32 s27, s2, 7\ns_add_u32 s25, s25, s27\ns_sub_u32 s25, s25, 1\ns_min_u32 s25, s25, 223')
        a('s_mul_i32 s27, s25, 1171\ns_lshr_b32 s27, s27, 16\ns_mul_i32 s29, s27, 56\ns_sub_u32 s25, s25, s29')
        a(f's_cmp_eq_u32 s27, 1\ns_cselect_b64 s[16:17], s[{P["Wk"]}:{P["Wk"]+1}], s[{P["Wq"]}:{P["Wq"]+1}]')
        a(f's_cmp_eq_u32 s27, 2\ns_cselect_b64 s[16:17], s[{P["Wv"]}:{P["Wv"]+1}], s[16:17]')
        a(f's_cmp_eq_u32 s27, 3\ns_cselect_b64 s[16:17], s[{P["Wo"]}:{P["Wo"]+1}], s[16:17]')
        a('s_mov_b32 s18, 4718592\ns_mov_b32 s19, 0x20000')
        a('s_lshl_b32 s25, s25, 15\nv_lshlrev_b32 v199, 7, v0')
        for k in range(3):
            a(f'buffer_load_dword v{200+k}, v199, s[16:19], s25 offen')
            a(f's_add_u32 s25, s25, {56*32768}')
        a.label(l)
    a('s_and_b32 s24, s2, 7\ns_cmp_lg_u32 s24, 1\ns_cbranch_scc1 NO_LN')
    a(f's_lshr_b32 s{G.G_T4}, s2, 3\ns_cmp_ge_u32 s{G.G_T4}, 16\ns_cbranch_scc1 NO_LN')
    a('s_mov_b32 s45, 0')
    a.label('LN_GO')
    G.layernorm(a, P)
    a('s_cmp_eq_u32 s45, 1\ns_cbranch_scc1 LN_RET1\ns_cmp_eq_u32 s45, 2\ns_cbranch_scc1 LN_RET2')
    a.label('NO_LN')
    if cfg.get('warm', 0): warm()
    def resolve(sfx, ldsaddr, firstwait):
        a(f's_cmp_lg_u32 s13, 0\ns_cbranch_scc1 CL_WAIT{sfx}')
        a('s_mov_b32 s25, s55\ns_mov_b32 s26, s54\ns_mov_b32 s28, 0\ns_lshl_b32 s27, 1, s25')
        a('s_mov_b64 exec, 1')
        a(firstwait)
        a(f's_branch CL_CHK{sfx}')
        a.label(f'CL_TRY{sfx}')
        a('s_lshl_b32 s27, 1, s25\ns_lshl_b32 s29, s26, 2')
        a('v_mov_b32 v248, s29\nv_mov_b32 v249, s27')
        a(f'global_atomic_or v250, v248, v249, {DBGP} sc0')
        a('s_waitcnt vmcnt(0)')
        a.label(f'CL_CHK{sfx}')
        a('v_readfirstlane_b32 s30, v250')
        a(f's_and_b32 s31, s30, s27\ns_cbranch_scc0 CL_GOT{sfx}')
        a(f's_not_b32 s31, s30\ns_cbranch_scc0 CL_FULL{sfx}')
        a(f's_ff1_i32_b32 s25, s31\ns_branch CL_TRY{sfx}')
        a.label(f'CL_FULL{sfx}')
        a(f's_add_u32 s28, s28, 1\ns_sub_u32 s26, 8, s28\ns_cmp_gt_u32 s28, 8\ns_cbranch_scc1 CL_NONE{sfx}')
        a('s_mov_b32 s25, 0')
        a(f's_cmp_lg_u32 s26, 0\ns_cbranch_scc1 CL_TRY{sfx}')
        a(f'v_mov_b32 v248, {G.DBG_IMPURE}\nv_mov_b32 v249, 1')
        a(f'global_atomic_or v250, v248, v249, {DBGP} sc0\ns_waitcnt vmcnt(0)')
        a(f's_branch CL_TRY{sfx}')
        a.label(f'CL_NONE{sfx}')
        a('s_mov_b32 s26, 8\ns_mov_b32 s25, 0')
        a.label(f'CL_GOT{sfx}')
        a('s_lshl_b32 s26, s26, 5\ns_add_u32 s26, s26, s25')
        a(f'v_mov_b32 v248, {ldsaddr}\nv_mov_b32 v249, s26\nds_write_b32 v248, v249\ns_waitcnt lgkmcnt(0)')
        a('s_mov_b64 exec, -1')
        a.label(f'CL_WAIT{sfx}')
        a('s_barrier')
        a(f'v_mov_b32 v248, {ldsaddr}\nds_read_b32 v249, v248\ns_waitcnt lgkmcnt(0)')
        a('v_readfirstlane_b32 s26, v249')
        a('s_barrier')
    if cfg.get('spec', 1):
        a(f's_mov_b32 s52, 1\ns_mov_b32 s{C.S_H}, s55')
        a('s_cmp_eq_u32 s54, 0\ns_cbranch_scc1 R_CHAIN2')
    resolve('A', 0, 's_waitcnt vmcnt(0)')
    a.label('ROLE')
    a('s_lshr_b32 s24, s26, 5\ns_and_b32 s28, s26, 31')
    if cfg.get('prof'): a('s_mov_b32 s101, s26')
    a('s_cmp_ge_u32 s24, 8\ns_cbranch_scc1 K_END')
    a('s_cmp_eq_u32 s24, 0\ns_cbranch_scc1 R_CHAIN')
    a('s_cmp_eq_u32 s24, 1\ns_cbranch_scc1 R_AO')
    a(f's_sub_u32 s{G.G_CG}, s24, 2\ns_lshl_b32 s{G.G_CG}, s{G.G_CG}, 2\ns_lshr_b32 s25, s28, 3\ns_add_u32 s{G.G_CG}, s{G.G_CG}, s25\ns_and_b32 s{G.G_RB}, s28, 7')
    a(f's_lshl_b32 s24, s{G.G_CG}, 3\ns_add_u32 s24, s24, s{G.G_RB}\nv_lshlrev_b32 v8, 4, v0')
    for r in range(4): a(f'v_mov_b32 v{12+r}, -1')
    a(f's_lshl_b32 s25, s24, 12\ns_add_u32 s25, s25, {WS_KM}')
    for k in range(11):
        if k == 10: a('s_cmp_ge_u32 s24, 128\ns_cbranch_scc1 KVMF')
        a(f'buffer_store_dwordx4 v[12:15], v8, s[4:7], s25 offen sc1\ns_add_u32 s25, s25, {192*4096}')
    a.label('KVMF')
    G.gemm1(a, P, cfg)
    if cfg.get('prof'): prof(a, 1)
    a(f's_cmp_lt_u32 s{G.G_CG}, 12\ns_cbranch_scc1 R_FFN')
    a(f's_sub_u32 s24, s{G.G_CG}, 12\ns_lshl_b32 s24, s24, 3\ns_add_u32 s24, s24, s{G.G_RB}')
    a(f's_and_b32 s{AO.A_CH}, s24, 1\ns_bfe_u32 s{AO.A_HG}, s24, 0x30001\ns_lshr_b32 s{AO.A_SEG}, s24, 4\ns_add_u32 s{AO.A_SEG}, s{AO.A_SEG}, {2 + cfg.get("S0", 20)}')
    a('s_barrier\ns_branch AO_ENTRY2')
    a.label('R_FFN')
    F.ffn2(a, P, cfg)
    if cfg.get('dst') == 1:
        a('s_waitcnt vmcnt(0)\ns_sub_u32 s24, 15, s16\ns_add_u32 s24, s24, s17'); dstamp(a, P, 14, vt=(4, 5), cond='s24')
    a('s_branch K_DONE')
    a.label('R_AO')
    a(f's_and_b32 s{AO.A_SEG}, s28, 1\ns_bfe_u32 s{AO.A_CH}, s28, 0x10001\ns_lshr_b32 s{AO.A_HG}, s28, 2')
    def ln_rest():
        a(f's_add_u32 s{G.G_T4}, s46, 16\ns_mov_b32 s45, 1\ns_branch LN_GO')
        a.label('LN_RET1')
        a('s_cmp_ge_u32 s46, 16\ns_cbranch_scc1 LN_RET2')
        a(f's_add_u32 s{G.G_T4}, s46, 48\ns_mov_b32 s45, 2\ns_branch LN_GO')
        a.label('LN_RET2')
    cfg['_ln_rest'] = ln_rest
    a('s_mov_b32 s46, s28')
    AO.ao(a, P, cfg)
    a('s_branch K_DONE')
    a.label('R_CHAIN')
    a(f's_mov_b32 s{C.S_H}, s28\ns_mov_b32 s52, 0')
    a.label('R_CHAIN2')
    def hook(vm):
        a('s_cmp_eq_u32 s52, 0\ns_cbranch_scc1 CH_OK')
        resolve('B', 0, 's_waitcnt vmcnt(60)')
        if cfg.get('prof'): a('s_mov_b32 s101, s26')
        a(f's_cmp_eq_u32 s26, s{C.S_H}\ns_cbranch_scc1 CH_OK')
        a('s_waitcnt vmcnt(0)\ns_barrier')
        a('s_lshl_b32 s24, s13, 6\nv_lshrrev_b32 v0, 4, v0\nv_or_b32 v0, s24, v0')
        a('s_branch ROLE')
        a.label('CH_OK')
    def flags_wait(sfx, words, vo=44):
        a(f'v_mov_b32 v{vo}, 0\nv_mov_b32 v{vo+1}, 0')
        for n_, (off, tgt) in enumerate(words):
            a(f's_mov_b32 s43, {off}\nv_writelane_b32 v{vo}, s43, {n_}\ns_mov_b32 s43, {tgt}\nv_writelane_b32 v{vo+1}, s43, {n_}')
        a(f's_cmp_lg_u32 s13, 0\ns_cbranch_scc1 FE{sfx}')
        a(f's_mov_b32 s27, 0\ns_mov_b64 exec, {(1 << len(words)) - 1}')
        a.label(f'FW{sfx}')
        a(f'global_load_dword v{vo+2}, v{vo}, {DBGP} sc1')
        a(f's_add_u32 s27, s27, 1\ns_cmp_gt_u32 s27, 0x20000\ns_cbranch_scc1 FD{sfx}')
        a('s_waitcnt vmcnt(0)')
        a(f'v_cmp_gt_u32 vcc, v{vo+1}, v{vo+2}')
        a(f's_cbranch_vccz FD{sfx}')
        a(f's_sleep {cfg.get("FWS", 6)}\ns_branch FW{sfx}')
        a.label(f'FD{sfx}')
        a('s_waitcnt vmcnt(0)\ns_mov_b64 exec, -1')
        a.label(f'FE{sfx}')
        a('s_barrier')
    C.chain_prologue(a, P, hook, None)
    C.chain_init(a, P, cfg)
    if cfg.get('dst'): dstamp(a, P, 13, vt=(4, 5), also=15)
    if cfg.get('prof'): prof(a, 4)
    a('s_barrier')
    G.signal(a, P, G.DBG_CHAIN, None)
    flags_wait('0', [(0, 0xffffffff), (G.DBG_AOINIT, 32), (G.DBG_KV, G.KVT_LO), (G.DBG_KV + 4, G.KVT_LO)])
    a(f'v_mov_b32 v4, {G.DBG_IMPURE}')
    a(f'global_load_dword v5, v4, {DBGP} sc1')
    a(f's_sub_u32 s35, s{C.S_KF}, {32*8192}\ns_mov_b32 m0, s{C.S_KXL}')
    for q in range(4): a(f'buffer_load_dwordx4 v{C.V_L16}, s[4:7], s35 offen offset:{q*1024} sc1 lds')
    a(f'v_lshlrev_b32 v6, 3, v{C.V_L16}\ns_mov_b32 m0, {L_QX}')
    a(f's_sub_u32 s35, s{C.S_PF}, {32*8192}\ns_mov_b64 exec, 0xffffffff')
    a('buffer_load_dword v6, s[4:7], s35 offen sc1 lds')
    a('s_mov_b64 exec, -1')
    if cfg.get('pmw', 1):
        a(f's_mul_i32 s43, s{C.S_H}, 12288\ns_and_b32 s27, s13, 1\ns_lshl_b32 s27, s27, 19\ns_add_u32 s43, s43, s27\ns_lshr_b32 s27, s13, 1\ns_lshl_b32 s27, s27, 13\ns_add_u32 s43, s43, s27\ns_add_u32 s43, s43, {WS_P}')
        a('buffer_load_dword v6, s[4:7], s43 offen sc1 lds')
        a(f's_lshl_b32 s43, s13, 13\ns_add_u32 s43, s43, {WS_M + M_STRIDE}')
        a('buffer_load_dword v6, s[4:7], s43 offen sc1 lds')
        a('s_waitcnt vmcnt(7)')
    else: a('s_waitcnt vmcnt(5)')
    a('v_readfirstlane_b32 s34, v5')
    if cfg.get('prof'): prof(a, 2)
    lg = C.Cnt(a, 'lgkmcnt', 15)
    if cfg.get('dst'): a('s_mov_b32 s35, s34'); dstamp(a, P, 8, vt=(4, 5))
    C.build_table(a)
    C.next_prep(a, lg)
    cfg['_kvwait'] = lambda a: G.wait_flag(a, P, 0, None, 24, sleep=2, cnt=C.S_CNT, multi=(G.DBG_KV + 8, 6))
    if cfg.get('forceslow'): a('s_mov_b32 s34, 1')
    a('s_cmp_lg_u32 s34, 0\ns_cbranch_scc1 STEPS')
    C.chain_loop(a, cfg, 'F', '')
    C.chain_loop(a, cfg, 'S', 'sc1')
    a.label('CHAIN_DONE')
    if cfg.get('dst') == 1: dstamp(a, P, 9, vt=(4, 5))
    a.label('K_DONE')
    a('s_waitcnt vmcnt(0) lgkmcnt(0)')
    if cfg.get('prof'): prof(a, 3)
    a.label('K_END')
    a('s_endpgm')
    body, n = a.finalize()
    head = HEADER + f'''; @launch grid=(256,1,1) block=(256,1,1) lds=163840
.amdgcn_target "amdgcn-amd-amdhsa--gfx950"
.text
.globl {KN}
.p2align 8
.type {KN},@function
{KN}:
'''
    tail = f'''.section .rodata,"a"
.p2align 6
.amdhsa_kernel {KN}
  .amdhsa_next_free_vgpr 512
  .amdhsa_next_free_sgpr 102
  .amdhsa_accum_offset 256
  .amdhsa_group_segment_fixed_size 0
  .amdhsa_kernarg_size 112
  .amdhsa_user_sgpr_count 2
  .amdhsa_user_sgpr_kernarg_segment_ptr 1
  .amdhsa_system_sgpr_workgroup_id_x 1
.end_amdhsa_kernel
'''
    return head + body + tail, n

def dstamp(a, P, word, inv=False, vt=(250, 251), cond='s12', also=None):
    l = a.newlabel('DS')
    a(f's_cmp_lg_u32 s13, 0\ns_cbranch_scc1 {l}')
    a(f's_cmp_lg_u32 {cond}, 0\ns_cbranch_scc1 {l}')
    a('s_memrealtime s[98:99]\ns_waitcnt lgkmcnt(0)')
    a('s_mov_b64 exec, 1')
    a(f'v_mov_b32 v{vt[0]}, {word*4}\nv_mov_b32 v{vt[1]}, s98')
    a(f'global_store_dword v{vt[0]}, v{vt[1]}, s[{P["dbg"]}:{P["dbg"]+1}] sc1')
    if also:
        a(f'v_mov_b32 v{vt[0]}, {also*4}\nv_mov_b32 v{vt[1]}, s96')
        a(f'global_store_dword v{vt[0]}, v{vt[1]}, s[{P["dbg"]}:{P["dbg"]+1}] sc1')
    a('s_mov_b64 exec, -1')
    a.label(l)

def amax(a, P, word, vt=(8, 9)):
    l = a.newlabel('AM')
    a(f's_cmp_lg_u32 s13, 0\ns_cbranch_scc1 {l}')
    a('s_memrealtime s[98:99]\ns_waitcnt lgkmcnt(0)\ns_mov_b64 exec, 1')
    a(f'v_mov_b32 v{vt[0]}, {word*4}\nv_mov_b32 v{vt[1]}, s98')
    a(f'global_atomic_umax v{vt[0]}, v{vt[1]}, s[{P["dbg"]}:{P["dbg"]+1}]')
    a('s_mov_b64 exec, -1')
    a.label(l)

def prof(a, k):
    l = a.newlabel('PR')
    a(f's_cmp_lg_u32 s13, 0\ns_cbranch_scc1 {l}')
    a('s_memrealtime s[98:99]\ns_waitcnt lgkmcnt(0)')
    a(f's_sub_u32 s98, s98, s100\ns_lshl_b32 s99, s2, 6\ns_add_u32 s99, s99, {WS_DBG + 0x80000 + k*8}')
    a('s_mov_b64 exec, 1')
    a('v_mov_b32 v14, s98\nv_mov_b32 v15, s101\nv_mov_b32 v13, 0')
    a('buffer_store_dwordx2 v[14:15], v13, s[4:7], s99 offen')
    a('s_mov_b64 exec, -1')
    a.label(l)

if __name__ == '__main__':
    cfg = json.loads(sys.argv[1]) if len(sys.argv) > 1 else dict(D1=110, D2=310)
    src, n = gen(cfg)
    out = sys.argv[2] if len(sys.argv) > 2 else 'all.s'
    open(out, 'w').write(src)
    print(n, 'instructions', len(src), 'bytes')
```

```python
from asmlib import *
from layout import *
from chain import Cnt
import struct, math

def f32bits(x): return struct.unpack('<I', struct.pack('<f', x))[0]

G_CG = 12; G_WV = 13; G_RB = 14; G_I = 15
G_SW = 8
G_SG = 16; G_SU = 20
G_T0 = 24; G_T1 = 25; G_T2 = 26; G_T3 = 27; G_T4 = 28; G_T5 = 29
G_LB = 30
G_C1 = 32; G_C2 = 34; G_ONE = 36
G_DJ = 38
G_CUR = 39
G_DB = 40
G_SO = 41
G_CNT = 42

DBG_LN = 64; DBG_KV = 96; DBG_Q = 128; DBG_H = 160; DBG_AO = 192
KVT_LO = 96
NHELP = 2
DBG_CHAIN = 40; DBG_AOINIT = 44; DBG_IMPURE = 48

def signal(a, P, off_imm, s_idx=None, val=1, vtmp=(4, 5)):
    l = a.newlabel('SIG')
    a(f's_cmp_lg_u32 s13, 0\ns_cbranch_scc1 {l}')
    if s_idx is None: a(f'v_mov_b32 v{vtmp[0]}, {off_imm}')
    else: a(f's_lshl_b32 s{G_T5}, s{s_idx}, 2\ns_add_u32 s{G_T5}, s{G_T5}, {off_imm}\nv_mov_b32 v{vtmp[0]}, s{G_T5}')
    a(f'v_mov_b32 v{vtmp[1]}, {val}' if isinstance(val, int) else f'v_mov_b32 v{vtmp[1]}, s{val[0]}')
    a('s_mov_b64 exec, 1')
    a(f'global_atomic_add v{vtmp[0]}, v{vtmp[1]}, s[{P["dbg"]}:{P["dbg"]+1}]')
    a('s_mov_b64 exec, -1')
    a.label(l)

def wait_flag(a, P, off_imm, s_idx, target, vtmp=(4, 5), sleep=8, shift_s=None, mask=None, cnt=42, multi=None):
    l = a.newlabel('WF'); d = a.newlabel('WFD'); e = a.newlabel('WFE')
    a(f's_cmp_lg_u32 s13, 0\ns_cbranch_scc1 {e}')
    if multi:
        off0, n = multi
        a(f'v_mbcnt_lo_u32_b32 v{vtmp[0]}, -1, 0\nv_lshlrev_b32 v{vtmp[0]}, 2, v{vtmp[0]}\nv_add_u32 v{vtmp[0]}, {off0}, v{vtmp[0]}')
        a(f's_mov_b64 exec, {(1 << n) - 1}')
    else:
        if s_idx is None: a(f'v_mov_b32 v{vtmp[0]}, {off_imm}')
        else: a(f's_lshl_b32 s{G_T5}, s{s_idx}, 2\ns_add_u32 s{G_T5}, s{G_T5}, {off_imm}\nv_mov_b32 v{vtmp[0]}, s{G_T5}')
        a('s_mov_b64 exec, 1')
    a(f's_mov_b32 s{cnt}, 0')
    a.label(l)
    a(f'global_load_dword v{vtmp[1]}, v{vtmp[0]}, s[{P["dbg"]}:{P["dbg"]+1}] sc1')
    a(f's_add_u32 s{cnt}, s{cnt}, 1\ns_cmp_gt_u32 s{cnt}, 0x20000\ns_cbranch_scc1 {d}')
    a('s_waitcnt vmcnt(0)')
    if shift_s is not None: a(f'v_lshrrev_b32 v{vtmp[1]}, s{shift_s}, v{vtmp[1]}\nv_and_b32 v{vtmp[1]}, {mask}, v{vtmp[1]}')
    a(f'v_cmp_gt_u32 vcc, {target}, v{vtmp[1]}')
    a(f's_cbranch_vccz {d}')
    if sleep: a(f's_sleep {sleep}')
    a(f's_branch {l}')
    a.label(d)
    a('s_waitcnt vmcnt(0)')
    a('s_mov_b64 exec, -1')
    a.label(e)
    a('s_barrier')

def rnd_bf16(a, dst, src, tmp=None):
    a(f'v_cvt_pk_bf16_f32 v{dst}, v{src}, v{src}\nv_lshlrev_b32 v{dst}, 16, v{dst}')

LN_HOOK = [None]
def layernorm(a, P):
    a('; ---- layernorm ----')
    a(f's_mov_b32 s8, s{P["x"]}\ns_mov_b32 s9, s{P["x"]+1}\ns_mov_b32 s10, {2048*1152}\ns_mov_b32 s11, 0x20000')
    a('v_and_b32 v1, 63, v0\nv_lshrrev_b32 v2, 3, v1\nv_and_b32 v3, 7, v1')
    a(f's_lshl_b32 s{G_T0}, s{G_T4}, 2\ns_add_u32 s{G_T0}, s{G_T0}, s{G_WV}\ns_lshl_b32 s{G_T0}, s{G_T0}, 3')
    a(f's_mul_i32 s{G_T1}, s{G_T0}, 1152')
    a('v_mul_u32_u24 v4, 1152, v2\nv_lshl_add_u32 v4, v3, 4, v4')
    X = 8; F = 48
    for i in range(9): a(f'buffer_load_dwordx4 {vr(X+4*i,4)}, v4, s[8:11], s{G_T1} offen offset:{i*128}')
    a(f's_lshr_b32 s{G_T2}, s{G_T0}, 5\ns_mul_i32 s{G_T2}, s{G_T2}, 36864\ns_and_b32 s{G_T3}, s{G_T0}, 31\ns_lshl_b32 s{G_T3}, s{G_T3}, 4\ns_add_u32 s{G_T2}, s{G_T2}, s{G_T3}\ns_add_u32 s{G_T2}, s{G_T2}, {WS_XF}')
    a('v_lshrrev_b32 v5, 1, v3\nv_lshlrev_b32 v5, 10, v5\nv_and_b32 v6, 1, v3\nv_lshl_add_u32 v5, v6, 9, v5\nv_lshl_add_u32 v5, v2, 4, v5')
    for i in range(9):
        a(f's_waitcnt vmcnt({8-i})')
        for r in range(4):
            x = X + 4*i + r; f = F + 2*(4*i + r)
            a(f'v_lshlrev_b32 v{f}, 16, v{x}\nv_and_b32 v{f+1}, 0xffff0000, v{x}')
    def red8(v, t):
        a(f'v_add_f32_dpp v{v}, v{v}, v{v} quad_perm:[1,0,3,2] row_mask:0xf bank_mask:0xf')
        a(f'v_add_f32_dpp v{v}, v{v}, v{v} quad_perm:[2,3,0,1] row_mask:0xf bank_mask:0xf')
        a(f'v_add_f32_dpp v{v}, v{v}, v{v} row_half_mirror row_mask:0xf bank_mask:0xf')
    S = 120
    a(f'v_pk_add_f32 {vr(S,2)}, {vr(F,2)}, {vr(F+2,2)}')
    for k in range(2, 36): a(f'v_pk_add_f32 {vr(S,2)}, {vr(S,2)}, {vr(F+2*k,2)}')
    a(f'v_add_f32 v{S}, v{S}, v{S+1}')
    red8(S, S+1)
    a(f'v_mul_f32 v{S}, 0x{f32bits(1/576):08x}, v{S}')
    a(f'v_mov_b32 v{S+1}, v{S}')
    Q = 122; D = 124
    a(f'v_mov_b64 {vr(Q,2)}, 0')
    for k in range(36):
        a(f'v_pk_add_f32 {vr(D,2)}, {vr(F+2*k,2)}, {vr(S,2)} neg_lo:[0,1] neg_hi:[0,1]')
        a(f'v_pk_fma_f32 {vr(Q,2)}, {vr(D,2)}, {vr(D,2)}, {vr(Q,2)}')
    a(f'v_add_f32 v{Q}, v{Q}, v{Q+1}')
    red8(Q, Q+1)
    a(f'v_mul_f32 v{Q}, 0x{f32bits(1/576):08x}, v{Q}')
    rnd_bf16(a, Q, Q)
    a(f'v_add_f32 v{Q}, 0x{f32bits(1e-5):08x}, v{Q}')
    rnd_bf16(a, Q, Q)
    a(f'v_sqrt_f32 v{Q}, v{Q}')
    rnd_bf16(a, Q, Q)
    a(f'v_rcp_f32 v{Q}, v{Q}')
    rnd_bf16(a, S, S)
    a(f'v_mov_b32 v{S+1}, v{S}\nv_mov_b32 v{Q+1}, v{Q}')
    for k in range(36):
        f = F + 2*k
        a(f'v_pk_add_f32 {vr(f,2)}, {vr(f,2)}, {vr(S,2)} neg_lo:[0,1] neg_hi:[0,1]')
        a(f'v_cvt_pk_bf16_f32 v{X+k}, v{f}, v{f+1}')
        a(f'v_lshlrev_b32 v{f}, 16, v{X+k}\nv_and_b32 v{f+1}, 0xffff0000, v{X+k}')
        a(f'v_pk_mul_f32 {vr(f,2)}, {vr(f,2)}, {vr(Q,2)}')
        a(f'v_cvt_pk_bf16_f32 v{X+k}, v{f}, v{f+1}')
        if k % 4 == 3:
            i = k // 4
            a(f'buffer_store_dwordx4 {vr(X+4*i,4)}, v5, s[4:7], s{G_T2} offen sc1')
            a(f's_add_u32 s{G_T2}, s{G_T2}, 4096')
    a('s_waitcnt vmcnt(0)\ns_barrier')
    if LN_HOOK[0]: LN_HOOK[0](a)
    a(f's_lshr_b32 s{G_T4}, s{G_T4}, 3')
    signal(a, P, DBG_LN, G_T4)

def XR(rt, ks):
    n = (rt * 36 + ks) * 4
    return vr(n, 4, 'a') if n < 256 else vr(224 + n - 256, 4, 'v')
V_LN = 1; V_DQ = 2; V_DG = 3; V_TR = 4; V_SK = 5; V_SV = 6; V_L16 = 7; V_D = 10; V_TRC = 11
ACG = 16; ACU = 48; WB = 80; NWB = 4; ET = 96
G_STEP = 16; G_MSK = 18; G_PT = 20; G_OB = 22; G_SZQ = 23; G_STQ = 31
G_PB = 43; G_O1 = 44; G_O2 = 45; G_P = 46; G_RBC = 47; G_LAST = 48; G_KVP = 49; G_QS = 50

def gemm1(a, P, cfg):
    a('; ---- gemm1 ----')
    a(f'v_and_b32 v{V_LN}, 63, v0\nv_lshlrev_b32 v{V_L16}, 4, v{V_LN}')
    a(f'v_lshrrev_b32 v8, 2, v{V_LN}\nv_and_b32 v9, 3, v{V_LN}\nv_lshlrev_b32 v9, 4, v9')
    a(f'v_lshl_add_u32 v{V_DQ}, v8, 13, v9')
    a(f'v_mul_u32_u24 v{V_DG}, 9216, v8\nv_add_u32 v{V_DG}, v{V_DG}, v9')
    a(f'v_lshrrev_b32 v8, 5, v{V_LN}\nv_bfe_u32 v9, v{V_LN}, 2, 2\nv_lshl_add_u32 v8, v8, 3, v9\nv_lshlrev_b32 v8, 6, v8')
    a(f'v_bfe_u32 v9, v{V_LN}, 4, 1\nv_lshl_add_u32 v8, v9, 5, v8\nv_and_b32 v9, 3, v{V_LN}\nv_lshl_add_u32 v{V_TR}, v9, 3, v8')
    a(f'v_lshrrev_b32 v8, 5, v{V_LN}\nv_and_b32 v9, 15, v{V_LN}\nv_lshlrev_b32 v9, 4, v9\nv_lshl_add_u32 v8, v8, 8, v9\nv_bfe_u32 v9, v{V_LN}, 4, 1')
    a(f'v_lshl_add_u32 v{V_SK}, v9, 12, v8\nv_lshl_add_u32 v{V_SV}, v9, 10, v8')
    a(f's_mov_b32 s{G_SW+3}, 0x20000\ns_mov_b32 s{G_SZQ}, {576*8192}\ns_mov_b32 s{G_STQ}, {16*8192}')
    a(f's_mul_i32 s{G_LB}, s{G_WV}, 9216')
    c1 = -2 * math.log2(math.e) * math.sqrt(2 / math.pi); c2 = c1 * 0.044715
    for sr, v in ((G_C1, c1), (G_C2, c2), (G_ONE, 1.0)):
        a(f's_mov_b32 s{sr}, 0x{f32bits(v):08x}\ns_mov_b32 s{sr+1}, s{sr}')
    pp = lambda n: f's[{P[n]}:{P[n]+1}]'
    def dma_ops():
        pre = f"""s_cmp_lt_u32 s{G_DJ}, s{G_PB}|s_cselect_b32 s{G_T0}, s{G_O1}, s{G_O2}|s_add_u32 s{G_T0}, s{G_T0}, s{G_DJ}
s_min_u32 s{G_T0}, s{G_T0}, 27
s_mul_i32 s{G_T1}, s{G_T0}, 24
s_add_u32 s{G_T1}, s{G_T1}, s{G_CG}
s_lshr_b32 s{G_T2}, s{G_T1}, 7
s_and_b32 s{G_T1}, s{G_T1}, 127
s_lshl_b32 s{G_T1}, s{G_T1}, 6
s_mul_i32 s{G_SO}, s{G_WV}, {144*8192}
s_add_u32 s{G_SO}, s{G_SO}, s{G_T1}
s_cmp_eq_u32 s{G_T2}, 1|s_cselect_b64 s[{G_SW}:{G_SW+1}], {pp('Wv')}, {pp('Wk')}
s_cmp_eq_u32 s{G_T2}, 2|s_cselect_b64 s[{G_SW}:{G_SW+1}], {pp('Wq')}, s[{G_SW}:{G_SW+1}]
s_sub_u32 s{G_T1}, s{G_T0}, 16
s_lshr_b32 s{G_T2}, s{G_T1}, 1
s_mul_i32 s{G_T2}, s{G_T2}, 24
s_add_u32 s{G_T2}, s{G_T2}, s{G_CG}
s_lshl_b32 s{G_T2}, s{G_T2}, 6
s_mul_i32 s{G_T3}, s{G_WV}, {144*9216}
s_add_u32 s{G_T2}, s{G_T2}, s{G_T3}
s_bitcmp1_b32 s{G_T1}, 0|s_cselect_b64 s[{G_PT}:{G_PT+1}], {pp('wu')}, {pp('wg')}
s_cmp_ge_u32 s{G_T0}, 16|s_cselect_b64 s[{G_SW}:{G_SW+1}], s[{G_PT}:{G_PT+1}], s[{G_SW}:{G_SW+1}]|s_cselect_b32 s{G_SO}, s{G_T2}, s{G_SO}|s_cselect_b32 s{G_SW+2}, {576*9216}, s{G_SZQ}|s_cselect_b32 s{G_STEP}, {16*9216}, s{G_STQ}|s_cselect_b64 s[{G_MSK}:{G_MSK+1}], -1, 0
v_cndmask_b32 v{V_D}, v{V_DQ}, v{V_DG}, s[{G_MSK}:{G_MSK+1}]
s_add_u32 s{G_T0}, s{G_DB}, s{G_LB}"""
        ops = [x.replace('|', '\n') for x in pre.split('\n')]
        for n in range(9):
            if cfg.get('g_nodma'): continue
            ops.append(f's_add_u32 m0, s{G_T0}, {n*1024}\ns_nop 0\nbuffer_load_dwordx4 v{V_D}, s[{G_SW}:{G_SW+3}], s{G_SO} offen lds\ns_add_u32 s{G_SO}, s{G_SO}, s{G_STEP}')
        ops.append(f's_add_u32 s{G_DJ}, s{G_DJ}, 1')
        ops.append(f's_add_u32 s{G_DB}, s{G_DB}, 36864\ns_cmp_eq_u32 s{G_DB}, {4*36864}\ns_cselect_b32 s{G_DB}, 0, s{G_DB}')
        return ops
    a(f's_mov_b32 s{G_DJ}, 0\ns_mov_b32 s{G_DB}, 0\ns_mov_b32 s{G_CUR}, 0')
    a(f's_lshr_b32 s{G_T0}, s{G_RB}, 1\ns_mul_i32 s{G_O1}, s{G_T0}, 3\ns_cmp_eq_u32 s{G_T0}, 3\ns_cselect_b32 s{G_PB}, 2, 3')
    a(f's_sub_u32 s{G_O2}, 0, s{G_PB}\ns_add_u32 s{G_LAST}, s{G_PB}, 16\ns_add_u32 s{G_KVP}, s{G_PB}, 11')
    a(f's_cmp_lt_u32 s{G_RB}, 2\ns_cselect_b32 s{G_O2}, 8, s{G_O2}\ns_cselect_b32 s{G_LAST}, 8, s{G_LAST}\ns_cselect_b32 s{G_KVP}, 99, s{G_KVP}')
    a(f's_and_b32 s{G_RBC}, s{G_RB}, 1')
    for _ in range(3):
        for op in dma_ops(): a(op)
    first = [True]
    def load_x(wait=True):
        wait_flag(a, P, DBG_LN, G_RBC, 8, vtmp=(8, 9), sleep=cfg.get('LNS', 4))
        if cfg.get('prof') == 2 and first[0]: cfg['_prof'](a, 4)
        if cfg.get('dst') == 2 and first[0]:
            a(f's_cmp_lg_u32 s{G_RB}, 3\ns_cbranch_scc1 NAM2'); cfg['_amax'](a, P, 9); a.label('NAM2')
        first[0] = False
        a(f's_lshl_b32 s{G_T0}, s{G_RBC}, 3\ns_lshl_b32 s{G_T1}, s{G_WV}, 1\ns_add_u32 s{G_T0}, s{G_T0}, s{G_T1}\ns_mul_i32 s{G_T0}, s{G_T0}, 36864\ns_add_u32 s{G_T0}, s{G_T0}, {WS_XF}')
        a(f's_add_u32 s{G_T1}, s{G_T0}, 36864')
        for ks in range(36):
            for rt in range(2):
                a(f'buffer_load_dwordx4 {XR(rt, ks)}, v{V_L16}, s[4:7], s{G_T0 if rt == 0 else G_T1} offen offset:{(ks % 4)*1024} sc1')
            if ks % 4 == 3: a(f's_add_u32 s{G_T0}, s{G_T0}, 4096\ns_add_u32 s{G_T1}, s{G_T1}, 4096')
            if ks == 23: a('s_waitcnt vmcnt(48)')
        if wait: a('s_waitcnt vmcnt(0)')
    load_x(False)
    a(f's_lshl_b32 s{G_T0}, s{G_CG}, 3\ns_add_u32 s{G_T0}, s{G_T0}, s{G_RB}\nv_lshlrev_b32 v8, 4, v0')
    for r in range(4): a(f'v_mov_b32 v{12+r}, -1')
    a(f's_lshl_b32 s{G_T1}, s{G_T0}, 12\ns_add_u32 s{G_T1}, s{G_T1}, {WS_KM}')
    for k in range(11):
        if k == 10: a(f's_cmp_ge_u32 s{G_T0}, 128\ns_cselect_b32 s{G_T2}, {192*4096}, 0\ns_sub_u32 s{G_T1}, s{G_T1}, s{G_T2}')
        a(f'buffer_store_dwordx4 v[12:15], v8, s[4:7], s{G_T1} offen sc1\ns_add_u32 s{G_T1}, s{G_T1}, {192*4096}')
    if cfg.get('prof') == 3: cfg['_prof'](a, 5)

    def tile_start(vw=True):
        if cfg.get('gprof'): a('s_memtime s[60:61]\ns_waitcnt lgkmcnt(0)\ns_sub_u32 s66, s60, s64\ns_add_u32 s69, s69, s66')
        if vw: a('s_waitcnt vmcnt(18)')
        if cfg.get('gprof'): a('s_memtime s[62:63]\ns_waitcnt lgkmcnt(0)\ns_sub_u32 s66, s62, s60\ns_add_u32 s67, s67, s66')
        a('s_barrier')
        if cfg.get('gprof'): a('s_memtime s[64:65]\ns_waitcnt lgkmcnt(0)\ns_sub_u32 s66, s64, s62\ns_add_u32 s68, s68, s66')
        a(f'v_add_u32 v{V_TRC}, s{G_CUR}, v{V_TR}')
        a(f's_add_u32 s{G_CUR}, s{G_CUR}, 36864\ns_cmp_eq_u32 s{G_CUR}, {4*36864}\ns_cselect_b32 s{G_CUR}, 0, s{G_CUR}')
    def body(acc, swapped, dma=True):
        fill = dma_ops() if dma else []
        def rd(ks):
            w = WB + 4 * (ks % NWB)
            a(f'ds_read_b64_tr_b16 {vr(w,2)}, v{V_TRC} offset:{ks*1024}')
            a(f'ds_read_b64_tr_b16 {vr(w+2,2)}, v{V_TRC} offset:{ks*1024+256}')
        PD = NWB - 1; DSP = cfg.get('DSP', 3)
        for ks in range(PD): rd(ks)
        for ks in range(36):
            if ks + PD < 36: rd(ks + PD)
            rem = min(PD, 35 - ks)
            a(f's_waitcnt lgkmcnt({2*rem})')
            if not dma: a(f's_waitcnt vmcnt({min(63, 2*(35-ks) + 11)})')
            w = vr(WB + 4 * (ks % NWB), 4)
            for rt in range(2):
                d = vr(acc + 16*rt, 16); c = d if ks else '0'
                if swapped: a(f'v_mfma_f32_32x32x16_bf16 {d}, {w}, {XR(rt, ks)}, {c}')
                else: a(f'v_mfma_f32_32x32x16_bf16 {d}, {XR(rt, ks)}, {w}, {c}')
                if fill and ks >= 1 and (not fill[0].startswith('s_add_u32 m0') or (2*ks + rt) % DSP == 0): a(fill.pop(0))
        assert not fill
    def pack_swapped(src_fn, rt, store_fn):
        for ai, aq in enumerate((0, 2)):
            t = ET + 8 * (rt % 2) + 4 * ai
            a(f'v_cvt_pk_bf16_f32 v{t}, v{src_fn(4*aq)}, v{src_fn(4*aq+1)}\nv_cvt_pk_bf16_f32 v{t+1}, v{src_fn(4*aq+2)}, v{src_fn(4*aq+3)}')
            a(f'v_cvt_pk_bf16_f32 v{t+2}, v{src_fn(4*aq+4)}, v{src_fn(4*aq+5)}\nv_cvt_pk_bf16_f32 v{t+3}, v{src_fn(4*aq+6)}, v{src_fn(4*aq+7)}')
            a(f'v_permlane32_swap_b32 v{t}, v{t+2}\nv_permlane32_swap_b32 v{t+1}, v{t+3}')
            store_fn(t, ai)
    if cfg.get('gprof'): a('s_memtime s[64:65]\ns_waitcnt lgkmcnt(0)\ns_mov_b32 s67, 0\ns_mov_b32 s68, 0\ns_mov_b32 s69, 0')
    def single_tile(sfx, dma):
        tile_start(dma)
        a(f's_cmp_lt_u32 s{G_P}, s{G_PB}\ns_cselect_b32 s{G_I}, s{G_O1}, s{G_O2}\ns_add_u32 s{G_I}, s{G_I}, s{G_P}')
        a(f's_mul_i32 s{G_T4}, s{G_I}, 24\ns_add_u32 s{G_T4}, s{G_T4}, s{G_CG}')
        a(f's_lshl_b32 s{G_OB}, s{G_RBC}, 3\ns_lshl_b32 s{G_T5}, s{G_WV}, 1\ns_add_u32 s{G_OB}, s{G_OB}, s{G_T5}\ns_lshl_b32 s{G_OB}, s{G_OB}, 18')
        a(f's_bfe_u32 s{G_T5}, s{G_T4}, 0x50002\ns_lshl_b32 s{G_T5}, s{G_T5}, 13\ns_add_u32 s{G_OB}, s{G_OB}, s{G_T5}')
        a(f's_and_b32 s{G_CNT}, s{G_T4}, 3\ns_lshl_b32 s{G_CNT}, s{G_CNT}, 10\ns_add_u32 s{G_OB}, s{G_OB}, s{G_CNT}')
        a(f's_lshr_b32 s{G_T4}, s{G_T4}, 7')
        a(f's_cmp_eq_u32 s{G_T4}, 1\ns_cbranch_scc1 G1V{sfx}')
        a(f's_mov_b32 s{G_T5}, {WS_KF}\ns_cmp_eq_u32 s{G_T4}, 0\ns_cselect_b32 s{G_T4}, s{G_T5}, {WS_QF}')
        a(f's_cselect_b32 s{G_QS}, 1.0, 0x{f32bits(math.log2(math.e) / math.sqrt(128.0)):08x}\ns_mov_b32 s{G_QS+1}, s{G_QS}')
        a(f's_add_u32 s{G_OB}, s{G_OB}, s{G_T4}')
        body(ACG, True, dma)
        for r in range(ACG, ACG + 32, 2): a(f'v_pk_mul_f32 {vr(r,2)}, {vr(r,2)}, s[{G_QS}:{G_QS+1}]')
        for rt in range(2):
            pack_swapped(lambda r: ACG + 16*rt + r, rt,
                         lambda t, ai: a(f'buffer_store_dwordx4 {vr(t,4)}, v{V_SK}, s[4:7], s{G_OB} offen offset:{ai*512} sc1'))
            if rt == 0: a(f's_add_u32 s{G_OB}, s{G_OB}, {32*8192}')
        a(f's_branch G1SE{sfx}')
        a.label(f'G1V{sfx}')
        a(f's_add_u32 s{G_OB}, s{G_OB}, s{G_CNT}\ns_add_u32 s{G_OB}, s{G_OB}, {WS_VF}')
        body(ACG, False, dma)
        for rt in range(2):
            for ap in range(2):
                t = ET + 8 * rt + 4 * ap; s0 = ACG + 16*rt + 4*ap; s1 = s0 + 8
                a(f'v_cvt_pk_bf16_f32 v{t}, v{s0}, v{s0+1}\nv_cvt_pk_bf16_f32 v{t+1}, v{s0+2}, v{s0+3}')
                a(f'v_cvt_pk_bf16_f32 v{t+2}, v{s1}, v{s1+1}\nv_cvt_pk_bf16_f32 v{t+3}, v{s1+2}, v{s1+3}')
                a(f'buffer_store_dwordx4 {vr(t,4)}, v{V_SV}, s[4:7], s{G_OB} offen offset:{ap*512} sc1')
            if rt == 0: a(f's_add_u32 s{G_OB}, s{G_OB}, {32*8192}')
        a.label(f'G1SE{sfx}')
        a(f's_add_u32 s{G_P}, s{G_P}, 1')
    a(f's_mov_b32 s{G_P}, 0')
    a.label('G1A')
    single_tile('A', False)
    a(f's_cmp_lt_u32 s{G_P}, s{G_PB}\ns_cbranch_scc1 G1A')
    a('s_waitcnt vmcnt(0)\ns_barrier')
    signal(a, P, DBG_KV, G_RBC, vtmp=(8, 9))
    if cfg.get('prof'): cfg['_prof'](a, 6)
    if cfg.get('dst') == 2:
        a(f's_cmp_lg_u32 s{G_RB}, 3\ns_cbranch_scc1 NAM1'); cfg['_amax'](a, P, 14); a.label('NAM1')
    for k in range(3):
        if k == 2: a(f's_cmp_lt_u32 s{G_PB}, 3\ns_cbranch_scc1 G1P')
        for op in dma_ops(): a(op)
    a.label('G1P')
    a(f's_cmp_lt_u32 s{G_RB}, 2\ns_cbranch_scc1 G1S')
    a(f's_mov_b32 s{G_RBC}, s{G_RB}')
    load_x()
    a.label('G1S')
    single_tile('B', True)
    a(f's_cmp_lg_u32 s{G_P}, s{G_KVP}\ns_cbranch_scc1 G1F2')
    a('s_waitcnt vmcnt(0)\ns_barrier')
    signal(a, P, DBG_KV, G_RBC, vtmp=(8, 9))
    a.label('G1F2')
    a(f's_cmp_lt_u32 s{G_P}, s{G_LAST}\ns_cbranch_scc1 G1S')
    a('s_waitcnt vmcnt(0)\ns_barrier')
    signal(a, P, DBG_Q, G_RB, vtmp=(8, 9))
    if cfg.get('prof'): cfg['_prof'](a, 7)
    a(f's_mov_b32 s{G_I}, 0')
    a.label('G1G')
    tile_start(); body(ACG, True)
    tile_start(); body(ACU, True)
    a(f's_lshl_b32 s{G_OB}, s{G_RB}, 3\ns_lshl_b32 s{G_T5}, s{G_WV}, 1\ns_add_u32 s{G_OB}, s{G_OB}, s{G_T5}\ns_mul_i32 s{G_OB}, s{G_OB}, {288*1024}')
    a(f's_mul_i32 s{G_T4}, s{G_I}, 24\ns_add_u32 s{G_T4}, s{G_T4}, s{G_CG}\ns_lshl_b32 s{G_T4}, s{G_T4}, 11\ns_add_u32 s{G_OB}, s{G_OB}, s{G_T4}\ns_add_u32 s{G_OB}, s{G_OB}, {WS_HF}')
    T = 112
    for rt in range(2):
        for q in range(0, 16, 4):
            prs = [(ACG + 16*rt + q + o, ACU + 16*rt + q + o, T + o) for o in (0, 2)]
            for g, u, t in prs: a(f'v_pk_mul_f32 {vr(t,2)}, {vr(g,2)}, {vr(g,2)}')
            for g, u, t in prs: a(f'v_pk_fma_f32 {vr(t,2)}, {vr(t,2)}, s[{G_C2}:{G_C2+1}], {vr(T+4,2)}') if False else a(f'v_pk_mul_f32 {vr(t,2)}, {vr(t,2)}, s[{G_C2}:{G_C2+1}]')
            for g, u, t in prs: a(f'v_pk_add_f32 {vr(t,2)}, {vr(t,2)}, s[{G_C1}:{G_C1+1}]')
            for g, u, t in prs: a(f'v_pk_mul_f32 {vr(t,2)}, {vr(t,2)}, {vr(g,2)}')
            for g, u, t in prs: a(f'v_exp_f32 v{t}, v{t}\nv_exp_f32 v{t+1}, v{t+1}')
            for g, u, t in prs: a(f'v_pk_add_f32 {vr(t,2)}, {vr(t,2)}, s[{G_ONE}:{G_ONE+1}]')
            for g, u, t in prs: a(f'v_rcp_f32 v{t}, v{t}\nv_rcp_f32 v{t+1}, v{t+1}')
            for g, u, t in prs: a(f'v_pk_mul_f32 {vr(g,2)}, {vr(g,2)}, {vr(u,2)}')
            for g, u, t in prs: a(f'v_pk_mul_f32 {vr(g,2)}, {vr(g,2)}, {vr(t,2)}')
        pack_swapped(lambda r: ACG + 16*rt + r, rt,
                     lambda t, ai: a(f'buffer_store_dwordx4 {vr(t,4)}, v{V_L16}, s[4:7], s{G_OB} offen offset:{ai*1024} {cfg.get("g_st", "sc1")}'))
        if rt == 0: a(f's_add_u32 s{G_OB}, s{G_OB}, {288*1024}')
    a(f's_add_u32 s{G_I}, s{G_I}, 1\ns_cmp_lt_u32 s{G_I}, 6\ns_cbranch_scc1 G1G')
    a('s_waitcnt vmcnt(0)\ns_barrier')
    signal(a, P, DBG_H, G_RB, vtmp=(8, 9))
    if cfg.get('gprof'):
        a(f's_lshl_b32 s59, s2, 6\ns_lshl_b32 s58, s13, 4\ns_add_u32 s59, s59, s58\ns_add_u32 s59, s59, {WS_DBG + 0x90000}')
        a('v_mov_b32 v12, s67\nv_mov_b32 v13, s68\nv_mov_b32 v14, s69\nv_mov_b32 v15, 0\nv_mov_b32 v8, 0\ns_mov_b64 exec, 1')
        a('buffer_store_dwordx4 v[12:15], v8, s[4:7], s59 offen\ns_mov_b64 exec, -1')
```

```python
import sys, json
from asmlib import *
from layout import *
import chain as C, gemm1 as G, ffn2 as F, ao as AO

KN = 'parallel_sum__memory_aug_recurrent_mem_tr__geglu_ffn__prompt_kernel'
HEADER = open('parallel_sum__memory_aug_recurrent_mem_tr__geglu_ffn__prompt.s.ref').read().split('; Override launch')[0]

def gen(cfg):
    cfg = dict(cfg); cfg['_prof'] = prof; cfg['_amax'] = amax
    a = Asm()
    P = {}
    names = [('x',0),('mem0',8),('Wq',16),('Wk',24),('Wv',32),('Wo',40),('wg',64),('wu',72),('wd',80),('out',88),('dbg',96),('ws',104)]
    a('s_cmp_ge_u32 s2, 256\ns_cbranch_scc1 K_END')
    if cfg.get('perm'): a(f's_mul_i32 s2, s2, {cfg["perm"]}\ns_and_b32 s2, s2, 255')
    for i, (n, off) in enumerate(names):
        P[n] = 72 + 2*i
        a(f's_load_dwordx2 s[{P[n]}:{P[n]+1}], s[0:1], {off}')
    a('s_getreg_b32 s3, hwreg(HW_REG_XCC_ID)')
    a('v_lshrrev_b32 v4, 6, v0')
    a('v_readfirstlane_b32 s13, v4')
    a('s_waitcnt lgkmcnt(0)')
    a(f's_mov_b32 s4, s{P["ws"]}\ns_mov_b32 s5, s{P["ws"]+1}\ns_mov_b32 s6, {WS_SIZE}\ns_mov_b32 s7, 0x20000')
    if cfg.get('prof'): a('s_memrealtime s[100:101]')
    if cfg.get('fakexcc'): a('s_cmp_lt_u32 s2, 128\ns_cselect_b32 s24, 1, 0\ns_cmp_eq_u32 s3, 0\ns_cselect_b32 s3, s24, s3')
    if cfg.get('cpf', 1):
        a('s_cmp_lg_u32 s13, 3\ns_cbranch_scc1 CPF_X')
        a('s_getpc_b64 s[24:25]')
        a('s_and_b32 s24, s24, 0xffffff00')
        a('s_lshr_b32 s26, s2, 3\ns_and_b32 s26, s26, 31\ns_mul_i32 s26, s26, 2560')
        a('v_and_b32 v240, 63, v0\nv_lshlrev_b32 v240, 7, v240\nv_add_u32 v240, s26, v240')
        a(f's_mov_b32 s26, K_END-{KN}')
        a('v_cmp_gt_u32 vcc, s26, v240\ns_and_b64 vcc, vcc, 0xfffff\ns_and_saveexec_b64 s[28:29], vcc\ns_cbranch_execz CPF_E')
        a('global_load_dword v242, v240, s[24:25]')
        a.label('CPF_E')
        a('s_mov_b64 exec, s[28:29]')
        a.label('CPF_X')
    if cfg.get('dst'): a('s_memrealtime s[96:97]')
    a('s_cmp_lt_u32 s3, 8\ns_cselect_b32 s54, s3, 7')
    a('s_lshr_b32 s55, s2, 3\ns_and_b32 s55, s55, 31')
    DBGP = f's[{P["dbg"]}:{P["dbg"]+1}]'
    a('s_cmp_lg_u32 s13, 0\ns_cbranch_scc1 CL_ISSUED')
    a('s_mov_b64 exec, 1')
    a('s_lshl_b32 s27, 1, s55\ns_lshl_b32 s29, s54, 2')
    a('v_mov_b32 v4, s29\nv_mov_b32 v5, s27')
    a(f'global_atomic_or v250, v4, v5, {DBGP} sc0')
    a('s_mov_b64 exec, -1')
    a.label('CL_ISSUED')
    def warm():
        l = a.newlabel('WARM')
        a(f's_cmp_eq_u32 s54, 0\ns_cbranch_scc1 {l}')
        a('s_lshr_b32 s25, s2, 3\ns_mul_i32 s25, s25, 7\ns_and_b32 s27, s2, 7\ns_add_u32 s25, s25, s27\ns_sub_u32 s25, s25, 1\ns_min_u32 s25, s25, 223')
        a('s_mul_i32 s27, s25, 1171\ns_lshr_b32 s27, s27, 16\ns_mul_i32 s29, s27, 56\ns_sub_u32 s25, s25, s29')
        a(f's_cmp_eq_u32 s27, 1\ns_cselect_b64 s[16:17], s[{P["Wk"]}:{P["Wk"]+1}], s[{P["Wq"]}:{P["Wq"]+1}]')
        a(f's_cmp_eq_u32 s27, 2\ns_cselect_b64 s[16:17], s[{P["Wv"]}:{P["Wv"]+1}], s[16:17]')
        a(f's_cmp_eq_u32 s27, 3\ns_cselect_b64 s[16:17], s[{P["Wo"]}:{P["Wo"]+1}], s[16:17]')
        a('s_mov_b32 s18, 4718592\ns_mov_b32 s19, 0x20000')
        a('s_lshl_b32 s25, s25, 15\nv_lshlrev_b32 v199, 7, v0')
        for k in range(3):
            a(f'buffer_load_dword v{200+k}, v199, s[16:19], s25 offen')
            a(f's_add_u32 s25, s25, {56*32768}')
        a.label(l)
    a('s_and_b32 s24, s2, 7\ns_cmp_lg_u32 s24, 1\ns_cbranch_scc1 NO_LN')
    a(f's_lshr_b32 s{G.G_T4}, s2, 3\ns_cmp_ge_u32 s{G.G_T4}, 16\ns_cbranch_scc1 NO_LN')
    a('s_mov_b32 s45, 0')
    G.LN_HOOK[0] = (lambda a: (a('s_cmp_lg_u32 s45, 0\ns_cbranch_scc1 NLH'), amax(a, P, 13, vt=(6, 7)), a.label('NLH'))) if cfg.get('dst') == 2 else None
    a.label('LN_GO')
    G.layernorm(a, P)
    a('s_cmp_eq_u32 s45, 1\ns_cbranch_scc1 LN_RET1\ns_cmp_eq_u32 s45, 2\ns_cbranch_scc1 LN_RET2')
    a.label('NO_LN')
    if cfg.get('warm', 0): warm()
    def resolve(sfx, ldsaddr, firstwait):
        a(f's_cmp_lg_u32 s13, 0\ns_cbranch_scc1 CL_WAIT{sfx}')
        a('s_mov_b32 s25, s55\ns_mov_b32 s26, s54\ns_mov_b32 s28, 0\ns_lshl_b32 s27, 1, s25')
        a('s_mov_b64 exec, 1')
        a(firstwait)
        a(f's_branch CL_CHK{sfx}')
        a.label(f'CL_TRY{sfx}')
        a('s_lshl_b32 s27, 1, s25\ns_lshl_b32 s29, s26, 2')
        a('v_mov_b32 v248, s29\nv_mov_b32 v249, s27')
        a(f'global_atomic_or v250, v248, v249, {DBGP} sc0')
        a('s_waitcnt vmcnt(0)')
        a.label(f'CL_CHK{sfx}')
        a('v_readfirstlane_b32 s30, v250')
        a(f's_and_b32 s31, s30, s27\ns_cbranch_scc0 CL_GOT{sfx}')
        a(f's_not_b32 s31, s30\ns_cbranch_scc0 CL_FULL{sfx}')
        a(f's_ff1_i32_b32 s25, s31\ns_branch CL_TRY{sfx}')
        a.label(f'CL_FULL{sfx}')
        a(f's_add_u32 s28, s28, 1\ns_sub_u32 s26, 8, s28\ns_cmp_gt_u32 s28, 8\ns_cbranch_scc1 CL_NONE{sfx}')
        a('s_mov_b32 s25, 0')
        a(f's_cmp_lg_u32 s26, 0\ns_cbranch_scc1 CL_TRY{sfx}')
        a(f'v_mov_b32 v248, {G.DBG_IMPURE}\nv_mov_b32 v249, 1')
        a(f'global_atomic_or v250, v248, v249, {DBGP} sc0\ns_waitcnt vmcnt(0)')
        a(f's_branch CL_TRY{sfx}')
        a.label(f'CL_NONE{sfx}')
        a('s_mov_b32 s26, 8\ns_mov_b32 s25, 0')
        a.label(f'CL_GOT{sfx}')
        a('s_lshl_b32 s26, s26, 5\ns_add_u32 s26, s26, s25')
        a(f'v_mov_b32 v248, {ldsaddr}\nv_mov_b32 v249, s26\nds_write_b32 v248, v249\ns_waitcnt lgkmcnt(0)')
        a('s_mov_b64 exec, -1')
        a.label(f'CL_WAIT{sfx}')
        a('s_barrier')
        a(f'v_mov_b32 v248, {ldsaddr}\nds_read_b32 v249, v248\ns_waitcnt lgkmcnt(0)')
        a('v_readfirstlane_b32 s26, v249')
        a('s_barrier')
    if cfg.get('spec', 1):
        a(f's_mov_b32 s52, 1\ns_mov_b32 s{C.S_H}, s55')
        a('s_cmp_eq_u32 s54, 0\ns_cbranch_scc1 R_CHAIN2')
    resolve('A', 0, 's_waitcnt vmcnt(0)')
    a.label('ROLE')
    a('s_lshr_b32 s24, s26, 5\ns_and_b32 s28, s26, 31')
    if cfg.get('prof'): a('s_mov_b32 s101, s26')
    a('s_cmp_ge_u32 s24, 8\ns_cbranch_scc1 K_END')
    a('s_cmp_eq_u32 s24, 0\ns_cbranch_scc1 R_CHAIN')
    a('s_cmp_eq_u32 s24, 1\ns_cbranch_scc1 R_AO')
    a(f's_sub_u32 s{G.G_CG}, s24, 2\ns_lshl_b32 s{G.G_CG}, s{G.G_CG}, 2\ns_lshr_b32 s25, s28, 3\ns_add_u32 s{G.G_CG}, s{G.G_CG}, s25\ns_and_b32 s{G.G_RB}, s28, 7')
    G.gemm1(a, P, cfg)
    if cfg.get('prof'): prof(a, 1)
    a(f's_cmp_lt_u32 s{G.G_CG}, 12\ns_cbranch_scc1 R_FFN')
    a(f's_sub_u32 s24, s{G.G_CG}, 12\ns_lshl_b32 s24, s24, 3\ns_add_u32 s24, s24, s{G.G_RB}')
    a(f's_and_b32 s{AO.A_CH}, s24, 1\ns_bfe_u32 s{AO.A_HG}, s24, 0x30001\ns_lshr_b32 s{AO.A_SEG}, s24, 4\ns_add_u32 s{AO.A_SEG}, s{AO.A_SEG}, {2 + cfg.get("S0", 20)}')
    a('s_barrier\ns_branch AO_ENTRY2')
    a.label('R_FFN')
    F.ffn2(a, P, cfg)
    if cfg.get('dst') == 1:
        a('s_waitcnt vmcnt(0)\ns_sub_u32 s24, 15, s16\ns_add_u32 s24, s24, s17'); dstamp(a, P, 14, vt=(4, 5), cond='s24')
    a('s_branch K_DONE')
    a.label('R_AO')
    a(f's_and_b32 s{AO.A_SEG}, s28, 1\ns_bfe_u32 s{AO.A_CH}, s28, 0x10001\ns_lshr_b32 s{AO.A_HG}, s28, 2')
    def ln_rest():
        a(f's_add_u32 s{G.G_T4}, s46, 16\ns_mov_b32 s45, 1\ns_branch LN_GO')
        a.label('LN_RET1')
        a('s_cmp_ge_u32 s46, 16\ns_cbranch_scc1 LN_RET2')
        a(f's_add_u32 s{G.G_T4}, s46, 48\ns_mov_b32 s45, 2\ns_branch LN_GO')
        a.label('LN_RET2')
    cfg['_ln_rest'] = ln_rest
    a('s_mov_b32 s46, s28')
    AO.ao(a, P, cfg)
    a('s_branch K_DONE')
    a.label('R_CHAIN')
    a(f's_mov_b32 s{C.S_H}, s28\ns_mov_b32 s52, 0')
    a.label('R_CHAIN2')
    def hook(vm):
        a('s_cmp_eq_u32 s52, 0\ns_cbranch_scc1 CH_OK')
        resolve('B', 0, 's_waitcnt vmcnt(60)')
        if cfg.get('prof'): a('s_mov_b32 s101, s26')
        a(f's_cmp_eq_u32 s26, s{C.S_H}\ns_cbranch_scc1 CH_OK')
        a('s_waitcnt vmcnt(0)\ns_barrier')
        a('s_lshl_b32 s24, s13, 6\nv_lshrrev_b32 v0, 4, v0\nv_or_b32 v0, s24, v0')
        a('s_branch ROLE')
        a.label('CH_OK')
    def flags_wait(sfx, words, vo=44):
        a(f'v_mov_b32 v{vo}, 0\nv_mov_b32 v{vo+1}, 0')
        for n_, (off, tgt) in enumerate(words):
            a(f's_mov_b32 s43, {off}\nv_writelane_b32 v{vo}, s43, {n_}\ns_mov_b32 s43, {tgt}\nv_writelane_b32 v{vo+1}, s43, {n_}')
        a(f's_cmp_lg_u32 s13, 0\ns_cbranch_scc1 FE{sfx}')
        a(f's_mov_b32 s27, 0\ns_mov_b64 exec, {(1 << len(words)) - 1}')
        a.label(f'FW{sfx}')
        a(f'global_load_dword v{vo+2}, v{vo}, {DBGP} sc1')
        a(f's_add_u32 s27, s27, 1\ns_cmp_gt_u32 s27, 0x20000\ns_cbranch_scc1 FD{sfx}')
        a('s_waitcnt vmcnt(0)')
        a(f'v_cmp_gt_u32 vcc, v{vo+1}, v{vo+2}')
        a(f's_cbranch_vccz FD{sfx}')
        a(f's_sleep {cfg.get("FWS", 6)}\ns_branch FW{sfx}')
        a.label(f'FD{sfx}')
        a('s_waitcnt vmcnt(0)\ns_mov_b64 exec, -1')
        a.label(f'FE{sfx}')
        a('s_barrier')
    C.chain_prologue(a, P, hook, None)
    C.chain_init(a, P, cfg)
    if cfg.get('dst'): dstamp(a, P, 13 if cfg.get('dst') == 1 else 12, vt=(4, 5), also=15) if cfg.get('dst') == 1 else dstamp(a, P, 15, vt=(4, 5), also=15)
    if cfg.get('prof'): prof(a, 4)
    a('s_barrier')
    G.signal(a, P, G.DBG_CHAIN, None)
    flags_wait('0', [(0, 0xffffffff), (G.DBG_AOINIT, 32), (G.DBG_KV, G.KVT_LO), (G.DBG_KV + 4, G.KVT_LO)])
    a(f'v_mov_b32 v4, {G.DBG_IMPURE}')
    a(f'global_load_dword v5, v4, {DBGP} sc1')
    a(f's_sub_u32 s35, s{C.S_KF}, {32*8192}\ns_mov_b32 m0, s{C.S_KXL}')
    for q in range(4): a(f'buffer_load_dwordx4 v{C.V_L16}, s[4:7], s35 offen offset:{q*1024} sc1 lds')
    a(f'v_lshlrev_b32 v6, 3, v{C.V_L16}\ns_mov_b32 m0, {L_QX}')
    a(f's_sub_u32 s35, s{C.S_PF}, {32*8192}\ns_mov_b64 exec, 0xffffffff')
    a('buffer_load_dword v6, s[4:7], s35 offen sc1 lds')
    a('s_mov_b64 exec, -1')
    if cfg.get('pmw', 1):
        a(f's_mul_i32 s43, s{C.S_H}, 12288\ns_and_b32 s27, s13, 1\ns_lshl_b32 s27, s27, 19\ns_add_u32 s43, s43, s27\ns_lshr_b32 s27, s13, 1\ns_lshl_b32 s27, s27, 13\ns_add_u32 s43, s43, s27\ns_add_u32 s43, s43, {WS_P}')
        a('buffer_load_dword v6, s[4:7], s43 offen sc1 lds')
        a(f's_lshl_b32 s43, s13, 13\ns_add_u32 s43, s43, {WS_M + M_STRIDE}')
        a('buffer_load_dword v6, s[4:7], s43 offen sc1 lds')
        a('s_waitcnt vmcnt(7)')
    else: a('s_waitcnt vmcnt(5)')
    a('v_readfirstlane_b32 s34, v5')
    if cfg.get('prof'): prof(a, 2)
    lg = C.Cnt(a, 'lgkmcnt', 15)
    if cfg.get('dst'): a('s_mov_b32 s35, s34'); dstamp(a, P, 8, vt=(4, 5))
    C.build_table(a)
    C.next_prep(a, lg)
    cfg['_kvwait'] = lambda a: G.wait_flag(a, P, 0, None, 24, sleep=2, cnt=C.S_CNT, multi=(G.DBG_KV + 8, 6))
    if cfg.get('forceslow'): a('s_mov_b32 s34, 1')
    a('s_cmp_lg_u32 s34, 0\ns_cbranch_scc1 STEPS')
    C.chain_loop(a, cfg, 'F', '')
    C.chain_loop(a, cfg, 'S', 'sc1')
    a.label('CHAIN_DONE')
    if cfg.get('dst') == 1: dstamp(a, P, 9, vt=(4, 5))
    a.label('K_DONE')
    a('s_waitcnt vmcnt(0) lgkmcnt(0)')
    if cfg.get('prof'): prof(a, 3)
    a.label('K_END')
    a('s_endpgm')
    body, n = a.finalize()
    head = HEADER + f'''; @launch grid=(256,1,1) block=(256,1,1) lds=163840
.amdgcn_target "amdgcn-amd-amdhsa--gfx950"
.text
.globl {KN}
.p2align 8
.type {KN},@function
{KN}:
'''
    tail = f'''.section .rodata,"a"
.p2align 6
.amdhsa_kernel {KN}
  .amdhsa_next_free_vgpr 512
  .amdhsa_next_free_sgpr 102
  .amdhsa_accum_offset 256
  .amdhsa_group_segment_fixed_size 0
  .amdhsa_kernarg_size 112
  .amdhsa_user_sgpr_count 2
  .amdhsa_user_sgpr_kernarg_segment_ptr 1
  .amdhsa_system_sgpr_workgroup_id_x 1
.end_amdhsa_kernel
'''
    return head + body + tail, n

def dstamp(a, P, word, inv=False, vt=(250, 251), cond='s12', also=None):
    l = a.newlabel('DS')
    a(f's_cmp_lg_u32 s13, 0\ns_cbranch_scc1 {l}')
    a(f's_cmp_lg_u32 {cond}, 0\ns_cbranch_scc1 {l}')
    a('s_memrealtime s[98:99]\ns_waitcnt lgkmcnt(0)')
    a('s_mov_b64 exec, 1')
    a(f'v_mov_b32 v{vt[0]}, {word*4}\nv_mov_b32 v{vt[1]}, s98')
    a(f'global_store_dword v{vt[0]}, v{vt[1]}, s[{P["dbg"]}:{P["dbg"]+1}] sc1')
    if also:
        a(f'v_mov_b32 v{vt[0]}, {also*4}\nv_mov_b32 v{vt[1]}, s96')
        a(f'global_store_dword v{vt[0]}, v{vt[1]}, s[{P["dbg"]}:{P["dbg"]+1}] sc1')
    a('s_mov_b64 exec, -1')
    a.label(l)

def amax(a, P, word, vt=(8, 9)):
    l = a.newlabel('AM')
    a(f's_cmp_lg_u32 s13, 0\ns_cbranch_scc1 {l}')
    a('s_memrealtime s[98:99]\ns_waitcnt lgkmcnt(0)\ns_mov_b64 exec, 1')
    a(f'v_mov_b32 v{vt[0]}, {word*4}\nv_mov_b32 v{vt[1]}, s98')
    a(f'global_atomic_umax v{vt[0]}, v{vt[1]}, s[{P["dbg"]}:{P["dbg"]+1}]')
    a('s_mov_b64 exec, -1')
    a.label(l)

def prof(a, k):
    l = a.newlabel('PR')
    a(f's_cmp_lg_u32 s13, 0\ns_cbranch_scc1 {l}')
    a('s_memrealtime s[98:99]\ns_waitcnt lgkmcnt(0)')
    a(f's_sub_u32 s98, s98, s100\ns_lshl_b32 s99, s2, 6\ns_add_u32 s99, s99, {WS_DBG + 0x80000 + k*8}')
    a('s_mov_b64 exec, 1')
    a('v_mov_b32 v14, s98\nv_mov_b32 v15, s101\nv_mov_b32 v13, 0')
    a('buffer_store_dwordx2 v[14:15], v13, s[4:7], s99 offen')
    a('s_mov_b64 exec, -1')
    a.label(l)

if __name__ == '__main__':
    cfg = json.loads(sys.argv[1]) if len(sys.argv) > 1 else dict(D1=110, D2=310)
    src, n = gen(cfg)
    out = sys.argv[2] if len(sys.argv) > 2 else 'all.s'
    open(out, 'w').write(src)
    print(n, 'instructions', len(src), 'bytes')
```

```python
from asmlib import *
from layout import *
import math

class Cnt:
    def __init__(self, a, name, maxv):
        self.a = a; self.name = name; self.q = []; self.maxv = maxv
    def issue(self, tag, n=1):
        for _ in range(n): self.q.append(tag)
    def wait(self, tag):
        idx = max(i for i, t in enumerate(self.q) if t == tag) if tag in self.q else None
        if idx is None: return
        n = len(self.q) - 1 - idx
        assert n <= self.maxv, (self.name, n)
        self.a(f's_waitcnt {self.name}({n})')
        self.q = self.q[idx + 1:]
    def wait_all(self):
        self.a(f's_waitcnt {self.name}(0)'); self.q = []
    def reset(self, q=()): self.q = list(q)

S_WS = 4
S_W = 8
S_H = 12; S_WV = 13; S_STEP = 14; S_ABORT = 15
S_PC = 16; S_PST = 17; S_MC = 18; S_MN = 19; S_MP = 20
S_KF = 21; S_VF = 22; S_KM = 23; S_VM = 24
S_RED = 25; S_TASK = 26; S_CNT = 27
S_MK_KEY = 28; S_MK_J8 = 30
S_SC = 32
S_T0 = 34; S_T1 = 35; S_T3 = 36; S_T4 = 37; S_T2 = 43
S_RB = 38; S_RMA = 39; S_RIS8 = 40; S_RLD = 41; S_PO = 42
S_W512 = 44; S_W4 = 45; S_W2K = 46; S_F0 = 47; S_MK_N6 = 48; S_PF = 50; S_ROT = 51; S_TAG = 54; S_TAGS = 55; S_ROTB = 3; S_DUP = 24; S_CK = 56; S_CK2 = 96; S_CK3 = 98; S_MC1 = 39; S_MC2 = 40; S_W1536 = 26; S_KXL = 58; S_ONE = 8; S_TGN = 59; S_CK4 = 10; S_W1K = 44; S_W64 = 45

V_L16 = 0; V_IDX = 1; V_WL = 2; V_X = 3
def A(i): return 4 + 4 * i
ACC = {'q0': 40, 'q1': 44, 'k0': 48, 'k1': 52, 'v0': 56, 'v1': 60}
T0 = 64; T1 = 72

QK_LDS = {0: 'q', 2: 'k', 4: 'q', 6: 'k', 8: 'q'}
WO_LDS = [(0, 1), (1, 1), (2, 1), (3, 1)]

def build_frag_map():
    slots = []
    for m in 'qkv':
        for i in range(9): slots.append((m, i))
    for p in range(4):
        for c in range(2): slots.append(('o', p, c))
    slots.append(('o8',))
    lds_slots = [(m, i) for i, m in sorted(QK_LDS.items())] + [('o', p, c) for p, c in WO_LDS]
    reg_slots = [s for s in slots if s not in lds_slots]
    assert len(reg_slots) == 27 and len(lds_slots) == 9
    loc = {}
    for n, s in enumerate(reg_slots):
        for z in range(2):
            f = 2 * n + z
            loc[(s, z)] = ('a', 8 * f) if f < 32 else ('v', 80 + 8 * (f - 32))
    for n, s in enumerate(lds_slots):
        for z in range(2): loc[(s, z)] = ('lds', n * 4096 + z * 2048)
    return reg_slots, lds_slots, loc

REG_SLOTS, LDS_SLOTS, LOC = build_frag_map()

def frag_reg(s, z):
    t, r = LOC[(s, z)]
    assert t != 'lds'
    return vr(r, 8, t)

def actual_col(pos):
    c = pos // 64; pw = (pos % 64) // 16; jp = c // 3; tg = c % 3
    return (9 * pw + 3 * (2 - jp) + tg) * 16 + pos % 16
NCOPY = 1
M_CSTR = 0x10000
def m_imm(c): return (c % 4) * 1024

def chain_prologue(a, P, hook=None, hook2=None):
    a('; ---- chain prologue: weights ----')
    a(f'v_and_b32 v4, 63, v0')
    a(f'v_lshlrev_b32 v{V_L16}, 4, v4')
    a('v_lshrrev_b32 v8, 3, v4\nv_and_b32 v9, 7, v4\nv_lshlrev_b32 v9, 4, v9\nv_lshl_add_u32 v5, v8, 13, v9')
    a('v_lshrrev_b32 v8, 5, v4\nv_lshlrev_b32 v10, 4, v8')
    a('v_bfe_u32 v8, v4, 3, 1\nv_lshl_add_u32 v10, v8, 3, v10')
    a('v_bfe_u32 v8, v4, 4, 1\nv_lshl_add_u32 v10, v8, 2, v10')
    a('v_bfe_u32 v8, v4, 2, 1\nv_add_u32 v10, v10, v8')
    a('v_and_b32 v9, 3, v4\nv_lshlrev_b32 v9, 3, v9')
    a(f's_and_b32 s{S_CNT}, s{S_WV}, 1\ns_lshl_b32 s{S_CNT}, s{S_CNT}, 6')
    a(f'v_lshl_add_u32 v11, v10, 7, v9\nv_add_u32 v11, s{S_CNT}, v11')
    a(f's_mul_i32 s{S_T0}, s{S_WV}, 36864\ns_add_u32 s{S_T0}, s{S_T0}, {L_W}')
    a(f's_lshl_b32 s{S_T1}, s{S_WV}, 12')
    a(f's_and_b32 s{S_CNT}, s{S_WV}, 2\ns_lshl_b32 s{S_T4}, s{S_CNT}, 12\nv_add_u32 v14, s{S_T4}, v11')
    a(f's_mul_i32 s{S_T4}, s{S_CNT}, 36864\ns_add_u32 s{S_T4}, s{S_T4}, {L_W}\nv_add_u32 v13, s{S_T4}, v11\nv_add_u32 v15, 36864, v13')
    a(f'v_mul_u32_u24 v12, 1152, v10\nv_add_u32 v12, v12, v9\ns_mul_i32 s{S_T4}, s{S_WV}, 288\ns_add_u32 s{S_T4}, s{S_T4}, {L_W}\nv_add_u32 v12, s{S_T4}, v12\nv_add_u32 v16, 73728, v12')
    a(f'v_add_u32 v{V_WL}, s{S_T0}, v{V_L16}\nv_add_u32 v17, s{S_T1}, v{V_L16}')
    a(f'v_bfe_u32 v8, v4, 1, 1\nv_mul_u32_u24 v8, 0xAAAA, v8\nv_add_u32 v{V_IDX}, 0x4444, v8')
    a(f's_lshl_b32 s{S_T2}, s{S_H}, 8\ns_lshl_b32 s{S_CNT}, s{S_CNT}, 6\ns_add_u32 s{S_T2}, s{S_T2}, s{S_CNT}')
    a(f's_mul_i32 s{S_T3}, s{S_H}, 147456\ns_mul_i32 s{S_T4}, s{S_WV}, 36864\ns_add_u32 s{S_T3}, s{S_T3}, s{S_T4}')
    a(f's_mov_b32 s{S_ROT}, 0\ns_and_b32 s{S_T4}, s{S_WV}, 1')
    vm = Cnt(a, 'vmcnt', 63)
    cur_mat = [None]
    def set_srd(m):
        if cur_mat[0] == m: return
        cur_mat[0] = m
        p = P[{'q': 'Wq', 'k': 'Wk', 'v': 'Wv', 'o': 'Wo'}[m]]
        a(f's_mov_b32 s{S_W}, s{p}\ns_mov_b32 s{S_W+1}, s{p+1}\ns_mov_b32 s{S_W+2}, 4718592\ns_mov_b32 s{S_W+3}, 0x20000')
    qreg = [x for x in REG_SLOTS if x[0] in 'qkv' and x[0] != 'o' and x[0] != 'o8']
    qlds = [x for x in LDS_SLOTS if x[0] != 'o']
    assert len(qreg) == 22 and len(qlds) == 5
    TMPS = qreg[-4:]
    def issue_q(sl):
        set_srd(sl[0])
        for n in range(4):
            o0 = (actual_col(sl[1]*64 + (n >> 1)*16) + 8*(n & 1)) * 8192
            o1 = (actual_col(sl[1]*64 + (2 + (n >> 1))*16) + 8*(n & 1)) * 8192
            a(f's_mov_b32 s{S_CNT}, {o0}\ns_cmp_eq_u32 s{S_T4}, 1\ns_cselect_b32 s{S_CNT}, {o1}, s{S_CNT}\ns_add_u32 s{S_CNT}, s{S_CNT}, s{S_T2}')
            if sl in qlds:
                a(f's_add_u32 m0, s{S_T0}, {LDS_SLOTS.index(sl)*4096 + n*1024}\ns_nop 0')
                a(f'buffer_load_dwordx4 v5, s[{S_W}:{S_W+3}], s{S_CNT} offen lds')
            else:
                t, r = LOC[(sl, 0)]
                a(f'buffer_load_dwordx4 {vr(r + 4*n, 4, t)}, v5, s[{S_W}:{S_W+3}], s{S_CNT} offen')
            vm.issue(sl)
    def process_q(sl):
        vm.wait(sl)
        inl = sl in qlds
        if not inl:
            t, r = LOC[(sl, 0)]
            for n in range(4): a(f'ds_write_b128 v17, {vr(r + 4*n, 4, t)} offset:{n*1024}')
            a('s_waitcnt lgkmcnt(0)')
        a('s_barrier')
        boff = LDS_SLOTS.index(sl) * 4096 if inl else 0
        for z in range(2):
            t, r = LOC[(sl, z)]
            if inl: t, r = 'v', 20 + 8 * z
            for m in range(4):
                if inl: base = 13 if m < 2 else 15; off = boff + (m & 1) * 256 + z * 32
                else: base = 14; off = (m >> 1) * 4096 + (m & 1) * 256 + z * 32
                a(f'ds_read_b64_tr_b16 {vr(r + 2*m, 2, t)}, v{base} offset:{off}')
        a('s_waitcnt lgkmcnt(0)\ns_barrier')
        if inl:
            for q in range(4): a(f'ds_write_b128 v{V_WL}, {vr(20 + 4*q, 4)} offset:{boff + q*1024}')
    set_srd('o')
    for n in range(36):
        if n % 4 == 0: a(f's_add_u32 m0, s{S_T0}, {n*1024}\ns_add_u32 s{S_CNT}, s{S_T3}, {n*1024}\ns_nop 0')
        a(f'buffer_load_dwordx4 v{V_L16}, s[{S_W}:{S_W+3}], s{S_CNT} offen offset:{(n % 4)*1024} lds'); vm.issue('wo')
    pend = list(qreg[:-4]); inflight = []
    for _ in range(6):
        sl = pend.pop(0); issue_q(sl); inflight.append(sl)
    if hook: hook(vm)
    vm.wait('wo')
    a('s_barrier')
    for _ in range(7):
        sl = pend.pop(0); issue_q(sl); inflight.append(sl)
    tmp_of = {}
    k = 0
    for t in range(9):
        for c in range(2):
            key = (('o8',), c) if t == 8 else (('o', t // 2, c), t % 2)
            ty, r = LOC[key]
            if ty == 'lds':
                tt, rr = LOC[(TMPS[k // 2], k % 2)]; tmp_of[key] = (tt, rr); ty, r = tt, rr; k += 1
            for m in range(4):
                off = ((m >> 1) * 32 + (m & 1) * 2) * 1152 + t * 32
                a(f'ds_read_b64_tr_b16 {vr(r + 2*m, 2, ty)}, v{12 if c == 0 else 16} offset:{off}')
            if (t * 2 + c) % 3 == 2: a('s_waitcnt lgkmcnt(0)')
    a('s_waitcnt lgkmcnt(0)\ns_barrier')
    for key, (tt, rr) in tmp_of.items():
        off = LOC[key][1]
        for h_ in range(2): a(f'ds_write_b128 v{V_WL}, {vr(rr + 4*h_, 4, tt)} offset:{off + h_*1024}')
    a('s_waitcnt lgkmcnt(0)')
    pend = qlds + pend + list(TMPS)
    n_done = 0
    while inflight or pend:
        while pend and len(inflight) < 14:
            sl = pend.pop(0); issue_q(sl); inflight.append(sl)
            if not pend and hook2: hook2(vm)
        process_q(inflight.pop(0))
    a('s_waitcnt lgkmcnt(0)')

def lds_frag_read(a, lg, s, z, dst, tag):
    t, off = LOC[(s, z)]
    assert t == 'lds'
    a(f'ds_read_b128 {vr(dst, 4)}, v{V_WL} offset:{off}')
    a(f'ds_read_b128 {vr(dst+4, 4)}, v{V_WL} offset:{off+1024}')
    lg.issue(tag, 2)

def lds_half_read(a, lg, s, z, dst, tag, h):
    t, off = LOC[(s, z)]
    a(f'ds_read_b128 {vr(dst+4*h, 4)}, v{V_WL} offset:{off+1024*h}')
    lg.issue(tag, 1)

def timeout(a, lbl_ok_branch=None):
    a(f's_add_u32 s{S_CNT}, s{S_CNT}, 1')
    a(f's_cmp_gt_u32 s{S_CNT}, 0x40000')
    a(f's_cselect_b32 s{S_ABORT}, 1, s{S_ABORT}')

def emit_vma(a, dst, tmp):
    a(f'v_bfe_u32 v{tmp}, v{V_L16}, 6, 2')
    a(f'v_lshlrev_b32 v{dst}, 8, v{tmp}')
    a(f'v_lshrrev_b32 v{tmp}, 8, v{V_L16}')
    a(f'v_lshl_add_u32 v{dst}, v{tmp}, 6, v{dst}')
    a(f'v_bfe_u32 v{tmp}, v{V_L16}, 4, 1')
    a(f'v_lshl_add_u32 v{dst}, v{tmp}, 5, v{dst}')
    a(f'v_bfe_u32 v{tmp}, v{V_L16}, 5, 1')
    a(f'v_lshl_add_u32 v{dst}, v{tmp}, 4, v{dst}')

def R(i): return 4 + 4 * i
SLOT = {0: 0, 1: 1, 2: 2, 3: 3, 4: 4, 5: 5, 6: 6, 7: 0, 8: 1}
def AR(c): return R(SLOT[c])

def zero(a, regs):
    regs = sorted(regs); i = 0
    while i < len(regs):
        r = regs[i]
        if r % 2 == 0 and i + 1 < len(regs) and regs[i+1] == r + 1:
            a(f'v_mov_b64 v[{r}:{r+1}], 0'); i += 2
        else:
            a(f'v_mov_b32 v{r}, 0'); i += 1

def chain_loop(a, cfg, sfx, stf):
    NFULL = 4; NP = cfg.get('NP', 3)
    assert 2 <= NP <= 6
    D1 = cfg.get('D1', 0); D2 = cfg.get('D2', 0); D2R = cfg.get('D2R', 0)
    dbg = cfg.get('dbg', False)
    SRD = f's[{S_WS}:{S_WS+3}]'
    vm = Cnt(a, 'vmcnt', 63); lg = Cnt(a, 'lgkmcnt', 15)
    smap = cfg.get('smap', {str(k): k for k in range(8)})
    def stamp(k):
        if dbg and str(k) in smap:
            q = smap[str(k)]
            a(f'{"s_memrealtime" if cfg.get("rt") else "s_memtime"} s[{60+2*q}:{61+2*q}]')
    def smf(d, aa, b): a(f'v_smfmac_f32_16x16x64_bf16 {vr(d,4)}, {vr(aa,4)}, {b}, v{V_IDX}')
    def delay(n):
        if cfg.get('SLEEP', 1):
            if int(n): a(f's_sleep {int(n)}')
            fr = int(round((n - int(n)) * 16))
            if fr: a(f's_nop {fr-1}')
            return
        while n > 0:
            k = min(n, 16); a(f's_nop {k-1}'); n -= k
    def mf(d, x, y, cinit):
        c = vr(d, 4) if not cinit else '0'
        a(f'v_mfma_f32_16x16x32_bf16 {vr(d,4)}, {vr(x,4)}, {vr(y,4)}, {c}')
    L = lambda t: [x for x in t.split('\n') if x.strip()]
    VX0 = 32; VX1 = 36

    a.label(f'STEP{sfx}')
    lg.reset(['T'] * 4)
    a(f's_add_u32 s{S_MC1}, s{S_MC}, 4096\ns_add_u32 s{S_MC2}, s{S_MC}, 8192')
    a(f's_add_u32 m0, s{S_W1536}, {L_KXX}\ns_add_u32 s{S_T0}, s{S_MC}, s{S_W1536}\ns_add_u32 s{S_T0}, s{S_T0}, 3072')
    a(f's_mov_b32 s{S_CNT}, 0')
    def aoff(i): return m_imm(i)
    def msr(i): return (S_MC, S_MC1, S_MC2)[i // 4]
    def ldA(i, reg=None):
        a(f'buffer_load_dwordx4 {vr(AR(i) if reg is None else reg,4)}, v{V_X}, {SRD}, s{msr(i)} offen offset:{aoff(i)} sc1'); vm.issue(('A', i))
    SH = cfg.get('SHARE', 1)
    L_ST = L_KXX - 0
    def st1():
        a(f'buffer_load_dwordx4 v{V_L16}, {SRD}, s{S_T0} offen sc1 lds'); vm.issue('st')
    def st2():
        a(f's_mov_b64 exec, 0xffffffff')
        a(f'buffer_load_dwordx4 v{V_L16}, {SRD}, s{S_T0} offen offset:1024 sc1 lds'); vm.issue('st')
        a('s_mov_b64 exec, -1')
    CK = VX1 + 3
    PM = cfg.get('PM', 'np3')
    SPEC = cfg.get('SPECST', 0) and SH
    tmo = f"""s_add_u32 s{S_CNT}, s{S_CNT}, 1
s_cmp_gt_u32 s{S_CNT}, 0x40000
s_cselect_b32 s{S_ABORT}, 1, s{S_ABORT}
s_cmp_lg_u32 s{S_ABORT}, 0
s_cselect_b64 s[{S_T3}:{S_T4}], 0, -1"""
    a.label(f'POLLM0{sfx}')
    if PM == 'pipe1':
        ldA(0)
        delay(cfg.get('STG', 30))
        a.label(f'POLLM{sfx}')
        ldA(0, R(1))
        a(tmo)
        a('s_waitcnt vmcnt(1)')
        a(f'v_max_u32 v{CK}, v{R(0)+1}, v{R(0)+3}')
        a(f'v_cmp_eq_u32 vcc, -1, v{CK}')
        a(f's_and_b64 vcc, vcc, s[{S_T3}:{S_T4}]')
        a(f's_cbranch_vccz GOTM{sfx}')
        ldA(0)
        a('s_waitcnt vmcnt(1)')
        a(f'v_max_u32 v{CK}, v{R(1)+1}, v{R(1)+3}')
        a(f'v_cmp_eq_u32 vcc, -1, v{CK}')
        a(f's_cbranch_vccnz POLLM{sfx}')
        a(f'v_mov_b64 {vr(R(0),2)}, {vr(R(1),2)}\nv_mov_b64 {vr(R(0)+2,2)}, {vr(R(1)+2,2)}')
        a.label(f'GOTM{sfx}')
        vm.reset()
        ldA(1); ldA(2)
        NC = 1
    else:
        vm.reset()
        for i in range(3): ldA(i)
        if SPEC: st1(); st2()
        a(tmo)
        NC = cfg.get('NC', 3)
        for i in range(NC):
            vm.wait(('A', i))
            if i == 0: a(f'v_max_u32 v{CK}, v{AR(0)+1}, v{AR(0)+3}')
            else: a(f'v_max3_u32 v{CK}, v{CK}, v{AR(i)+1}, v{AR(i)+3}')
        a(f'v_cmp_eq_u32 vcc, -1, v{CK}')
        a(f's_and_b64 vcc, vcc, s[{S_T3}:{S_T4}]')
        a(f's_cbranch_vccnz POLLM0{sfx}')
    stamp(0)
    if dbg: a(f's_mov_b32 s52, s{S_CNT}')
    XB = R(2); TK = R(2) + 1
    fl = ['TBL']
    def bop(m, i, z):
        s = (m, i)
        if LOC[(s, z)][0] == 'lds': return vr(T0 if z == 0 else T1, 8)
        return frag_reg(s, z)
    lds_chunks = sorted(QK_LDS)
    def ldvx(q):
        a(f'buffer_load_dwordx4 {vr(VX0+4*q,4)}, v{V_L16}, {SRD}, s{S_VF} offen offset:{q*1024} sc1'); vm.issue('vx')
    def bar0():
        if SH: vm.wait('st')
        stamp(16)
        a('s_barrier')
        stamp(12)
    def pf1():
        a(f'v_lshlrev_b32 v{V_X}, 3, v{V_L16}')
        a(f's_mov_b32 m0, {L_QX}')
    def pf2():
        a(f's_mov_b64 exec, 0xffffffff')
        a(f'buffer_load_dword v{V_X}, {SRD}, s{S_PF} offen sc1 lds'); vm.issue('pf')
        a('s_mov_b64 exec, -1')
    def rdA(c):
        a(f'ds_read_b128 {vr(AR(c),4)}, v{V_X} offset:{L_ST + (c-3)*1024}'); lg.issue(('A', c))
    if SH:
        if SPEC:
            memq = {0: [lambda: ldvx(0), lambda: ldvx(1)],
                    1: [lambda: None] * cfg.get('B0P', 0) + [bar0, lambda: [rdA(c) for c in (3, 4, 5, 6)], lambda: rdA(7)],
                    2: [lambda: rdA(8)] + ([] if cfg.get('nopf') else [pf1, pf2])}
        else:
            memq = {0: [st1, st2, lambda: ldvx(0), lambda: ldvx(1)],
                    2: [bar0, lambda: [rdA(3), rdA(4)], lambda: [rdA(5), rdA(6)], lambda: [rdA(7), rdA(8)], lambda: None if cfg.get('nopf') else [pf1(), pf2()]]}
    else:
        memq = {0: [lambda: ldA(3), lambda: ldA(4), lambda: ldA(5), lambda: ldA(6), lambda: ldvx(0), lambda: ldvx(1)],
                1: [lambda: ldA(7)], 2: [lambda: ldA(8), bar0] + ([] if cfg.get('nopf') else [pf1, pf2])}
    first_ck = True
    side = []; NS = cfg.get('NS', 1)
    for i in range(9):
        mem = list(memq.get(i, [])); pend = []
        if i >= NC:
            if SH and i >= 3: lg.wait(('A', i))
            else: vm.wait(('A', i))
        if NC <= i <= 2:
            pr = (S_CK4, S_CK) if i == 1 else (S_CK2, S_CK3)
            pend.append(f'v_cmp_eq_u32 s[{pr[0]}:{pr[0]+1}], -1, v{AR(i)+1}'); pend.append(f'v_cmp_eq_u32 s[{pr[1]}:{pr[1]+1}], -1, v{AR(i)+3}')
        if i >= 3:
            if first_ck: pend.append(f'v_max_u32 v{V_X}, v{AR(i)+1}, v{AR(i)+3}'); first_ck = False
            else: pend.append(f'v_max3_u32 v{V_X}, v{V_X}, v{AR(i)+1}, v{AR(i)+3}')
        mats = ['q', 'k'] + (['v'] if i < NFULL else [])
        if i in QK_LDS: mats = [m for m in mats if m != QK_LDS[i]] + [QK_LDS[i]]
        for m in mats:
            for z in range(2):
                isl = i in QK_LDS and m == QK_LDS[i]
                if isl:
                    while any(t_ == ('T', z) for t_, _ in side): side.pop(0)[1]()
                    lg.wait(('T', z) if i else 'T')
                smf(ACC[f'{m}{z}'], AR(i), bop(m, i, z))
                if isl and i != lds_chunks[-1]:
                    nx = lds_chunks[lds_chunks.index(i) + 1]
                    for h_ in range(2):
                        side.append((('T', z), lambda nx=nx, z=z, h_=h_: lds_half_read(a, lg, (QK_LDS[nx], nx), z, T0 if z == 0 else T1, ('T', z), h_)))
                if pend: a(pend.pop(0))
                if mem: mem.pop(0)()
                elif side:
                    for _ in range(NS):
                        if side: side.pop(0)[1]()
                elif fl and i >= 5:
                    fl.pop(0); a(f'ds_read_b128 {vr(R(2),4)}, v{V_L16} offset:{L_TBL}'); lg.issue('tbl')
        assert not mem and not pend
    assert not side
    assert not fl, fl
    stamp(1)
    KX = {(0, 0): 64, (1, 0): 68, (0, 1): 72, (1, 1): 76, (0, 2): R(4), (1, 2): R(5), (0, 3): R(3), (1, 3): 64}
    def ldkx(t, ks):
        a(f'ds_read_b128 {vr(KX[(t, ks)],4)}, v{V_L16} offset:{L_KX + t*4096 + ks*1024}'); lg.issue(('kx', t, ks))
    vrem = [(i, z) for i in range(NFULL, 9) for z in range(2)]
    def vsm(n):
        for _ in range(n):
            if vrem:
                i, z = vrem.pop(0); smf(ACC[f'v{z}'], AR(i), bop('v', i, z))
    a(f'v_cmp_eq_u32 vcc, -1, v{V_X}')
    lg.wait('tbl')
    vsm(1)
    a(f'v_add_u32 v{XB}, s{S_W1K}, v{XB}')
    K0 = ACC['k0']; K1 = ACC['k1']; Q0 = ACC['q0']; Q1 = ACC['q1']
    a(f'v_pk_add_f32 {vr(K0,2)}, {vr(K0,2)}, {vr(K0+2,2)}')
    a(f'v_pk_add_f32 {vr(K1,2)}, {vr(K1,2)}, {vr(K1+2,2)}')
    a(f'v_cvt_pk_bf16_f32 v{K0}, v{K0}, v{K0+1}')
    a(f'v_cvt_pk_bf16_f32 v{K0+2}, v{K1}, v{K1+1}')
    a(f'v_pk_add_f32 {vr(Q0,2)}, {vr(Q0,2)}, {vr(Q0+2,2)}')
    a(f'v_pk_add_f32 {vr(Q1,2)}, {vr(Q1,2)}, {vr(Q1+2,2)}')
    a(f'v_pk_mul_f32 {vr(Q0,2)}, {vr(Q0,2)}, s[{S_SC}:{S_SC+1}]')
    a(f'v_pk_mul_f32 {vr(Q1,2)}, {vr(Q1,2)}, s[{S_SC}:{S_SC+1}]')
    a(f'v_cvt_pk_bf16_f32 v{K0+1}, v{Q0}, v{Q0+1}')
    a(f'v_cvt_pk_bf16_f32 v{K0+3}, v{Q1}, v{Q1+1}')
    a(f'ds_write2st64_b64 v{XB}, {vr(K0,2)}, {vr(K0+2,2)} offset0:{L_KXX//512} offset1:{L_KXX//512+1}'); lg.issue('xw')
    vsm(1)
    ldkx(0, 0); ldkx(1, 0)
    if NC == 1:
        for pr in (S_CK4, S_CK, S_CK2, S_CK3): a(f's_or_b64 vcc, vcc, s[{pr}:{pr+1}]')
    a(f's_and_b64 vcc, vcc, s[{S_T3}:{S_T4}]')
    if cfg.get('forceredo'): a(f's_and_b32 s{S_T0}, s{S_STEP}, 7\ns_cmp_eq_u32 s{S_T0}, s{S_WV}\ns_cselect_b64 vcc, -1, vcc')
    a(f's_cbranch_vccnz REDO{sfx}')
    a.label(f'REDOX{sfx}')
    vsm(1)
    ldkx(0, 1); ldkx(1, 1)
    a(f'v_lshrrev_b32 v{V_X}, 1, v{V_L16}')
    a(f'v_mov_b32 v{K1}, v{K0}\nv_mov_b32 v{K1+1}, v{K0+2}')
    vsm(1)
    if not cfg.get('nopub') and not cfg.get('KPL', 1):
        a(f'buffer_store_dwordx2 {vr(K1,2)}, v{V_X}, {SRD}, s{S_KM} offen sc1'); vm.issue('pub')
    ldkx(0, 2); ldkx(1, 2); ldkx(0, 3)
    vsm(cfg.get('VB', 2))
    stamp(17)
    lg.wait('xw')
    stamp(18)
    a('s_barrier')
    stamp(2)
    F = {0: 40, 1: 44, 2: 48, 3: 52}
    def ldf(ks):
        for hh in range(2):
            a(f'ds_read_b64_tr_b16 {vr(F[ks]+2*hh,2)}, v{TK} offset:{L_KXX + ks*1024 + hh*128}'); lg.issue(('f', ks))
    for ks in range(3): ldf(ks)
    if not cfg.get('nopub') and cfg.get('KPL', 1):
        a(f'buffer_store_dwordx2 {vr(K1,2)}, v{V_X}, {SRD}, s{S_KM} offen sc1'); vm.issue('pub')
    ldf(3)
    vsm(len(vrem))
    stamp(3)
    SX0 = R(6); SX1 = R(0); SM = R(1)
    OW = 14; OW2 = 12; ORD = 15; ORD2 = 13; OT = V_X; OT2 = 62
    PX = 48; PMX = 52; PMY = 54
    f1 = L(f"""v_pk_add_f32 v[56:57], v[56:57], v[58:59]
v_pk_add_f32 v[60:61], v[60:61], v[62:63]
v_cvt_pk_bf16_f32 v56, v56, v57
v_cvt_pk_bf16_f32 v57, v60, v61""")
    f2 = L(f"""v_xor_b32 v{OW}, s{S_W64}, v{OW}
v_xor_b32 v{OW2}, 32, v{OW}
v_xor_b32 v{ORD2}, 128, v{ORD}""")
    def fill(lst, n):
        for _ in range(n):
            if lst: a(lst.pop(0))
    lg.wait(('f', 0))
    mf(SX0, KX[(0, 0)], F[0], True); mf(SX1, KX[(1, 0)], F[0], True)
    ldkx(1, 3)
    mf(SM, F[0], F[0], True)
    lg.wait(('f', 1))
    mf(SX0, KX[(0, 1)], F[1], False); mf(SX1, KX[(1, 1)], F[1], False); fill(f1, 2)
    mf(SM, F[1], F[1], False); fill(f1, 2)
    lg.wait(('f', 2))
    mf(SX0, KX[(0, 2)], F[2], False)
    if not cfg.get('nopub'):
        a(f'buffer_store_dwordx2 v[56:57], v{V_X}, {SRD}, s{S_KM} offen offset:512 sc1'); vm.issue('pub')
    mf(SX1, KX[(1, 2)], F[2], False); fill(f2, 2)
    mf(SM, F[2], F[2], False); fill(f2, 2)
    lg.wait(('f', 3))
    mf(SM, F[3], F[3], False); fill(f2, 2)
    mf(SX0, KX[(0, 3)], F[3], False); fill(f2, 2)
    lg.wait(('kx', 1, 3))
    mf(SX1, KX[(1, 3)], F[3], False)
    B0 = 48; B1 = 56; B2 = 64; B3 = 72
    stamp(4)
    MX = 58; M2 = 59; LS = 60; L2 = 61
    B4 = 40
    lds_frag_read(a, lg, ('o', 1, 1), 0, B4, ('w', 2))
    lds_frag_read(a, lg, ('o', 0, 1), 1, B3, ('w', 1))
    a(f'v_max3_f32 v{MX}, v{SM}, v{SM+1}, v{SX0}')
    a(f'v_max3_f32 v{MX}, v{MX}, v{SX0+1}, v{SX0+2}')
    a(f'v_mov_b32 v{PMX+1}, 0\nv_mov_b32 v{PMY}, 0')
    a(f'v_max3_f32 v{M2}, v{SX1}, v{SX1+1}, v{SX1+2}')
    a(f'v_max3_f32 v{MX}, v{MX}, v{SX0+3}, v{SX1+3}')
    a(f'v_max_f32 v{MX}, v{MX}, v{M2}')
    a(f'v_max_f32 v{M2}, v{MX}, v{M2}')
    a(f'v_mov_b64 {vr(R(3),2)}, s[{S_ONE}:{S_ONE+1}]\nv_mov_b64 {vr(R(3)+2,2)}, s[{S_ONE}:{S_ONE+1}]')
    a(f'v_permlane32_swap_b32 v{MX}, v{M2}')
    a(f'v_max_f32 v{MX}, v{MX}, v{M2}')
    a(f'v_max_f32 v{M2}, v{MX}, v{M2}')
    lds_frag_read(a, lg, ('o', 0, 1), 0, B2, ('w', 0))
    a(f'v_permlane16_swap_b32 v{MX}, v{M2}')
    a(f'v_max_f32 v{MX}, v{MX}, v{M2}')
    stamp(13)
    rs = (SX0, SX0+2, SX1, SX1+2)
    for r in rs + (SM,): a(f'v_pk_add_f32 {vr(r,2)}, {vr(r,2)}, {vr(MX,2)} op_sel_hi:[1,0] neg_lo:[0,1] neg_hi:[0,1]')
    for k, r in enumerate(rs):
        a(f'v_exp_f32 v{r}, v{r}\nv_exp_f32 v{r+1}, v{r+1}')
        if k: a(f'v_cvt_pk_bf16_f32 v{PX+k-1}, v{rs[k-1]}, v{rs[k-1]+1}')
    a(f'v_exp_f32 v{SM}, v{SM}')
    a(f'v_cvt_pk_bf16_f32 v{PX+3}, v{rs[3]}, v{rs[3]+1}')
    a(f'v_exp_f32 v{SM+1}, v{SM+1}')
    OX = R(4); OY = R(5); ONE = R(3); LS = 60
    vm.wait('vx')
    mf(LS, ONE, PX, True)
    a(f'v_cvt_pk_bf16_f32 v{PMX}, v{SM}, v{SM+1}\nv_cvt_pk_bf16_f32 v{PMY+1}, v{SM}, v{SM+1}')
    mf(OX, VX0, PX, True)
    a(f'v_mfma_f32_16x16x16_bf16 {vr(LS,4)}, {vr(ONE,2)}, {vr(PMX,2)}, {vr(LS,4)}')
    mf(OY, VX1, PX, True)
    a(f'v_mfma_f32_16x16x16_bf16 {vr(OX,4)}, v[56:57], {vr(PMX,2)}, {vr(OX,4)}')
    a(f'v_mfma_f32_16x16x16_bf16 {vr(OY,4)}, v[56:57], {vr(PMY,2)}, {vr(OY,4)}')
    stamp(14)
    lds_frag_read(a, lg, ('o', 1, 1), 1, B0, ('w', 3))
    fill(f2, 99)
    zero(a, range(SX0, SX0 + 4))
    a(f'v_rcp_f32 v{LS}, v{LS}')
    zero(a, range(VX0, VX0 + 8))
    for o in (OX, OY):
        a(f'v_pk_mul_f32 {vr(o,2)}, {vr(o,2)}, {vr(LS,2)} op_sel_hi:[1,0]')
        a(f'v_pk_mul_f32 {vr(o+2,2)}, {vr(o+2,2)}, {vr(LS,2)} op_sel_hi:[1,0]')
        a(f'v_cvt_pk_bf16_f32 v{o}, v{o}, v{o+1}\nv_cvt_pk_bf16_f32 v{o+1}, v{o+2}, v{o+3}')
        if o == OX:
            a(f's_mov_b64 exec, s[{S_MK_KEY}:{S_MK_KEY+1}]')
            a(f'ds_write_b64 v{OW}, {vr(OX,2)} offset:{L_OX}'); lg.issue('ow')
    a(f'ds_write_b64 v{OW2}, {vr(OY,2)} offset:{L_OX}'); lg.issue('ow')
    a('s_mov_b64 exec, -1')
    stamp(15)
    WACC = 12
    zero(a, [12, 14] + list(range(16, 28)))
    lg.wait('ow')
    a('s_barrier')
    stamp(5)
    OA0 = 4; OA1 = 8
    a(f'ds_read_b128 {vr(OA0,4)}, v{ORD} offset:{L_OX}'); lg.issue('oa0')
    a(f'ds_read_b128 {vr(OA1,4)}, v{ORD2} offset:{L_OX}'); lg.issue('oa1')
    lds_frag_read(a, lg, ('o', 3, 1), 0, B1, ('w', 6))
    zero(a, [ORD, ORD2])
    def wacc(t): return WACC + 4 * t
    def post_tile(t):
        d = wacc(t); q = wacc(t - t % 3) + t % 3
        return [f'v_pk_add_f32 {vr(d,2)}, {vr(d,2)}, {vr(d+2,2)}', f'v_cvt_pk_bf16_f32 v{q}, v{d}, v{d+1}']
    def post_group(j):
        ops = post_tile(3*j) + [f'v_mov_b32 v{wacc(3*j)+3}, s{S_TAG}'] + post_tile(3*j+1) + post_tile(3*j+2)
        return ops + [('v', f'buffer_store_dwordx4 {vr(wacc(3*j),4)}, v{V_L16}, {SRD}, s{S_PST} offen offset:{j*1024} {stf}'.rstrip())]
    def wf(t, c):
        if t == 8: return frag_reg(('o8',), c)
        return frag_reg(('o', t // 2, c), t % 2)
    lbuf = {0: B2, 1: B3, 2: B4, 3: B0, 4: B2, 5: B3, 6: B1, 7: B0}
    reload_ = {0: 4, 1: 5, 3: 7}; wside = []
    seq = [(0,0),(1,0),(2,0),(0,1),(1,1),(2,1), (3,0),(4,0),(5,0),(3,1),(4,1),(5,1), (6,0),(7,0),(8,0),(8,1),(6,1),(7,1)]
    fillers = {k: [] for k in range(40)}
    PL = cfg.get('PL', 3)
    for j_, start in ((0, cfg.get('PS', 8)), (1, cfg.get('PS', 8) + 6)):
        k = start; cnt = 0
        for op in post_group(j_):
            fillers[k].append(op); cnt += 1
            if cnt % PL == 0: k += 1
    for k_, r_ in enumerate(range(40, 48, 2)): fillers[6 + k_ // 2].append(f'v_mov_b64 v[{r_}:{r_+1}], 0')
    lg.wait('oa0')
    stamp(8)
    for n_, (t, c) in enumerate(seq):
        if n_ == 3: lg.wait('oa1')
        if c == 1 and t != 8:
            lg.wait(('w', t)); b = vr(lbuf[t], 8)
        else: b = wf(t, c)
        smf(wacc(t), OA0 if c == 0 else OA1, b)
        if c == 1 and t in reload_:
            for h_ in range(2): wside.append(lambda t=t, h_=h_: lds_half_read(a, lg, ('o', reload_[t]//2, 1), reload_[t] % 2, lbuf[t], ('w', reload_[t]), h_))
        if wside: wside.pop(0)()
        for f in fillers[n_]:
            if isinstance(f, tuple): a(f[1]); vm.issue('pst')
            else: a(f)
    stamp(9)
    for k in range(18, 40):
        for f in fillers[k]:
            if isinstance(f, tuple): a(f[1]); vm.issue('pst')
            else: a(f)
    g2 = post_tile(8) + post_tile(6) + [f'v_mov_b32 v{wacc(6)+3}, s{S_TAG}'] + post_tile(7)
    a(g2[0]); a(g2[2]); a(g2[1]); a(g2[3]); a(g2[4]); a(g2[5]); a(g2[6])
    a(post_group(2)[-1][1]); vm.issue('pst')
    stamp(6)
    if not cfg.get('static'):
        a(f's_add_u32 s{S_VF}, s{S_VF}, {32*8192}\ns_add_u32 s{S_PF}, s{S_PF}, {32*8192}')
    a(f's_add_u32 s{S_KM}, s{S_KM}, {32*4096}\ns_xor_b32 s{S_PST}, s{S_PST}, s{S_PO}')
    a(f's_add_u32 s{S_STEP}, s{S_STEP}, 1')
    a(f's_and_b32 s{S_T0}, s{S_STEP}, 3\ns_lshl_b32 s{S_TAG}, s{S_T0}, 7\ns_add_u32 s{S_TAG}, s{S_TAG}, 0x3f80\ns_lshl_b32 s{S_TGN}, s{S_T0}, 23\ns_add_u32 s{S_TGN}, s{S_TGN}, 0x43000000')
    c0 = sorted(QK_LDS)[0]
    SEL = 36; RACC = 72; RL = 76; RO = 77; RT = 78; RT2 = 79; NEG = 4
    a(f's_bitcmp0_b32 s{S_RED}, 0\ns_cbranch_scc1 NORED{sfx}')
    PP = 12288
    a(f'v_lshrrev_b32 v{RT}, 8, v{V_L16}\nv_mul_u32_u24 v{RL}, {PP}, v{RT}\nv_and_or_b32 v{RL}, v{V_L16}, s{S_F0}, v{RL}')
    a(f's_add_u32 s{S_T2}, s{S_PC}, s{S_RLD}')
    a(f's_mov_b32 s{S_CNT}, 0')
    delay(D1)
    if cfg.get('D1W1'):
        a(f's_cmp_eq_u32 s{S_WV}, 0\ns_cbranch_scc1 NOD1W{sfx}')
        delay(cfg['D1W1'])
        a.label(f'NOD1W{sfx}')
    stamp(10)
    def pl():
        for it in range(8):
            a(f'buffer_load_dwordx4 {vr(4+4*it,4)}, v{RL}, {SRD}, s{S_T2} offen sc1'); vm.issue(('r', it))
            a(f's_add_u32 s{S_T2}, s{S_T2}, {4*PP if it < 7 else -7*4*PP & 0xffffffff}')
    vm.reset(); pl()
    a(f'v_bfe_u32 v{RT2}, v{V_L16}, 4, {4 if NCOPY == 1 else 3}')
    a(f'v_and_b32 v{RO}, 1, v{RT2}\nv_lshlrev_b32 v{RO}, 4, v{RO}')
    a(f'v_mov_b32 v{RACC}, 0x3f80\nv_lshlrev_b32 v{RO}, v{RO}, v{RACC}')
    a(f'v_lshrrev_b32 v{RACC}, 1, v{RT2}')
    for r in range(4):
        a(f'v_cmp_eq_u32 vcc, {r}, v{RACC}')
        zero(a, range(40 + 4*r, 44 + 4*r))
        a(f'v_cndmask_b32 v{SEL+r}, 0, v{RO}, vcc')
    a(f'v_and_b32 v{RO}, 1, v{RT2}\nv_lshlrev_b32 v{RO}, 5, v{RO}\nv_lshl_add_u32 v{RO}, v{RACC}, 10, v{RO}')
    a(f'v_lshl_add_u32 v{RO}, v{RT}, 3, v{RO}')
    a(f'v_add_u32 v{RO}, s{S_RB}, v{RO}')
    if NCOPY > 1: a(f'v_bfe_u32 v{RACC}, v{V_L16}, 7, 1\nv_lshl_add_u32 v{RO}, v{RACC}, 16, v{RO}')
    zero(a, range(56, 64))
    emit_vma(a, V_X, RT2)
    lg.reset()
    lds_frag_read(a, lg, (QK_LDS[c0], c0), 0, T0, 'T')
    a.label(f'RWAIT{sfx}')
    for it in range(8):
        vm.wait(('r', it))
        if it == 0: stamp(11)
        mf(RACC, 4 + 4*it, SEL, it == 0)
    a(f's_add_u32 s{S_T0}, s{S_MN}, s{S_DUP}' if NCOPY == 1 else f's_sub_u32 s{S_T0}, s{S_MN}, s{S_DUP}')
    a(f'v_pk_add_f32 {vr(RT,2)}, {vr(RACC,2)}, {vr(RACC+2,2)}')
    a(f'v_cvt_pk_bf16_f32 v{RACC}, v{RACC}, v{RACC+1}\nv_cvt_pk_bf16_f32 v{RACC+1}, v{RACC+2}, v{RACC+3}')
    a(f'v_add_f32 v{RT}, v{RT}, v{RT2}')
    a(f'v_cmp_neq_f32 vcc, s{S_TAGS}, v{RT}')
    a(f's_and_b64 vcc, vcc, s[{S_MK_N6}:{S_MK_N6+1}]')
    a(f's_cselect_b64 exec, 0, s[{S_MK_J8}:{S_MK_J8+1}]')
    a(f'buffer_store_dwordx2 {vr(RACC,2)}, v{RO}, {SRD}, s{S_MN} offen {stf}'.rstrip())
    a(f's_cbranch_scc1 RCHK{sfx}')
    a(f's_branch RG2{sfx}')
    a.label(f'RGO{sfx}')
    a(f'buffer_store_dwordx2 {vr(RACC,2)}, v{RO}, {SRD}, s{S_MN} offen {stf}'.rstrip())
    a.label(f'RG2{sfx}')
    if NCOPY == 1:
        pass
    else:
        for c in range(NCOPY // 2):
            a(f'buffer_store_dwordx2 {vr(RACC,2)}, v{RO}, {SRD}, s{S_T0} offen {stf}'.rstrip())
            if c < NCOPY // 2 - 1: a(f's_add_u32 s{S_T0}, s{S_T0}, {2*M_CSTR}')
    stamp(7)
    if dbg: a(f's_mov_b32 s53, s{S_CNT}')
    a(f'v_mov_b64 v[{NEG}:{NEG+1}], -1')
    if NCOPY == 1:
        a(f'buffer_store_dwordx2 {vr(NEG,2)}, v{RO}, {SRD}, s{S_MC} offen {stf}'.rstrip())
    else:
        a(f's_sub_u32 s{S_T0}, s{S_MC}, s{S_DUP}')
        for c in range(NCOPY // 2):
            a(f'buffer_store_dwordx2 {vr(NEG,2)}, v{RO}, {SRD}, s{S_T0} offen {stf}'.rstrip())
            if c < NCOPY // 2 - 1: a(f's_add_u32 s{S_T0}, s{S_T0}, {2*M_CSTR}')
    a('s_mov_b64 exec, -1')
    lds_frag_read(a, lg, (QK_LDS[c0], c0), 1, T1, 'T')
    delay(D2R)
    a(f's_branch NEXT{sfx}')
    a.label(f'NORED{sfx}')
    a(f's_cmp_lt_u32 s{S_WV}, 2\ns_cbranch_scc1 NODMA{sfx}')
    a(f's_mov_b32 m0, s{S_KXL}')
    for q in range(4): a(f'buffer_load_dwordx4 v{V_L16}, {SRD}, s{S_KF} offen offset:{q*1024} sc1 lds')
    a.label(f'NODMA{sfx}')
    zero(a, range(40, 64))
    lds_frag_read(a, lg, (QK_LDS[c0], c0), 0, T0, 'T'); lds_frag_read(a, lg, (QK_LDS[c0], c0), 1, T1, 'T')
    emit_vma(a, V_X, 4)
    delay(D2)
    a.label(f'NEXT{sfx}')
    if cfg.get('cprof'):
        a(f's_cmp_lg_u32 s{S_WV}, 3\ns_cbranch_scc1 NCP{sfx}')
        a('s_memrealtime s[60:61]\ns_memtime s[62:63]\ns_waitcnt lgkmcnt(0)')
        a(f's_lshl_b32 s{S_T0}, s{S_H}, 9\ns_lshl_b32 s{S_T1}, s{S_STEP}, 3\ns_add_u32 s{S_T0}, s{S_T0}, s{S_T1}\ns_add_u32 s{S_T0}, s{S_T0}, {WS_DBG + 0xA0000}')
        a('v_mov_b32 v4, s60\nv_mov_b32 v5, s62\nv_mov_b32 v6, 0\ns_mov_b64 exec, 1')
        a(f'buffer_store_dwordx2 v[4:5], v6, {SRD}, s{S_T0} offen\ns_mov_b64 exec, -1')
        a.label(f'NCP{sfx}')
    if dbg:
        a('s_waitcnt lgkmcnt(0)')
        a(f's_sub_u32 s{S_T0}, s{S_STEP}, 1\ns_lshl_b32 s{S_T0}, s{S_T0}, 7\ns_lshl_b32 s{S_T1}, s{S_H}, 2\ns_add_u32 s{S_T0}, s{S_T0}, s{S_T1}\ns_add_u32 s{S_T0}, s{S_T0}, s{S_WV}\ns_lshl_b32 s{S_T0}, s{S_T0}, 6\ns_add_u32 s{S_T0}, s{S_T0}, {WS_DBG}')
        for k in range(8): a(f'v_writelane_b32 v4, s{60+2*k}, {k}')
        a('v_writelane_b32 v4, s52, 8\nv_writelane_b32 v4, s53, 9\nv_writelane_b32 v4, s25, 10')
        a(f'v_lshrrev_b32 v5, 2, v{V_L16}')
        a('s_mov_b64 exec, 0x7ff')
        a(f'buffer_store_dword v4, v5, {SRD}, s{S_T0} offen')
        a('s_mov_b64 exec, -1')
    a(f's_xor_b32 s{S_PC}, s{S_PC}, s{S_PO}\ns_mov_b32 s{S_TAGS}, s{S_TGN}')
    if not cfg.get('static'): a(f's_add_u32 s{S_KF}, s{S_KF}, {32*8192}')
    a(f's_mov_b32 s{S_T0}, s{S_MC}\ns_mov_b32 s{S_MC}, s{S_MN}\ns_mov_b32 s{S_MN}, s{S_MP}\ns_mov_b32 s{S_MP}, s{S_T0}')
    if cfg.get('_kvwait'):
        a(f's_cmp_lg_u32 s{S_STEP}, 12\ns_cbranch_scc1 NKW{sfx}')
        cfg['_kvwait'](a)
        a.label(f'NKW{sfx}')
    a(f's_cmp_lt_u32 s{S_STEP}, 63\ns_cbranch_scc1 STEP{sfx}')
    FA = lambda i: 4 + 4 * i
    a(f's_add_u32 s{S_MC1}, s{S_MC}, 4096\ns_add_u32 s{S_MC2}, s{S_MC}, 8192')
    a(f's_mov_b32 s{S_CNT}, 0')
    a.label(f'FPOLL{sfx}')
    a(f'v_subrev_u32 v41, s{S_ROTB}, v{V_X}')
    for i in range(9): a(f'buffer_load_dwordx4 {vr(FA(i),4)}, v{V_X if i < 3 else 41}, {SRD}, s{msr(i)} offen offset:{aoff(i)} sc1')
    timeout(a)
    a('s_waitcnt vmcnt(0)')
    a(f'v_max_u32 v40, v{FA(0)+1}, v{FA(0)+3}')
    for i in range(1, 9): a(f'v_max3_u32 v40, v40, v{FA(i)+1}, v{FA(i)+3}')
    a('v_cmp_eq_u32 vcc, -1, v40')
    a(f's_cmp_lg_u32 s{S_ABORT}, 0\ns_cbranch_scc1 FGO{sfx}')
    a(f's_cbranch_vccnz FPOLL{sfx}')
    a.label(f'FGO{sfx}')
    klds = [i for i in lds_chunks if QK_LDS[i] == 'k']
    assert len(klds) == 2
    lds_frag_read(a, lg, ('k', klds[0]), 0, T0, 'T'); lds_frag_read(a, lg, ('k', klds[0]), 1, T1, 'T')
    lds_frag_read(a, lg, ('k', klds[1]), 0, 40, 'T')
    for i in range(9):
        if i in klds: continue
        for z in range(2): smf(ACC[f'k{z}'], FA(i), frag_reg(('k', i), z))
    a('s_waitcnt lgkmcnt(0)')
    smf(ACC['k0'], FA(klds[0]), vr(T0, 8)); smf(ACC['k1'], FA(klds[0]), vr(T1, 8)); smf(ACC['k0'], FA(klds[1]), vr(40, 8))
    lds_frag_read(a, lg, ('k', klds[1]), 1, T0, 'T')
    for i in range(9):
        for z in range(2): smf(ACC[f'v{z}'], FA(i), frag_reg(('v', i), z))
    a('s_waitcnt lgkmcnt(0)')
    smf(ACC['k1'], FA(klds[1]), vr(T0, 8))
    a(f'v_lshrrev_b32 v{V_X}, 1, v{V_L16}')
    for nm, d in (('v0', 42), ('v1', 43), ('k0', 40), ('k1', 41)):
        r = ACC[nm]
        a(f'v_pk_add_f32 {vr(r,2)}, {vr(r,2)}, {vr(r+2,2)}')
        a(f'v_cvt_pk_bf16_f32 v{d}, v{r}, v{r+1}')
        if nm == 'v1': a(f'buffer_store_dwordx2 v[42:43], v{V_X}, {SRD}, s{S_KM} offen offset:512 sc1')
    a(f'buffer_store_dwordx2 v[40:41], v{V_X}, {SRD}, s{S_KM} offen sc1')
    a('s_branch CHAIN_DONE')
    a.label(f'REDO{sfx}')
    if dbg: a('s_add_u32 s25, s25, 0x10000')
    a('s_waitcnt vmcnt(0) lgkmcnt(0)')
    a('s_nop 15')
    zero(a, range(40, 64))
    emit_vma(a, V_X, T0)
    a(f'v_subrev_u32 v{T0+1}, s{S_ROTB}, v{V_X}')
    done_v = [(i, z) for i in range(NFULL) for z in range(2)] + [(4, 0), (4, 1)]
    for c in range(9):
        l = f'RD{c}{sfx}'
        dst = AR(c) if c >= 5 else R(3)
        a.label(l)
        a(f'buffer_load_dwordx4 {vr(dst,4)}, v{V_X if c < 3 else T0+1}, {SRD}, s{msr(c)} offen offset:{aoff(c)} sc1')
        timeout(a)
        a(f's_cmp_lg_u32 s{S_ABORT}, 0\ns_cselect_b64 s[{S_T3}:{S_T4}], 0, -1')
        a('s_waitcnt vmcnt(0)')
        a(f'v_max_u32 v{T0+2}, v{dst+1}, v{dst+3}\nv_cmp_eq_u32 vcc, -1, v{T0+2}\ns_and_b64 vcc, vcc, s[{S_T3}:{S_T4}]')
        a(f's_cbranch_vccnz {l}')
        for m in 'qkv':
            for z in range(2):
                if m == 'v' and (c, z) not in done_v: continue
                if LOC[((m, c), z)][0] == 'lds':
                    lds_frag_read(a, lg, (m, c), z, T1, 'T'); a('s_waitcnt lgkmcnt(0)')
                    smf(ACC[f'{m}{z}'], dst, vr(T1, 8))
                else: smf(ACC[f'{m}{z}'], dst, frag_reg((m, c), z))
    a('s_nop 15')
    for ks in range(2):
        for t in range(2): a(f'ds_read_b128 {vr(KX[(t, ks)],4)}, v{V_L16} offset:{L_KX + t*4096 + ks*1024}')
    a(f'v_pk_add_f32 {vr(K0,2)}, {vr(K0,2)}, {vr(K0+2,2)}')
    a(f'v_pk_add_f32 {vr(K1,2)}, {vr(K1,2)}, {vr(K1+2,2)}')
    a(f'v_cvt_pk_bf16_f32 v{K0}, v{K0}, v{K0+1}')
    a(f'v_cvt_pk_bf16_f32 v{K0+2}, v{K1}, v{K1+1}')
    a(f'v_pk_add_f32 {vr(Q0,2)}, {vr(Q0,2)}, {vr(Q0+2,2)}')
    a(f'v_pk_add_f32 {vr(Q1,2)}, {vr(Q1,2)}, {vr(Q1+2,2)}')
    a(f'v_pk_mul_f32 {vr(Q0,2)}, {vr(Q0,2)}, s[{S_SC}:{S_SC+1}]')
    a(f'v_pk_mul_f32 {vr(Q1,2)}, {vr(Q1,2)}, s[{S_SC}:{S_SC+1}]')
    a(f'v_cvt_pk_bf16_f32 v{K0+1}, v{Q0}, v{Q0+1}')
    a(f'v_cvt_pk_bf16_f32 v{K0+3}, v{Q1}, v{Q1+1}')
    a(f'ds_write2st64_b64 v{XB}, {vr(K0,2)}, {vr(K0+2,2)} offset0:{L_KXX//512} offset1:{L_KXX//512+1}')
    a('s_waitcnt lgkmcnt(0)')
    a(f's_branch REDOX{sfx}')
    a.label(f'RCHK{sfx}')
    a('s_mov_b64 exec, -1')
    a(f's_cmp_lt_u32 s{S_CNT}, 8\ns_cbranch_scc1 RCH2{sfx}')
    a(f's_sub_u32 s{S_T1}, s{S_TAGS}, 0x43000000\ns_lshr_b32 s{S_T1}, s{S_T1}, 16\ns_add_u32 s{S_T1}, s{S_T1}, 0x3f80')
    a(f'v_xor_b32 v{RT}, s{S_T1}, v7')
    for it in range(1, 8): a(f'v_xor_b32 v{RT2}, s{S_T1}, v{7+4*it}\nv_or_b32 v{RT}, v{RT}, v{RT2}')
    a(f'v_cmp_ne_u32 vcc, 0, v{RT}')
    a(f's_cbranch_vccnz RCH2{sfx}')
    a(f's_mov_b64 exec, s[{S_MK_J8}:{S_MK_J8+1}]')
    a(f's_branch RGO{sfx}')
    a.label(f'RCH2{sfx}')
    pl()
    timeout(a)
    a(f's_cmp_eq_u32 s{S_ABORT}, 0\ns_cbranch_scc1 RWAIT{sfx}')
    a('s_waitcnt vmcnt(0)')
    a(f's_mov_b64 exec, s[{S_MK_J8}:{S_MK_J8+1}]')
    a(f's_branch RGO{sfx}')

def next_prep(a, lg):
    for r in range(40, 64): a(f'v_mov_b32 v{r}, 0')
    c0 = sorted(QK_LDS)[0]
    lds_frag_read(a, lg, (QK_LDS[c0], c0), 0, T0, 'T'); lds_frag_read(a, lg, (QK_LDS[c0], c0), 1, T1, 'T')
    emit_vma(a, V_X, 4)

def chain_init(a, P, cfg):
    SRD = f's[{S_WS}:{S_WS+3}]'
    a(f's_mov_b32 s{S_STEP}, 0\ns_mov_b32 s{S_ABORT}, {1 if cfg.get("free") else 0}')
    a(f's_mov_b32 s{S_PC}, {WS_P}\ns_mov_b32 s{S_PO}, {WS_P ^ (WS_P + 0x80000)}')
    a(f's_mul_i32 s{S_T0}, s{S_H}, 12288\ns_add_u32 s{S_PST}, s{S_PC}, s{S_T0}\ns_mul_i32 s{S_T0}, s{S_WV}, 3072\ns_add_u32 s{S_PST}, s{S_PST}, s{S_T0}')
    a(f's_mov_b32 s{S_TAG}, 0x3f80\ns_mov_b32 s{S_TAGS}, 0x43000000\ns_lshl_b32 s{S_ROTB}, s{S_ROT}, 7')
    a(f's_mov_b32 s{S_MK_N6}, 0x00400040\ns_mov_b32 s{S_MK_N6+1}, 0x00400040')
    if cfg.get('free'): a(f's_mov_b64 s[{S_MK_N6}:{S_MK_N6+1}], 0')
    a(f's_mov_b32 s{S_MC}, {WS_M}\ns_mov_b32 s{S_MN}, {WS_M + M_STRIDE}\ns_mov_b32 s{S_MP}, {WS_M + 2*M_STRIDE}')
    a(f's_lshl_b32 s{S_T0}, s{S_H}, 13\ns_lshl_b32 s{S_T1}, s{S_WV}, 11\ns_add_u32 s{S_T1}, s{S_T0}, s{S_T1}')
    a(f's_add_u32 s{S_VF}, s{S_T1}, {WS_VF}')
    a(f's_and_b32 s{S_W2K}, s{S_WV}, 1\ns_lshl_b32 s{S_W2K}, s{S_W2K}, 12\ns_mov_b32 s{S_KXL}, s{S_W2K}')
    a(f's_add_u32 s{S_KF}, s{S_T0}, s{S_W2K}\ns_add_u32 s{S_KF}, s{S_KF}, {WS_KF + 32*8192}')
    a(f's_add_u32 s{S_PF}, s{S_T0}, {WS_VF + 32*8192}\ns_add_u32 s{S_T1}, s{S_T0}, {WS_KF + 2*32*8192}')
    a(f's_cmp_ge_u32 s{S_WV}, 2\ns_cselect_b32 s{S_PF}, s{S_T1}, s{S_PF}\ns_add_u32 s{S_PF}, s{S_PF}, s{S_W2K}\ns_lshl_b32 s{S_W2K}, s{S_WV}, 11')
    a(f's_mul_i32 s{S_W1536}, s{S_WV}, 1536\ns_mov_b32 s{S_ONE}, 0x3f803f80\ns_mov_b32 s{S_ONE+1}, 0x3f803f80')
    a(f's_lshl_b32 s{S_W1K}, s{S_WV}, 10\ns_lshl_b32 s{S_W64}, s{S_WV}, 6\ns_mov_b32 s{S_F0}, 0xf0')
    a(f's_lshl_b32 s{S_T0}, s{S_H}, 12\ns_lshl_b32 s{S_T1}, s{S_WV}, 10\ns_add_u32 s{S_T0}, s{S_T0}, s{S_T1}')
    a(f's_add_u32 s{S_KM}, s{S_T0}, {WS_KM}')
    a(f's_mov_b32 s{S_MK_KEY}, 0xcccccccc\ns_mov_b32 s{S_MK_KEY+1}, 0xcccccccc')
    a(f's_mov_b32 s{S_MK_J8}, 0x003f003f\ns_mov_b32 s{S_MK_J8+1}, 0x003f003f')
    import struct
    c = math.log2(math.e) / math.sqrt(128.0)
    a(f's_mov_b32 s{S_SC}, 0x{struct.unpack("<I", struct.pack("<f", c))[0]:08x}\ns_mov_b32 s{S_SC+1}, s{S_SC}')
    a(f's_mov_b32 s{S_RED}, 0')
    a(f's_lshr_b32 s{S_T0}, s{S_H}, 4\ns_and_b32 s{S_T1}, s{S_H}, 15')
    a(f's_cmp_eq_u32 s{S_WV}, 0\ns_cselect_b32 s{S_RED}, 1, 0')
    l = a.newlabel('RT')
    a(f's_cmp_lg_u32 s{S_WV}, 1\ns_cbranch_scc1 {l}\ns_cmp_ge_u32 s{S_H}, 16\ns_cbranch_scc1 {l}')
    a(f's_mov_b32 s{S_RED}, 1\ns_mov_b32 s{S_T0}, 2')
    a.label(l)
    a(f's_lshr_b32 s{S_T3}, s{S_T1}, 2\ns_and_b32 s{S_T4}, s{S_T1}, 3')
    a(f's_mul_i32 s{S_RLD}, s{S_T3}, 3072\ns_lshl_b32 s{S_T2}, s{S_T0}, 10\ns_add_u32 s{S_RLD}, s{S_RLD}, s{S_T2}\ns_lshl_b32 s{S_T2}, s{S_T4}, 8\ns_add_u32 s{S_RLD}, s{S_RLD}, s{S_T2}')
    a(f's_sub_u32 s{S_T0}, 2, s{S_T0}\ns_mul_i32 s{S_RB}, s{S_T0}, 3072\ns_lshl_b32 s{S_T2}, s{S_T4}, 8\ns_add_u32 s{S_RB}, s{S_RB}, s{S_T2}\ns_lshl_b32 s{S_T2}, s{S_T3}, 6\ns_add_u32 s{S_RB}, s{S_RB}, s{S_T2}\ns_mov_b32 s{S_DUP}, 0')
    if NCOPY > 1:
        a(f's_and_b32 s{S_DUP}, s{S_H}, {NCOPY-1}\ns_lshl_b32 s{S_DUP}, s{S_DUP}, 16')
        for r in (S_MC, S_MN, S_MP): a(f's_add_u32 s{r}, s{r}, s{S_DUP}')
        a(f's_mov_b32 s{S_MK_J8}, 0x3f3f3f3f\ns_mov_b32 s{S_MK_J8+1}, 0x3f3f3f3f')

def mem0_copy(a, P, copy=None):
    a(f's_mov_b32 s8, s{P["mem0"]}\ns_mov_b32 s9, s{P["mem0"]+1}\ns_mov_b32 s10, 9216\ns_mov_b32 s11, 0x20000')
    a(f's_lshl_b32 s34, s{S_H}, 16\ns_add_u32 s34, s34, {WS_M}' if copy is None else f's_mov_b32 s34, {WS_M}')
    for k in range(3):
        a(f'v_add_u32 v12, {k*256}, v0')
        a('v_mul_u32_u24 v13, 911, v12\nv_lshrrev_b32 v13, 16, v13')
        a('v_mul_u32_u24 v14, 72, v13\nv_sub_u32 v14, v12, v14')
        a('v_lshrrev_b32 v15, 1, v14')
        a('v_mul_u32_u24 v16, 57, v15\nv_lshrrev_b32 v16, 9, v16')
        a('v_mul_u32_u24 v17, 9, v16\nv_sub_u32 v17, v15, v17')
        a('v_mul_u32_u24 v18, 43, v17\nv_lshrrev_b32 v18, 7, v18')
        a('v_mul_u32_u24 v19, 3, v18\nv_sub_u32 v19, v17, v19')
        a('v_sub_u32 v18, 2, v18')
        a('v_lshrrev_b32 v20, 1, v13\nv_lshlrev_b32 v20, 8, v20\nv_lshl_add_u32 v20, v16, 6, v20')
        a('v_mul_u32_u24 v21, 3072, v18\nv_add_u32 v20, v20, v21\nv_lshl_add_u32 v20, v19, 10, v20')
        a('v_and_b32 v21, 1, v13\nv_lshl_add_u32 v20, v21, 5, v20\nv_and_b32 v21, 1, v14\nv_lshl_add_u32 v20, v21, 4, v20')
        a('v_lshlrev_b32 v21, 4, v12')
        a('v_cmp_gt_u32 vcc, 576, v12\ns_and_saveexec_b64 s[36:37], vcc')
        a('buffer_load_dwordx4 v[8:11], v21, s[8:11], 0 offen\ns_waitcnt vmcnt(0)')
        a('buffer_store_dwordx4 v[8:11], v20, s[4:7], s34 offen sc1')
        a('s_mov_b64 exec, s[36:37]')

L_TBL = L_QX + 1024
def build_table(a):
    L16 = V_L16
    a(f"""v_and_b32 v8, 0xf0, v{L16}
v_bfe_u32 v4, v{L16}, 8, 2
v_lshl_add_u32 v4, v4, 2, v8
v_lshlrev_b32 v4, 1, v4
v_lshrrev_b32 v8, 8, v{L16}
v_bfe_u32 v9, v{L16}, 6, 2
v_lshl_add_u32 v8, v8, 3, v9
v_bfe_u32 v5, v{L16}, 4, 2
v_lshlrev_b32 v5, 3, v5
v_lshl_add_u32 v5, v8, 5, v5
v_bfe_u32 v8, v{L16}, 6, 2
v_bfe_u32 v7, v{L16}, 4, 1
v_lshl_add_u32 v7, v8, 1, v7
v_lshlrev_b32 v9, 1, v7
v_lshrrev_b32 v8, 9, v{L16}
v_xor_b32 v6, v8, v9
v_lshlrev_b32 v6, 4, v6
v_lshl_add_u32 v6, v7, 8, v6
v_bfe_u32 v8, v{L16}, 8, 1
v_lshl_add_u32 v6, v8, 3, v6
v_lshrrev_b32 v8, 8, v{L16}
v_bfe_u32 v10, v{L16}, 5, 1
v_lshl_add_u32 v8, v8, 1, v10
v_xor_b32 v8, v8, v9
v_lshlrev_b32 v8, 4, v8
v_lshl_add_u32 v7, v7, 8, v8
ds_write_b128 v{L16}, v[4:7] offset:{L_TBL}
s_waitcnt lgkmcnt(0)""")
```

```python
import sys, json
from asmlib import *
from layout import *
import chain as C, gemm1 as G, ffn2 as F, ao as AO

KN = 'parallel_sum__memory_aug_recurrent_mem_tr__geglu_ffn__prompt_kernel'
HEADER = open('parallel_sum__memory_aug_recurrent_mem_tr__geglu_ffn__prompt.s.ref').read().split('; Override launch')[0]

def gen(cfg):
    cfg = dict(cfg); cfg['_prof'] = prof; cfg['_amax'] = amax
    a = Asm()
    P = {}
    names = [('x',0),('mem0',8),('Wq',16),('Wk',24),('Wv',32),('Wo',40),('wg',64),('wu',72),('wd',80),('out',88),('dbg',96),('ws',104)]
    a('s_cmp_ge_u32 s2, 256\ns_cbranch_scc1 K_END')
    if cfg.get('rot'): a('s_lshl_b32 s3, s2, 3\ns_lshr_b32 s2, s2, 5\ns_or_b32 s2, s2, s3\ns_and_b32 s2, s2, 255')
    if cfg.get('perm'): a(f's_mul_i32 s2, s2, {cfg["perm"]}\ns_and_b32 s2, s2, 255')
    for i, (n, off) in enumerate(names):
        P[n] = 72 + 2*i
        a(f's_load_dwordx2 s[{P[n]}:{P[n]+1}], s[0:1], {off}')
    a('s_getreg_b32 s3, hwreg(HW_REG_XCC_ID)')
    a('v_lshrrev_b32 v4, 6, v0')
    a('v_readfirstlane_b32 s13, v4')
    a('s_waitcnt lgkmcnt(0)')
    a(f's_mov_b32 s4, s{P["ws"]}\ns_mov_b32 s5, s{P["ws"]+1}\ns_mov_b32 s6, {WS_SIZE}\ns_mov_b32 s7, 0x20000')
    if cfg.get('prof'): a('s_memrealtime s[100:101]')
    if cfg.get('fakexcc'): a('s_cmp_lt_u32 s2, 128\ns_cselect_b32 s24, 1, 0\ns_cmp_eq_u32 s3, 0\ns_cselect_b32 s3, s24, s3')
    if cfg.get('cpf', 0):
        a('s_cmp_lg_u32 s13, 3\ns_cbranch_scc1 CPF_X')
        a('s_getpc_b64 s[24:25]')
        a('s_and_b32 s24, s24, 0xffffff00')
        a('s_lshr_b32 s26, s2, 3\ns_and_b32 s26, s26, 31\ns_mul_i32 s26, s26, 2560')
        a('v_and_b32 v240, 63, v0\nv_lshlrev_b32 v240, 7, v240\nv_add_u32 v240, s26, v240')
        a(f's_mov_b32 s26, K_END-{KN}')
        a('v_cmp_gt_u32 vcc, s26, v240\ns_and_b64 vcc, vcc, 0xfffff\ns_and_saveexec_b64 s[28:29], vcc\ns_cbranch_execz CPF_E')
        a('global_load_dword v242, v240, s[24:25]')
        a.label('CPF_E')
        a('s_mov_b64 exec, s[28:29]')
        a.label('CPF_X')
    if cfg.get('dst'): a('s_memrealtime s[96:97]')
    a('s_cmp_lt_u32 s3, 8\ns_cselect_b32 s54, s3, 7')
    a('s_lshr_b32 s55, s2, 3\ns_and_b32 s55, s55, 31')
    DBGP = f's[{P["dbg"]}:{P["dbg"]+1}]'
    a('s_cmp_lg_u32 s13, 0\ns_cbranch_scc1 CL_ISSUED')
    a('s_mov_b64 exec, 1')
    a('s_lshl_b32 s27, 1, s55\ns_lshl_b32 s29, s54, 2')
    a('v_mov_b32 v4, s29\nv_mov_b32 v5, s27')
    a(f'global_atomic_or v250, v4, v5, {DBGP} sc0')
    a('s_mov_b64 exec, -1')
    a.label('CL_ISSUED')
    def warm():
        l = a.newlabel('WARM')
        a(f's_cmp_eq_u32 s54, 0\ns_cbranch_scc1 {l}')
        a('s_lshr_b32 s25, s2, 3\ns_mul_i32 s25, s25, 7\ns_and_b32 s27, s2, 7\ns_add_u32 s25, s25, s27\ns_sub_u32 s25, s25, 1\ns_min_u32 s25, s25, 223')
        a('s_mul_i32 s27, s25, 1171\ns_lshr_b32 s27, s27, 16\ns_mul_i32 s29, s27, 56\ns_sub_u32 s25, s25, s29')
        a(f's_cmp_eq_u32 s27, 1\ns_cselect_b64 s[16:17], s[{P["Wk"]}:{P["Wk"]+1}], s[{P["Wq"]}:{P["Wq"]+1}]')
        a(f's_cmp_eq_u32 s27, 2\ns_cselect_b64 s[16:17], s[{P["Wv"]}:{P["Wv"]+1}], s[16:17]')
        a(f's_cmp_eq_u32 s27, 3\ns_cselect_b64 s[16:17], s[{P["Wo"]}:{P["Wo"]+1}], s[16:17]')
        a('s_mov_b32 s18, 4718592\ns_mov_b32 s19, 0x20000')
        a('s_lshl_b32 s25, s25, 15\nv_lshlrev_b32 v199, 7, v0')
        for k in range(3):
            a(f'buffer_load_dword v{200+k}, v199, s[16:19], s25 offen')
            a(f's_add_u32 s25, s25, {56*32768}')
        a.label(l)
    a('s_and_b32 s24, s2, 7\ns_cmp_lg_u32 s24, 1\ns_cbranch_scc1 NO_LN')
    a(f's_lshr_b32 s{G.G_T4}, s2, 3\ns_cmp_ge_u32 s{G.G_T4}, 16\ns_cbranch_scc1 NO_LN')
    a('s_mov_b32 s45, 0')
    G.LN_HOOK[0] = (lambda a: (a('s_cmp_lg_u32 s45, 0\ns_cbranch_scc1 NLH'), amax(a, P, 13, vt=(6, 7)), a.label('NLH'))) if cfg.get('dst') == 2 else None
    a.label('LN_GO')
    G.layernorm(a, P)
    a('s_cmp_eq_u32 s45, 1\ns_cbranch_scc1 LN_RET1\ns_cmp_eq_u32 s45, 2\ns_cbranch_scc1 LN_RET2')
    a.label('NO_LN')
    if cfg.get('warm', 0): warm()
    def resolve(sfx, ldsaddr, firstwait):
        a(f's_cmp_lg_u32 s13, 0\ns_cbranch_scc1 CL_WAIT{sfx}')
        a('s_mov_b32 s25, s55\ns_mov_b32 s26, s54\ns_mov_b32 s28, 0\ns_lshl_b32 s27, 1, s25')
        a('s_lshr_b32 s53, s2, 2')
        a('s_mov_b64 exec, 1')
        a(firstwait)
        a(f's_branch CL_CHK{sfx}')
        a.label(f'CL_TRY{sfx}')
        a('s_lshl_b32 s27, 1, s25\ns_lshl_b32 s29, s26, 2')
        a('v_mov_b32 v248, s29\nv_mov_b32 v249, s27')
        a(f'global_atomic_or v250, v248, v249, {DBGP} sc0')
        a('s_waitcnt vmcnt(0)')
        a.label(f'CL_CHK{sfx}')
        a('v_readfirstlane_b32 s30, v250')
        a(f's_and_b32 s31, s30, s27\ns_cbranch_scc0 CL_GOT{sfx}')
        a(f's_not_b32 s31, s30\ns_cbranch_scc0 CL_FULL{sfx}')
        a('s_mul_i32 s53, s53, 13\ns_add_u32 s53, s53, s2\ns_add_u32 s53, s53, 7\ns_and_b32 s29, s53, 31')
        a('s_mov_b32 s30, s31\ns_lshr_b64 s[30:31], s[30:31], s29\ns_ff1_i32_b32 s25, s30\ns_add_u32 s25, s25, s29\ns_and_b32 s25, s25, 31')
        a(f's_branch CL_TRY{sfx}')
        a.label(f'CL_FULL{sfx}')
        a(f's_add_u32 s28, s28, 1\ns_sub_u32 s26, 8, s28\ns_cmp_gt_u32 s28, 8\ns_cbranch_scc1 CL_NONE{sfx}')
        a('s_mov_b32 s25, 0')
        a(f's_cmp_lg_u32 s26, 0\ns_cbranch_scc1 CL_TRY{sfx}')
        a(f'v_mov_b32 v248, {G.DBG_IMPURE}\nv_mov_b32 v249, 1')
        a(f'global_atomic_or v250, v248, v249, {DBGP} sc0\ns_waitcnt vmcnt(0)')
        a(f's_branch CL_TRY{sfx}')
        a.label(f'CL_NONE{sfx}')
        a('s_mov_b32 s26, 8\ns_mov_b32 s25, 0')
        a.label(f'CL_GOT{sfx}')
        a('s_lshl_b32 s26, s26, 5\ns_add_u32 s26, s26, s25')
        a(f'v_mov_b32 v248, {ldsaddr}\nv_mov_b32 v249, s26\nds_write_b32 v248, v249\ns_waitcnt lgkmcnt(0)')
        a('s_mov_b64 exec, -1')
        a.label(f'CL_WAIT{sfx}')
        a('s_barrier')
        a(f'v_mov_b32 v248, {ldsaddr}\nds_read_b32 v249, v248\ns_waitcnt lgkmcnt(0)')
        a('v_readfirstlane_b32 s26, v249')
        a('s_barrier')
    if cfg.get('spec', 1):
        a(f's_mov_b32 s52, 1\ns_mov_b32 s{C.S_H}, s55')
        a('s_cmp_eq_u32 s54, 0\ns_cbranch_scc1 R_CHAIN2')
    resolve('A', 0, 's_waitcnt vmcnt(0)')
    a.label('ROLE')
    a('s_lshr_b32 s24, s26, 5\ns_and_b32 s28, s26, 31')
    if cfg.get('prof'): a('s_mov_b32 s101, s26')
    a('s_cmp_ge_u32 s24, 8\ns_cbranch_scc1 K_END')
    a('s_cmp_eq_u32 s24, 0\ns_cbranch_scc1 R_CHAIN')
    a('s_cmp_eq_u32 s24, 1\ns_cbranch_scc1 R_AO')
    a(f's_sub_u32 s{G.G_CG}, s24, 2\ns_lshl_b32 s{G.G_CG}, s{G.G_CG}, 2\ns_lshr_b32 s25, s28, 3\ns_add_u32 s{G.G_CG}, s{G.G_CG}, s25\ns_and_b32 s{G.G_RB}, s28, 7')
    G.gemm1(a, P, cfg)
    if cfg.get('prof'): prof(a, 1)
    a(f's_cmp_lt_u32 s{G.G_CG}, 12\ns_cbranch_scc1 R_FFN')
    a(f's_sub_u32 s24, s{G.G_CG}, 12\ns_lshl_b32 s24, s24, 3\ns_add_u32 s24, s24, s{G.G_RB}')
    a(f's_and_b32 s{AO.A_CH}, s24, 1\ns_bfe_u32 s{AO.A_HG}, s24, 0x30001\ns_lshr_b32 s{AO.A_SEG}, s24, 4\ns_add_u32 s{AO.A_SEG}, s{AO.A_SEG}, {2 + cfg.get("S0", 20)}')
    a('s_barrier\ns_branch AO_ENTRY2')
    a.label('R_FFN')
    F.ffn2(a, P, cfg)
    if cfg.get('dst') == 1:
        a('s_waitcnt vmcnt(0)\ns_sub_u32 s24, 15, s16\ns_add_u32 s24, s24, s17'); dstamp(a, P, 14, vt=(4, 5), cond='s24')
    a('s_branch K_DONE')
    a.label('R_AO')
    a(f's_and_b32 s{AO.A_SEG}, s28, 1\ns_bfe_u32 s{AO.A_CH}, s28, 0x10001\ns_lshr_b32 s{AO.A_HG}, s28, 2')
    def ln_rest():
        a(f's_add_u32 s{G.G_T4}, s46, 16\ns_mov_b32 s45, 1\ns_branch LN_GO')
        a.label('LN_RET1')
        a('s_cmp_ge_u32 s46, 16\ns_cbranch_scc1 LN_RET2')
        a(f's_add_u32 s{G.G_T4}, s46, 48\ns_mov_b32 s45, 2\ns_branch LN_GO')
        a.label('LN_RET2')
    cfg['_ln_rest'] = ln_rest
    a('s_mov_b32 s46, s28')
    AO.ao(a, P, cfg)
    a('s_branch K_DONE')
    a.label('R_CHAIN')
    a(f's_mov_b32 s{C.S_H}, s28\ns_mov_b32 s52, 0')
    a.label('R_CHAIN2')
    def hook(vm):
        a('s_cmp_eq_u32 s52, 0\ns_cbranch_scc1 CH_OK')
        resolve('B', 0, 's_waitcnt vmcnt(60)')
        if cfg.get('prof'): a('s_mov_b32 s101, s26')
        a(f's_cmp_eq_u32 s26, s{C.S_H}\ns_cbranch_scc1 CH_OK')
        a('s_waitcnt vmcnt(0)\ns_barrier')
        a('s_lshl_b32 s24, s13, 6\nv_lshrrev_b32 v0, 4, v0\nv_or_b32 v0, s24, v0')
        a('s_branch ROLE')
        a.label('CH_OK')
    def flags_wait(sfx, words, vo=44):
        a(f'v_mov_b32 v{vo}, 0\nv_mov_b32 v{vo+1}, 0')
        for n_, (off, tgt) in enumerate(words):
            a(f's_mov_b32 s43, {off}\nv_writelane_b32 v{vo}, s43, {n_}\ns_mov_b32 s43, {tgt}\nv_writelane_b32 v{vo+1}, s43, {n_}')
        a(f's_cmp_lg_u32 s13, 0\ns_cbranch_scc1 FE{sfx}')
        a(f's_mov_b32 s27, 0\ns_mov_b64 exec, {(1 << len(words)) - 1}')
        a.label(f'FW{sfx}')
        a(f'global_load_dword v{vo+2}, v{vo}, {DBGP} sc1')
        a(f's_add_u32 s27, s27, 1\ns_cmp_gt_u32 s27, 0x20000\ns_cbranch_scc1 FD{sfx}')
        a('s_waitcnt vmcnt(0)')
        a(f'v_cmp_gt_u32 vcc, v{vo+1}, v{vo+2}')
        a(f's_cbranch_vccz FD{sfx}')
        a(f's_sleep {cfg.get("FWS", 6)}\ns_branch FW{sfx}')
        a.label(f'FD{sfx}')
        a('s_waitcnt vmcnt(0)\ns_mov_b64 exec, -1')
        a.label(f'FE{sfx}')
        a('s_barrier')
    C.chain_prologue(a, P, hook, None)
    C.chain_init(a, P, cfg)
    if cfg.get('dst'): dstamp(a, P, 13 if cfg.get('dst') == 1 else 12, vt=(4, 5), also=15) if cfg.get('dst') == 1 else dstamp(a, P, 15, vt=(4, 5), also=15)
    if cfg.get('prof'): prof(a, 4)
    a('s_barrier')
    G.signal(a, P, G.DBG_CHAIN, None)
    flags_wait('0', [(0, 0xffffffff), (G.DBG_AOINIT, 32), (G.DBG_KV, G.KVT_LO), (G.DBG_KV + 4, G.KVT_LO)])
    a(f'v_mov_b32 v4, {G.DBG_IMPURE}')
    a(f'global_load_dword v5, v4, {DBGP} sc1')
    a(f's_sub_u32 s35, s{C.S_KF}, {32*8192}\ns_mov_b32 m0, s{C.S_KXL}')
    for q in range(4): a(f'buffer_load_dwordx4 v{C.V_L16}, s[4:7], s35 offen offset:{q*1024} sc1 lds')
    a(f'v_lshlrev_b32 v6, 3, v{C.V_L16}\ns_mov_b32 m0, {L_QX}')
    a(f's_sub_u32 s35, s{C.S_PF}, {32*8192}\ns_mov_b64 exec, 0xffffffff')
    a('buffer_load_dword v6, s[4:7], s35 offen sc1 lds')
    a('s_mov_b64 exec, -1')
    if cfg.get('pmw', 1):
        a(f's_mul_i32 s43, s{C.S_H}, 12288\ns_and_b32 s27, s13, 1\ns_lshl_b32 s27, s27, 19\ns_add_u32 s43, s43, s27\ns_lshr_b32 s27, s13, 1\ns_lshl_b32 s27, s27, 13\ns_add_u32 s43, s43, s27\ns_add_u32 s43, s43, {WS_P}')
        a('buffer_load_dword v6, s[4:7], s43 offen sc1 lds')
        a(f's_lshl_b32 s43, s13, 13\ns_add_u32 s43, s43, {WS_M + M_STRIDE}')
        a('buffer_load_dword v6, s[4:7], s43 offen sc1 lds')
        a('s_waitcnt vmcnt(7)')
    else: a('s_waitcnt vmcnt(5)')
    a('v_readfirstlane_b32 s34, v5')
    if cfg.get('prof'): prof(a, 2)
    lg = C.Cnt(a, 'lgkmcnt', 15)
    if cfg.get('dst'): a('s_mov_b32 s35, s34'); dstamp(a, P, 8, vt=(4, 5))
    C.build_table(a)
    C.next_prep(a, lg)
    cfg['_kvwait'] = lambda a: G.wait_flag(a, P, 0, None, 24, sleep=2, cnt=C.S_CNT, multi=(G.DBG_KV + 8, 6))
    if cfg.get('forceslow'): a('s_mov_b32 s34, 1')
    a('s_cmp_lg_u32 s34, 0\ns_cbranch_scc1 STEPS')
    C.chain_loop(a, cfg, 'F', '')
    C.chain_loop(a, cfg, 'S', 'sc1')
    a.label('CHAIN_DONE')
    if cfg.get('dst') == 1: dstamp(a, P, 9, vt=(4, 5))
    a.label('K_DONE')
    a('s_waitcnt vmcnt(0) lgkmcnt(0)')
    if cfg.get('prof'): prof(a, 3)
    a.label('K_END')
    a('s_endpgm')
    body, n = a.finalize()
    head = HEADER + f'''; @launch grid=(256,1,1) block=(256,1,1) lds=163840
.amdgcn_target "amdgcn-amd-amdhsa--gfx950"
.text
.globl {KN}
.p2align 8
.type {KN},@function
{KN}:
'''
    tail = f'''.section .rodata,"a"
.p2align 6
.amdhsa_kernel {KN}
  .amdhsa_next_free_vgpr 512
  .amdhsa_next_free_sgpr 102
  .amdhsa_accum_offset 256
  .amdhsa_group_segment_fixed_size 0
  .amdhsa_kernarg_size 112
  .amdhsa_user_sgpr_count 2
  .amdhsa_user_sgpr_kernarg_segment_ptr 1
  .amdhsa_system_sgpr_workgroup_id_x 1
.end_amdhsa_kernel
'''
    return head + body + tail, n

def dstamp(a, P, word, inv=False, vt=(250, 251), cond='s12', also=None):
    l = a.newlabel('DS')
    a(f's_cmp_lg_u32 s13, 0\ns_cbranch_scc1 {l}')
    a(f's_cmp_lg_u32 {cond}, 0\ns_cbranch_scc1 {l}')
    a('s_memrealtime s[98:99]\ns_waitcnt lgkmcnt(0)')
    a('s_mov_b64 exec, 1')
    a(f'v_mov_b32 v{vt[0]}, {word*4}\nv_mov_b32 v{vt[1]}, s98')
    a(f'global_store_dword v{vt[0]}, v{vt[1]}, s[{P["dbg"]}:{P["dbg"]+1}] sc1')
    if also:
        a(f'v_mov_b32 v{vt[0]}, {also*4}\nv_mov_b32 v{vt[1]}, s96')
        a(f'global_store_dword v{vt[0]}, v{vt[1]}, s[{P["dbg"]}:{P["dbg"]+1}] sc1')
    a('s_mov_b64 exec, -1')
    a.label(l)

def amax(a, P, word, vt=(8, 9)):
    l = a.newlabel('AM')
    a(f's_cmp_lg_u32 s13, 0\ns_cbranch_scc1 {l}')
    a('s_memrealtime s[98:99]\ns_waitcnt lgkmcnt(0)\ns_mov_b64 exec, 1')
    a(f'v_mov_b32 v{vt[0]}, {word*4}\nv_mov_b32 v{vt[1]}, s98')
    a(f'global_atomic_umax v{vt[0]}, v{vt[1]}, s[{P["dbg"]}:{P["dbg"]+1}]')
    a('s_mov_b64 exec, -1')
    a.label(l)

def prof(a, k):
    l = a.newlabel('PR')
    a(f's_cmp_lg_u32 s13, 0\ns_cbranch_scc1 {l}')
    a('s_memrealtime s[98:99]\ns_waitcnt lgkmcnt(0)')
    a(f's_sub_u32 s98, s98, s100\ns_lshl_b32 s99, s2, 6\ns_add_u32 s99, s99, {WS_DBG + 0x80000 + k*8}')
    a('s_mov_b64 exec, 1')
    a('v_mov_b32 v14, s98\nv_mov_b32 v15, s101\nv_mov_b32 v13, 0')
    a('buffer_store_dwordx2 v[14:15], v13, s[4:7], s99 offen')
    a('s_mov_b64 exec, -1')
    a.label(l)

if __name__ == '__main__':
    cfg = json.loads(sys.argv[1]) if len(sys.argv) > 1 else dict(D1=110, D2=310)
    src, n = gen(cfg)
    out = sys.argv[2] if len(sys.argv) > 2 else 'all.s'
    open(out, 'w').write(src)
    print(n, 'instructions', len(src), 'bytes')
```

```python
from asmlib import *
from layout import *
import math

class Cnt:
    def __init__(self, a, name, maxv):
        self.a = a; self.name = name; self.q = []; self.maxv = maxv
    def issue(self, tag, n=1):
        for _ in range(n): self.q.append(tag)
    def wait(self, tag):
        idx = max(i for i, t in enumerate(self.q) if t == tag) if tag in self.q else None
        if idx is None: return
        n = len(self.q) - 1 - idx
        assert n <= self.maxv, (self.name, n)
        self.a(f's_waitcnt {self.name}({n})')
        self.q = self.q[idx + 1:]
    def wait_all(self):
        self.a(f's_waitcnt {self.name}(0)'); self.q = []
    def reset(self, q=()): self.q = list(q)

S_WS = 4
S_W = 8
S_H = 12; S_WV = 13; S_STEP = 14; S_ABORT = 15
S_PC = 16; S_PST = 17; S_MC = 18; S_MN = 19; S_MP = 20
S_KF = 21; S_VF = 22; S_KM = 23; S_VM = 24
S_RED = 25; S_TASK = 26; S_CNT = 27
S_MK_KEY = 28; S_MK_J8 = 30
S_SC = 32
S_T0 = 34; S_T1 = 35; S_T3 = 36; S_T4 = 37; S_T2 = 43
S_RB = 38; S_RMA = 39; S_RIS8 = 40; S_RLD = 41; S_PO = 42
S_W512 = 44; S_W4 = 45; S_W2K = 46; S_F0 = 47; S_MK_N6 = 48; S_PF = 50; S_ROT = 51; S_TAG = 54; S_TAGS = 55; S_ROTB = 3; S_DUP = 24; S_CK = 56; S_CK2 = 96; S_CK3 = 98; S_MC1 = 39; S_MC2 = 40; S_W1536 = 26; S_KXL = 58; S_ONE = 8; S_TGN = 59; S_CK4 = 10; S_W1K = 44; S_W64 = 45

V_L16 = 0; V_IDX = 1; V_WL = 2; V_X = 3
def A(i): return 4 + 4 * i
ACC = {'q0': 40, 'q1': 44, 'k0': 48, 'k1': 52, 'v0': 56, 'v1': 60}
T0 = 64; T1 = 72

QK_LDS = {0: 'q', 2: 'k', 4: 'q', 6: 'k', 8: 'q'}
WO_LDS = [(0, 1), (1, 1), (2, 1), (3, 1)]

def build_frag_map():
    slots = []
    for m in 'qkv':
        for i in range(9): slots.append((m, i))
    for p in range(4):
        for c in range(2): slots.append(('o', p, c))
    slots.append(('o8',))
    lds_slots = [(m, i) for i, m in sorted(QK_LDS.items())] + [('o', p, c) for p, c in WO_LDS]
    reg_slots = [s for s in slots if s not in lds_slots]
    assert len(reg_slots) == 27 and len(lds_slots) == 9
    loc = {}
    for n, s in enumerate(reg_slots):
        for z in range(2):
            f = 2 * n + z
            loc[(s, z)] = ('a', 8 * f) if f < 32 else ('v', 80 + 8 * (f - 32))
    for n, s in enumerate(lds_slots):
        for z in range(2): loc[(s, z)] = ('lds', n * 4096 + z * 2048)
    return reg_slots, lds_slots, loc

REG_SLOTS, LDS_SLOTS, LOC = build_frag_map()

def frag_reg(s, z):
    t, r = LOC[(s, z)]
    assert t != 'lds'
    return vr(r, 8, t)

def actual_col(pos):
    c = pos // 64; pw = (pos % 64) // 16; jp = c // 3; tg = c % 3
    return (9 * pw + 3 * (2 - jp) + tg) * 16 + pos % 16
NCOPY = 1
M_CSTR = 0x10000
def m_imm(c): return (c % 4) * 1024

def chain_prologue(a, P, hook=None, hook2=None):
    a('; ---- chain prologue: weights ----')
    a(f'v_and_b32 v4, 63, v0')
    a(f'v_lshlrev_b32 v{V_L16}, 4, v4')
    a('v_lshrrev_b32 v8, 3, v4\nv_and_b32 v9, 7, v4\nv_lshlrev_b32 v9, 4, v9\nv_lshl_add_u32 v5, v8, 13, v9')
    a('v_lshrrev_b32 v8, 5, v4\nv_lshlrev_b32 v10, 4, v8')
    a('v_bfe_u32 v8, v4, 3, 1\nv_lshl_add_u32 v10, v8, 3, v10')
    a('v_bfe_u32 v8, v4, 4, 1\nv_lshl_add_u32 v10, v8, 2, v10')
    a('v_bfe_u32 v8, v4, 2, 1\nv_add_u32 v10, v10, v8')
    a('v_and_b32 v9, 3, v4\nv_lshlrev_b32 v9, 3, v9')
    a(f's_and_b32 s{S_CNT}, s{S_WV}, 1\ns_lshl_b32 s{S_CNT}, s{S_CNT}, 6')
    a(f'v_lshl_add_u32 v11, v10, 7, v9\nv_add_u32 v11, s{S_CNT}, v11')
    a(f's_mul_i32 s{S_T0}, s{S_WV}, 36864\ns_add_u32 s{S_T0}, s{S_T0}, {L_W}')
    a(f's_lshl_b32 s{S_T1}, s{S_WV}, 12')
    a(f's_and_b32 s{S_CNT}, s{S_WV}, 2\ns_lshl_b32 s{S_T4}, s{S_CNT}, 12\nv_add_u32 v14, s{S_T4}, v11')
    a(f's_mul_i32 s{S_T4}, s{S_CNT}, 36864\ns_add_u32 s{S_T4}, s{S_T4}, {L_W}\nv_add_u32 v13, s{S_T4}, v11\nv_add_u32 v15, 36864, v13')
    a(f'v_mul_u32_u24 v12, 1152, v10\nv_add_u32 v12, v12, v9\ns_mul_i32 s{S_T4}, s{S_WV}, 288\ns_add_u32 s{S_T4}, s{S_T4}, {L_W}\nv_add_u32 v12, s{S_T4}, v12\nv_add_u32 v16, 73728, v12')
    a(f'v_add_u32 v{V_WL}, s{S_T0}, v{V_L16}\nv_add_u32 v17, s{S_T1}, v{V_L16}')
    a(f'v_bfe_u32 v8, v4, 1, 1\nv_mul_u32_u24 v8, 0xAAAA, v8\nv_add_u32 v{V_IDX}, 0x4444, v8')
    a(f's_lshl_b32 s{S_T2}, s{S_H}, 8\ns_lshl_b32 s{S_CNT}, s{S_CNT}, 6\ns_add_u32 s{S_T2}, s{S_T2}, s{S_CNT}')
    a(f's_mul_i32 s{S_T3}, s{S_H}, 147456\ns_mul_i32 s{S_T4}, s{S_WV}, 36864\ns_add_u32 s{S_T3}, s{S_T3}, s{S_T4}')
    a(f's_mov_b32 s{S_ROT}, 0\ns_and_b32 s{S_T4}, s{S_WV}, 1')
    vm = Cnt(a, 'vmcnt', 63)
    cur_mat = [None]
    def set_srd(m):
        if cur_mat[0] == m: return
        cur_mat[0] = m
        p = P[{'q': 'Wq', 'k': 'Wk', 'v': 'Wv', 'o': 'Wo'}[m]]
        a(f's_mov_b32 s{S_W}, s{p}\ns_mov_b32 s{S_W+1}, s{p+1}\ns_mov_b32 s{S_W+2}, 4718592\ns_mov_b32 s{S_W+3}, 0x20000')
    qreg = [x for x in REG_SLOTS if x[0] in 'qkv' and x[0] != 'o' and x[0] != 'o8']
    qlds = [x for x in LDS_SLOTS if x[0] != 'o']
    assert len(qreg) == 22 and len(qlds) == 5
    TMPS = qreg[-4:]
    def issue_q(sl):
        set_srd(sl[0])
        for n in range(4):
            o0 = (actual_col(sl[1]*64 + (n >> 1)*16) + 8*(n & 1)) * 8192
            o1 = (actual_col(sl[1]*64 + (2 + (n >> 1))*16) + 8*(n & 1)) * 8192
            a(f's_mov_b32 s{S_CNT}, {o0}\ns_cmp_eq_u32 s{S_T4}, 1\ns_cselect_b32 s{S_CNT}, {o1}, s{S_CNT}\ns_add_u32 s{S_CNT}, s{S_CNT}, s{S_T2}')
            if sl in qlds:
                a(f's_add_u32 m0, s{S_T0}, {LDS_SLOTS.index(sl)*4096 + n*1024}\ns_nop 0')
                a(f'buffer_load_dwordx4 v5, s[{S_W}:{S_W+3}], s{S_CNT} offen lds')
            else:
                t, r = LOC[(sl, 0)]
                a(f'buffer_load_dwordx4 {vr(r + 4*n, 4, t)}, v5, s[{S_W}:{S_W+3}], s{S_CNT} offen')
            vm.issue(sl)
    def process_q(sl):
        vm.wait(sl)
        inl = sl in qlds
        if not inl:
            t, r = LOC[(sl, 0)]
            for n in range(4): a(f'ds_write_b128 v17, {vr(r + 4*n, 4, t)} offset:{n*1024}')
            a('s_waitcnt lgkmcnt(0)')
        a('s_barrier')
        boff = LDS_SLOTS.index(sl) * 4096 if inl else 0
        for z in range(2):
            t, r = LOC[(sl, z)]
            if inl: t, r = 'v', 20 + 8 * z
            for m in range(4):
                if inl: base = 13 if m < 2 else 15; off = boff + (m & 1) * 256 + z * 32
                else: base = 14; off = (m >> 1) * 4096 + (m & 1) * 256 + z * 32
                a(f'ds_read_b64_tr_b16 {vr(r + 2*m, 2, t)}, v{base} offset:{off}')
        a('s_waitcnt lgkmcnt(0)\ns_barrier')
        if inl:
            for q in range(4): a(f'ds_write_b128 v{V_WL}, {vr(20 + 4*q, 4)} offset:{boff + q*1024}')
    set_srd('o')
    for n in range(36):
        if n % 4 == 0: a(f's_add_u32 m0, s{S_T0}, {n*1024}\ns_add_u32 s{S_CNT}, s{S_T3}, {n*1024}\ns_nop 0')
        a(f'buffer_load_dwordx4 v{V_L16}, s[{S_W}:{S_W+3}], s{S_CNT} offen offset:{(n % 4)*1024} lds'); vm.issue('wo')
    pend = list(qreg[:-4]); inflight = []
    for _ in range(6):
        sl = pend.pop(0); issue_q(sl); inflight.append(sl)
    if hook: hook(vm)
    vm.wait('wo')
    a('s_barrier')
    for _ in range(7):
        sl = pend.pop(0); issue_q(sl); inflight.append(sl)
    tmp_of = {}
    k = 0
    for t in range(9):
        for c in range(2):
            key = (('o8',), c) if t == 8 else (('o', t // 2, c), t % 2)
            ty, r = LOC[key]
            if ty == 'lds':
                tt, rr = LOC[(TMPS[k // 2], k % 2)]; tmp_of[key] = (tt, rr); ty, r = tt, rr; k += 1
            for m in range(4):
                off = ((m >> 1) * 32 + (m & 1) * 2) * 1152 + t * 32
                a(f'ds_read_b64_tr_b16 {vr(r + 2*m, 2, ty)}, v{12 if c == 0 else 16} offset:{off}')
            if (t * 2 + c) % 3 == 2: a('s_waitcnt lgkmcnt(0)')
    a('s_waitcnt lgkmcnt(0)\ns_barrier')
    for key, (tt, rr) in tmp_of.items():
        off = LOC[key][1]
        for h_ in range(2): a(f'ds_write_b128 v{V_WL}, {vr(rr + 4*h_, 4, tt)} offset:{off + h_*1024}')
    a('s_waitcnt lgkmcnt(0)')
    pend = qlds + pend + list(TMPS)
    n_done = 0
    while inflight or pend:
        while pend and len(inflight) < 14:
            sl = pend.pop(0); issue_q(sl); inflight.append(sl)
            if not pend and hook2: hook2(vm)
        process_q(inflight.pop(0))
    a('s_waitcnt lgkmcnt(0)')

def lds_frag_read(a, lg, s, z, dst, tag):
    t, off = LOC[(s, z)]
    assert t == 'lds'
    a(f'ds_read_b128 {vr(dst, 4)}, v{V_WL} offset:{off}')
    a(f'ds_read_b128 {vr(dst+4, 4)}, v{V_WL} offset:{off+1024}')
    lg.issue(tag, 2)

def lds_half_read(a, lg, s, z, dst, tag, h):
    t, off = LOC[(s, z)]
    a(f'ds_read_b128 {vr(dst+4*h, 4)}, v{V_WL} offset:{off+1024*h}')
    lg.issue(tag, 1)

def timeout(a, lbl_ok_branch=None):
    a(f's_add_u32 s{S_CNT}, s{S_CNT}, 1')
    a(f's_cmp_gt_u32 s{S_CNT}, 0x40000')
    a(f's_cselect_b32 s{S_ABORT}, 1, s{S_ABORT}')

def emit_vma(a, dst, tmp):
    a(f'v_bfe_u32 v{tmp}, v{V_L16}, 6, 2')
    a(f'v_lshlrev_b32 v{dst}, 8, v{tmp}')
    a(f'v_lshrrev_b32 v{tmp}, 8, v{V_L16}')
    a(f'v_lshl_add_u32 v{dst}, v{tmp}, 6, v{dst}')
    a(f'v_bfe_u32 v{tmp}, v{V_L16}, 4, 1')
    a(f'v_lshl_add_u32 v{dst}, v{tmp}, 5, v{dst}')
    a(f'v_bfe_u32 v{tmp}, v{V_L16}, 5, 1')
    a(f'v_lshl_add_u32 v{dst}, v{tmp}, 4, v{dst}')

def R(i): return 4 + 4 * i
SLOT = {0: 0, 1: 1, 2: 2, 3: 3, 4: 4, 5: 5, 6: 6, 7: 0, 8: 1}
def AR(c): return R(SLOT[c])

def zero(a, regs):
    regs = sorted(regs); i = 0
    while i < len(regs):
        r = regs[i]
        if r % 2 == 0 and i + 1 < len(regs) and regs[i+1] == r + 1:
            a(f'v_mov_b64 v[{r}:{r+1}], 0'); i += 2
        else:
            a(f'v_mov_b32 v{r}, 0'); i += 1

def chain_loop(a, cfg, sfx, stf):
    NFULL = 4; NP = cfg.get('NP', 3)
    assert 2 <= NP <= 6
    D1 = cfg.get('D1', 0); D2 = cfg.get('D2', 0); D2R = cfg.get('D2R', 0)
    dbg = cfg.get('dbg', False)
    SRD = f's[{S_WS}:{S_WS+3}]'
    vm = Cnt(a, 'vmcnt', 63); lg = Cnt(a, 'lgkmcnt', 15)
    smap = cfg.get('smap', {str(k): k for k in range(8)})
    def stamp(k):
        if dbg and str(k) in smap:
            q = smap[str(k)]
            a(f'{"s_memrealtime" if cfg.get("rt") else "s_memtime"} s[{60+2*q}:{61+2*q}]')
    def smf(d, aa, b): a(f'v_smfmac_f32_16x16x64_bf16 {vr(d,4)}, {vr(aa,4)}, {b}, v{V_IDX}')
    def delay(n):
        if cfg.get('SLEEP', 1):
            if int(n): a(f's_sleep {int(n)}')
            fr = int(round((n - int(n)) * 16))
            if fr: a(f's_nop {fr-1}')
            return
        while n > 0:
            k = min(n, 16); a(f's_nop {k-1}'); n -= k
    def mf(d, x, y, cinit):
        c = vr(d, 4) if not cinit else '0'
        a(f'v_mfma_f32_16x16x32_bf16 {vr(d,4)}, {vr(x,4)}, {vr(y,4)}, {c}')
    L = lambda t: [x for x in t.split('\n') if x.strip()]
    VX0 = 32; VX1 = 36

    a.label(f'STEP{sfx}')
    lg.reset(['T'] * 4)
    a(f's_add_u32 s{S_MC1}, s{S_MC}, 4096\ns_add_u32 s{S_MC2}, s{S_MC}, 8192')
    a(f's_add_u32 m0, s{S_W1536}, {L_KXX}\ns_add_u32 s{S_T0}, s{S_MC}, s{S_W1536}\ns_add_u32 s{S_T0}, s{S_T0}, 3072')
    a(f's_mov_b32 s{S_CNT}, 0')
    def aoff(i): return m_imm(i)
    def msr(i): return (S_MC, S_MC1, S_MC2)[i // 4]
    def ldA(i, reg=None):
        a(f'buffer_load_dwordx4 {vr(AR(i) if reg is None else reg,4)}, v{V_X}, {SRD}, s{msr(i)} offen offset:{aoff(i)} sc1'); vm.issue(('A', i))
    SH = cfg.get('SHARE', 1)
    L_ST = L_KXX - 0
    def st1():
        a(f'buffer_load_dwordx4 v{V_L16}, {SRD}, s{S_T0} offen sc1 lds'); vm.issue('st')
    def st2():
        a(f's_mov_b64 exec, 0xffffffff')
        a(f'buffer_load_dwordx4 v{V_L16}, {SRD}, s{S_T0} offen offset:1024 sc1 lds'); vm.issue('st')
        a('s_mov_b64 exec, -1')
    CK = VX1 + 3
    PM = cfg.get('PM', 'np3')
    SPEC = cfg.get('SPECST', 0) and SH
    tmo = f"""s_add_u32 s{S_CNT}, s{S_CNT}, 1
s_cmp_gt_u32 s{S_CNT}, 0x40000
s_cselect_b32 s{S_ABORT}, 1, s{S_ABORT}
s_cmp_lg_u32 s{S_ABORT}, 0
s_cselect_b64 s[{S_T3}:{S_T4}], 0, -1"""
    a.label(f'POLLM0{sfx}')
    if PM == 'pipe1':
        ldA(0)
        delay(cfg.get('STG', 30))
        a.label(f'POLLM{sfx}')
        ldA(0, R(1))
        a(tmo)
        a('s_waitcnt vmcnt(1)')
        a(f'v_max_u32 v{CK}, v{R(0)+1}, v{R(0)+3}')
        a(f'v_cmp_eq_u32 vcc, -1, v{CK}')
        a(f's_and_b64 vcc, vcc, s[{S_T3}:{S_T4}]')
        a(f's_cbranch_vccz GOTM{sfx}')
        ldA(0)
        a('s_waitcnt vmcnt(1)')
        a(f'v_max_u32 v{CK}, v{R(1)+1}, v{R(1)+3}')
        a(f'v_cmp_eq_u32 vcc, -1, v{CK}')
        a(f's_cbranch_vccnz POLLM{sfx}')
        a(f'v_mov_b64 {vr(R(0),2)}, {vr(R(1),2)}\nv_mov_b64 {vr(R(0)+2,2)}, {vr(R(1)+2,2)}')
        a.label(f'GOTM{sfx}')
        vm.reset()
        ldA(1); ldA(2)
        NC = 1
    else:
        vm.reset()
        for i in range(3): ldA(i)
        if SPEC: st1(); st2()
        a(tmo)
        NC = cfg.get('NC', 3)
        for i in range(NC):
            vm.wait(('A', i))
            if i == 0: a(f'v_max_u32 v{CK}, v{AR(0)+1}, v{AR(0)+3}')
            else: a(f'v_max3_u32 v{CK}, v{CK}, v{AR(i)+1}, v{AR(i)+3}')
        a(f'v_cmp_eq_u32 vcc, -1, v{CK}')
        a(f's_and_b64 vcc, vcc, s[{S_T3}:{S_T4}]')
        a(f's_cbranch_vccnz POLLM0{sfx}')
    stamp(0)
    if dbg: a(f's_mov_b32 s52, s{S_CNT}')
    XB = R(2); TK = R(2) + 1
    fl = ['TBL']
    def bop(m, i, z):
        s = (m, i)
        if LOC[(s, z)][0] == 'lds': return vr(T0 if z == 0 else T1, 8)
        return frag_reg(s, z)
    lds_chunks = sorted(QK_LDS)
    def ldvx(q):
        a(f'buffer_load_dwordx4 {vr(VX0+4*q,4)}, v{V_L16}, {SRD}, s{S_VF} offen offset:{q*1024} sc1'); vm.issue('vx')
    def bar0():
        if SH: vm.wait('st')
        stamp(16)
        a('s_barrier')
        stamp(12)
    def pf1():
        a(f'v_lshlrev_b32 v{V_X}, 3, v{V_L16}')
        a(f's_mov_b32 m0, {L_QX}')
    def pf2():
        a(f's_mov_b64 exec, 0xffffffff')
        a(f'buffer_load_dword v{V_X}, {SRD}, s{S_PF} offen sc1 lds'); vm.issue('pf')
        a('s_mov_b64 exec, -1')
    def rdA(c):
        a(f'ds_read_b128 {vr(AR(c),4)}, v{V_X} offset:{L_ST + (c-3)*1024}'); lg.issue(('A', c))
    if SH:
        if SPEC:
            memq = {0: [lambda: ldvx(0), lambda: ldvx(1)],
                    1: [lambda: None] * cfg.get('B0P', 0) + [bar0, lambda: [rdA(c) for c in (3, 4, 5, 6)], lambda: rdA(7)],
                    2: [lambda: rdA(8)] + ([] if cfg.get('nopf') else [pf1, pf2])}
        else:
            memq = {0: [st1, st2, lambda: ldvx(0), lambda: ldvx(1)],
                    2: [bar0, lambda: [rdA(3), rdA(4)], lambda: [rdA(5), rdA(6)], lambda: [rdA(7), rdA(8)], lambda: None if cfg.get('nopf') else [pf1(), pf2()]]}
    else:
        memq = {0: [lambda: ldA(3), lambda: ldA(4), lambda: ldA(5), lambda: ldA(6), lambda: ldvx(0), lambda: ldvx(1)],
                1: [lambda: ldA(7)], 2: [lambda: ldA(8), bar0] + ([] if cfg.get('nopf') else [pf1, pf2])}
    first_ck = True
    side = []; NS = cfg.get('NS', 1)
    for i in range(9):
        mem = list(memq.get(i, [])); pend = []
        if i >= NC:
            if SH and i >= 3: lg.wait(('A', i))
            else: vm.wait(('A', i))
        if NC <= i <= 2:
            pr = (S_CK4, S_CK) if i == 1 else (S_CK2, S_CK3)
            pend.append(f'v_cmp_eq_u32 s[{pr[0]}:{pr[0]+1}], -1, v{AR(i)+1}'); pend.append(f'v_cmp_eq_u32 s[{pr[1]}:{pr[1]+1}], -1, v{AR(i)+3}')
        if i >= 3:
            if first_ck: pend.append(f'v_max_u32 v{V_X}, v{AR(i)+1}, v{AR(i)+3}'); first_ck = False
            else: pend.append(f'v_max3_u32 v{V_X}, v{V_X}, v{AR(i)+1}, v{AR(i)+3}')
        mats = ['q', 'k'] + (['v'] if i < NFULL else [])
        if i in QK_LDS: mats = [m for m in mats if m != QK_LDS[i]] + [QK_LDS[i]]
        for m in mats:
            for z in range(2):
                isl = i in QK_LDS and m == QK_LDS[i]
                if isl:
                    while any(t_ == ('T', z) for t_, _ in side): side.pop(0)[1]()
                    lg.wait(('T', z) if i else 'T')
                smf(ACC[f'{m}{z}'], AR(i), bop(m, i, z))
                if isl and i != lds_chunks[-1]:
                    nx = lds_chunks[lds_chunks.index(i) + 1]
                    for h_ in range(2):
                        side.append((('T', z), lambda nx=nx, z=z, h_=h_: lds_half_read(a, lg, (QK_LDS[nx], nx), z, T0 if z == 0 else T1, ('T', z), h_)))
                if pend: a(pend.pop(0))
                if mem: mem.pop(0)()
                elif side:
                    for _ in range(NS):
                        if side: side.pop(0)[1]()
                elif fl and i >= 5:
                    fl.pop(0); a(f'ds_read_b128 {vr(R(2),4)}, v{V_L16} offset:{L_TBL}'); lg.issue('tbl')
        assert not mem and not pend
    assert not side
    assert not fl, fl
    stamp(1)
    KX = {(0, 0): 64, (1, 0): 68, (0, 1): 72, (1, 1): 76, (0, 2): R(4), (1, 2): R(5), (0, 3): R(3), (1, 3): 64}
    def ldkx(t, ks):
        a(f'ds_read_b128 {vr(KX[(t, ks)],4)}, v{V_L16} offset:{L_KX + t*4096 + ks*1024}'); lg.issue(('kx', t, ks))
    vrem = [(i, z) for i in range(NFULL, 9) for z in range(2)]
    def vsm(n):
        for _ in range(n):
            if vrem:
                i, z = vrem.pop(0); smf(ACC[f'v{z}'], AR(i), bop('v', i, z))
    a(f'v_cmp_eq_u32 vcc, -1, v{V_X}')
    lg.wait('tbl')
    vsm(1)
    a(f'v_add_u32 v{XB}, s{S_W1K}, v{XB}')
    K0 = ACC['k0']; K1 = ACC['k1']; Q0 = ACC['q0']; Q1 = ACC['q1']
    a(f'v_pk_add_f32 {vr(K0,2)}, {vr(K0,2)}, {vr(K0+2,2)}')
    a(f'v_pk_add_f32 {vr(K1,2)}, {vr(K1,2)}, {vr(K1+2,2)}')
    a(f'v_cvt_pk_bf16_f32 v{K0}, v{K0}, v{K0+1}')
    a(f'v_cvt_pk_bf16_f32 v{K0+2}, v{K1}, v{K1+1}')
    a(f'v_pk_add_f32 {vr(Q0,2)}, {vr(Q0,2)}, {vr(Q0+2,2)}')
    a(f'v_pk_add_f32 {vr(Q1,2)}, {vr(Q1,2)}, {vr(Q1+2,2)}')
    a(f'v_pk_mul_f32 {vr(Q0,2)}, {vr(Q0,2)}, s[{S_SC}:{S_SC+1}]')
    a(f'v_pk_mul_f32 {vr(Q1,2)}, {vr(Q1,2)}, s[{S_SC}:{S_SC+1}]')
    a(f'v_cvt_pk_bf16_f32 v{K0+1}, v{Q0}, v{Q0+1}')
    a(f'v_cvt_pk_bf16_f32 v{K0+3}, v{Q1}, v{Q1+1}')
    a(f'ds_write2st64_b64 v{XB}, {vr(K0,2)}, {vr(K0+2,2)} offset0:{L_KXX//512} offset1:{L_KXX//512+1}'); lg.issue('xw')
    vsm(1)
    ldkx(0, 0); ldkx(1, 0)
    if NC == 1:
        for pr in (S_CK4, S_CK, S_CK2, S_CK3): a(f's_or_b64 vcc, vcc, s[{pr}:{pr+1}]')
    a(f's_and_b64 vcc, vcc, s[{S_T3}:{S_T4}]')
    if cfg.get('forceredo'): a(f's_and_b32 s{S_T0}, s{S_STEP}, 7\ns_cmp_eq_u32 s{S_T0}, s{S_WV}\ns_cselect_b64 vcc, -1, vcc')
    a(f's_cbranch_vccnz REDO{sfx}')
    a.label(f'REDOX{sfx}')
    vsm(1)
    ldkx(0, 1); ldkx(1, 1)
    a(f'v_lshrrev_b32 v{V_X}, 1, v{V_L16}')
    a(f'v_mov_b32 v{K1}, v{K0}\nv_mov_b32 v{K1+1}, v{K0+2}')
    vsm(1)
    if not cfg.get('nopub') and not cfg.get('KPL', 1):
        a(f'buffer_store_dwordx2 {vr(K1,2)}, v{V_X}, {SRD}, s{S_KM} offen sc1'); vm.issue('pub')
    ldkx(0, 2); ldkx(1, 2); ldkx(0, 3)
    vsm(cfg.get('VB', 2))
    stamp(17)
    lg.wait('xw')
    stamp(18)
    a('s_barrier')
    stamp(2)
    F = {0: 40, 1: 44, 2: 48, 3: 52}
    def ldf(ks):
        for hh in range(2):
            a(f'ds_read_b64_tr_b16 {vr(F[ks]+2*hh,2)}, v{TK} offset:{L_KXX + ks*1024 + hh*128}'); lg.issue(('f', ks))
    for ks in range(3): ldf(ks)
    if not cfg.get('nopub') and cfg.get('KPL', 1):
        a(f'buffer_store_dwordx2 {vr(K1,2)}, v{V_X}, {SRD}, s{S_KM} offen sc1'); vm.issue('pub')
    ldf(3)
    vsm(len(vrem))
    stamp(3)
    SX0 = R(6); SX1 = R(0); SM = R(1)
    OW = 14; OW2 = 12; ORD = 15; ORD2 = 13; OT = V_X; OT2 = 62
    PX = 48; PMX = 52; PMY = 54
    f1 = L(f"""v_pk_add_f32 v[56:57], v[56:57], v[58:59]
v_pk_add_f32 v[60:61], v[60:61], v[62:63]
v_cvt_pk_bf16_f32 v56, v56, v57
v_cvt_pk_bf16_f32 v57, v60, v61""")
    f2 = L(f"""v_xor_b32 v{OW}, s{S_W64}, v{OW}
v_xor_b32 v{OW2}, 32, v{OW}
v_xor_b32 v{ORD2}, 128, v{ORD}""")
    def fill(lst, n):
        for _ in range(n):
            if lst: a(lst.pop(0))
    lg.wait(('f', 0))
    mf(SX0, KX[(0, 0)], F[0], True); mf(SX1, KX[(1, 0)], F[0], True)
    ldkx(1, 3)
    mf(SM, F[0], F[0], True)
    lg.wait(('f', 1))
    mf(SX0, KX[(0, 1)], F[1], False); mf(SX1, KX[(1, 1)], F[1], False); fill(f1, 2)
    mf(SM, F[1], F[1], False); fill(f1, 2)
    lg.wait(('f', 2))
    mf(SX0, KX[(0, 2)], F[2], False)
    if not cfg.get('nopub'):
        a(f'buffer_store_dwordx2 v[56:57], v{V_X}, {SRD}, s{S_KM} offen offset:512 sc1'); vm.issue('pub')
    mf(SX1, KX[(1, 2)], F[2], False); fill(f2, 2)
    mf(SM, F[2], F[2], False); fill(f2, 2)
    lg.wait(('f', 3))
    mf(SM, F[3], F[3], False); fill(f2, 2)
    mf(SX0, KX[(0, 3)], F[3], False); fill(f2, 2)
    lg.wait(('kx', 1, 3))
    mf(SX1, KX[(1, 3)], F[3], False)
    B0 = 48; B1 = 56; B2 = 64; B3 = 72
    stamp(4)
    MX = 58; M2 = 59; LS = 60; L2 = 61
    B4 = 40
    lds_frag_read(a, lg, ('o', 1, 1), 0, B4, ('w', 2))
    lds_frag_read(a, lg, ('o', 0, 1), 1, B3, ('w', 1))
    a(f'v_max3_f32 v{MX}, v{SM}, v{SM+1}, v{SX0}')
    a(f'v_max3_f32 v{MX}, v{MX}, v{SX0+1}, v{SX0+2}')
    a(f'v_mov_b32 v{PMX+1}, 0\nv_mov_b32 v{PMY}, 0')
    a(f'v_max3_f32 v{M2}, v{SX1}, v{SX1+1}, v{SX1+2}')
    a(f'v_max3_f32 v{MX}, v{MX}, v{SX0+3}, v{SX1+3}')
    a(f'v_max_f32 v{MX}, v{MX}, v{M2}')
    a(f'v_max_f32 v{M2}, v{MX}, v{M2}')
    a(f'v_mov_b64 {vr(R(3),2)}, s[{S_ONE}:{S_ONE+1}]\nv_mov_b64 {vr(R(3)+2,2)}, s[{S_ONE}:{S_ONE+1}]')
    a(f'v_permlane32_swap_b32 v{MX}, v{M2}')
    a(f'v_max_f32 v{MX}, v{MX}, v{M2}')
    a(f'v_max_f32 v{M2}, v{MX}, v{M2}')
    lds_frag_read(a, lg, ('o', 0, 1), 0, B2, ('w', 0))
    a(f'v_permlane16_swap_b32 v{MX}, v{M2}')
    a(f'v_max_f32 v{MX}, v{MX}, v{M2}')
    stamp(13)
    rs = (SX0, SX0+2, SX1, SX1+2)
    for r in rs + (SM,): a(f'v_pk_add_f32 {vr(r,2)}, {vr(r,2)}, {vr(MX,2)} op_sel_hi:[1,0] neg_lo:[0,1] neg_hi:[0,1]')
    for k, r in enumerate(rs):
        a(f'v_exp_f32 v{r}, v{r}\nv_exp_f32 v{r+1}, v{r+1}')
        if k: a(f'v_cvt_pk_bf16_f32 v{PX+k-1}, v{rs[k-1]}, v{rs[k-1]+1}')
    a(f'v_exp_f32 v{SM}, v{SM}')
    a(f'v_cvt_pk_bf16_f32 v{PX+3}, v{rs[3]}, v{rs[3]+1}')
    a(f'v_exp_f32 v{SM+1}, v{SM+1}')
    OX = R(4); OY = R(5); ONE = R(3); LS = 60
    vm.wait('vx')
    mf(LS, ONE, PX, True)
    a(f'v_cvt_pk_bf16_f32 v{PMX}, v{SM}, v{SM+1}\nv_cvt_pk_bf16_f32 v{PMY+1}, v{SM}, v{SM+1}')
    mf(OX, VX0, PX, True)
    a(f'v_mfma_f32_16x16x16_bf16 {vr(LS,4)}, {vr(ONE,2)}, {vr(PMX,2)}, {vr(LS,4)}')
    mf(OY, VX1, PX, True)
    a(f'v_mfma_f32_16x16x16_bf16 {vr(OX,4)}, v[56:57], {vr(PMX,2)}, {vr(OX,4)}')
    a(f'v_mfma_f32_16x16x16_bf16 {vr(OY,4)}, v[56:57], {vr(PMY,2)}, {vr(OY,4)}')
    stamp(14)
    lds_frag_read(a, lg, ('o', 1, 1), 1, B0, ('w', 3))
    fill(f2, 99)
    zero(a, range(SX0, SX0 + 4))
    a(f'v_rcp_f32 v{LS}, v{LS}')
    zero(a, range(VX0, VX0 + 8))
    for o in (OX, OY):
        a(f'v_pk_mul_f32 {vr(o,2)}, {vr(o,2)}, {vr(LS,2)} op_sel_hi:[1,0]')
        a(f'v_pk_mul_f32 {vr(o+2,2)}, {vr(o+2,2)}, {vr(LS,2)} op_sel_hi:[1,0]')
        a(f'v_cvt_pk_bf16_f32 v{o}, v{o}, v{o+1}\nv_cvt_pk_bf16_f32 v{o+1}, v{o+2}, v{o+3}')
        if o == OX:
            a(f's_mov_b64 exec, s[{S_MK_KEY}:{S_MK_KEY+1}]')
            a(f'ds_write_b64 v{OW}, {vr(OX,2)} offset:{L_OX}'); lg.issue('ow')
    a(f'ds_write_b64 v{OW2}, {vr(OY,2)} offset:{L_OX}'); lg.issue('ow')
    a('s_mov_b64 exec, -1')
    stamp(15)
    WACC = 12
    zero(a, [12, 14] + list(range(16, 28)))
    lg.wait('ow')
    a('s_barrier')
    stamp(5)
    OA0 = 4; OA1 = 8
    a(f'ds_read_b128 {vr(OA0,4)}, v{ORD} offset:{L_OX}'); lg.issue('oa0')
    a(f'ds_read_b128 {vr(OA1,4)}, v{ORD2} offset:{L_OX}'); lg.issue('oa1')
    lds_frag_read(a, lg, ('o', 3, 1), 0, B1, ('w', 6))
    zero(a, [ORD, ORD2])
    def wacc(t): return WACC + 4 * t
    def post_tile(t):
        d = wacc(t); q = wacc(t - t % 3) + t % 3
        return [f'v_pk_add_f32 {vr(d,2)}, {vr(d,2)}, {vr(d+2,2)}', f'v_cvt_pk_bf16_f32 v{q}, v{d}, v{d+1}']
    def post_group(j):
        ops = post_tile(3*j) + [f'v_mov_b32 v{wacc(3*j)+3}, s{S_TAG}'] + post_tile(3*j+1) + post_tile(3*j+2)
        return ops + [('v', f'buffer_store_dwordx4 {vr(wacc(3*j),4)}, v{V_L16}, {SRD}, s{S_PST} offen offset:{j*1024} {stf}'.rstrip())]
    def wf(t, c):
        if t == 8: return frag_reg(('o8',), c)
        return frag_reg(('o', t // 2, c), t % 2)
    lbuf = {0: B2, 1: B3, 2: B4, 3: B0, 4: B2, 5: B3, 6: B1, 7: B0}
    reload_ = {0: 4, 1: 5, 3: 7}; wside = []
    seq = [(0,0),(1,0),(2,0),(0,1),(1,1),(2,1), (3,0),(4,0),(5,0),(3,1),(4,1),(5,1), (6,0),(7,0),(8,0),(8,1),(6,1),(7,1)]
    fillers = {k: [] for k in range(40)}
    PL = cfg.get('PL', 3)
    for j_, start in ((0, cfg.get('PS', 8)), (1, cfg.get('PS', 8) + 6)):
        k = start; cnt = 0
        for op in post_group(j_):
            fillers[k].append(op); cnt += 1
            if cnt % PL == 0: k += 1
    for k_, r_ in enumerate(range(40, 48, 2)): fillers[6 + k_ // 2].append(f'v_mov_b64 v[{r_}:{r_+1}], 0')
    lg.wait('oa0')
    stamp(8)
    for n_, (t, c) in enumerate(seq):
        if n_ == 3: lg.wait('oa1')
        if c == 1 and t != 8:
            lg.wait(('w', t)); b = vr(lbuf[t], 8)
        else: b = wf(t, c)
        smf(wacc(t), OA0 if c == 0 else OA1, b)
        if c == 1 and t in reload_:
            for h_ in range(2): wside.append(lambda t=t, h_=h_: lds_half_read(a, lg, ('o', reload_[t]//2, 1), reload_[t] % 2, lbuf[t], ('w', reload_[t]), h_))
        if wside: wside.pop(0)()
        for f in fillers[n_]:
            if isinstance(f, tuple): a(f[1]); vm.issue('pst')
            else: a(f)
    stamp(9)
    for k in range(18, 40):
        for f in fillers[k]:
            if isinstance(f, tuple): a(f[1]); vm.issue('pst')
            else: a(f)
    g2 = post_tile(8) + post_tile(6) + [f'v_mov_b32 v{wacc(6)+3}, s{S_TAG}'] + post_tile(7)
    a(g2[0]); a(g2[2]); a(g2[1]); a(g2[3]); a(g2[4]); a(g2[5]); a(g2[6])
    a(post_group(2)[-1][1]); vm.issue('pst')
    stamp(6)
    if not cfg.get('static'):
        a(f's_add_u32 s{S_VF}, s{S_VF}, {32*8192}\ns_add_u32 s{S_PF}, s{S_PF}, {32*8192}')
    a(f's_add_u32 s{S_KM}, s{S_KM}, {32*4096}\ns_xor_b32 s{S_PST}, s{S_PST}, s{S_PO}')
    a(f's_add_u32 s{S_STEP}, s{S_STEP}, 1')
    a(f's_and_b32 s{S_T0}, s{S_STEP}, 3\ns_lshl_b32 s{S_TAG}, s{S_T0}, 7\ns_add_u32 s{S_TAG}, s{S_TAG}, 0x3f80')
    c0 = sorted(QK_LDS)[0]
    SEL = 36; RACC = 72; RL = 76; RO = 77; RT = 78; RT2 = 79; NEG = 4
    a(f's_bitcmp0_b32 s{S_RED}, 0\ns_cbranch_scc1 NORED{sfx}')
    PP = 12288
    a(f'v_lshrrev_b32 v{RT}, 8, v{V_L16}\nv_mul_u32_u24 v{RL}, {PP}, v{RT}\nv_and_or_b32 v{RL}, v{V_L16}, s{S_F0}, v{RL}')
    a(f's_add_u32 s{S_T2}, s{S_PC}, s{S_RLD}')
    a(f's_mov_b32 s{S_CNT}, 0')
    delay(D1)
    if cfg.get('D1W1'):
        a(f's_cmp_eq_u32 s{S_WV}, 0\ns_cbranch_scc1 NOD1W{sfx}')
        delay(cfg['D1W1'])
        a.label(f'NOD1W{sfx}')
    stamp(10)
    def pl():
        for it in range(8):
            a(f'buffer_load_dwordx4 {vr(4+4*it,4)}, v{RL}, {SRD}, s{S_T2} offen sc1'); vm.issue(('r', it))
            a(f's_add_u32 s{S_T2}, s{S_T2}, {4*PP if it < 7 else -7*4*PP & 0xffffffff}')
    vm.reset(); pl()
    a(f'v_bfe_u32 v{RT2}, v{V_L16}, 4, {4 if NCOPY == 1 else 3}')
    a(f'v_and_b32 v{RO}, 1, v{RT2}\nv_lshlrev_b32 v{RO}, 4, v{RO}')
    a(f'v_mov_b32 v{RACC}, 0x3f80\nv_lshlrev_b32 v{RO}, v{RO}, v{RACC}')
    a(f'v_lshrrev_b32 v{RACC}, 1, v{RT2}')
    for r in range(4):
        a(f'v_cmp_eq_u32 vcc, {r}, v{RACC}')
        zero(a, range(40 + 4*r, 44 + 4*r))
        a(f'v_cndmask_b32 v{SEL+r}, 0, v{RO}, vcc')
    a(f'v_and_b32 v{RO}, 1, v{RT2}\nv_lshlrev_b32 v{RO}, 5, v{RO}\nv_lshl_add_u32 v{RO}, v{RACC}, 10, v{RO}')
    a(f'v_lshl_add_u32 v{RO}, v{RT}, 3, v{RO}')
    a(f'v_add_u32 v{RO}, s{S_RB}, v{RO}')
    if NCOPY > 1: a(f'v_bfe_u32 v{RACC}, v{V_L16}, 7, 1\nv_lshl_add_u32 v{RO}, v{RACC}, 16, v{RO}')
    zero(a, range(56, 64))
    emit_vma(a, V_X, RT2)
    lg.reset()
    lds_frag_read(a, lg, (QK_LDS[c0], c0), 0, T0, 'T')
    a.label(f'RWAIT{sfx}')
    for it in range(8):
        vm.wait(('r', it))
        if it == 0: stamp(11)
        mf(RACC, 4 + 4*it, SEL, it == 0)
        if it == 0: a(f'v_xor_b32 v{RT}, s{S_TAGS}, v7')
        else: a(f'v_xor_b32 v{RT2}, s{S_TAGS}, v{7 + 4*it}\nv_or_b32 v{RT}, v{RT}, v{RT2}')
    a(f'v_cmp_ne_u32 vcc, 0, v{RT}')
    a(f's_and_b64 vcc, vcc, {"0" if cfg.get("free") else "-1"}')
    a(f's_cselect_b64 s[{S_CK}:{S_CK+1}], 0, s[{S_MK_J8}:{S_MK_J8+1}]')
    a(f'v_cvt_pk_bf16_f32 v{RACC}, v{RACC}, v{RACC+1}\nv_cvt_pk_bf16_f32 v{RACC+1}, v{RACC+2}, v{RACC+3}')
    a(f's_mov_b64 exec, s[{S_CK}:{S_CK+1}]')
    a(f'buffer_store_dwordx2 {vr(RACC,2)}, v{RO}, {SRD}, s{S_MN} offen {stf}'.rstrip())
    a(f's_cbranch_scc1 RCHK{sfx}')
    a(f's_branch RG2{sfx}')
    a.label(f'RGO{sfx}')
    a(f'buffer_store_dwordx2 {vr(RACC,2)}, v{RO}, {SRD}, s{S_MN} offen {stf}'.rstrip())
    a.label(f'RG2{sfx}')
    if NCOPY == 1:
        pass
    else:
        for c in range(NCOPY // 2):
            a(f'buffer_store_dwordx2 {vr(RACC,2)}, v{RO}, {SRD}, s{S_T0} offen {stf}'.rstrip())
            if c < NCOPY // 2 - 1: a(f's_add_u32 s{S_T0}, s{S_T0}, {2*M_CSTR}')
    stamp(7)
    if dbg: a(f's_mov_b32 s53, s{S_CNT}')
    a(f'v_mov_b64 v[{NEG}:{NEG+1}], -1')
    if NCOPY == 1:
        a(f'buffer_store_dwordx2 {vr(NEG,2)}, v{RO}, {SRD}, s{S_MC} offen {stf}'.rstrip())
    else:
        a(f's_sub_u32 s{S_T0}, s{S_MC}, s{S_DUP}')
        for c in range(NCOPY // 2):
            a(f'buffer_store_dwordx2 {vr(NEG,2)}, v{RO}, {SRD}, s{S_T0} offen {stf}'.rstrip())
            if c < NCOPY // 2 - 1: a(f's_add_u32 s{S_T0}, s{S_T0}, {2*M_CSTR}')
    a('s_mov_b64 exec, -1')
    lds_frag_read(a, lg, (QK_LDS[c0], c0), 1, T1, 'T')
    delay(D2R)
    a(f's_branch NEXT{sfx}')
    a.label(f'NORED{sfx}')
    a(f's_cmp_lt_u32 s{S_WV}, 2\ns_cbranch_scc1 NODMA{sfx}')
    a(f's_mov_b32 m0, s{S_KXL}')
    for q in range(4): a(f'buffer_load_dwordx4 v{V_L16}, {SRD}, s{S_KF} offen offset:{q*1024} sc1 lds')
    a.label(f'NODMA{sfx}')
    zero(a, range(40, 64))
    lds_frag_read(a, lg, (QK_LDS[c0], c0), 0, T0, 'T'); lds_frag_read(a, lg, (QK_LDS[c0], c0), 1, T1, 'T')
    emit_vma(a, V_X, 4)
    delay(D2)
    a.label(f'NEXT{sfx}')
    if cfg.get('cprof'):
        a(f's_cmp_lg_u32 s{S_WV}, 3\ns_cbranch_scc1 NCP{sfx}')
        a('s_memrealtime s[60:61]\ns_memtime s[62:63]\ns_waitcnt lgkmcnt(0)')
        a(f's_lshl_b32 s{S_T0}, s{S_H}, 9\ns_lshl_b32 s{S_T1}, s{S_STEP}, 3\ns_add_u32 s{S_T0}, s{S_T0}, s{S_T1}\ns_add_u32 s{S_T0}, s{S_T0}, {WS_DBG + 0xA0000}')
        a('v_mov_b32 v4, s60\nv_mov_b32 v5, s62\nv_mov_b32 v6, 0\ns_mov_b64 exec, 1')
        a(f'buffer_store_dwordx2 v[4:5], v6, {SRD}, s{S_T0} offen\ns_mov_b64 exec, -1')
        a.label(f'NCP{sfx}')
    if dbg:
        a('s_waitcnt lgkmcnt(0)')
        a(f's_sub_u32 s{S_T0}, s{S_STEP}, 1\ns_lshl_b32 s{S_T0}, s{S_T0}, 7\ns_lshl_b32 s{S_T1}, s{S_H}, 2\ns_add_u32 s{S_T0}, s{S_T0}, s{S_T1}\ns_add_u32 s{S_T0}, s{S_T0}, s{S_WV}\ns_lshl_b32 s{S_T0}, s{S_T0}, 6\ns_add_u32 s{S_T0}, s{S_T0}, {WS_DBG}')
        for k in range(8): a(f'v_writelane_b32 v4, s{60+2*k}, {k}')
        a('v_writelane_b32 v4, s52, 8\nv_writelane_b32 v4, s53, 9\nv_writelane_b32 v4, s25, 10')
        a(f'v_lshrrev_b32 v5, 2, v{V_L16}')
        a('s_mov_b64 exec, 0x7ff')
        a(f'buffer_store_dword v4, v5, {SRD}, s{S_T0} offen')
        a('s_mov_b64 exec, -1')
    a(f's_xor_b32 s{S_PC}, s{S_PC}, s{S_PO}\ns_mov_b32 s{S_TAGS}, s{S_TAG}')
    if not cfg.get('static'): a(f's_add_u32 s{S_KF}, s{S_KF}, {32*8192}')
    a(f's_mov_b32 s{S_T0}, s{S_MC}\ns_mov_b32 s{S_MC}, s{S_MN}\ns_mov_b32 s{S_MN}, s{S_MP}\ns_mov_b32 s{S_MP}, s{S_T0}')
    if cfg.get('_kvwait'):
        a(f's_cmp_lg_u32 s{S_STEP}, 12\ns_cbranch_scc1 NKW{sfx}')
        cfg['_kvwait'](a)
        a.label(f'NKW{sfx}')
    a(f's_cmp_lt_u32 s{S_STEP}, 63\ns_cbranch_scc1 STEP{sfx}')
    FA = lambda i: 4 + 4 * i
    a(f's_add_u32 s{S_MC1}, s{S_MC}, 4096\ns_add_u32 s{S_MC2}, s{S_MC}, 8192')
    a(f's_mov_b32 s{S_CNT}, 0')
    a.label(f'FPOLL{sfx}')
    a(f'v_subrev_u32 v41, s{S_ROTB}, v{V_X}')
    for i in range(9): a(f'buffer_load_dwordx4 {vr(FA(i),4)}, v{V_X if i < 3 else 41}, {SRD}, s{msr(i)} offen offset:{aoff(i)} sc1')
    timeout(a)
    a('s_waitcnt vmcnt(0)')
    a(f'v_max_u32 v40, v{FA(0)+1}, v{FA(0)+3}')
    for i in range(1, 9): a(f'v_max3_u32 v40, v40, v{FA(i)+1}, v{FA(i)+3}')
    a('v_cmp_eq_u32 vcc, -1, v40')
    a(f's_cmp_lg_u32 s{S_ABORT}, 0\ns_cbranch_scc1 FGO{sfx}')
    a(f's_cbranch_vccnz FPOLL{sfx}')
    a.label(f'FGO{sfx}')
    klds = [i for i in lds_chunks if QK_LDS[i] == 'k']
    assert len(klds) == 2
    lds_frag_read(a, lg, ('k', klds[0]), 0, T0, 'T'); lds_frag_read(a, lg, ('k', klds[0]), 1, T1, 'T')
    lds_frag_read(a, lg, ('k', klds[1]), 0, 40, 'T')
    for i in range(9):
        if i in klds: continue
        for z in range(2): smf(ACC[f'k{z}'], FA(i), frag_reg(('k', i), z))
    a('s_waitcnt lgkmcnt(0)')
    smf(ACC['k0'], FA(klds[0]), vr(T0, 8)); smf(ACC['k1'], FA(klds[0]), vr(T1, 8)); smf(ACC['k0'], FA(klds[1]), vr(40, 8))
    lds_frag_read(a, lg, ('k', klds[1]), 1, T0, 'T')
    for i in range(9):
        for z in range(2): smf(ACC[f'v{z}'], FA(i), frag_reg(('v', i), z))
    a('s_waitcnt lgkmcnt(0)')
    smf(ACC['k1'], FA(klds[1]), vr(T0, 8))
    a(f'v_lshrrev_b32 v{V_X}, 1, v{V_L16}')
    for nm, d in (('v0', 42), ('v1', 43), ('k0', 40), ('k1', 41)):
        r = ACC[nm]
        a(f'v_pk_add_f32 {vr(r,2)}, {vr(r,2)}, {vr(r+2,2)}')
        a(f'v_cvt_pk_bf16_f32 v{d}, v{r}, v{r+1}')
        if nm == 'v1': a(f'buffer_store_dwordx2 v[42:43], v{V_X}, {SRD}, s{S_KM} offen offset:512 sc1')
    a(f'buffer_store_dwordx2 v[40:41], v{V_X}, {SRD}, s{S_KM} offen sc1')
    a('s_branch CHAIN_DONE')
    a.label(f'REDO{sfx}')
    if dbg: a('s_add_u32 s25, s25, 0x10000')
    a('s_waitcnt vmcnt(0) lgkmcnt(0)')
    a('s_nop 15')
    zero(a, range(40, 64))
    emit_vma(a, V_X, T0)
    a(f'v_subrev_u32 v{T0+1}, s{S_ROTB}, v{V_X}')
    done_v = [(i, z) for i in range(NFULL) for z in range(2)] + [(4, 0), (4, 1)]
    for c in range(9):
        l = f'RD{c}{sfx}'
        dst = AR(c) if c >= 5 else R(3)
        a.label(l)
        a(f'buffer_load_dwordx4 {vr(dst,4)}, v{V_X if c < 3 else T0+1}, {SRD}, s{msr(c)} offen offset:{aoff(c)} sc1')
        timeout(a)
        a(f's_cmp_lg_u32 s{S_ABORT}, 0\ns_cselect_b64 s[{S_T3}:{S_T4}], 0, -1')
        a('s_waitcnt vmcnt(0)')
        a(f'v_max_u32 v{T0+2}, v{dst+1}, v{dst+3}\nv_cmp_eq_u32 vcc, -1, v{T0+2}\ns_and_b64 vcc, vcc, s[{S_T3}:{S_T4}]')
        a(f's_cbranch_vccnz {l}')
        for m in 'qkv':
            for z in range(2):
                if m == 'v' and (c, z) not in done_v: continue
                if LOC[((m, c), z)][0] == 'lds':
                    lds_frag_read(a, lg, (m, c), z, T1, 'T'); a('s_waitcnt lgkmcnt(0)')
                    smf(ACC[f'{m}{z}'], dst, vr(T1, 8))
                else: smf(ACC[f'{m}{z}'], dst, frag_reg((m, c), z))
    a('s_nop 15')
    for ks in range(2):
        for t in range(2): a(f'ds_read_b128 {vr(KX[(t, ks)],4)}, v{V_L16} offset:{L_KX + t*4096 + ks*1024}')
    a(f'v_pk_add_f32 {vr(K0,2)}, {vr(K0,2)}, {vr(K0+2,2)}')
    a(f'v_pk_add_f32 {vr(K1,2)}, {vr(K1,2)}, {vr(K1+2,2)}')
    a(f'v_cvt_pk_bf16_f32 v{K0}, v{K0}, v{K0+1}')
    a(f'v_cvt_pk_bf16_f32 v{K0+2}, v{K1}, v{K1+1}')
    a(f'v_pk_add_f32 {vr(Q0,2)}, {vr(Q0,2)}, {vr(Q0+2,2)}')
    a(f'v_pk_add_f32 {vr(Q1,2)}, {vr(Q1,2)}, {vr(Q1+2,2)}')
    a(f'v_pk_mul_f32 {vr(Q0,2)}, {vr(Q0,2)}, s[{S_SC}:{S_SC+1}]')
    a(f'v_pk_mul_f32 {vr(Q1,2)}, {vr(Q1,2)}, s[{S_SC}:{S_SC+1}]')
    a(f'v_cvt_pk_bf16_f32 v{K0+1}, v{Q0}, v{Q0+1}')
    a(f'v_cvt_pk_bf16_f32 v{K0+3}, v{Q1}, v{Q1+1}')
    a(f'ds_write2st64_b64 v{XB}, {vr(K0,2)}, {vr(K0+2,2)} offset0:{L_KXX//512} offset1:{L_KXX//512+1}')
    a('s_waitcnt lgkmcnt(0)')
    a(f's_branch REDOX{sfx}')
    a.label(f'RCHK{sfx}')
    a('s_mov_b64 exec, -1')
    a.label(f'RCH2{sfx}')
    pl()
    timeout(a)
    a(f's_cmp_eq_u32 s{S_ABORT}, 0\ns_cbranch_scc1 RWAIT{sfx}')
    a('s_waitcnt vmcnt(0)')
    a(f's_mov_b64 exec, s[{S_MK_J8}:{S_MK_J8+1}]')
    a(f's_branch RGO{sfx}')

def next_prep(a, lg):
    for r in range(40, 64): a(f'v_mov_b32 v{r}, 0')
    c0 = sorted(QK_LDS)[0]
    lds_frag_read(a, lg, (QK_LDS[c0], c0), 0, T0, 'T'); lds_frag_read(a, lg, (QK_LDS[c0], c0), 1, T1, 'T')
    emit_vma(a, V_X, 4)

def chain_init(a, P, cfg):
    SRD = f's[{S_WS}:{S_WS+3}]'
    a(f's_mov_b32 s{S_STEP}, 0\ns_mov_b32 s{S_ABORT}, {1 if cfg.get("free") else 0}')
    a(f's_mov_b32 s{S_PC}, {WS_P}\ns_mov_b32 s{S_PO}, {WS_P ^ (WS_P + 0x80000)}')
    a(f's_mul_i32 s{S_T0}, s{S_H}, 12288\ns_add_u32 s{S_PST}, s{S_PC}, s{S_T0}\ns_mul_i32 s{S_T0}, s{S_WV}, 3072\ns_add_u32 s{S_PST}, s{S_PST}, s{S_T0}')
    a(f's_mov_b32 s{S_TAG}, 0x3f80\ns_mov_b32 s{S_TAGS}, 0x3f80\ns_lshl_b32 s{S_ROTB}, s{S_ROT}, 7')
    a(f's_mov_b32 s{S_MK_N6}, 0x00400040\ns_mov_b32 s{S_MK_N6+1}, 0x00400040')
    if cfg.get('free'): a(f's_mov_b64 s[{S_MK_N6}:{S_MK_N6+1}], 0')
    a(f's_mov_b32 s{S_MC}, {WS_M}\ns_mov_b32 s{S_MN}, {WS_M + M_STRIDE}\ns_mov_b32 s{S_MP}, {WS_M + 2*M_STRIDE}')
    a(f's_lshl_b32 s{S_T0}, s{S_H}, 13\ns_lshl_b32 s{S_T1}, s{S_WV}, 11\ns_add_u32 s{S_T1}, s{S_T0}, s{S_T1}')
    a(f's_add_u32 s{S_VF}, s{S_T1}, {WS_VF}')
    a(f's_and_b32 s{S_W2K}, s{S_WV}, 1\ns_lshl_b32 s{S_W2K}, s{S_W2K}, 12\ns_mov_b32 s{S_KXL}, s{S_W2K}')
    a(f's_add_u32 s{S_KF}, s{S_T0}, s{S_W2K}\ns_add_u32 s{S_KF}, s{S_KF}, {WS_KF + 32*8192}')
    a(f's_add_u32 s{S_PF}, s{S_T0}, {WS_VF + 32*8192}\ns_add_u32 s{S_T1}, s{S_T0}, {WS_KF + 2*32*8192}')
    a(f's_cmp_ge_u32 s{S_WV}, 2\ns_cselect_b32 s{S_PF}, s{S_T1}, s{S_PF}\ns_add_u32 s{S_PF}, s{S_PF}, s{S_W2K}\ns_lshl_b32 s{S_W2K}, s{S_WV}, 11')
    a(f's_mul_i32 s{S_W1536}, s{S_WV}, 1536\ns_mov_b32 s{S_ONE}, 0x3f803f80\ns_mov_b32 s{S_ONE+1}, 0x3f803f80')
    a(f's_lshl_b32 s{S_W1K}, s{S_WV}, 10\ns_lshl_b32 s{S_W64}, s{S_WV}, 6\ns_mov_b32 s{S_F0}, 0xf0')
    a(f's_lshl_b32 s{S_T0}, s{S_H}, 12\ns_lshl_b32 s{S_T1}, s{S_WV}, 10\ns_add_u32 s{S_T0}, s{S_T0}, s{S_T1}')
    a(f's_add_u32 s{S_KM}, s{S_T0}, {WS_KM}')
    a(f's_mov_b32 s{S_MK_KEY}, 0xcccccccc\ns_mov_b32 s{S_MK_KEY+1}, 0xcccccccc')
    a(f's_mov_b32 s{S_MK_J8}, 0x003f003f\ns_mov_b32 s{S_MK_J8+1}, 0x003f003f')
    import struct
    c = math.log2(math.e) / math.sqrt(128.0)
    a(f's_mov_b32 s{S_SC}, 0x{struct.unpack("<I", struct.pack("<f", c))[0]:08x}\ns_mov_b32 s{S_SC+1}, s{S_SC}')
    a(f's_mov_b32 s{S_RED}, 0')
    a(f's_lshr_b32 s{S_T0}, s{S_H}, 4\ns_and_b32 s{S_T1}, s{S_H}, 15')
    a(f's_cmp_eq_u32 s{S_WV}, 0\ns_cselect_b32 s{S_RED}, 1, 0')
    l = a.newlabel('RT')
    a(f's_cmp_lg_u32 s{S_WV}, 1\ns_cbranch_scc1 {l}\ns_cmp_ge_u32 s{S_H}, 16\ns_cbranch_scc1 {l}')
    a(f's_mov_b32 s{S_RED}, 1\ns_mov_b32 s{S_T0}, 2')
    a.label(l)
    a(f's_lshr_b32 s{S_T3}, s{S_T1}, 2\ns_and_b32 s{S_T4}, s{S_T1}, 3')
    a(f's_mul_i32 s{S_RLD}, s{S_T3}, 3072\ns_lshl_b32 s{S_T2}, s{S_T0}, 10\ns_add_u32 s{S_RLD}, s{S_RLD}, s{S_T2}\ns_lshl_b32 s{S_T2}, s{S_T4}, 8\ns_add_u32 s{S_RLD}, s{S_RLD}, s{S_T2}')
    a(f's_sub_u32 s{S_T0}, 2, s{S_T0}\ns_mul_i32 s{S_RB}, s{S_T0}, 3072\ns_lshl_b32 s{S_T2}, s{S_T4}, 8\ns_add_u32 s{S_RB}, s{S_RB}, s{S_T2}\ns_lshl_b32 s{S_T2}, s{S_T3}, 6\ns_add_u32 s{S_RB}, s{S_RB}, s{S_T2}\ns_mov_b32 s{S_DUP}, 0')
    if NCOPY > 1:
        a(f's_and_b32 s{S_DUP}, s{S_H}, {NCOPY-1}\ns_lshl_b32 s{S_DUP}, s{S_DUP}, 16')
        for r in (S_MC, S_MN, S_MP): a(f's_add_u32 s{r}, s{r}, s{S_DUP}')
        a(f's_mov_b32 s{S_MK_J8}, 0x3f3f3f3f\ns_mov_b32 s{S_MK_J8+1}, 0x3f3f3f3f')

def mem0_copy(a, P, copy=None):
    a(f's_mov_b32 s8, s{P["mem0"]}\ns_mov_b32 s9, s{P["mem0"]+1}\ns_mov_b32 s10, 9216\ns_mov_b32 s11, 0x20000')
    a(f's_lshl_b32 s34, s{S_H}, 16\ns_add_u32 s34, s34, {WS_M}' if copy is None else f's_mov_b32 s34, {WS_M}')
    for k in range(3):
        a(f'v_add_u32 v12, {k*256}, v0')
        a('v_mul_u32_u24 v13, 911, v12\nv_lshrrev_b32 v13, 16, v13')
        a('v_mul_u32_u24 v14, 72, v13\nv_sub_u32 v14, v12, v14')
        a('v_lshrrev_b32 v15, 1, v14')
        a('v_mul_u32_u24 v16, 57, v15\nv_lshrrev_b32 v16, 9, v16')
        a('v_mul_u32_u24 v17, 9, v16\nv_sub_u32 v17, v15, v17')
        a('v_mul_u32_u24 v18, 43, v17\nv_lshrrev_b32 v18, 7, v18')
        a('v_mul_u32_u24 v19, 3, v18\nv_sub_u32 v19, v17, v19')
        a('v_sub_u32 v18, 2, v18')
        a('v_lshrrev_b32 v20, 1, v13\nv_lshlrev_b32 v20, 8, v20\nv_lshl_add_u32 v20, v16, 6, v20')
        a('v_mul_u32_u24 v21, 3072, v18\nv_add_u32 v20, v20, v21\nv_lshl_add_u32 v20, v19, 10, v20')
        a('v_and_b32 v21, 1, v13\nv_lshl_add_u32 v20, v21, 5, v20\nv_and_b32 v21, 1, v14\nv_lshl_add_u32 v20, v21, 4, v20')
        a('v_lshlrev_b32 v21, 4, v12')
        a('v_cmp_gt_u32 vcc, 576, v12\ns_and_saveexec_b64 s[36:37], vcc')
        a('buffer_load_dwordx4 v[8:11], v21, s[8:11], 0 offen\ns_waitcnt vmcnt(0)')
        a('buffer_store_dwordx4 v[8:11], v20, s[4:7], s34 offen sc1')
        a('s_mov_b64 exec, s[36:37]')

L_TBL = L_QX + 1024
def build_table(a):
    L16 = V_L16
    a(f"""v_and_b32 v8, 0xf0, v{L16}
v_bfe_u32 v4, v{L16}, 8, 2
v_lshl_add_u32 v4, v4, 2, v8
v_lshlrev_b32 v4, 1, v4
v_lshrrev_b32 v8, 8, v{L16}
v_bfe_u32 v9, v{L16}, 6, 2
v_lshl_add_u32 v8, v8, 3, v9
v_bfe_u32 v5, v{L16}, 4, 2
v_lshlrev_b32 v5, 3, v5
v_lshl_add_u32 v5, v8, 5, v5
v_bfe_u32 v8, v{L16}, 6, 2
v_bfe_u32 v7, v{L16}, 4, 1
v_lshl_add_u32 v7, v8, 1, v7
v_lshlrev_b32 v9, 1, v7
v_lshrrev_b32 v8, 9, v{L16}
v_xor_b32 v6, v8, v9
v_lshlrev_b32 v6, 4, v6
v_lshl_add_u32 v6, v7, 8, v6
v_bfe_u32 v8, v{L16}, 8, 1
v_lshl_add_u32 v6, v8, 3, v6
v_lshrrev_b32 v8, 8, v{L16}
v_bfe_u32 v10, v{L16}, 5, 1
v_lshl_add_u32 v8, v8, 1, v10
v_xor_b32 v8, v8, v9
v_lshlrev_b32 v8, 4, v8
v_lshl_add_u32 v7, v7, 8, v8
ds_write_b128 v{L16}, v[4:7] offset:{L_TBL}
s_waitcnt lgkmcnt(0)""")
```
